```python
import torch

def _softmax(x, axis=-1):
    return torch.softmax(x, dim=axis)
def _gelu(x):
    return torch.nn.functional.gelu(x, approximate="tanh")
def _silu(x):
    return torch.nn.functional.silu(x)
def _sigmoid(x):
    return torch.sigmoid(x)
def _layernorm(x, axis=-1, eps=1e-5):
    m = x.mean(dim=axis, keepdim=True)
    v = x.var(dim=axis, keepdim=True, unbiased=False)
    return (x - m) / torch.sqrt(v + eps)
def _scatter_add(tgt, idx, src, axis=0):
    return tgt.clone().index_add_(axis, idx, src)
def _segment_sum(src, seg, n):
    out = torch.zeros((n,) + src.shape[1:], dtype=src.dtype)
    return out.index_add_(0, seg, src)
def _pad(x, pw):
    flat = tuple(v for pair in reversed(pw) for v in pair)
    return torch.nn.functional.pad(x, flat)

kernel_name = 'recurrent_scan__mha_block_cached__geglu_ffn__decode'

def setup_inputs():

    _w = (lambda a: (lambda t: t.to(torch.bfloat16) if t.is_floating_point() else t)(torch.as_tensor(a)))
    def _A_setup():
        B, Sq, D = 8, 1, 512
        H, Sk, Dh = 32, 4096, 128
        return {
            "x": _w((lambda *s: torch.randn(*s, dtype=torch.bfloat16) * 0.05)(B, Sq, D)),
            "k_cache": _w((lambda *s: torch.randn(*s, dtype=torch.bfloat16) * 1.6)(B, H, Sk, Dh)),
            "v_cache": _w((lambda *s: torch.randn(*s, dtype=torch.bfloat16) * 0.2)(B, H, Sk, Dh)),
            "wq": _w((lambda *s: torch.randn(*s, dtype=torch.bfloat16) * 1.6)(D, H * Dh) * (D ** -0.5)),
            "wo": _w((lambda *s: torch.randn(*s, dtype=torch.bfloat16) * 0.2)(H * Dh, D) * ((H * Dh) ** -0.5)),
        }
    _A_in = _A_setup()

    def _B_setup():
        B, S, D, F = 8, 1, 512, 1792
        return {
            "x": _w((lambda *s: torch.randn(*s, dtype=torch.bfloat16) * 0.05)(B, S, D)),
            "w_gate": _w((lambda *s: torch.randn(*s, dtype=torch.bfloat16) * 0.1)(D, F)),
            "w_up": _w((lambda *s: torch.randn(*s, dtype=torch.bfloat16) * 0.1)(D, F)),
            "w_down": _w((lambda *s: torch.randn(*s, dtype=torch.bfloat16) * 0.1)(F, D)),
        }
    _B_in = _B_setup()

    return {
        "A_x": _A_in["x"],
        "A_k_cache": _A_in["k_cache"],
        "A_v_cache": _A_in["v_cache"],
        "A_wq": _A_in["wq"],
        "A_wo": _A_in["wo"],
        "B_x": _B_in["x"],
        "B_w_gate": _B_in["w_gate"],
        "B_w_up": _B_in["w_up"],
        "B_w_down": _B_in["w_down"],
    }

def reference(A_x, A_k_cache, A_v_cache, A_wq, A_wo, B_x, B_w_gate, B_w_up, B_w_down):
    def _A_ref(x, k_cache, v_cache, wq, wo):
        B, Sq, D = x.shape
        H, Dh = 32, 128
        q = (lambda x, *d: x.permute(*d))((x @ wq).reshape(B, Sq, H, Dh), 0, 2, 1, 3)
        scores = torch.einsum("bhqd,bhkd->bhqk", q, k_cache) * (Dh ** -0.5)
        p = _softmax(scores, axis=-1)
        o = torch.einsum("bhqk,bhkd->bhqd", p, v_cache)
        return (lambda x, *d: x.permute(*d))(o, 0, 2, 1, 3).reshape(B, Sq, H * Dh) @ wo

    def _B_ref(x, w_gate, w_up, w_down):
        return (_gelu(x @ w_gate) * (x @ w_up)) @ w_down

    x = A_x
    xn = _layernorm(x, axis=-1)
    s = _A_ref(xn, A_k_cache, A_v_cache, A_wq, A_wo)
    g = _silu(_B_ref(xn, B_w_gate, B_w_up, B_w_down))
    return x + s * g
```

```python
import sys
KN = "recurrent_scan__mha_block_cached__geglu_ffn__decode_kernel"

HEADER = open("recurrent_scan__mha_block_cached__geglu_ffn__decode.s.ref").read().split("; Override launch")[0]

XN, QP, SP, ML, OB, HB = 0, 4096, 6144, 8192, 8448, 9472
LDS_BYTES = 10240
YOFF = 0x80000
STOFF = 0x30000000
LOG2E = 0x3fb8aa3b
SCALE = 0x3db504f3

def gen(NBUF=6, WQWIN=16, FWIN=8, WOWIN=4, wpol="", diag=0, hprio=2, kvpol="nt"):
    L = []
    def a(s): L.append("  " + s)
    def lab(s): L.append(s + ":")
    def nop(n): a(f"s_nop {n-1}")
    def stamp(i):
        if diag:
            a(f"s_memrealtime s[{60+2*i}:{61+2*i}]")
    L.append(HEADER.rstrip("\n"))
    L.append(f"; @launch grid=(256,1,1) block=(512,1,1) lds={LDS_BYTES}")
    L.append('.amdgcn_target "amdgcn-amd-amdhsa--gfx950"')
    L.append(".text"); L.append(f".globl {KN}"); L.append(".p2align 8"); L.append(f".type {KN},@function"); lab(KN)
    a("s_cmp_ge_u32 s2, 256")
    a("s_cbranch_scc1 L_done")
    a("s_load_dwordx8 s[4:11], s[0:1], 0")
    stamp(0)
    a("v_lshrrev_b32 v1, 6, v0")
    a("v_and_b32 v2, 63, v0")
    a("v_readfirstlane_b32 s3, v1")
    a("s_and_b32 s36, s2, 7")
    a("s_lshl_b32 s36, s36, 2")
    a("s_bfe_u32 s37, s2, 0x20003")
    a("s_add_u32 s36, s36, s37")
    a("s_lshr_b32 s37, s2, 5")
    a("s_cmp_ge_u32 s3, 4")
    a("s_cbranch_scc1 L_helper")

    a("s_lshl_b32 s38, s37, 5")
    a("s_add_u32 s38, s38, s36")
    a("s_lshl_b32 s38, s38, 20")
    a("s_lshl_b32 s39, s3, 12")
    a("v_lshlrev_b32 v1, 4, v2")
    a("v_add_u32 v1, s39, v1")
    a("s_mov_b32 s30, 0x100000")
    a("s_mov_b32 s31, 0x20000")
    a("s_mov_b32 s34, 0x100000")
    a("s_mov_b32 s35, 0x20000")
    a("s_mov_b32 s40, 0")
    a("s_waitcnt lgkmcnt(0)")
    a("s_add_u32 s28, s6, s38")
    a("s_addc_u32 s29, s7, 0")
    a("s_add_u32 s32, s8, s38")
    a("s_addc_u32 s33, s9, 0")
    BUF0 = 40
    def kreg(slot, j): return BUF0 + slot * 32 + j * 4
    def vreg(slot, j): return BUF0 + slot * 32 + 16 + j * 4
    def issue_k(slot):
        for j in range(4):
            r = kreg(slot, j)
            a(f"buffer_load_dwordx4 v[{r}:{r+3}], v1, s[28:31], s40 offen offset:{j*1024} {kvpol}")
    def issue_v(slot):
        for j in range(4):
            r = vreg(slot, j)
            a(f"buffer_load_dwordx4 v[{r}:{r+3}], v1, s[32:35], s40 offen offset:{j*1024} {kvpol}")
        a("s_add_u32 s40, s40, 0x4000")
    for s in range(NBUF):
        issue_k(s); issue_v(s)
    a("v_and_b32 v3, 15, v2")
    a("v_lshlrev_b32 v3, 5, v3")
    a("s_mov_b32 s41, " + hex(SCALE))
    a("s_mov_b32 s42, " + hex(LOG2E))
    a("s_mov_b32 s43, 0xffff0000")
    a("s_barrier")
    for w in range(4):
        a(f"ds_read_b128 v[{8+w*8}:{11+w*8}], v3 offset:{QP+w*512}")
        a(f"ds_read_b128 v[{12+w*8}:{15+w*8}], v3 offset:{QP+w*512+16}")
    a("s_waitcnt lgkmcnt(4)")
    for k in range(8): a(f"v_add_f32 v{8+k}, v{8+k}, v{16+k}")
    a("s_waitcnt lgkmcnt(0)")
    for k in range(8): a(f"v_add_f32 v{24+k}, v{24+k}, v{32+k}")
    for k in range(8): a(f"v_add_f32 v{8+k}, v{8+k}, v{24+k}")
    for k in range(4): a(f"v_cvt_pk_bf16_f32 v{4+k}, v{8+2*k}, v{9+2*k}")
    for k in range(8): a(f"v_mov_b32 v{8+k}, 0")
    a("v_mov_b32 v16, 0xff800000")
    a("v_mov_b32 v17, 0")
    a("s_mov_b32 s44, 64")
    stamp(1)
    W = 8 * NBUF - 4
    S = [18, 19, 20, 21]; T = [22, 23]; MN = 24; MS = 25; AL = 26
    PLO = [28, 29, 30, 31]; PHI = [32, 33, 34, 35]
    lab("L_sloop")
    for slot in range(NBUF):
        for j in range(4): a(f"v_mov_b32 v{S[j]}, 0")
        a(f"s_waitcnt vmcnt({W})")
        for d in range(4):
            for j in range(4):
                a(f"v_dot2c_f32_bf16 v{S[j]}, v{kreg(slot,j)+d}, v{4+d}")
        for r in (8, 4, 2, 1):
            for j in range(4):
                a(f"v_add_f32_dpp v{S[j]}, v{S[j]}, v{S[j]} row_ror:{r} row_mask:0xf bank_mask:0xf")
        issue_k(slot)
        a(f"v_cvt_pk_bf16_f32 v{T[0]}, v{S[0]}, v{S[1]}")
        a(f"v_cvt_pk_bf16_f32 v{T[1]}, v{S[2]}, v{S[3]}")
        a(f"v_lshlrev_b32 v{S[0]}, 16, v{T[0]}")
        a(f"v_and_b32 v{S[1]}, s43, v{T[0]}")
        a(f"v_lshlrev_b32 v{S[2]}, 16, v{T[1]}")
        a(f"v_and_b32 v{S[3]}, s43, v{T[1]}")
        for j in range(4): a(f"v_mul_f32 v{S[j]}, s41, v{S[j]}")
        a(f"v_cvt_pk_bf16_f32 v{T[0]}, v{S[0]}, v{S[1]}")
        a(f"v_cvt_pk_bf16_f32 v{T[1]}, v{S[2]}, v{S[3]}")
        a(f"v_lshlrev_b32 v{S[0]}, 16, v{T[0]}")
        a(f"v_and_b32 v{S[1]}, s43, v{T[0]}")
        a(f"v_lshlrev_b32 v{S[2]}, 16, v{T[1]}")
        a(f"v_and_b32 v{S[3]}, s43, v{T[1]}")
        a(f"v_max3_f32 v{MN}, v{S[0]}, v{S[1]}, v16")
        a(f"v_max3_f32 v{MN}, v{S[2]}, v{S[3]}, v{MN}")
        a(f"v_mul_f32 v{MS}, s42, v{MN}")
        a(f"v_fma_f32 v{AL}, v16, s42, -v{MS}")
        for j in range(4): a(f"v_fma_f32 v{S[j]}, v{S[j]}, s42, -v{MS}")
        a(f"v_exp_f32 v{AL}, v{AL}")
        for j in range(4): a(f"v_exp_f32 v{S[j]}, v{S[j]}")
        a(f"v_mov_b32 v16, v{MN}")
        for k in range(8): a(f"v_mul_f32 v{8+k}, v{AL}, v{8+k}")
        a(f"v_fma_f32 v17, v17, v{AL}, v{S[0]}")
        a(f"v_add_f32 v{T[0]}, v{S[1]}, v{S[2]}")
        for j in range(4): a(f"v_cvt_pk_bf16_f32 v{PLO[j]}, v{S[j]}, 0")
        for j in range(4): a(f"v_cvt_pk_bf16_f32 v{PHI[j]}, 0, v{S[j]}")
        a(f"v_add_f32 v17, v17, v{S[3]}")
        a(f"v_add_f32 v17, v17, v{T[0]}")
        a(f"s_waitcnt vmcnt({W})")
        for j in range(4):
            for d in range(4):
                a(f"v_dot2c_f32_bf16 v{8+2*d}, v{vreg(slot,j)+d}, v{PLO[j]}")
                a(f"v_dot2c_f32_bf16 v{9+2*d}, v{vreg(slot,j)+d}, v{PHI[j]}")
        issue_v(slot)
        a("s_sub_u32 s44, s44, 1")
        a("s_cmp_eq_u32 s44, 0")
        if slot == NBUF - 1:
            a("s_cbranch_scc0 L_sloop")
        else:
            a("s_cbranch_scc1 L_sdone")
    lab("L_sdone")
    stamp(2)
    a("v_mov_b32 v18, v16"); a("v_mov_b32 v19, v16"); nop(2)
    a("v_permlane16_swap_b32 v18, v19"); a("v_max_f32 v18, v18, v19"); a("v_mov_b32 v19, v18"); nop(2)
    a("v_permlane32_swap_b32 v18, v19"); a("v_max_f32 v18, v18, v19")
    a("v_sub_f32 v20, v16, v18"); a("v_mul_f32 v20, s42, v20"); a("v_exp_f32 v20, v20"); nop(1)
    for k in range(8): a(f"v_mul_f32 v{8+k}, v20, v{8+k}")
    a("v_mul_f32 v17, v20, v17")
    a("v_mov_b32 v21, v17")
    for k in range(4): a(f"v_permlane16_swap_b32 v{8+2*k}, v{9+2*k}")
    a("v_permlane16_swap_b32 v17, v21")
    for k in range(4): a(f"v_add_f32 v{8+2*k}, v{8+2*k}, v{9+2*k}")
    a("v_add_f32 v17, v17, v21"); a("v_mov_b32 v21, v17")
    a("v_permlane32_swap_b32 v8, v10"); a("v_permlane32_swap_b32 v12, v14"); a("v_permlane32_swap_b32 v17, v21")
    a("v_add_f32 v8, v8, v10"); a("v_add_f32 v12, v12, v14"); a("v_add_f32 v17, v17, v21")
    a("v_lshrrev_b32 v22, 4, v2"); a("v_lshlrev_b32 v22, 2, v22"); a("v_add_u32 v22, v22, v3")
    a("s_lshl_b32 s45, s3, 9"); a("v_add_u32 v22, s45, v22")
    a(f"ds_write_b32 v22, v8 offset:{SP}"); a(f"ds_write_b32 v22, v12 offset:{SP+16}")
    a("s_lshl_b32 s45, s3, 2"); a("v_mov_b32 v23, s45")
    a(f"ds_write_b32 v23, v18 offset:{ML}"); a(f"ds_write_b32 v23, v17 offset:{ML+16}")
    a("s_waitcnt lgkmcnt(0)")
    a("s_barrier")
    if diag:
        a("s_cmp_lg_u32 s3, 0"); a("s_cbranch_scc1 L_done")
        a("s_load_dwordx2 s[26:27], s[0:1], 88")
        a("s_waitcnt lgkmcnt(0)")
        a("s_lshl_b32 s45, s2, 6"); a(f"s_add_u32 s45, s45, {STOFF}"); a("v_mov_b32 v3, s45")
        a("s_mov_b64 exec, 1")
        a("v_mov_b32 v4, s60"); a("v_mov_b32 v5, s61"); a("global_store_dwordx2 v3, v[4:5], s[26:27]")
        a("v_mov_b32 v6, s62"); a("v_mov_b32 v7, s63"); a("global_store_dwordx2 v3, v[6:7], s[26:27] offset:16")
        a("v_mov_b32 v8, s64"); a("v_mov_b32 v9, s65"); a("global_store_dwordx2 v3, v[8:9], s[26:27] offset:24")
    a("s_endpgm")

    lab("L_helper")
    if hprio: a(f"s_setprio {hprio}")
    a("s_load_dwordx2 s[12:13], s[0:1], 32")
    a("s_load_dwordx8 s[16:23], s[0:1], 48")
    a("s_load_dwordx4 s[24:27], s[0:1], 80")
    a("s_sub_u32 s3, s3, 4")
    a("v_lshlrev_b32 v1, 4, v2")
    a("v_lshrrev_b32 v3, 4, v2")
    a("v_and_b32 v4, 15, v2")
    a("s_lshl_b32 s38, s3, 20"); a("s_lshl_b32 s39, s36, 8"); a("s_add_u32 s38, s38, s39")
    a("v_lshlrev_b32 v5, 18, v3"); a("v_lshl_add_u32 v5, v4, 4, v5"); a("v_add_u32 v5, s38, v5")
    a("s_lshl_b32 s39, s37, 10")
    a("s_mov_b32 s43, 0xffff0000")
    a("s_mov_b32 s42, " + hex(LOG2E))
    a("s_waitcnt lgkmcnt(0)")
    a("s_add_u32 s28, s4, s39"); a("s_addc_u32 s29, s5, 0"); a("s_mov_b32 s30, 1024"); a("s_mov_b32 s31, 0x20000")
    a("s_mov_b32 s32, s10"); a("s_mov_b32 s33, s11"); a("s_mov_b32 s34, 0x400000"); a("s_mov_b32 s35, 0x20000")
    a("buffer_load_dwordx4 v[8:11], v1, s[28:31], 0 offen")
    WREG = 128
    a("s_mov_b32 s40, 0")
    def issue_wq(i):
        r = WREG + (i % WQWIN) * 4
        a(f"buffer_load_dwordx4 v[{r}:{r+3}], v5, s[32:35], s40 offen {wpol}")
        a("s_add_u32 s40, s40, 0x2000")
    for i in range(WQWIN): issue_wq(i)
    a("s_lshl_b32 s38, s37, 5"); a("s_add_u32 s38, s38, s36"); a("s_lshl_b32 s38, s38, 11")
    a("s_add_u32 s48, s26, s38"); a("s_addc_u32 s49, s27, 0"); a("s_mov_b32 s50, 2048"); a("s_mov_b32 s51, 0x20000")
    a(f"s_add_u32 s52, s48, {YOFF}"); a("s_addc_u32 s53, s49, 0"); a("s_mov_b32 s54, 1792"); a("s_mov_b32 s55, 0x20000")
    a(f"s_waitcnt vmcnt({WQWIN})")
    for k in range(4):
        a(f"v_lshlrev_b32 v{12+2*k}, 16, v{8+k}"); a(f"v_and_b32 v{13+2*k}, s43, v{8+k}")
    def wave_allsum(r, t):
        for ro in (8, 4, 2, 1):
            nop(2)
            a(f"v_add_f32_dpp v{r}, v{r}, v{r} row_ror:{ro} row_mask:0xf bank_mask:0xf")
        a(f"v_mov_b32 v{t}, v{r}"); nop(2)
        a(f"v_permlane16_swap_b32 v{r}, v{t}"); a(f"v_add_f32 v{r}, v{r}, v{t}"); a(f"v_mov_b32 v{t}, v{r}"); nop(2)
        a(f"v_permlane32_swap_b32 v{r}, v{t}"); a(f"v_add_f32 v{r}, v{r}, v{t}")
    a("v_add_f32 v20, v12, v13"); a("v_add_f32 v21, v14, v15"); a("v_add_f32 v22, v16, v17"); a("v_add_f32 v23, v18, v19")
    a("v_add_f32 v20, v20, v21"); a("v_add_f32 v22, v22, v23"); a("v_add_f32 v20, v20, v22")
    wave_allsum(20, 21)
    a("v_mul_f32 v20, 0x3b000000, v20")
    a("v_mov_b32 v22, 0")
    for k in range(8):
        a(f"v_sub_f32 v21, v{12+k}, v20"); a("v_fmac_f32 v22, v21, v21")
    wave_allsum(22, 21)
    a("v_mul_f32 v22, 0x3b000000, v22")
    a("v_cvt_pk_bf16_f32 v20, v20, v22")
    a("v_and_b32 v22, s43, v20")
    a("v_lshlrev_b32 v20, 16, v20")
    a("v_add_f32 v22, 0x3727c5ac, v22")
    a("v_cvt_pk_bf16_f32 v22, v22, v22"); a("v_and_b32 v22, s43, v22")
    a("v_sqrt_f32 v22, v22"); nop(1)
    a("v_cvt_pk_bf16_f32 v22, v22, v22"); a("v_and_b32 v22, s43, v22")
    a("v_rcp_f32 v22, v22")
    for k in range(8): a(f"v_sub_f32 v{12+k}, v{12+k}, v20")
    for k in range(4): a(f"v_cvt_pk_bf16_f32 v{8+k}, v{12+2*k}, v{13+2*k}")
    for k in range(4):
        a(f"v_lshlrev_b32 v{12+2*k}, 16, v{8+k}"); a(f"v_and_b32 v{13+2*k}, s43, v{8+k}")
    for k in range(8): a(f"v_mul_f32 v{12+k}, v22, v{12+k}")
    for k in range(4): a(f"v_cvt_pk_bf16_f32 v{8+k}, v{12+2*k}, v{13+2*k}")
    a("s_lshl_b32 s45, s3, 10")
    a("v_add_u32 v6, s45, v1")
    a(f"ds_write_b128 v6, v[8:11] offset:{XN}")
    a("s_lshl_b32 s46, s3, 8"); a("s_add_u32 s46, s46, s45")
    a("v_lshlrev_b32 v7, 6, v3"); a("v_add_u32 v7, s46, v7")
    a("s_waitcnt lgkmcnt(0)")
    for k in range(4): a(f"ds_read_b128 v[{24+4*k}:{27+4*k}], v7 offset:{XN+16*k}")
    for k in range(8): a(f"v_mov_b32 v{40+k}, 0")
    a("s_waitcnt lgkmcnt(0)")
    def forms(pair, odd, lo, hi):
        if not odd:
            a(f"v_and_b32 v{lo}, 0xffff, v{pair}"); a(f"v_lshlrev_b32 v{hi}, 16, v{pair}")
        else:
            a(f"v_lshrrev_b32 v{lo}, 16, v{pair}"); a(f"v_and_b32 v{hi}, s43, v{pair}")
    def mac8(acc, w, lo, hi):
        for d in range(4):
            a(f"v_dot2c_f32_bf16 v{acc+2*d}, v{w+d}, v{lo}")
            a(f"v_dot2c_f32_bf16 v{acc+2*d+1}, v{w+d}, v{hi}")
    for i in range(32):
        forms(24 + i // 2, i & 1, 12, 13)
        rem = min(WQWIN - 1, 31 - i)
        a(f"s_waitcnt vmcnt({rem})")
        mac8(40, WREG + (i % WQWIN) * 4, 12, 13)
        if i + WQWIN < 32: issue_wq(i + WQWIN)
    def scatter8(acc):
        nop(3)
        for k in range(4): a(f"v_permlane16_swap_b32 v{acc+2*k}, v{acc+2*k+1}")
        for k in range(4): a(f"v_add_f32 v{acc+2*k}, v{acc+2*k}, v{acc+2*k+1}")
        nop(1)
        a(f"v_permlane32_swap_b32 v{acc}, v{acc+2}"); a(f"v_permlane32_swap_b32 v{acc+4}, v{acc+6}")
        a(f"v_add_f32 v{acc}, v{acc}, v{acc+2}"); a(f"v_add_f32 v{acc+4}, v{acc+4}, v{acc+6}")
    scatter8(40)
    a("v_lshlrev_b32 v6, 5, v4"); a("v_lshl_add_u32 v6, v3, 2, v6")
    a("s_lshl_b32 s46, s3, 9"); a("v_add_u32 v6, s46, v6")
    a(f"ds_write_b32 v6, v40 offset:{QP}"); a(f"ds_write_b32 v6, v44 offset:{QP+16}")
    a("s_waitcnt lgkmcnt(0)")
    a("s_barrier")
    stamp(3)
    a("s_cmp_lg_u32 s3, 1"); a("s_cbranch_scc1 L_noclear")
    for k in range(4): a(f"v_mov_b32 v{8+k}, -1")
    a("buffer_store_dwordx4 v[8:11], v1, s[48:51], 0 offen sc1")
    a("buffer_store_dwordx4 v[8:11], v1, s[48:51], 0 offen offset:1024 sc1")
    a("buffer_store_dwordx4 v[8:11], v1, s[52:55], 0 offen sc1")
    a("buffer_store_dwordx4 v[8:11], v1, s[52:55], 0 offen offset:1024 sc1")
    a("s_lshl_b32 s46, s37, 5"); a("v_mov_b32 v12, s46"); a("v_mov_b32 v13, 1")
    a("s_waitcnt vmcnt(0)")
    a("s_mov_b64 exec, 1")
    a("global_atomic_add v12, v13, s[24:25] sc1")
    a("s_mov_b64 exec, -1")
    lab("L_noclear")
    a("s_cmp_lg_u32 s3, 0"); a("s_cbranch_scc1 L_noffn")
    a("s_cmp_ge_u32 s36, 28"); a("s_cbranch_scc1 L_ffn_skip")
    a("s_mov_b32 s28, s16"); a("s_mov_b32 s29, s17"); a("s_mov_b32 s30, 0x1c0000")
    a("s_mov_b32 s32, s18"); a("s_mov_b32 s33, s19"); a("s_mov_b32 s34, 0x1c0000")
    a("v_lshrrev_b32 v6, 3, v2"); a("v_and_b32 v7, 7, v2")
    a("s_mov_b32 s46, 229376"); a("v_mul_lo_u32 v8, v6, s46")
    a("v_lshl_add_u32 v8, v7, 4, v8"); a("s_lshl_b32 s46, s36, 7"); a("v_add_u32 v8, s46, v8")
    a("v_lshlrev_b32 v9, 7, v6")
    for k in range(8): a(f"ds_read_b128 v[{48+4*k}:{51+4*k}], v9 offset:{XN+16*k}")
    FREG = 96
    assert FWIN % 2 == 0 and FWIN <= 8
    a("s_mov_b32 s40, 0")
    def issue_f(n):
        r = FREG + (n % FWIN) * 4
        srd = 28 if n % 2 == 0 else 32
        a(f"buffer_load_dwordx4 v[{r}:{r+3}], v8, s[{srd}:{srd+3}], s40 offen {wpol}")
        if n % 2: a("s_add_u32 s40, s40, 3584")
    for n in range(FWIN): issue_f(n)
    for k in range(16): a(f"v_mov_b32 v{80+k}, 0")
    a("s_waitcnt lgkmcnt(0)")
    for n in range(128):
        i = n // 2
        if n % 2 == 0: forms(48 + i // 2, i & 1, 12, 13)
        a(f"s_waitcnt vmcnt({min(FWIN-1, 127-n)})")
        mac8(80 + 8 * (n % 2), FREG + (n % FWIN) * 4, 12, 13)
        if n + FWIN < 128: issue_f(n + FWIN)
    a("s_mov_b32 s28, s20"); a("s_mov_b32 s29, s21")
    a("s_lshl_b32 s40, s36, 16")
    def issue_d(i):
        r = FREG + (i % FWIN) * 4
        a(f"buffer_load_dwordx4 v[{r}:{r+3}], v1, s[28:31], s40 offen offset:{(i%4)*1024} {wpol}")
        if i % 4 == 3: a("s_add_u32 s40, s40, 4096")
    for i in range(FWIN): issue_d(i)
    a("v_and_b32 v14, 8, v2"); a("v_cmp_ne_u32 vcc, 0, v14")
    for acc in (80, 88):
        for k in range(4): a(f"v_permlane32_swap_b32 v{acc+k}, v{acc+4+k}")
        for k in range(4): a(f"v_add_f32 v{acc+k}, v{acc+k}, v{acc+4+k}")
        nop(1)
        a(f"v_permlane16_swap_b32 v{acc}, v{acc+2}"); a(f"v_permlane16_swap_b32 v{acc+1}, v{acc+3}")
        a(f"v_add_f32 v{acc}, v{acc}, v{acc+2}"); a(f"v_add_f32 v{acc+1}, v{acc+1}, v{acc+3}")
        nop(2)
        a(f"v_add_f32_dpp v{acc}, v{acc}, v{acc} row_ror:8 row_mask:0xf bank_mask:0xf")
        a(f"v_add_f32_dpp v{acc+1}, v{acc+1}, v{acc+1} row_ror:8 row_mask:0xf bank_mask:0xf")
        a(f"v_cndmask_b32 v{acc}, v{acc}, v{acc+1}, vcc")
    a("v_cvt_pk_bf16_f32 v14, v80, v88")
    a("v_lshlrev_b32 v15, 16, v14")
    a("v_and_b32 v16, s43, v14")
    a("v_mul_f32 v17, v15, v15"); a("v_mul_f32 v17, v17, v15")
    a("v_mov_b32 v18, 0x3d372713"); a("v_fma_f32 v17, v17, v18, v15")
    a("v_mul_f32 v17, 0xc0135761, v17")
    a("v_exp_f32 v17, v17"); nop(1)
    a("v_add_f32 v17, 1.0, v17"); a("v_rcp_f32 v17, v17"); nop(1)
    a("v_mul_f32 v17, v15, v17")
    a("v_cvt_pk_bf16_f32 v17, v17, v17"); a("v_and_b32 v17, s43, v17")
    a("v_mul_f32 v17, v17, v16")
    a("v_cvt_pk_bf16_f32 v17, v17, v17")
    a("v_lshlrev_b32 v14, 4, v7")
    a("v_lshrrev_b32 v15, 5, v2"); a("v_lshl_add_u32 v14, v15, 3, v14")
    a("v_bfe_u32 v15, v2, 4, 1"); a("v_lshl_add_u32 v14, v15, 2, v14")
    a("v_bfe_u32 v15, v2, 3, 1"); a("v_lshl_add_u32 v14, v15, 1, v14")
    a(f"ds_write_b16 v14, v17 offset:{HB}")
    a("v_mov_b32 v15, 0")
    a("s_waitcnt lgkmcnt(0)")
    for k in range(8): a(f"ds_read_b128 v[{48+4*k}:{51+4*k}], v15 offset:{HB+16*k}")
    for k in range(8): a(f"v_mov_b32 v{80+k}, 0")
    a("s_waitcnt lgkmcnt(0)")
    for i in range(64):
        forms(48 + i // 2, i & 1, 12, 13)
        a(f"s_waitcnt vmcnt({min(FWIN-1, 63-i)})")
        mac8(80, FREG + (i % FWIN) * 4, 12, 13)
        if i + FWIN < 64: issue_d(i + FWIN)
    lab("L_ffn_skip")
    a("s_lshl_b32 s46, s37, 5"); a("v_mov_b32 v12, s46"); a("s_mov_b32 s47, 0x40000")
    lab("L_rdy")
    a("global_load_dword v13, v12, s[24:25] sc1")
    a("s_waitcnt vmcnt(0)")
    a("v_readfirstlane_b32 s46, v13")
    a("s_sub_u32 s47, s47, 1"); a("s_cmp_eq_u32 s47, 0"); a("s_cbranch_scc1 L_rdy_ok")
    a("s_cmp_ge_u32 s46, 32"); a("s_cbranch_scc1 L_rdy_ok")
    a("s_sleep 8"); a("s_branch L_rdy")
    lab("L_rdy_ok")
    a("s_cmp_ge_u32 s36, 28"); a("s_cbranch_scc1 L_noffn")
    a("s_lshl_b32 s46, s37, 16"); a(f"s_add_u32 s46, s46, {YOFF}")
    a("s_add_u32 s28, s26, s46"); a("s_addc_u32 s29, s27, 0"); a("s_mov_b32 s30, 0x10000")
    a("v_lshrrev_b32 v12, 1, v2"); a("v_lshlrev_b32 v12, 11, v12")
    a("v_and_b32 v13, 1, v2"); a("v_lshl_add_u32 v12, v13, 5, v12")
    a("s_lshl_b32 s46, s36, 6"); a("s_mov_b32 s47, -2")
    for k in range(8): a(f"v_min_u32 v{80+k}, s47, v{80+k}")
    a("buffer_store_dwordx4 v[80:83], v12, s[28:31], s46 offen sc1")
    a("buffer_store_dwordx4 v[84:87], v12, s[28:31], s46 offen offset:16 sc1")
    lab("L_noffn")
    stamp(4)
    a("s_mov_b32 s32, s12"); a("s_mov_b32 s33, s13"); a("s_mov_b32 s34, 0x400000")
    a("s_lshl_b32 s46, s36, 17"); a("s_lshl_b32 s47, s3, 8"); a("s_add_u32 s46, s46, s47")
    a("v_lshlrev_b32 v5, 15, v3"); a("v_lshl_add_u32 v5, v4, 4, v5"); a("v_add_u32 v5, s46, v5")
    a("s_mov_b32 s40, 0"); a("s_mov_b32 s46, 0x05040100"); a("s_mov_b32 s47, 0x07060302")
    def issue_o(i):
        r = WREG + i * 4
        a(f"buffer_load_dwordx4 v[{r}:{r+3}], v5, s[32:35], s40 offen offset:{(i%4)*1024} {wpol}")
        if i % 4 == 3: a("s_add_u32 s40, s40, 4096")
    for i in range(WOWIN): issue_o(i)
    for k in range(16):
        for i in (2 * k, 2 * k + 1):
            if i + WOWIN < 32: issue_o(i + WOWIN)
        a(f"s_waitcnt vmcnt({min(WOWIN, 30-2*k)})")
        A = WREG + 8 * k; B = A + 4
        for d in range(4):
            a(f"v_perm_b32 v12, v{B+d}, v{A+d}, s46")
            a(f"v_perm_b32 v{B+d}, v{B+d}, v{A+d}, s47")
            a(f"v_mov_b32 v{A+d}, v12")
    def gather(srd, lbl, sleep):
        a("s_mov_b32 s47, 0x40000")
        lab(lbl)
        a(f"buffer_load_dwordx4 v[8:11], v1, s[{srd}:{srd+3}], 0 offen sc1")
        a(f"buffer_load_dwordx4 v[12:15], v1, s[{srd}:{srd+3}], 0 offen offset:1024 sc1")
        a("s_waitcnt vmcnt(0)")
        a("v_max3_u32 v16, v8, v9, v10"); a("v_max3_u32 v17, v11, v12, v13"); a("v_max3_u32 v16, v14, v15, v16")
        a("v_max_u32 v16, v16, v17")
        a("v_cmp_eq_u32 vcc, -1, v16")
        a("s_sub_u32 s47, s47, 1"); a("s_cmp_eq_u32 s47, 0"); a(f"s_cbranch_scc1 {lbl}_ok")
        a("s_cmp_eq_u64 vcc, 0"); a(f"s_cbranch_scc1 {lbl}_ok")
        if sleep: a(f"s_sleep {sleep}")
        a(f"s_branch {lbl}")
        lab(lbl + "_ok")
        for k in range(4): a(f"v_add_f32 v{8+k}, v{8+k}, v{12+k}")
        for ro in (4, 8):
            if ro == 4: nop(1)
            for k in range(4): a(f"v_add_f32_dpp v{8+k}, v{8+k}, v{8+k} row_ror:{ro} row_mask:0xf bank_mask:0xf")
        for k in range(4): a(f"v_mov_b32 v{12+k}, v{8+k}")
        for k in range(4): a(f"v_permlane16_swap_b32 v{8+k}, v{12+k}")
        for k in range(4): a(f"v_add_f32 v{8+k}, v{8+k}, v{12+k}")
        for k in range(4): a(f"v_mov_b32 v{12+k}, v{8+k}")
        for k in range(4): a(f"v_permlane32_swap_b32 v{8+k}, v{12+k}")
        for k in range(4): a(f"v_add_f32 v{8+k}, v{8+k}, v{12+k}")
        a("v_cvt_pk_bf16_f32 v12, v8, v9"); a("v_cvt_pk_bf16_f32 v13, v10, v11")
        a("v_lshlrev_b32 v8, 16, v12"); a("v_and_b32 v9, s43, v12"); a("v_lshlrev_b32 v10, 16, v13"); a("v_and_b32 v11, s43, v13")
    a("s_cmp_lg_u32 s3, 1"); a("s_cbranch_scc1 L_noy")
    a("v_and_b32 v6, 3, v2"); a("v_lshlrev_b32 v6, 3, v6"); a("s_lshl_b32 s46, s36, 5"); a("v_add_u32 v6, s46, v6")
    a("buffer_load_dwordx2 v[56:57], v6, s[28:31], 0 offen")
    gather(52, "L_gy", 32)
    for k in range(4): a(f"v_mul_f32 v{12+k}, 0xbfb8aa3b, v{8+k}")
    for k in range(4): a(f"v_exp_f32 v{12+k}, v{12+k}")
    for k in range(4): a(f"v_add_f32 v{12+k}, 1.0, v{12+k}")
    for k in range(4): a(f"v_rcp_f32 v{12+k}, v{12+k}")
    for k in range(4): a(f"v_mul_f32 v{8+k}, v{8+k}, v{12+k}")
    a("v_cvt_pk_bf16_f32 v12, v8, v9"); a("v_cvt_pk_bf16_f32 v13, v10, v11")
    a("v_lshlrev_b32 v48, 16, v12"); a("v_and_b32 v49, s43, v12"); a("v_lshlrev_b32 v50, 16, v13"); a("v_and_b32 v51, s43, v13")
    a("v_lshlrev_b32 v52, 16, v56"); a("v_and_b32 v53, s43, v56"); a("v_lshlrev_b32 v54, 16, v57"); a("v_and_b32 v55, s43, v57")
    lab("L_noy")
    a("s_lshl_b32 s46, s37, 10"); a("s_add_u32 s56, s22, s46"); a("s_addc_u32 s57, s23, 0"); a("s_mov_b32 s58, 1024"); a("s_mov_b32 s59, 0x20000")
    a("s_lshl_b32 s46, s37, 16"); a("s_add_u32 s28, s26, s46"); a("s_addc_u32 s29, s27, 0"); a("s_mov_b32 s30, 0x10000")
    a("v_lshrrev_b32 v5, 1, v4"); a("v_lshlrev_b32 v5, 11, v5")
    a("v_and_b32 v7, 1, v4"); a("v_lshl_add_u32 v5, v7, 5, v5")
    a("v_lshrrev_b32 v7, 1, v3"); a("v_lshl_add_u32 v5, v7, 4, v5")
    a("s_lshl_b32 s44, s3, 14"); a("s_lshl_b32 s46, s36, 6"); a("s_add_u32 s44, s44, s46")
    a("v_lshlrev_b32 v7, 3, v2")
    a("s_lshl_b32 s45, s3, 8")
    a("v_lshlrev_b32 v58, 2, v2"); a("v_add_u32 v58, s45, v58")
    a("v_lshlrev_b32 v59, 6, v3"); a("v_add_u32 v59, s45, v59")
    a("v_mov_b32 v60, 0")
    for k in range(8): a(f"v_mov_b32 v{40+k}, 0")
    a("s_mov_b32 s47, -2")
    stamp(5)
    a("s_barrier")
    a(f"ds_read_b128 v[8:11], v60 offset:{ML}"); a(f"ds_read_b128 v[12:15], v60 offset:{ML+16}")
    for w in range(4): a(f"ds_read_b64 v[{16+2*w}:{17+2*w}], v7 offset:{SP+w*512}")
    a("s_waitcnt lgkmcnt(4)")
    a("v_max3_f32 v24, v8, v9, v10"); a("v_max_f32 v24, v24, v11")
    for w in range(4): a(f"v_sub_f32 v{8+w}, v{8+w}, v24")
    for w in range(4): a(f"v_mul_f32 v{8+w}, s42, v{8+w}")
    for w in range(4): a(f"v_exp_f32 v{8+w}, v{8+w}")
    a("v_mul_f32 v24, v8, v12"); a("v_fmac_f32 v24, v9, v13"); a("v_fmac_f32 v24, v10, v14"); a("v_fmac_f32 v24, v11, v15")
    a("v_rcp_f32 v24, v24")
    a("s_waitcnt lgkmcnt(0)")
    a("v_mul_f32 v25, v8, v16"); a("v_mul_f32 v26, v8, v17")
    for w in range(1, 4):
        a(f"v_fmac_f32 v25, v{8+w}, v{16+2*w}"); a(f"v_fmac_f32 v26, v{8+w}, v{17+2*w}")
    a("v_mul_f32 v25, v24, v25"); a("v_mul_f32 v26, v24, v26")
    a("v_cvt_pk_bf16_f32 v25, v25, v26")
    a(f"ds_write_b32 v58, v25 offset:{OB}")
    a("s_waitcnt lgkmcnt(0)")
    for k in range(4): a(f"ds_read_b128 v[{24+4*k}:{27+4*k}], v59 offset:{OB+16*k}")
    for k in range(16):
        if k % 4 == 0: a(f"s_waitcnt lgkmcnt({3-k//4})")
        A = WREG + 8 * k; B = A + 4
        for d in range(4):
            a(f"v_dot2c_f32_bf16 v{40+2*d}, v{A+d}, v{24+k}")
            a(f"v_dot2c_f32_bf16 v{41+2*d}, v{B+d}, v{24+k}")
    nop(3)
    for k in range(4): a(f"v_permlane32_swap_b32 v{40+k}, v{44+k}")
    for k in range(4): a(f"v_add_f32 v{40+k}, v{40+k}, v{44+k}")
    for k in range(4): a(f"v_mov_b32 v{44+k}, v{40+k}")
    for k in range(4): a(f"v_permlane16_swap_b32 v{40+k}, v{44+k}")
    for k in range(4): a(f"v_add_f32 v{40+k}, v{40+k}, v{44+k}")
    for k in range(4): a(f"v_min_u32 v{40+k}, s47, v{40+k}")
    a("s_mov_b32 exec_lo, 0xffff"); a("s_mov_b32 exec_hi, 0xffff")
    a("buffer_store_dwordx4 v[40:43], v5, s[28:31], s44 offen sc1")
    a("s_mov_b64 exec, -1")
    a("s_cmp_lg_u32 s3, 1"); a("s_cbranch_scc1 L_done")
    stamp(6)
    gather(48, "L_gs", 0)
    for k in range(4): a(f"v_mul_f32 v{8+k}, v{8+k}, v{48+k}")
    a("v_cvt_pk_bf16_f32 v12, v8, v9"); a("v_cvt_pk_bf16_f32 v13, v10, v11")
    a("v_lshlrev_b32 v8, 16, v12"); a("v_and_b32 v9, s43, v12"); a("v_lshlrev_b32 v10, 16, v13"); a("v_and_b32 v11, s43, v13")
    for k in range(4): a(f"v_add_f32 v{8+k}, v{8+k}, v{52+k}")
    a("v_cvt_pk_bf16_f32 v12, v8, v9"); a("v_cvt_pk_bf16_f32 v13, v10, v11")
    a("s_mov_b64 exec, 15")
    a("buffer_store_dwordx2 v[12:13], v6, s[56:59], 0 offen")
    if diag:
        stamp(7)
        a("s_waitcnt lgkmcnt(0)")
        a("s_lshl_b32 s45, s2, 6"); a(f"s_add_u32 s45, s45, {STOFF}"); a("v_mov_b32 v3, s45")
        a("s_mov_b64 exec, 1")
        for i, (st, off) in enumerate([(7, 8), (3, 32), (5, 40), (6, 48), (4, 56)]):
            a(f"v_mov_b32 v{20+2*i}, s{60+2*st}"); a(f"v_mov_b32 v{21+2*i}, s{61+2*st}")
            a(f"global_store_dwordx2 v3, v[{20+2*i}:{21+2*i}], s[26:27] offset:{off}")
    lab("L_done")
    a("s_endpgm")
    L.append('.section .rodata,"a"'); L.append(".p2align 6"); L.append(f".amdhsa_kernel {KN}")
    a(".amdhsa_next_free_vgpr 256"); a(".amdhsa_next_free_sgpr 80"); a(".amdhsa_accum_offset 256")
    a(".amdhsa_group_segment_fixed_size 0"); a(".amdhsa_kernarg_size 96"); a(".amdhsa_user_sgpr_count 2")
    a(".amdhsa_user_sgpr_kernarg_segment_ptr 1"); a(".amdhsa_system_sgpr_workgroup_id_x 1")
    a(".amdhsa_float_denorm_mode_32 3")
    L.append(".end_amdhsa_kernel")
    return "\n".join(L) + "\n"

if __name__ == "__main__":
    for spec in sys.argv[1:]:
        out, _, kvs = spec.partition(":")
        kw = {}
        if kvs:
            for kv in kvs.split(","):
                k, v = kv.split("=")
                kw[k] = int(v) if v.lstrip("-").isdigit() else v.replace("+", " ")
        open(out, "w").write(gen(**kw))
```

```python
import sys
KN = "recurrent_scan__mha_block_cached__geglu_ffn__decode_kernel"
HEADER = open("recurrent_scan__mha_block_cached__geglu_ffn__decode.s.ref").read().split("; Override launch")[0]

RING = 131072
XN, QP, SP, ML, CT, OB, HB = 0, 5120, 7168, 9216, 9280, 9472, 10496
LDS_BYTES = RING + 10752
YOFF = 0x80000
STOFF = 0x30000000
LOG2E = 0x3fb8aa3b
SCALE = 0x3db504f3

def gen(D=18, WQWIN=5, WOWIN=2, wpol="nt", diag=0, kvpol="nt", noffn=0, nowo=0, nocomp=0, noq=0, nosync=0,
        MID=448, pf=1, lprio=3, hprio=0):
    L = []
    def a(s): L.append("  " + s)
    def lab(s): L.append(s + ":")
    def nop(n): a(f"s_nop {n-1}")
    def stamp(i):
        if diag: a(f"s_memrealtime s[{60+2*i}:{61+2*i}]")
    def put_stamp(i, off, vt):
        a("s_waitcnt lgkmcnt(0)")
        a("s_lshl_b32 s45, s2, 6"); a(f"s_add_u32 s45, s45, {STOFF}"); a(f"v_mov_b32 v{vt+2}, s45")
        a(f"v_mov_b32 v{vt}, s{60+2*i}"); a(f"v_mov_b32 v{vt+1}, s{61+2*i}")
        a("s_mov_b64 exec, 1")
        a(f"global_store_dwordx2 v{vt+2}, v[{vt}:{vt+1}], s[26:27] offset:{off}")
        a("s_mov_b64 exec, -1")
        nop(2)
    L.append(HEADER.rstrip("\n"))
    L.append(f"; @launch grid=(256,1,1) block=(576,1,1) lds={LDS_BYTES}")
    L.append('.amdgcn_target "amdgcn-amd-amdhsa--gfx950"')
    L.append(".text"); L.append(f".globl {KN}"); L.append(".p2align 8"); L.append(f".type {KN},@function"); lab(KN)
    a("s_cmp_ge_u32 s2, 256")
    a("s_cbranch_scc1 L_done")
    a("s_load_dwordx8 s[4:11], s[0:1], 0")
    stamp(0)
    a("v_lshrrev_b32 v1, 6, v0")
    a("v_and_b32 v2, 63, v0")
    a("v_readfirstlane_b32 s3, v1")
    a("v_lshlrev_b32 v1, 4, v2")
    a("s_and_b32 s36, s2, 7")
    a("s_lshl_b32 s36, s36, 2")
    a("s_bfe_u32 s37, s2, 0x20003")
    a("s_add_u32 s36, s36, s37")
    a("s_lshr_b32 s37, s2, 5")
    a("s_cmp_lg_u32 s3, 0")
    a("s_cbranch_scc1 L_notloader")

    if lprio: a(f"s_setprio {lprio}")
    a("s_lshl_b32 s38, s37, 5"); a("s_add_u32 s38, s38, s36"); a("s_lshl_b32 s38, s38, 20")
    a("s_mov_b32 s30, 0x100000"); a("s_mov_b32 s31, 0x20000"); a("s_mov_b32 s34, 0x100000"); a("s_mov_b32 s35, 0x20000")
    a("s_mov_b32 s40, 0"); a("s_mov_b32 s41, 0")
    a(f"v_mov_b32 v3, {RING+CT}")
    a("v_lshl_add_u32 v4, v2, 2, v3"); a("v_mov_b32 v5, 0")
    a("s_mov_b64 exec, 0xff")
    a("ds_write_b32 v4, v5")
    a("s_mov_b64 exec, -1")
    a("s_mov_b32 m0, 0")
    a("s_waitcnt lgkmcnt(0)")
    a("s_add_u32 s28, s6, s38"); a("s_addc_u32 s29, s7, 0"); a("s_add_u32 s32, s8, s38"); a("s_addc_u32 s33, s9, 0")
    def publish():
        a("v_add_u32 v5, 1, v5"); a("ds_write_b32 v3, v5")
    def ld_step(m, issue=True, rem=None):
        j = m & 7
        if issue:
            if j == 0 and m: a("s_mov_b32 m0, s41")
            if j == 4: a("s_add_u32 m0, s41, 4096")
        if m >= D:
            a(f"s_waitcnt vmcnt({D-1 if issue else rem})")
        elif j in (0, 4) and m: nop(1)
        if issue:
            srd = 28 if j < 4 else 32
            a(f"buffer_load_dwordx4 v1, s[{srd}:{srd+3}], s40 offen offset:{(j&3)*1024} {kvpol} lds")
        if m >= D and (m - D + 1) % 4 == 0: publish()
        if issue and j == 7:
            a("s_add_u32 s40, s40, 4096"); a("s_add_u32 s41, s41, 8192"); a("s_and_b32 s41, s41, 0x1ffff")
    assert D <= 28
    for m in range(32):
        ld_step(m)
        if m == min(D, 8) - 1: a("s_barrier")
    a("s_mov_b32 s44, -2")
    a("ds_read_b32 v6, v3 offset:16")
    lab("L_lloop")
    for w in range(4):
        a("s_waitcnt lgkmcnt(0)")
        a("v_readfirstlane_b32 s45, v6")
        a("s_cmp_ge_i32 s45, s44")
        a(f"s_cbranch_scc0 L_lslow{w}")
        lab(f"L_lfree{w}")
        for j in range(8):
            ld_step(32 + 8 * w + j)
            if j == 4: a(f"ds_read_b32 v6, v3 offset:{16 + 4 * ((w + 1) & 3)}")
    a("s_add_u32 s44, s44, 1")
    a("s_cmp_lg_u32 s44, 61")
    a("s_cbranch_scc1 L_lloop")
    for k in range(D):
        ld_step(2048 + k, issue=False, rem=D - 1 - k)
    if diag:
        stamp(2)
        a("s_load_dwordx2 s[26:27], s[0:1], 88")
        put_stamp(0, 0, 8); put_stamp(2, 24, 8)
    a("s_endpgm")
    for w in range(4):
        lab(f"L_lslow{w}")
        a("s_sleep 1")
        a(f"ds_read_b32 v6, v3 offset:{16 + 4 * w}")
        a("s_waitcnt lgkmcnt(0)")
        a("v_readfirstlane_b32 s45, v6")
        a("s_cmp_ge_i32 s45, s44")
        a(f"s_cbranch_scc0 L_lslow{w}")
        a(f"s_branch L_lfree{w}")

    def wave_allsum(r, t):
        for ro in (8, 4, 2, 1):
            nop(2)
            a(f"v_add_f32_dpp v{r}, v{r}, v{r} row_ror:{ro} row_mask:0xf bank_mask:0xf")
        a(f"v_mov_b32 v{t}, v{r}"); nop(2)
        a(f"v_permlane16_swap_b32 v{r}, v{t}"); a(f"v_add_f32 v{r}, v{r}, v{t}"); a(f"v_mov_b32 v{t}, v{r}"); nop(2)
        a(f"v_permlane32_swap_b32 v{r}, v{t}"); a(f"v_add_f32 v{r}, v{r}, v{t}")
    def layernorm(hook):
        for k in range(4):
            a(f"v_lshlrev_b32 v{12+2*k}, 16, v{8+k}"); a(f"v_and_b32 v{13+2*k}, s43, v{8+k}")
        a("v_add_f32 v20, v12, v13"); a("v_add_f32 v21, v14, v15"); a("v_add_f32 v22, v16, v17"); a("v_add_f32 v23, v18, v19")
        a("v_add_f32 v20, v20, v21"); a("v_add_f32 v22, v22, v23"); a("v_add_f32 v20, v20, v22")
        wave_allsum(20, 21); hook()
        a("v_mul_f32 v20, 0x3b000000, v20")
        a("v_mov_b32 v22, 0")
        for k in range(8):
            a(f"v_sub_f32 v21, v{12+k}, v20"); a("v_fmac_f32 v22, v21, v21")
        hook(); wave_allsum(22, 21); hook()
        a("v_mul_f32 v22, 0x3b000000, v22")
        a("v_cvt_pk_bf16_f32 v20, v20, v22")
        a("v_and_b32 v22, s43, v20"); a("v_lshlrev_b32 v20, 16, v20")
        a("v_add_f32 v22, 0x3727c5ac, v22")
        a("v_cvt_pk_bf16_f32 v22, v22, v22"); a("v_and_b32 v22, s43, v22")
        a("v_sqrt_f32 v22, v22"); nop(1)
        a("v_cvt_pk_bf16_f32 v22, v22, v22"); a("v_and_b32 v22, s43, v22")
        a("v_rcp_f32 v22, v22"); hook()
        for k in range(8): a(f"v_sub_f32 v{12+k}, v{12+k}, v20")
        for k in range(4): a(f"v_cvt_pk_bf16_f32 v{8+k}, v{12+2*k}, v{13+2*k}")
        for k in range(4):
            a(f"v_lshlrev_b32 v{12+2*k}, 16, v{8+k}"); a(f"v_and_b32 v{13+2*k}, s43, v{8+k}")
        for k in range(8): a(f"v_mul_f32 v{12+k}, v22, v{12+k}")
        for k in range(4): a(f"v_cvt_pk_bf16_f32 v{8+k}, v{12+2*k}, v{13+2*k}")
    def forms(pair, odd, lo, hi):
        if not odd:
            a(f"v_and_b32 v{lo}, 0xffff, v{pair}"); a(f"v_lshlrev_b32 v{hi}, 16, v{pair}")
        else:
            a(f"v_lshrrev_b32 v{lo}, 16, v{pair}"); a(f"v_and_b32 v{hi}, s43, v{pair}")
    def mac8(acc, w, lo, hi):
        for d in range(4):
            a(f"v_dot2c_f32_bf16 v{acc+2*d}, v{w+d}, v{lo}")
            a(f"v_dot2c_f32_bf16 v{acc+2*d+1}, v{w+d}, v{hi}")
    def lds_poll(lbl, addr, off, tgt, vt, sleep):
        lab(lbl)
        a(f"ds_read_b32 v{vt}, v{addr} offset:{off}")
        a("s_waitcnt lgkmcnt(0)")
        a(f"v_readfirstlane_b32 s45, v{vt}")
        a(f"s_cmp_ge_u32 s45, {tgt}")
        a(f"s_cbranch_scc1 {lbl}_ok")
        a(f"s_sleep {sleep}")
        a(f"s_branch {lbl}")
        lab(lbl + "_ok")
    WREG = 40

    lab("L_notloader")
    a("v_lshrrev_b32 v3, 4, v2")
    a("v_and_b32 v4, 15, v2")
    a("s_mov_b32 s43, 0xffff0000")
    a("s_mov_b32 s42, " + hex(LOG2E))
    a("s_lshl_b32 s39, s37, 10")
    a("s_mov_b32 s30, 1024"); a("s_mov_b32 s31, 0x20000"); a("s_mov_b32 s35, 0x20000")
    a("s_cmp_ge_u32 s3, 5")
    a("s_cbranch_scc1 L_helper")

    a("s_sub_u32 s3, s3, 1")
    a("s_lshl_b32 s38, s3, 20"); a("s_lshl_b32 s46, s36, 8"); a("s_add_u32 s38, s38, s46")
    a("v_lshlrev_b32 v5, 18, v3"); a("v_lshl_add_u32 v5, v4, 4, v5"); a("v_add_u32 v5, s38, v5")
    a("s_mov_b32 s34, 0x400000")
    a("s_mov_b32 s40, 0")
    a("s_waitcnt lgkmcnt(0)")
    a("s_add_u32 s28, s4, s39"); a("s_addc_u32 s29, s5, 0")
    a("s_mov_b32 s32, s10"); a("s_mov_b32 s33, s11")
    a("buffer_load_dwordx4 v[8:11], v1, s[28:31], 0 offen")
    wq = {"issued": 0}
    def issue_wq(window=True):
        i = wq["issued"]
        if i >= 32 or noq: return
        if window: a(f"s_waitcnt vmcnt({WQWIN-1})")
        r = WREG + i * 4
        a(f"buffer_load_dwordx4 v[{r}:{r+3}], v5, s[32:35], s40 offen {wpol}")
        a("s_add_u32 s40, s40, 0x2000")
        wq["issued"] += 1
    for i in range(WQWIN): issue_wq(False)
    a("s_barrier")
    a(f"s_waitcnt vmcnt({WQWIN if not noq else 0})")
    layernorm(issue_wq)
    a("s_lshl_b32 s45, s3, 10"); a(f"s_add_u32 s45, s45, {RING+XN}")
    a("v_add_u32 v6, s45, v1")
    a("ds_write_b128 v6, v[8:11]")
    issue_wq()
    a("s_lshl_b32 s46, s3, 8"); a("s_add_u32 s46, s46, s45")
    a("v_lshlrev_b32 v7, 6, v3"); a("v_add_u32 v7, s46, v7")
    a("s_waitcnt lgkmcnt(0)")
    for k in range(4): a(f"ds_read_b128 v[{16+4*k}:{19+4*k}], v7 offset:{16*k}")
    for k in range(8): a(f"v_mov_b32 v{32+k}, 0")
    a("s_waitcnt lgkmcnt(0)")
    for i in range(32 if not noq else 0):
        forms(16 + i // 2, i & 1, 12, 13)
        if wq["issued"] < 32: issue_wq()
        else: a(f"s_waitcnt vmcnt({31 - i})")
        mac8(32, WREG + i * 4, 12, 13)
    a("v_lshlrev_b32 v7, 5, v4")
    a(f"v_add_u32 v7, {RING}, v7")
    a("v_lshl_add_u32 v6, v3, 2, v7")
    a("s_lshl_b32 s46, s3, 9"); a("v_add_u32 v6, s46, v6")
    for k in range(4): a(f"v_permlane16_swap_b32 v{32+2*k}, v{33+2*k}")
    for k in range(4): a(f"v_add_f32 v{32+2*k}, v{32+2*k}, v{33+2*k}")
    a(f"v_mov_b32 v38+1, 1".replace("v38+1", "v39"))
    a("v_permlane32_swap_b32 v32, v34"); a("v_permlane32_swap_b32 v36, v38")
    a("v_add_f32 v32, v32, v34"); a("v_add_f32 v36, v36, v38")
    a(f"ds_write_b32 v6, v32 offset:{QP}"); a(f"ds_write_b32 v6, v36 offset:{QP+16}")
    a(f"v_mov_b32 v38, {RING+CT}")
    a("s_waitcnt lgkmcnt(0)")
    a("s_mov_b64 exec, 1")
    a("ds_add_u32 v38, v39 offset:4")
    a("s_mov_b64 exec, -1")
    lds_poll("L_qw", 38, 4, 4, 39, 1)
    for w in range(4):
        a(f"ds_read_b128 v[{40+w*8}:{43+w*8}], v7 offset:{QP+w*512}")
        a(f"ds_read_b128 v[{44+w*8}:{47+w*8}], v7 offset:{QP+w*512+16}")
    a("s_mov_b32 s41, " + hex(SCALE))
    for k in range(8): a(f"v_mov_b32 v{8+k}, 0")
    a("v_mov_b32 v16, 0xff800000"); a("v_mov_b32 v17, 0")
    a("s_lshl_b32 s46, s3, 13"); a("v_add_u32 v36, s46, v1")
    a("s_lshl_b32 s46, s3, 2"); a("v_add_u32 v37, s46, v38")
    a("s_lshl_b32 s47, s3, 1"); a("s_add_u32 s47, s47, 1")
    a("v_mov_b32 v27, 0")
    a("s_waitcnt lgkmcnt(4)")
    for k in range(8): a(f"v_add_f32 v{40+k}, v{40+k}, v{48+k}")
    a("s_waitcnt lgkmcnt(0)")
    for k in range(8): a(f"v_add_f32 v{56+k}, v{56+k}, v{64+k}")
    for k in range(8): a(f"v_add_f32 v{40+k}, v{40+k}, v{56+k}")
    for k in range(4): a(f"v_cvt_pk_bf16_f32 v{72+k}, v{40+2*k}, v{41+2*k}")
    stamp(1)
    Q = 72; KR = 40; VR = 56
    S = [18, 19, 20, 21]; T = [22, 23]; MN = 24; MS = 25; AL = 26
    PLO = [28, 29, 30, 31]; PHI = [32, 33, 34, 35]
    def unpack():
        a(f"v_cvt_pk_bf16_f32 v{T[0]}, v{S[0]}, v{S[1]}")
        a(f"v_cvt_pk_bf16_f32 v{T[1]}, v{S[2]}, v{S[3]}")
        a(f"v_lshlrev_b32 v{S[0]}, 16, v{T[0]}")
        a(f"v_and_b32 v{S[1]}, s43, v{T[0]}")
        a(f"v_lshlrev_b32 v{S[2]}, 16, v{T[1]}")
        a(f"v_and_b32 v{S[3]}, s43, v{T[1]}")
    lab("L_cloop")
    lds_poll("L_pk", 38, 0, "s47", 39, 1)
    for j in range(4): a(f"ds_read_b128 v[{KR+4*j}:{KR+4*j+3}], v36 offset:{j*1024}")
    if not nocomp:
        for j in range(4): a(f"v_mov_b32 v{S[j]}, 0")
        for j in range(4):
            a(f"s_waitcnt lgkmcnt({3-j})")
            for d in range(4): a(f"v_dot2c_f32_bf16 v{S[j]}, v{KR+4*j+d}, v{Q+d}")
        for ri, r in enumerate((8, 4, 2, 1)):
            for j in range(4):
                if ri == 0 and j == 3: nop(1)
                a(f"v_add_f32_dpp v{S[j]}, v{S[j]}, v{S[j]} row_ror:{r} row_mask:0xf bank_mask:0xf")
        unpack()
        for j in range(4): a(f"v_mul_f32 v{S[j]}, s41, v{S[j]}")
        unpack()
        a(f"v_max3_f32 v{MN}, v{S[0]}, v{S[1]}, v16")
        a(f"v_max3_f32 v{MN}, v{S[2]}, v{S[3]}, v{MN}")
        a(f"v_mul_f32 v{MS}, s42, v{MN}")
        a(f"v_fma_f32 v{AL}, v16, s42, -v{MS}")
        for j in range(4): a(f"v_fma_f32 v{S[j]}, v{S[j]}, s42, -v{MS}")
        a(f"v_exp_f32 v{AL}, v{AL}")
        for j in range(4): a(f"v_exp_f32 v{S[j]}, v{S[j]}")
        a(f"v_mov_b32 v16, v{MN}")
        for q in range(8): a(f"v_mul_f32 v{8+q}, v{AL}, v{8+q}")
        a(f"v_fma_f32 v17, v17, v{AL}, v{S[0]}")
        a(f"v_add_f32 v{T[0]}, v{S[1]}, v{S[2]}")
        for j in range(4): a(f"v_cvt_pk_bf16_f32 v{PLO[j]}, v{S[j]}, 0")
        for j in range(4): a(f"v_cvt_pk_bf16_f32 v{PHI[j]}, 0, v{S[j]}")
        a(f"v_add_f32 v17, v17, v{S[3]}")
        a(f"v_add_f32 v17, v17, v{T[0]}")
    a("s_cmp_gt_u32 s45, s47")
    a("s_cbranch_scc1 L_pv_ok")
    a("s_add_u32 s46, s47, 1")
    lds_poll("L_pv", 38, 0, "s46", 39, 1)
    for j in range(4): a(f"ds_read_b128 v[{VR+4*j}:{VR+4*j+3}], v36 offset:{4096+j*1024}")
    a("v_add_u32 v27, 1, v27")
    a("v_add_u32 v36, 0x8000, v36"); a("v_and_b32 v36, 0x1ffff, v36")
    a("s_add_u32 s47, s47, 8")
    for j in range(4):
        a(f"s_waitcnt lgkmcnt({3-j})")
        if j == 3: a("ds_write_b32 v37, v27 offset:16")
        if not nocomp:
            for d in range(4):
                a(f"v_dot2c_f32_bf16 v{8+2*d}, v{VR+4*j+d}, v{PLO[j]}")
                a(f"v_dot2c_f32_bf16 v{9+2*d}, v{VR+4*j+d}, v{PHI[j]}")
    a("s_cmp_lt_u32 s47, 512")
    a("s_cbranch_scc1 L_cloop")
    a("v_mov_b32 v18, v16"); a("v_mov_b32 v19, v16"); nop(2)
    a("v_permlane16_swap_b32 v18, v19"); a("v_max_f32 v18, v18, v19"); a("v_mov_b32 v19, v18"); nop(2)
    a("v_permlane32_swap_b32 v18, v19"); a("v_max_f32 v18, v18, v19")
    a("v_sub_f32 v20, v16, v18"); a("v_mul_f32 v20, s42, v20"); a("v_exp_f32 v20, v20"); nop(1)
    for k in range(8): a(f"v_mul_f32 v{8+k}, v20, v{8+k}")
    a("v_mul_f32 v17, v20, v17")
    a("v_mov_b32 v21, v17")
    for k in range(4): a(f"v_permlane16_swap_b32 v{8+2*k}, v{9+2*k}")
    a("v_permlane16_swap_b32 v17, v21")
    for k in range(4): a(f"v_add_f32 v{8+2*k}, v{8+2*k}, v{9+2*k}")
    a("v_add_f32 v17, v17, v21"); a("v_mov_b32 v21, v17")
    a("v_permlane32_swap_b32 v8, v10"); a("v_permlane32_swap_b32 v12, v14"); a("v_permlane32_swap_b32 v17, v21")
    a("v_add_f32 v8, v8, v10"); a("v_add_f32 v12, v12, v14"); a("v_add_f32 v17, v17, v21")
    a(f"ds_write_b32 v6, v8 offset:{SP}"); a(f"ds_write_b32 v6, v12 offset:{SP+16}")
    a(f"v_subrev_u32 v37, {CT-ML}, v37")
    a("ds_write_b32 v37, v18"); a("ds_write_b32 v37, v17 offset:16")
    a("s_waitcnt lgkmcnt(0)")
    a("s_barrier")
    if diag:
        a("s_cmp_lg_u32 s3, 0"); a("s_cbranch_scc1 L_done")
        a("s_load_dwordx2 s[26:27], s[0:1], 88")
        put_stamp(1, 16, 8)
    a("s_endpgm")

    lab("L_helper")
    if hprio: a(f"s_setprio {hprio}")
    a("s_sub_u32 s3, s3, 5")
    if pf:
        a("s_cmp_lg_u32 s3, 2"); a("s_cbranch_scc1 L_nopf")
        a("s_getpc_b64 s[46:47]")
        lab("L_pc")
        a(f"s_sub_u32 s46, s46, L_pc-{KN}"); a("s_subb_u32 s47, s47, 0")
        a("s_lshr_b32 s45, s2, 3"); a("s_min_u32 s45, s45, (L_end-" + KN + ")/1024-1"); a("s_lshl_b32 s45, s45, 10")
        a("v_add_u32 v6, s45, v1")
        a("global_load_dwordx4 v[8:11], v6, s[46:47]")
        lab("L_nopf")
    a("s_load_dwordx2 s[12:13], s[0:1], 32")
    a("s_load_dwordx8 s[16:23], s[0:1], 48")
    a("s_load_dwordx4 s[24:27], s[0:1], 80")
    a("s_barrier")
    a("s_waitcnt lgkmcnt(0)")
    a("s_add_u32 s28, s4, s39"); a("s_addc_u32 s29, s5, 0")
    a("s_lshl_b32 s38, s37, 5"); a("s_add_u32 s38, s38, s36"); a("s_lshl_b32 s38, s38, 11")
    a("s_add_u32 s48, s26, s38"); a("s_addc_u32 s49, s27, 0"); a("s_mov_b32 s50, 2048"); a("s_mov_b32 s51, 0x20000")
    a(f"s_add_u32 s52, s48, {YOFF}"); a("s_addc_u32 s53, s49, 0"); a("s_mov_b32 s54, 1792"); a("s_mov_b32 s55, 0x20000")
    a(f"v_mov_b32 v38, {RING+CT}")
    lds_poll("L_hq", 38, 4, 4, 39, 16)
    a("s_cmp_lg_u32 s3, 1"); a("s_cbranch_scc1 L_noclear")
    if not nosync:
        for k in range(4): a(f"v_mov_b32 v{8+k}, -1")
        a("buffer_store_dwordx4 v[8:11], v1, s[48:51], 0 offen sc1")
        a("buffer_store_dwordx4 v[8:11], v1, s[48:51], 0 offen offset:1024 sc1")
        a("buffer_store_dwordx4 v[8:11], v1, s[52:55], 0 offen sc1")
        a("buffer_store_dwordx4 v[8:11], v1, s[52:55], 0 offen offset:1024 sc1")
        a("s_lshl_b32 s46, s37, 5"); a("v_mov_b32 v12, s46"); a("v_mov_b32 v13, 1")
        a("s_waitcnt vmcnt(0)")
        a("s_mov_b64 exec, 1")
        a("global_atomic_add v12, v13, s[24:25] sc1")
        a("s_mov_b64 exec, -1")
    lab("L_noclear")
    a("s_cmp_lg_u32 s3, 0"); a("s_cbranch_scc1 L_noffn")
    a("s_cmp_ge_u32 s36, 28"); a("s_cbranch_scc1 L_noffn")
    FA = 40; FREG = 56
    if not noffn:
        a("s_mov_b32 s28, s16"); a("s_mov_b32 s29, s17"); a("s_mov_b32 s30, 0x1c0000")
        a("s_mov_b32 s32, s18"); a("s_mov_b32 s33, s19"); a("s_mov_b32 s34, 0x1c0000")
        a("v_lshrrev_b32 v6, 3, v2"); a("v_and_b32 v7, 7, v2")
        a("s_mov_b32 s46, 229376"); a("v_mul_lo_u32 v8, v6, s46")
        a("v_lshl_add_u32 v8, v7, 4, v8"); a("s_lshl_b32 s46, s36, 7"); a("v_add_u32 v8, s46, v8")
        a("v_lshlrev_b32 v9, 7, v6"); a(f"v_add_u32 v9, {RING+XN}, v9")
        a("s_mov_b32 s40, 0")
        def issue_f(n):
            r = FREG + n * 4; srd = 28 if n % 2 == 0 else 32
            a(f"buffer_load_dwordx4 v[{r}:{r+3}], v8, s[{srd}:{srd+3}], s40 offen offset:{3584*(n//2)} {wpol}")
        for n in range(4): issue_f(n)
        a("ds_read_b32 v10, v9")
        for k in range(16): a(f"v_mov_b32 v{FA+k}, 0")
        a("s_mov_b32 s44, 31")
        def fbody(last):
            a("s_waitcnt lgkmcnt(0)")
            forms(10, 0, 12, 13); forms(10, 1, 14, 15)
            if not last:
                a("v_add_u32 v9, 4, v9"); a("ds_read_b32 v10, v9")
                a("s_add_u32 s40, s40, 7168")
            for n in range(4):
                a(f"s_waitcnt vmcnt({3 if not last else 3-n})")
                mac8(FA + 8 * (n % 2), FREG + n * 4, 12 + 2 * (n // 2), 13 + 2 * (n // 2))
                if not last: issue_f(n)
        lab("L_floop")
        fbody(False)
        a("s_sub_u32 s44, s44, 1"); a("s_cmp_lg_u32 s44, 0"); a("s_cbranch_scc1 L_floop")
        fbody(True)
        a("s_mov_b32 s28, s20"); a("s_mov_b32 s29, s21")
        a("s_lshl_b32 s40, s36, 16")
        def issue_d(n):
            r = FREG + n * 4
            a(f"buffer_load_dwordx4 v[{r}:{r+3}], v1, s[28:31], s40 offen offset:{n*1024} {wpol}")
        for n in range(4): issue_d(n)
        a("v_and_b32 v14, 8, v2"); a("v_cmp_ne_u32 vcc, 0, v14")
        for acc in (FA, FA + 8):
            for k in range(4): a(f"v_permlane32_swap_b32 v{acc+k}, v{acc+4+k}")
            for k in range(4): a(f"v_add_f32 v{acc+k}, v{acc+k}, v{acc+4+k}")
            nop(1)
            a(f"v_permlane16_swap_b32 v{acc}, v{acc+2}"); a(f"v_permlane16_swap_b32 v{acc+1}, v{acc+3}")
            a(f"v_add_f32 v{acc}, v{acc}, v{acc+2}"); a(f"v_add_f32 v{acc+1}, v{acc+1}, v{acc+3}")
            nop(2)
            a(f"v_add_f32_dpp v{acc}, v{acc}, v{acc} row_ror:8 row_mask:0xf bank_mask:0xf")
            a(f"v_add_f32_dpp v{acc+1}, v{acc+1}, v{acc+1} row_ror:8 row_mask:0xf bank_mask:0xf")
            a(f"v_cndmask_b32 v{acc}, v{acc}, v{acc+1}, vcc")
        a(f"v_cvt_pk_bf16_f32 v14, v{FA}, v{FA+8}")
        a("v_lshlrev_b32 v15, 16, v14"); a("v_and_b32 v16, s43, v14")
        a("v_mul_f32 v17, v15, v15"); a("v_mul_f32 v17, v17, v15")
        a("v_mov_b32 v18, 0x3d372713"); a("v_fma_f32 v17, v17, v18, v15")
        a("v_mul_f32 v17, 0xc0135761, v17")
        a("v_exp_f32 v17, v17"); nop(1)
        a("v_add_f32 v17, 1.0, v17"); a("v_rcp_f32 v17, v17"); nop(1)
        a("v_mul_f32 v17, v15, v17")
        a("v_cvt_pk_bf16_f32 v17, v17, v17"); a("v_and_b32 v17, s43, v17")
        a("v_mul_f32 v17, v17, v16")
        a("v_cvt_pk_bf16_f32 v17, v17, v17")
        a("v_lshlrev_b32 v14, 4, v7")
        a("v_lshrrev_b32 v15, 5, v2"); a("v_lshl_add_u32 v14, v15, 3, v14")
        a("v_bfe_u32 v15, v2, 4, 1"); a("v_lshl_add_u32 v14, v15, 2, v14")
        a("v_bfe_u32 v15, v2, 3, 1"); a("v_lshl_add_u32 v14, v15, 1, v14")
        a(f"v_mov_b32 v9, {RING+HB}"); a("v_add_u32 v14, v9, v14")
        a("ds_write_b16 v14, v17")
        a("s_waitcnt lgkmcnt(0)")
        a("ds_read_b64 v[10:11], v9")
        for k in range(8): a(f"v_mov_b32 v{FA+k}, 0")
        a("s_mov_b32 s44, 15")
        def dbody(last):
            a("s_waitcnt lgkmcnt(0)")
            forms(10, 0, 12, 13); forms(10, 1, 14, 15); forms(11, 0, 16, 17); forms(11, 1, 18, 19)
            if not last:
                a("v_add_u32 v9, 8, v9"); a("ds_read_b64 v[10:11], v9")
                a("s_add_u32 s40, s40, 4096")
            for n in range(4):
                a(f"s_waitcnt vmcnt({3 if not last else 3-n})")
                mac8(FA, FREG + n * 4, 12 + 2 * n, 13 + 2 * n)
                if not last: issue_d(n)
        lab("L_dloop")
        dbody(False)
        a("s_sub_u32 s44, s44, 1"); a("s_cmp_lg_u32 s44, 0"); a("s_cbranch_scc1 L_dloop")
        dbody(True)
    def rdy(lbl):
        if nosync: return
        a("s_lshl_b32 s46, s37, 5"); a("v_mov_b32 v12, s46"); a("s_mov_b32 s47, 0x8000")
        a("s_mov_b64 exec, 1")
        lab(lbl)
        a("global_load_dword v13, v12, s[24:25] sc1")
        a("s_waitcnt vmcnt(0)")
        a("v_readfirstlane_b32 s46, v13")
        a("s_sub_u32 s47, s47, 1"); a("s_cmp_eq_u32 s47, 0"); a(f"s_cbranch_scc1 {lbl}_ok")
        a("s_cmp_ge_u32 s46, 32"); a(f"s_cbranch_scc1 {lbl}_ok")
        a("s_sleep 64"); a(f"s_branch {lbl}")
        lab(lbl + "_ok")
        a("s_mov_b64 exec, -1")
    if noffn: lds_poll("L_nf", 38, 0, 200, 39, 64)
    rdy("L_rdy")
    a("s_lshl_b32 s46, s37, 16"); a(f"s_add_u32 s46, s46, {YOFF}")
    a("s_add_u32 s28, s26, s46"); a("s_addc_u32 s29, s27, 0"); a("s_mov_b32 s30, 0x10000")
    a("v_lshrrev_b32 v12, 1, v2"); a("v_lshlrev_b32 v12, 11, v12")
    a("v_and_b32 v13, 1, v2"); a("v_lshl_add_u32 v12, v13, 5, v12")
    a("s_lshl_b32 s46, s36, 6"); a("s_mov_b32 s47, -2")
    for k in range(8): a(f"v_min_u32 v{FA+k}, s47, v{FA+k}")
    if not nosync:
        a(f"buffer_store_dwordx4 v[{FA}:{FA+3}], v12, s[28:31], s46 offen sc1")
        a(f"buffer_store_dwordx4 v[{FA+4}:{FA+7}], v12, s[28:31], s46 offen offset:16 sc1")
        a("s_waitcnt vmcnt(0)")
    if diag:
        stamp(4); put_stamp(4, 56, 12)
    lab("L_noffn")
    a("s_mov_b32 s32, s12"); a("s_mov_b32 s33, s13"); a("s_mov_b32 s34, 0x400000")
    a("s_lshl_b32 s46, s36, 17"); a("s_lshl_b32 s47, s3, 8"); a("s_add_u32 s46, s46, s47")
    a("v_lshlrev_b32 v5, 15, v3"); a("v_lshl_add_u32 v5, v4, 4, v5"); a("v_add_u32 v5, s46, v5")
    a("s_mov_b32 s40, 0"); a("s_mov_b32 s46, 0x05040100"); a("s_mov_b32 s47, 0x07060302")
    def issue_o(i):
        r = WREG + i * 4
        a(f"buffer_load_dwordx4 v[{r}:{r+3}], v5, s[32:35], s40 offen offset:{(i%4)*1024} {wpol}")
        if i % 4 == 3: a("s_add_u32 s40, s40, 4096")
    for i in range(WOWIN if not nowo else 0): issue_o(i)
    for k in range(16 if not nowo else 0):
        for i in (2 * k, 2 * k + 1):
            if i + WOWIN < 32: issue_o(i + WOWIN)
        a(f"s_waitcnt vmcnt({min(WOWIN, 30-2*k)})")
        A = WREG + 8 * k; B = A + 4
        for d in range(4):
            a(f"v_perm_b32 v12, v{B+d}, v{A+d}, s46")
            a(f"v_perm_b32 v{B+d}, v{B+d}, v{A+d}, s47")
            a(f"v_mov_b32 v{A+d}, v12")
    def gather(srd, lbl, sleep):
        a("s_mov_b32 s47, 0x40000")
        lab(lbl)
        a(f"buffer_load_dwordx4 v[8:11], v1, s[{srd}:{srd+3}], 0 offen sc1")
        a(f"buffer_load_dwordx4 v[12:15], v1, s[{srd}:{srd+3}], 0 offen offset:1024 sc1")
        a("s_waitcnt vmcnt(0)")
        a("v_max3_u32 v16, v8, v9, v10"); a("v_max3_u32 v17, v11, v12, v13"); a("v_max3_u32 v16, v14, v15, v16")
        a("v_max_u32 v16, v16, v17")
        a("v_cmp_eq_u32 vcc, -1, v16")
        a("s_sub_u32 s47, s47, 1"); a("s_cmp_eq_u32 s47, 0"); a(f"s_cbranch_scc1 {lbl}_ok")
        a("s_cmp_eq_u64 vcc, 0"); a(f"s_cbranch_scc1 {lbl}_ok")
        if nosync: a(f"s_branch {lbl}_ok")
        if sleep: a(f"s_sleep {sleep}")
        a(f"s_branch {lbl}")
        lab(lbl + "_ok")
        for k in range(4): a(f"v_add_f32 v{8+k}, v{8+k}, v{12+k}")
        for ro in (4, 8):
            if ro == 4: nop(1)
            for k in range(4): a(f"v_add_f32_dpp v{8+k}, v{8+k}, v{8+k} row_ror:{ro} row_mask:0xf bank_mask:0xf")
        for k in range(4): a(f"v_mov_b32 v{12+k}, v{8+k}")
        for k in range(4): a(f"v_permlane16_swap_b32 v{8+k}, v{12+k}")
        for k in range(4): a(f"v_add_f32 v{8+k}, v{8+k}, v{12+k}")
        for k in range(4): a(f"v_mov_b32 v{12+k}, v{8+k}")
        for k in range(4): a(f"v_permlane32_swap_b32 v{8+k}, v{12+k}")
        for k in range(4): a(f"v_add_f32 v{8+k}, v{8+k}, v{12+k}")
        a("v_cvt_pk_bf16_f32 v12, v8, v9"); a("v_cvt_pk_bf16_f32 v13, v10, v11")
        a("v_lshlrev_b32 v8, 16, v12"); a("v_and_b32 v9, s43, v12"); a("v_lshlrev_b32 v10, 16, v13"); a("v_and_b32 v11, s43, v13")
    a("s_cmp_ge_u32 s3, 2"); a("s_cbranch_scc1 L_noy")
    lds_poll("L_mid", 38, 0, MID, 39, 32)
    a("s_cmp_lg_u32 s3, 0"); a("s_cbranch_scc1 L_doy")
    a("s_cmp_lt_u32 s36, 28"); a("s_cbranch_scc1 L_noy")
    rdy("L_rdy2")
    a("s_branch L_noy")
    lab("L_doy")
    a("v_and_b32 v6, 3, v2"); a("v_lshlrev_b32 v6, 3, v6"); a("s_lshl_b32 s46, s36, 5"); a("v_add_u32 v6, s46, v6")
    a("buffer_load_dwordx2 v[0:1+0], v6, s[28:31], 0 offen".replace("v[0:1+0]", "v[18:19]"))
    gather(52, "L_gy", 32)
    for k in range(4): a(f"v_mul_f32 v{12+k}, 0xbfb8aa3b, v{8+k}")
    for k in range(4): a(f"v_exp_f32 v{12+k}, v{12+k}")
    for k in range(4): a(f"v_add_f32 v{12+k}, 1.0, v{12+k}")
    for k in range(4): a(f"v_rcp_f32 v{12+k}, v{12+k}")
    for k in range(4): a(f"v_mul_f32 v{8+k}, v{8+k}, v{12+k}")
    a("v_cvt_pk_bf16_f32 v0, v8, v9"); a("v_cvt_pk_bf16_f32 v39, v10, v11")
    a("v_mov_b32 v2, v18"); a("v_mov_b32 v38, v19")
    lab("L_noy")
    a("v_lshrrev_b32 v6, 1, v1"); a("v_and_b32 v6, 24, v6"); a("s_lshl_b32 s46, s36, 5"); a("v_add_u32 v6, s46, v6")
    a("s_lshl_b32 s46, s37, 10"); a("s_add_u32 s56, s22, s46"); a("s_addc_u32 s57, s23, 0"); a("s_mov_b32 s58, 1024"); a("s_mov_b32 s59, 0x20000")
    a("s_lshl_b32 s46, s37, 16"); a("s_add_u32 s28, s26, s46"); a("s_addc_u32 s29, s27, 0"); a("s_mov_b32 s30, 0x10000")
    a("v_lshrrev_b32 v5, 1, v4"); a("v_lshlrev_b32 v5, 11, v5")
    a("v_and_b32 v7, 1, v4"); a("v_lshl_add_u32 v5, v7, 5, v5")
    a("v_lshrrev_b32 v7, 1, v3"); a("v_lshl_add_u32 v5, v7, 4, v5")
    a("s_lshl_b32 s44, s3, 14"); a("s_lshl_b32 s46, s36, 6"); a("s_add_u32 s44, s44, s46")
    a("v_lshrrev_b32 v7, 1, v1"); a(f"v_add_u32 v7, {RING}, v7")
    a("s_lshl_b32 s45, s3, 8"); a(f"s_add_u32 s45, s45, {RING+OB}")
    a("v_lshrrev_b32 v4, 2, v1"); a("v_add_u32 v4, s45, v4")
    a("v_lshlrev_b32 v3, 6, v3"); a("v_add_u32 v3, s45, v3")
    a(f"v_mov_b32 v37, {RING+ML}")
    a("s_mov_b32 s47, -2")
    stamp(5)
    a("s_barrier")
    a("ds_read_b128 v[8:11], v37"); a("ds_read_b128 v[12:15], v37 offset:16")
    for w in range(4): a(f"ds_read_b64 v[{16+2*w}:{17+2*w}], v7 offset:{SP+w*512}")
    a("s_waitcnt lgkmcnt(4)")
    a("v_max3_f32 v24, v8, v9, v10"); a("v_max_f32 v24, v24, v11")
    for w in range(4): a(f"v_sub_f32 v{8+w}, v{8+w}, v24")
    for w in range(4): a(f"v_mul_f32 v{8+w}, s42, v{8+w}")
    for w in range(4): a(f"v_exp_f32 v{8+w}, v{8+w}")
    a("v_mul_f32 v24, v8, v12"); a("v_fmac_f32 v24, v9, v13"); a("v_fmac_f32 v24, v10, v14"); a("v_fmac_f32 v24, v11, v15")
    a("v_rcp_f32 v24, v24")
    a("s_waitcnt lgkmcnt(0)")
    a("v_mul_f32 v25, v8, v16"); a("v_mul_f32 v26, v8, v17")
    for w in range(1, 4):
        a(f"v_fmac_f32 v25, v{8+w}, v{16+2*w}"); a(f"v_fmac_f32 v26, v{8+w}, v{17+2*w}")
    a("v_mul_f32 v25, v24, v25"); a("v_mul_f32 v26, v24, v26")
    a("v_cvt_pk_bf16_f32 v25, v25, v26")
    a("ds_write_b32 v4, v25")
    for k in range(8): a(f"v_mov_b32 v{8+k}, 0")
    a("s_waitcnt lgkmcnt(0)")
    for k in range(4): a(f"ds_read_b128 v[{16+4*k}:{19+4*k}], v3 offset:{16*k}")
    for k in range(16):
        if k % 4 == 0: a(f"s_waitcnt lgkmcnt({3-k//4})")
        A = WREG + 8 * k; B = A + 4
        for d in range(4):
            a(f"v_dot2c_f32_bf16 v{8+2*d}, v{A+d}, v{16+k}")
            a(f"v_dot2c_f32_bf16 v{9+2*d}, v{B+d}, v{16+k}")
    nop(3)
    for k in range(4): a(f"v_permlane32_swap_b32 v{8+k}, v{12+k}")
    for k in range(4): a(f"v_add_f32 v{8+k}, v{8+k}, v{12+k}")
    for k in range(4): a(f"v_mov_b32 v{12+k}, v{8+k}")
    for k in range(4): a(f"v_permlane16_swap_b32 v{8+k}, v{12+k}")
    for k in range(4): a(f"v_add_f32 v{8+k}, v{8+k}, v{12+k}")
    for k in range(4): a(f"v_min_u32 v{20+k}, s47, v{8+k}")
    a("s_mov_b32 exec_lo, 0xffff"); a("s_mov_b32 exec_hi, 0xffff")
    a("buffer_store_dwordx4 v[20:23], v5, s[28:31], s44 offen sc1")
    a("s_mov_b64 exec, -1")
    a("s_cmp_lg_u32 s3, 1"); a("s_cbranch_scc1 L_done")
    stamp(6)
    a("v_lshlrev_b32 v24, 16, v0"); a("v_and_b32 v25, s43, v0"); a("v_lshlrev_b32 v26, 16, v39"); a("v_and_b32 v27, s43, v39")
    a("v_lshlrev_b32 v28, 16, v2"); a("v_and_b32 v29, s43, v2"); a("v_lshlrev_b32 v30, 16, v38"); a("v_and_b32 v31, s43, v38")
    gather(48, "L_gs", 0)
    for k in range(4): a(f"v_mul_f32 v{8+k}, v{8+k}, v{24+k}")
    a("v_cvt_pk_bf16_f32 v12, v8, v9"); a("v_cvt_pk_bf16_f32 v13, v10, v11")
    a("v_lshlrev_b32 v8, 16, v12"); a("v_and_b32 v9, s43, v12"); a("v_lshlrev_b32 v10, 16, v13"); a("v_and_b32 v11, s43, v13")
    for k in range(4): a(f"v_add_f32 v{8+k}, v{8+k}, v{28+k}")
    a("v_cvt_pk_bf16_f32 v12, v8, v9"); a("v_cvt_pk_bf16_f32 v13, v10, v11")
    a("s_mov_b64 exec, 15")
    a("buffer_store_dwordx2 v[12:13], v6, s[56:59], 0 offen")
    if diag:
        stamp(7)
        a("s_mov_b64 exec, -1")
        put_stamp(7, 8, 20); put_stamp(5, 40, 20); put_stamp(6, 48, 20)
    lab("L_done")
    a("s_endpgm")
    L.append(".p2align 10")
    lab("L_end")
    L.append('.section .rodata,"a"'); L.append(".p2align 6"); L.append(f".amdhsa_kernel {KN}")
    a(".amdhsa_next_free_vgpr 168"); a(".amdhsa_next_free_sgpr 80"); a(".amdhsa_accum_offset 168")
    a(".amdhsa_group_segment_fixed_size 0"); a(".amdhsa_kernarg_size 96"); a(".amdhsa_user_sgpr_count 2")
    a(".amdhsa_user_sgpr_kernarg_segment_ptr 1"); a(".amdhsa_system_sgpr_workgroup_id_x 1")
    a(".amdhsa_float_denorm_mode_32 3")
    L.append(".end_amdhsa_kernel")
    return "\n".join(L) + "\n"

if __name__ == "__main__":
    for spec in sys.argv[1:]:
        out, _, kvs = spec.partition(":")
        kw = {}
        if kvs:
            for kv in kvs.split(","):
                k, v = kv.split("=")
                kw[k] = int(v) if v.lstrip("-").isdigit() else v.replace("+", " ")
        open(out, "w").write(gen(**kw))
```

```python
import sys
KN = "recurrent_scan__mha_block_cached__geglu_ffn__decode_kernel"
HEADER = open("recurrent_scan__mha_block_cached__geglu_ffn__decode.s.ref").read().split("; Override launch")[0]

XN, QP, SP, ML, CT, OB, HB = 0, 1024, 1024, 3072, 3136, 3328, 4352
MISC = 4608
YOFF = 0x80000
STOFF = 0x30000000
LOG2E = 0x3fb8aa3b
SCALE = 0x3db504f3

def gen(D=18, D1=0, N1=4, D3=0, N3=0, FW=4, WOS=0, WQWIN=5, WOWIN=2, wpol="nt", diag=0, kvpol="nt", noffn=0, nowo=0, nocomp=0, noq=0, nosync=0,
        MID=448, tl=0, hitx=0, lgk=1, prog=0, NSLOT=19, xpol='nt', gpol='sc1 nt', spol='sc1', pfpol='nt', CLR=0, pf=1, lprio=3, hprio=0):
    L = []
    RING = NSLOT * 8192
    LDS_BYTES = RING + MISC
    assert LDS_BYTES <= 163840
    def a(s): L.append("  " + s)
    def lab(s): L.append(s + ":")
    def nop(n): a(f"s_nop {n-1}")
    def stamp(i):
        if diag: a(f"s_memrealtime s[{60+2*i}:{61+2*i}]")
    def put_stamp(i, off, vt):
        a("s_waitcnt lgkmcnt(0)")
        a("s_lshl_b32 s45, s2, 6"); a(f"s_add_u32 s45, s45, {STOFF}"); a(f"v_mov_b32 v{vt+2}, s45")
        a(f"v_mov_b32 v{vt}, s{60+2*i}"); a(f"v_mov_b32 v{vt+1}, s{61+2*i}")
        a("s_mov_b64 exec, 1")
        a(f"global_store_dwordx2 v{vt+2}, v[{vt}:{vt+1}], s[26:27] offset:{off}")
        a("s_mov_b64 exec, -1")
        nop(2)
    L.append(HEADER.rstrip("\n"))
    L.append(f"; @launch grid=(256,1,1) block=(576,1,1) lds={LDS_BYTES}")
    L.append('.amdgcn_target "amdgcn-amd-amdhsa--gfx950"')
    L.append(".text"); L.append(f".globl {KN}"); L.append(".p2align 8"); L.append(f".type {KN},@function"); lab(KN)
    a("s_cmp_ge_u32 s2, 256")
    a("s_cbranch_scc1 L_done")
    a("s_load_dwordx8 s[4:11], s[0:1], 0")
    stamp(0)
    a("v_lshrrev_b32 v1, 6, v0")
    a("v_and_b32 v2, 63, v0")
    a("v_readfirstlane_b32 s3, v1")
    a("v_lshlrev_b32 v1, 4, v2")
    a("s_and_b32 s36, s2, 7")
    a("s_lshl_b32 s36, s36, 2")
    a("s_bfe_u32 s37, s2, 0x20003")
    a("s_add_u32 s36, s36, s37")
    a("s_lshr_b32 s37, s2, 5")
    a("s_cmp_lg_u32 s3, 0")
    a("s_cbranch_scc1 L_notloader")

    if lprio: a(f"s_setprio {lprio}")
    a("s_lshl_b32 s38, s37, 5"); a("s_add_u32 s38, s38, s36"); a("s_lshl_b32 s38, s38, 20")
    a("s_mov_b32 s30, 0x100000"); a("s_mov_b32 s31, 0x20000"); a("s_mov_b32 s34, 0x100000"); a("s_mov_b32 s35, 0x20000")
    a("s_mov_b32 s40, 0"); a("s_mov_b32 s41, 0")
    a(f"v_mov_b32 v3, {RING+CT}")
    a("v_lshl_add_u32 v4, v2, 2, v3"); a("v_mov_b32 v5, 0")
    a("s_mov_b64 exec, 0xff")
    a("ds_write_b32 v4, v5")
    a("s_mov_b64 exec, -1")
    a("s_mov_b32 m0, 0")
    a("s_waitcnt lgkmcnt(0)")
    a("s_add_u32 s28, s6, s38"); a("s_addc_u32 s29, s7, 0"); a("s_add_u32 s32, s8, s38"); a("s_addc_u32 s33, s9, 0")
    def publish(k):
        a(f"v_add_u32 v5, {k}, v7"); a("ds_write_b32 v3, v5")
    def ld_step(m, Dw, first=False, issue=True, rem=None):
        j = m & 7
        if issue:
            if j == 0 and not (first and m == 0): a("s_mov_b32 m0, s41")
            if j == 4: a("s_add_u32 m0, s41, 4096")
        waited = not (first and m < Dw)
        if waited: a(f"s_waitcnt vmcnt({Dw-1 if issue else rem})")
        elif j in (0, 4) and m: nop(1)
        if issue:
            srd = 28 if j < 4 else 32
            a(f"buffer_load_dwordx4 v1, s[{srd}:{srd+3}], s40 offen offset:{(j&3)*1024} {kvpol} lds")
        if waited and (m - Dw + 1) % 4 == 0: publish((m - Dw + 1) // 4)
        if issue and j == 7:
            a("s_add_u32 s40, s40, 4096"); a("s_add_u32 s41, s41, 8192")
            a(f"s_cmp_eq_u32 s41, {RING}"); a("s_cselect_b32 s41, 0, s41")
    phases = []
    if D1: phases.append((D1, N1))
    if D3: phases += [(D, 64 - N3), (D3, 64)]
    else: phases.append((D, 64))
    a("v_mov_b32 v7, 0")
    if prog: a("v_mov_b32 v10, 0"); lgk = 0
    for m in range(32):
        ld_step(m, phases[0][0], first=True)
        if m == 7: a("s_barrier")
    a("v_mov_b32 v7, 8")
    def fw(w): return (w - NSLOT) % 4
    def fo(w): return (w - NSLOT) // 4 + 1
    a("s_mov_b32 s44, 1")
    a(f"ds_read_b32 v6, v3 offset:{16 + 4 * fw(0)}")
    a("s_waitcnt lgkmcnt(0)")
    for pi, (Dw, upto) in enumerate(phases):
        npub = sum(1 for j in range(5, 8) if (j - Dw + 1) % 4 == 0) if lgk else 0
        if pi: a("s_waitcnt lgkmcnt(0)")
        lab(f"L_lloop{pi}")
        if prog: a("s_memrealtime s[76:77]")
        for w in range(4):
            a(f"s_waitcnt lgkmcnt({npub})")
            a("v_readfirstlane_b32 s45, v6")
            a(f"s_sub_i32 s45, s45, {fo(w)}")
            a("s_cmp_ge_i32 s45, s44")
            a(f"s_cbranch_scc0 L_lslow{pi}_{w}")
            lab(f"L_lfree{pi}_{w}")
            for j in range(8):
                ld_step(8 * w + j, Dw)
                if j == 4: a(f"ds_read_b32 v6, v3 offset:{16 + 4 * fw((w + 1) & 3)}")
        if prog:
            a("s_mov_b32 m0, s44"); nop(4); a("v_writelane_b32 v10, s76, m0")
        a("v_add_u32 v7, 8, v7")
        a("s_add_u32 s44, s44, 1")
        a(f"s_cmp_lg_u32 s44, {upto}")
        a(f"s_cbranch_scc1 L_lloop{pi}")
    Dl = phases[-1][0]
    for k in range(Dl):
        ld_step(k, Dl, issue=False, rem=Dl - 1 - k)
    if diag:
        stamp(2)
        a("s_load_dwordx2 s[26:27], s[0:1], 88")
        if prog:
            a("s_waitcnt lgkmcnt(0)")
            a("v_writelane_b32 v10, s64, 0")
            a("s_lshl_b32 s45, s2, 8"); a(f"s_add_u32 s45, s45, {STOFF + 0x4000}"); a("v_lshrrev_b32 v11, 2, v1"); a("v_add_u32 v11, s45, v11")
            a("global_store_dword v11, v10, s[26:27]")
        put_stamp(0, 0, 12); put_stamp(2, 24, 12)
    a("s_endpgm")
    for pi in range(len(phases)):
        for w in range(4):
            lab(f"L_lslow{pi}_{w}")
            a("s_sleep 1")
            a(f"ds_read_b32 v6, v3 offset:{16 + 4 * fw(w)}")
            a("s_waitcnt lgkmcnt(0)")
            a("v_readfirstlane_b32 s45, v6")
            a(f"s_sub_i32 s45, s45, {fo(w)}")
            a("s_cmp_ge_i32 s45, s44")
            a(f"s_cbranch_scc0 L_lslow{pi}_{w}")
            a(f"s_branch L_lfree{pi}_{w}")

    def wave_allsum(r, t):
        for ro in (8, 4, 2, 1):
            nop(2)
            a(f"v_add_f32_dpp v{r}, v{r}, v{r} row_ror:{ro} row_mask:0xf bank_mask:0xf")
        a(f"v_mov_b32 v{t}, v{r}"); nop(2)
        a(f"v_permlane16_swap_b32 v{r}, v{t}"); a(f"v_add_f32 v{r}, v{r}, v{t}"); a(f"v_mov_b32 v{t}, v{r}"); nop(2)
        a(f"v_permlane32_swap_b32 v{r}, v{t}"); a(f"v_add_f32 v{r}, v{r}, v{t}")
    def layernorm(hook):
        for k in range(4):
            a(f"v_lshlrev_b32 v{12+2*k}, 16, v{8+k}"); a(f"v_and_b32 v{13+2*k}, s43, v{8+k}")
        a("v_add_f32 v20, v12, v13"); a("v_add_f32 v21, v14, v15"); a("v_add_f32 v22, v16, v17"); a("v_add_f32 v23, v18, v19")
        a("v_add_f32 v20, v20, v21"); a("v_add_f32 v22, v22, v23"); a("v_add_f32 v20, v20, v22")
        wave_allsum(20, 21); hook()
        a("v_mul_f32 v20, 0x3b000000, v20")
        a("v_mov_b32 v22, 0")
        for k in range(8):
            a(f"v_sub_f32 v21, v{12+k}, v20"); a("v_fmac_f32 v22, v21, v21")
        hook(); wave_allsum(22, 21); hook()
        a("v_mul_f32 v22, 0x3b000000, v22")
        a("v_cvt_pk_bf16_f32 v20, v20, v22")
        a("v_and_b32 v22, s43, v20"); a("v_lshlrev_b32 v20, 16, v20")
        a("v_add_f32 v22, 0x3727c5ac, v22")
        a("v_cvt_pk_bf16_f32 v22, v22, v22"); a("v_and_b32 v22, s43, v22")
        a("v_sqrt_f32 v22, v22"); nop(1)
        a("v_cvt_pk_bf16_f32 v22, v22, v22"); a("v_and_b32 v22, s43, v22")
        a("v_rcp_f32 v22, v22"); hook()
        for k in range(8): a(f"v_sub_f32 v{12+k}, v{12+k}, v20")
        for k in range(4): a(f"v_cvt_pk_bf16_f32 v{8+k}, v{12+2*k}, v{13+2*k}")
        for k in range(4):
            a(f"v_lshlrev_b32 v{12+2*k}, 16, v{8+k}"); a(f"v_and_b32 v{13+2*k}, s43, v{8+k}")
        for k in range(8): a(f"v_mul_f32 v{12+k}, v22, v{12+k}")
        for k in range(4): a(f"v_cvt_pk_bf16_f32 v{8+k}, v{12+2*k}, v{13+2*k}")
    def forms(pair, odd, lo, hi):
        if not odd:
            a(f"v_and_b32 v{lo}, 0xffff, v{pair}"); a(f"v_lshlrev_b32 v{hi}, 16, v{pair}")
        else:
            a(f"v_lshrrev_b32 v{lo}, 16, v{pair}"); a(f"v_and_b32 v{hi}, s43, v{pair}")
    def mac8(acc, w, lo, hi):
        for d in range(4):
            a(f"v_dot2c_f32_bf16 v{acc+2*d}, v{w+d}, v{lo}")
            a(f"v_dot2c_f32_bf16 v{acc+2*d+1}, v{w+d}, v{hi}")
    def lds_poll(lbl, addr, off, tgt, vt, sleep):
        lab(lbl)
        a(f"ds_read_b32 v{vt}, v{addr} offset:{off}")
        a("s_waitcnt lgkmcnt(0)")
        a(f"v_readfirstlane_b32 s45, v{vt}")
        a(f"s_cmp_ge_u32 s45, {tgt}")
        a(f"s_cbranch_scc1 {lbl}_ok")
        a(f"s_sleep {sleep}")
        a(f"s_branch {lbl}")
        lab(lbl + "_ok")
    WREG = 40

    lab("L_notloader")
    a("v_lshrrev_b32 v3, 4, v2")
    a("v_and_b32 v4, 15, v2")
    a("s_mov_b32 s43, 0xffff0000")
    a("s_mov_b32 s42, " + hex(LOG2E))
    a("s_lshl_b32 s39, s37, 10")
    a("s_mov_b32 s30, 1024"); a("s_mov_b32 s31, 0x20000"); a("s_mov_b32 s35, 0x20000")
    a("s_cmp_ge_u32 s3, 5")
    a("s_cbranch_scc1 L_helper")

    a("s_sub_u32 s3, s3, 1")
    a("s_lshl_b32 s38, s3, 20"); a("s_lshl_b32 s46, s36, 8"); a("s_add_u32 s38, s38, s46")
    a(f"v_lshlrev_b32 v5, {13 if tl else 18}, v3"); a("v_lshl_add_u32 v5, v4, 4, v5"); a("v_add_u32 v5, s38, v5")
    a("s_mov_b32 s34, 0x400000")
    a("s_mov_b32 s40, 0")
    a("s_waitcnt lgkmcnt(0)")
    a("s_add_u32 s28, s4, s39"); a("s_addc_u32 s29, s5, 0")
    a("s_mov_b32 s32, s10"); a("s_mov_b32 s33, s11")
    a(f"buffer_load_dwordx4 v[8:11], v1, s[28:31], 0 offen {xpol}")
    wq = {"issued": 0}
    def issue_wq(window=True):
        i = wq["issued"]
        if i >= 32 or noq: return
        if window: a(f"s_waitcnt vmcnt({WQWIN-1})")
        r = WREG + i * 4
        a(f"buffer_load_dwordx4 v[{r}:{r+3}], v5, s[32:35], s40 offen {wpol}")
        a(f"s_add_u32 s40, s40, {0 if hitx else 0x8000 if tl else 0x2000}")
        wq["issued"] += 1
    for i in range(WQWIN): issue_wq(False)
    a("s_barrier")
    a(f"s_waitcnt vmcnt({WQWIN if not noq else 0})")
    layernorm(issue_wq)
    a(f"s_mov_b32 s45, {RING+XN}")
    a("v_add_u32 v6, s45, v1")
    a("ds_write_b128 v6, v[8:11]")
    issue_wq()
    a("s_lshl_b32 s46, s3, 8"); a("s_add_u32 s46, s46, s45")
    a("v_lshlrev_b32 v7, 6, v3"); a("v_add_u32 v7, s46, v7")
    a("s_waitcnt lgkmcnt(0)")
    for k in range(4): a(f"ds_read_b128 v[{16+4*k}:{19+4*k}], v7 offset:{16*k}")
    for k in range(8): a(f"v_mov_b32 v{32+k}, 0")
    a("s_waitcnt lgkmcnt(0)")
    for i in range(32 if not noq else 0):
        forms(16 + i // 2, i & 1, 12, 13)
        if wq["issued"] < 32: issue_wq()
        else: a(f"s_waitcnt vmcnt({31 - i})")
        mac8(32, WREG + i * 4, 12, 13)
    a("v_lshlrev_b32 v7, 5, v4")
    a(f"v_add_u32 v7, {RING}, v7")
    a("v_lshl_add_u32 v6, v3, 2, v7")
    a("s_lshl_b32 s46, s3, 9"); a("v_add_u32 v6, s46, v6")
    for k in range(4): a(f"v_permlane16_swap_b32 v{32+2*k}, v{33+2*k}")
    for k in range(4): a(f"v_add_f32 v{32+2*k}, v{32+2*k}, v{33+2*k}")
    a(f"v_mov_b32 v38+1, 1".replace("v38+1", "v39"))
    a("v_permlane32_swap_b32 v32, v34"); a("v_permlane32_swap_b32 v36, v38")
    a("v_add_f32 v32, v32, v34"); a("v_add_f32 v36, v36, v38")
    a(f"ds_write_b32 v6, v32 offset:{QP}"); a(f"ds_write_b32 v6, v36 offset:{QP+16}")
    a(f"v_mov_b32 v38, {RING+CT}")
    a("s_waitcnt lgkmcnt(0)")
    a("s_mov_b64 exec, 1")
    a("ds_add_u32 v38, v39 offset:4")
    a("s_mov_b64 exec, -1")
    lds_poll("L_qw", 38, 4, 4, 39, 1)
    for w in range(4):
        a(f"ds_read_b128 v[{40+w*8}:{43+w*8}], v7 offset:{QP+w*512}")
        a(f"ds_read_b128 v[{44+w*8}:{47+w*8}], v7 offset:{QP+w*512+16}")
    a("s_mov_b32 s41, " + hex(SCALE))
    for k in range(8): a(f"v_mov_b32 v{8+k}, 0")
    a("v_mov_b32 v16, 0xff800000"); a("v_mov_b32 v17, 0")
    a("s_lshl_b32 s44, s3, 13"); a("v_add_u32 v36, s44, v1")
    a("s_lshl_b32 s46, s3, 2"); a("v_add_u32 v37, s46, v38")
    a("s_lshl_b32 s47, s3, 1"); a("s_add_u32 s47, s47, 1")
    a("v_mov_b32 v27, 0")
    a("s_waitcnt lgkmcnt(4)")
    for k in range(8): a(f"v_add_f32 v{40+k}, v{40+k}, v{48+k}")
    a("s_waitcnt lgkmcnt(0)")
    for k in range(8): a(f"v_add_f32 v{56+k}, v{56+k}, v{64+k}")
    for k in range(8): a(f"v_add_f32 v{40+k}, v{40+k}, v{56+k}")
    for k in range(4): a(f"v_cvt_pk_bf16_f32 v{72+k}, v{40+2*k}, v{41+2*k}")
    stamp(1)
    Q = 72; KR = 40; VR = 56
    S = [18, 19, 20, 21]; T = [22, 23]; MN = 24; MS = 25; AL = 26
    PLO = [28, 29, 30, 31]; PHI = [32, 33, 34, 35]
    def unpack():
        a(f"v_cvt_pk_bf16_f32 v{T[0]}, v{S[0]}, v{S[1]}")
        a(f"v_cvt_pk_bf16_f32 v{T[1]}, v{S[2]}, v{S[3]}")
        a(f"v_lshlrev_b32 v{S[0]}, 16, v{T[0]}")
        a(f"v_and_b32 v{S[1]}, s43, v{T[0]}")
        a(f"v_lshlrev_b32 v{S[2]}, 16, v{T[1]}")
        a(f"v_and_b32 v{S[3]}, s43, v{T[1]}")
    lab("L_cloop")
    lds_poll("L_pk", 38, 0, "s47", 39, 1)
    for j in range(4): a(f"ds_read_b128 v[{KR+4*j}:{KR+4*j+3}], v36 offset:{j*1024}")
    if not nocomp:
        for j in range(4): a(f"v_mov_b32 v{S[j]}, 0")
        for j in range(4):
            a(f"s_waitcnt lgkmcnt({3-j})")
            for d in range(4): a(f"v_dot2c_f32_bf16 v{S[j]}, v{KR+4*j+d}, v{Q+d}")
        for ri, r in enumerate((8, 4, 2, 1)):
            for j in range(4):
                if ri == 0 and j == 3: nop(1)
                a(f"v_add_f32_dpp v{S[j]}, v{S[j]}, v{S[j]} row_ror:{r} row_mask:0xf bank_mask:0xf")
        unpack()
        for j in range(4): a(f"v_mul_f32 v{S[j]}, s41, v{S[j]}")
        unpack()
        a(f"v_max3_f32 v{MN}, v{S[0]}, v{S[1]}, v16")
        a(f"v_max3_f32 v{MN}, v{S[2]}, v{S[3]}, v{MN}")
        a(f"v_mul_f32 v{MS}, s42, v{MN}")
        a(f"v_fma_f32 v{AL}, v16, s42, -v{MS}")
        for j in range(4): a(f"v_fma_f32 v{S[j]}, v{S[j]}, s42, -v{MS}")
        a(f"v_exp_f32 v{AL}, v{AL}")
        for j in range(4): a(f"v_exp_f32 v{S[j]}, v{S[j]}")
        a(f"v_mov_b32 v16, v{MN}")
        for q in range(8): a(f"v_mul_f32 v{8+q}, v{AL}, v{8+q}")
        a(f"v_fma_f32 v17, v17, v{AL}, v{S[0]}")
        a(f"v_add_f32 v{T[0]}, v{S[1]}, v{S[2]}")
        for j in range(4): a(f"v_cvt_pk_bf16_f32 v{PLO[j]}, v{S[j]}, 0")
        for j in range(4): a(f"v_cvt_pk_bf16_f32 v{PHI[j]}, 0, v{S[j]}")
        a(f"v_add_f32 v17, v17, v{S[3]}")
        a(f"v_add_f32 v17, v17, v{T[0]}")
    a("s_cmp_gt_u32 s45, s47")
    a("s_cbranch_scc1 L_pv_ok")
    a("s_add_u32 s46, s47, 1")
    lds_poll("L_pv", 38, 0, "s46", 39, 1)
    for j in range(4): a(f"ds_read_b128 v[{VR+4*j}:{VR+4*j+3}], v36 offset:{4096+j*1024}")
    a("v_add_u32 v27, 1, v27")
    a("s_add_u32 s44, s44, 0x8000"); a(f"s_sub_u32 s46, s44, {RING}"); a("s_cselect_b32 s44, s44, s46")
    a("v_add_u32 v36, s44, v1")
    a("s_add_u32 s47, s47, 8")
    for j in range(4):
        a(f"s_waitcnt lgkmcnt({3-j})")
        if j == 3: a("ds_write_b32 v37, v27 offset:16")
        if not nocomp:
            for d in range(4):
                a(f"v_dot2c_f32_bf16 v{8+2*d}, v{VR+4*j+d}, v{PLO[j]}")
                a(f"v_dot2c_f32_bf16 v{9+2*d}, v{VR+4*j+d}, v{PHI[j]}")
    a("s_cmp_lt_u32 s47, 512")
    a("s_cbranch_scc1 L_cloop")
    a("v_mov_b32 v18, v16"); a("v_mov_b32 v19, v16"); nop(2)
    a("v_permlane16_swap_b32 v18, v19"); a("v_max_f32 v18, v18, v19"); a("v_mov_b32 v19, v18"); nop(2)
    a("v_permlane32_swap_b32 v18, v19"); a("v_max_f32 v18, v18, v19")
    a("v_sub_f32 v20, v16, v18"); a("v_mul_f32 v20, s42, v20"); a("v_exp_f32 v20, v20"); nop(1)
    for k in range(8): a(f"v_mul_f32 v{8+k}, v20, v{8+k}")
    a("v_mul_f32 v17, v20, v17")
    a("v_mov_b32 v21, v17")
    for k in range(4): a(f"v_permlane16_swap_b32 v{8+2*k}, v{9+2*k}")
    a("v_permlane16_swap_b32 v17, v21")
    for k in range(4): a(f"v_add_f32 v{8+2*k}, v{8+2*k}, v{9+2*k}")
    a("v_add_f32 v17, v17, v21"); a("v_mov_b32 v21, v17")
    a("v_permlane32_swap_b32 v8, v10"); a("v_permlane32_swap_b32 v12, v14"); a("v_permlane32_swap_b32 v17, v21")
    a("v_add_f32 v8, v8, v10"); a("v_add_f32 v12, v12, v14"); a("v_add_f32 v17, v17, v21")
    a(f"ds_write_b32 v6, v8 offset:{SP}"); a(f"ds_write_b32 v6, v12 offset:{SP+16}")
    a(f"v_subrev_u32 v37, {CT-ML}, v37")
    a("ds_write_b32 v37, v18"); a("ds_write_b32 v37, v17 offset:16")
    a("s_waitcnt lgkmcnt(0)")
    a("s_barrier")
    if diag:
        a("s_cmp_lg_u32 s3, 0"); a("s_cbranch_scc1 L_done")
        a("s_load_dwordx2 s[26:27], s[0:1], 88")
        put_stamp(1, 16, 8)
    a("s_endpgm")

    lab("L_helper")
    if hprio: a(f"s_setprio {hprio}")
    a("s_sub_u32 s3, s3, 5")
    if pf:
        a("s_cmp_lg_u32 s3, 2"); a("s_cbranch_scc1 L_nopf")
        a("s_getpc_b64 s[46:47]")
        lab("L_pc")
        a(f"s_sub_u32 s46, s46, L_pc-{KN}"); a("s_subb_u32 s47, s47, 0")
        a("s_lshr_b32 s45, s2, 3"); a("s_min_u32 s45, s45, (L_end-" + KN + ")/1024-1"); a("s_lshl_b32 s45, s45, 10")
        a("v_add_u32 v6, s45, v1")
        a(f"global_load_dwordx4 v[8:11], v6, s[46:47] {pfpol}")
        lab("L_nopf")
    a("s_load_dwordx2 s[12:13], s[0:1], 32")
    a("s_load_dwordx8 s[16:23], s[0:1], 48")
    a("s_load_dwordx4 s[24:27], s[0:1], 80")
    a("s_barrier")
    a("s_waitcnt lgkmcnt(0)")
    a("s_add_u32 s28, s4, s39"); a("s_addc_u32 s29, s5, 0")
    a("s_lshl_b32 s38, s37, 16")
    a("s_add_u32 s48, s26, s38"); a("s_addc_u32 s49, s27, 0"); a("s_mov_b32 s50, 0x10000"); a("s_mov_b32 s51, 0x20000")
    a(f"s_add_u32 s52, s48, {YOFF}"); a("s_addc_u32 s53, s49, 0"); a(f"s_mov_b32 s54, {28*2048}"); a("s_mov_b32 s55, 0x20000")
    a(f"v_mov_b32 v38, {RING+CT}")
    lds_poll("L_hq", 38, 4, 4, 39, 16)
    a("s_cmp_lg_u32 s3, 0"); a("s_cbranch_scc1 L_noffn")
    a("s_cmp_ge_u32 s36, 28"); a("s_cbranch_scc1 L_clr")
    FA = 40; FREG = 56
    if not noffn:
        a("s_mov_b32 s28, s16"); a("s_mov_b32 s29, s17"); a("s_mov_b32 s30, 0x1c0000")
        a("s_mov_b32 s32, s18"); a("s_mov_b32 s33, s19"); a("s_mov_b32 s34, 0x1c0000")
        a("v_lshrrev_b32 v6, 3, v2"); a("v_and_b32 v7, 7, v2")
        a(f"s_mov_b32 s46, {7168 if tl else 229376}"); a("v_mul_lo_u32 v8, v6, s46")
        a("v_lshl_add_u32 v8, v7, 4, v8"); a("s_lshl_b32 s46, s36, 7"); a("v_add_u32 v8, s46, v8")
        a("v_lshlrev_b32 v9, 7, v6"); a(f"v_add_u32 v9, {RING+XN}, v9")
        a("s_mov_b32 s40, 0")
        def issue_f(n):
            r = FREG + (n % 4) * 4; srd = 28 if n % 2 == 0 else 32
            so = "s40" if n < 4 else "s41"
            a(f"buffer_load_dwordx4 v[{r}:{r+3}], v8, s[{srd}:{srd+3}], {so} offen offset:{3584*((n%4)//2)} {wpol}")
        for n in range(FW): issue_f(n)
        a(f"s_mov_b32 s41, {0 if hitx else 7168*8 if tl else 7168}")
        a("ds_read_b32 v10, v9")
        for k in range(16): a(f"v_mov_b32 v{FA+k}, 0")
        a("s_mov_b32 s44, 31")
        def fbody(last):
            a("s_waitcnt lgkmcnt(0)")
            forms(10, 0, 12, 13); forms(10, 1, 14, 15)
            if not last:
                a("v_add_u32 v9, 4, v9"); a("ds_read_b32 v10, v9")
            for n in range(4):
                a(f"s_waitcnt vmcnt({FW-1 if not last else min(FW-1, 3-n)})")
                mac8(FA + 8 * (n % 2), FREG + n * 4, 12 + 2 * (n // 2), 13 + 2 * (n // 2))
                if not last or n + FW < 4: issue_f(n + FW)
            if not last:
                a("s_mov_b32 s40, s41"); a(f"s_add_u32 s41, s41, {0 if hitx else 7168*8 if tl else 7168}")
        lab("L_floop")
        fbody(False)
        a("s_sub_u32 s44, s44, 1"); a("s_cmp_lg_u32 s44, 0"); a("s_cbranch_scc1 L_floop")
        fbody(True)
        a("s_mov_b32 s28, s20"); a("s_mov_b32 s29, s21")
        a("s_lshl_b32 s40, s36, 16")
        a(f"s_add_u32 s41, s40, {0 if hitx else 4096}")
        def issue_d(n):
            r = FREG + (n % 4) * 4
            so = "s40" if n < 4 else "s41"
            a(f"buffer_load_dwordx4 v[{r}:{r+3}], v1, s[28:31], {so} offen offset:{(n%4)*1024} {wpol}")
        for n in range(FW): issue_d(n)
        a("v_and_b32 v14, 8, v2"); a("v_cmp_ne_u32 vcc, 0, v14")
        for acc in (FA, FA + 8):
            for k in range(4): a(f"v_permlane32_swap_b32 v{acc+k}, v{acc+4+k}")
            for k in range(4): a(f"v_add_f32 v{acc+k}, v{acc+k}, v{acc+4+k}")
            nop(1)
            a(f"v_permlane16_swap_b32 v{acc}, v{acc+2}"); a(f"v_permlane16_swap_b32 v{acc+1}, v{acc+3}")
            a(f"v_add_f32 v{acc}, v{acc}, v{acc+2}"); a(f"v_add_f32 v{acc+1}, v{acc+1}, v{acc+3}")
            nop(2)
            a(f"v_add_f32_dpp v{acc}, v{acc}, v{acc} row_ror:8 row_mask:0xf bank_mask:0xf")
            a(f"v_add_f32_dpp v{acc+1}, v{acc+1}, v{acc+1} row_ror:8 row_mask:0xf bank_mask:0xf")
            a(f"v_cndmask_b32 v{acc}, v{acc}, v{acc+1}, vcc")
        a(f"v_cvt_pk_bf16_f32 v14, v{FA}, v{FA+8}")
        a("v_lshlrev_b32 v15, 16, v14"); a("v_and_b32 v16, s43, v14")
        a("v_mul_f32 v17, v15, v15"); a("v_mul_f32 v17, v17, v15")
        a("v_mov_b32 v18, 0x3d372713"); a("v_fma_f32 v17, v17, v18, v15")
        a("v_mul_f32 v17, 0xc0135761, v17")
        a("v_exp_f32 v17, v17"); nop(1)
        a("v_add_f32 v17, 1.0, v17"); a("v_rcp_f32 v17, v17"); nop(1)
        a("v_mul_f32 v17, v15, v17")
        a("v_cvt_pk_bf16_f32 v17, v17, v17"); a("v_and_b32 v17, s43, v17")
        a("v_mul_f32 v17, v17, v16")
        a("v_cvt_pk_bf16_f32 v17, v17, v17")
        a("v_lshlrev_b32 v14, 4, v7")
        a("v_lshrrev_b32 v15, 5, v2"); a("v_lshl_add_u32 v14, v15, 3, v14")
        a("v_bfe_u32 v15, v2, 4, 1"); a("v_lshl_add_u32 v14, v15, 2, v14")
        a("v_bfe_u32 v15, v2, 3, 1"); a("v_lshl_add_u32 v14, v15, 1, v14")
        a(f"v_mov_b32 v9, {RING+HB}"); a("v_add_u32 v14, v9, v14")
        a("ds_write_b16 v14, v17")
        a("s_waitcnt lgkmcnt(0)")
        a("ds_read_b64 v[10:11], v9")
        for k in range(8): a(f"v_mov_b32 v{FA+k}, 0")
        a("s_mov_b32 s44, 15")
        def dbody(last):
            a("s_waitcnt lgkmcnt(0)")
            forms(10, 0, 12, 13); forms(10, 1, 14, 15); forms(11, 0, 16, 17); forms(11, 1, 18, 19)
            if not last:
                a("v_add_u32 v9, 8, v9"); a("ds_read_b64 v[10:11], v9")
            for n in range(4):
                a(f"s_waitcnt vmcnt({FW-1 if not last else min(FW-1, 3-n)})")
                mac8(FA, FREG + n * 4, 12 + 2 * n, 13 + 2 * n)
                if not last or n + FW < 4: issue_d(n + FW)
            if not last:
                a("s_mov_b32 s40, s41"); a(f"s_add_u32 s41, s41, {0 if hitx else 4096}")
        lab("L_dloop")
        dbody(False)
        a("s_sub_u32 s44, s44, 1"); a("s_cmp_lg_u32 s44, 0"); a("s_cbranch_scc1 L_dloop")
        dbody(True)
    if noffn: lds_poll("L_nf", 38, 0, 200, 39, 64)
    a("v_lshlrev_b32 v12, 1, v1"); a("s_lshl_b32 s46, s36, 11")
    nop(2)
    if not nosync:
        a(f"buffer_store_dwordx4 v[{FA}:{FA+3}], v12, s[52:55], s46 offen {spol}")
        a(f"buffer_store_dwordx4 v[{FA+4}:{FA+7}], v12, s[52:55], s46 offen offset:16 {spol}")
    lab("L_clr")
    if CLR: lds_poll("L_cw", 38, 0, CLR, 39, 64)
    if not nosync:
        a("s_lshl_b32 s46, s36, 11")
        for k in range(4): a(f"v_mov_b32 v{8+k}, -1")
        a(f"buffer_store_dwordx4 v[8:11], v1, s[48:51], s46 offen {spol}")
        a(f"buffer_store_dwordx4 v[8:11], v1, s[48:51], s46 offen offset:1024 {spol}")
        a("s_lshl_b32 s46, s37, 5"); a("v_mov_b32 v12, s46"); a("v_mov_b32 v13, 1")
        a("s_waitcnt vmcnt(0)")
        a("s_mov_b64 exec, 1")
        a("global_atomic_add v12, v13, s[24:25] sc1")
        a("s_mov_b64 exec, -1")
    if diag:
        stamp(4); put_stamp(4, 56, 12)
    lab("L_noffn")
    a("s_mov_b32 s32, s12"); a("s_mov_b32 s33, s13"); a("s_mov_b32 s34, 0x400000")
    a("s_lshl_b32 s46, s36, 17"); a("s_lshl_b32 s47, s3, 8"); a("s_add_u32 s46, s46, s47")
    a("v_lshlrev_b32 v5, 15, v3"); a("v_lshl_add_u32 v5, v4, 4, v5"); a("v_add_u32 v5, s46, v5")
    a("s_mov_b32 s40, 0"); a("s_mov_b32 s46, 0x05040100"); a("s_mov_b32 s47, 0x07060302")
    def issue_o(i):
        r = WREG + i * 4
        a(f"buffer_load_dwordx4 v[{r}:{r+3}], v5, s[32:35], s40 offen offset:{(i%4)*1024} {wpol}")
        if i % 4 == 3: a(f"s_add_u32 s40, s40, {0 if hitx else 4096}")
    if WOS:
        a(f"s_mul_i32 s44, s3, {WOS}"); a(f"s_sub_u32 s44, s44, {WOS}"); a("s_max_i32 s44, s44, 0")
        lds_poll("L_wos", 38, 0, "s44", 39, 32)
    for i in range(WOWIN if not nowo else 0): issue_o(i)
    for i in range(32 if not nowo else 0):
        a(f"s_waitcnt vmcnt({min(WOWIN - 1, 31 - i)})")
        if i + WOWIN < 32: issue_o(i + WOWIN)
        if i & 1:
            A = WREG + 8 * (i // 2); B = A + 4
            for d in range(4):
                a(f"v_perm_b32 v12, v{B+d}, v{A+d}, s46")
                a(f"v_perm_b32 v{B+d}, v{B+d}, v{A+d}, s47")
                a(f"v_mov_b32 v{A+d}, v12")
    def gather(srd, lbl, poll):
        if poll:
            a("s_mov_b32 s47, 0x40000")
            lab(lbl)
        a(f"buffer_load_dwordx4 v[8:11], v32, s[{srd}:{srd+3}], s41 offen {gpol}")
        a(f"buffer_load_dwordx4 v[12:15], v33, s[{srd}:{srd+3}], s41 offen {gpol}")
        a("s_waitcnt vmcnt(0)")
        if poll:
            a("v_max3_u32 v16, v8, v9, v10"); a("v_max3_u32 v17, v11, v12, v13"); a("v_max3_u32 v16, v14, v15, v16")
            a("v_max_u32 v16, v16, v17")
            a("v_cmp_eq_u32 vcc, -1, v16")
            a("s_sub_u32 s47, s47, 1"); a("s_cmp_eq_u32 s47, 0"); a(f"s_cbranch_scc1 {lbl}_ok")
            a("s_cmp_eq_u64 vcc, 0")
            if not nosync: a(f"s_cbranch_scc0 {lbl}")
            lab(lbl + "_ok")
        for k in range(4): a(f"v_add_f32 v{8+k}, v{8+k}, v{12+k}")
        for ro in (4, 8):
            if ro == 4: nop(1)
            for k in range(4): a(f"v_add_f32_dpp v{8+k}, v{8+k}, v{8+k} row_ror:{ro} row_mask:0xf bank_mask:0xf")
        for k in range(4): a(f"v_mov_b32 v{12+k}, v{8+k}")
        for k in range(4): a(f"v_permlane16_swap_b32 v{8+k}, v{12+k}")
        for k in range(4): a(f"v_add_f32 v{8+k}, v{8+k}, v{12+k}")
        for k in range(4): a(f"v_mov_b32 v{12+k}, v{8+k}")
        for k in range(4): a(f"v_permlane32_swap_b32 v{8+k}, v{12+k}")
        for k in range(4): a(f"v_add_f32 v{8+k}, v{8+k}, v{12+k}")
        a("v_cvt_pk_bf16_f32 v12, v8, v9"); a("v_cvt_pk_bf16_f32 v13, v10, v11")
        a("v_lshlrev_b32 v8, 16, v12"); a("v_and_b32 v9, s43, v12"); a("v_lshlrev_b32 v10, 16, v13"); a("v_and_b32 v11, s43, v13")
    a("v_lshrrev_b32 v32, 2, v2"); a("v_lshlrev_b32 v32, 11, v32"); a("v_and_b32 v33, 48, v1"); a("v_add_u32 v32, v32, v33")
    a("v_add_u32 v33, 0x8000, v32"); a("s_lshl_b32 s41, s36, 6")
    a("s_cmp_lg_u32 s3, 1"); a("s_cbranch_scc1 L_noy")
    lds_poll("L_mid", 38, 0, MID, 39, 32)
    if not nosync:
        a("s_lshl_b32 s46, s37, 5"); a("v_mov_b32 v12, s46"); a("s_mov_b32 s47, 0x20000")
        a("s_mov_b64 exec, 1")
        lab("L_rdy")
        a(f"global_load_dword v13, v12, s[24:25] {gpol}")
        a("s_waitcnt vmcnt(0)")
        a("v_readfirstlane_b32 s46, v13")
        a("s_sub_u32 s47, s47, 1"); a("s_cmp_eq_u32 s47, 0"); a("s_cbranch_scc1 L_rdy_ok")
        a("s_cmp_ge_u32 s46, 32"); a("s_cbranch_scc1 L_rdy_ok")
        a("s_sleep 16"); a("s_branch L_rdy")
        lab("L_rdy_ok")
        a("s_mov_b64 exec, -1")
    a("v_and_b32 v6, 3, v2"); a("v_lshlrev_b32 v6, 3, v6"); a("s_lshl_b32 s46, s36, 5"); a("v_add_u32 v6, s46, v6")
    a(f"buffer_load_dwordx2 v[18:19], v6, s[28:31], 0 offen {xpol}")
    gather(52, "L_gy", False)
    for k in range(4): a(f"v_mul_f32 v{12+k}, 0xbfb8aa3b, v{8+k}")
    for k in range(4): a(f"v_exp_f32 v{12+k}, v{12+k}")
    for k in range(4): a(f"v_add_f32 v{12+k}, 1.0, v{12+k}")
    for k in range(4): a(f"v_rcp_f32 v{12+k}, v{12+k}")
    for k in range(4): a(f"v_mul_f32 v{8+k}, v{8+k}, v{12+k}")
    a("v_cvt_pk_bf16_f32 v0, v8, v9"); a("v_cvt_pk_bf16_f32 v39, v10, v11")
    a("v_mov_b32 v2, v18"); a("v_mov_b32 v38, v19")
    lab("L_noy")
    a("v_lshrrev_b32 v6, 1, v1"); a("v_and_b32 v6, 24, v6"); a("s_lshl_b32 s46, s36, 5"); a("v_add_u32 v6, s46, v6")
    a("s_lshl_b32 s46, s37, 10"); a("s_add_u32 s56, s22, s46"); a("s_addc_u32 s57, s23, 0"); a("s_mov_b32 s58, 1024"); a("s_mov_b32 s59, 0x20000")
    a("v_lshlrev_b32 v5, 5, v4"); a("v_lshrrev_b32 v7, 1, v3"); a("v_lshl_add_u32 v5, v7, 4, v5")
    a("s_lshl_b32 s44, s3, 9"); a("s_lshl_b32 s46, s36, 11"); a("s_add_u32 s44, s44, s46")
    a("v_lshrrev_b32 v7, 1, v1"); a(f"v_add_u32 v7, {RING}, v7")
    a("s_lshl_b32 s45, s3, 8"); a(f"s_add_u32 s45, s45, {RING+OB}")
    a("v_lshrrev_b32 v4, 2, v1"); a("v_add_u32 v4, s45, v4")
    a("v_lshlrev_b32 v3, 6, v3"); a("v_add_u32 v3, s45, v3")
    a(f"v_mov_b32 v37, {RING+ML}")
    a("s_mov_b32 s47, -2")
    stamp(5)
    a("s_barrier")
    a("ds_read_b128 v[8:11], v37"); a("ds_read_b128 v[12:15], v37 offset:16")
    for w in range(4): a(f"ds_read_b64 v[{16+2*w}:{17+2*w}], v7 offset:{SP+w*512}")
    a("s_waitcnt lgkmcnt(4)")
    a("v_max3_f32 v24, v8, v9, v10"); a("v_max_f32 v24, v24, v11")
    for w in range(4): a(f"v_sub_f32 v{8+w}, v{8+w}, v24")
    for w in range(4): a(f"v_mul_f32 v{8+w}, s42, v{8+w}")
    for w in range(4): a(f"v_exp_f32 v{8+w}, v{8+w}")
    a("v_mul_f32 v24, v8, v12"); a("v_fmac_f32 v24, v9, v13"); a("v_fmac_f32 v24, v10, v14"); a("v_fmac_f32 v24, v11, v15")
    a("v_rcp_f32 v24, v24")
    a("s_waitcnt lgkmcnt(0)")
    a("v_mul_f32 v25, v8, v16"); a("v_mul_f32 v26, v8, v17")
    for w in range(1, 4):
        a(f"v_fmac_f32 v25, v{8+w}, v{16+2*w}"); a(f"v_fmac_f32 v26, v{8+w}, v{17+2*w}")
    a("v_mul_f32 v25, v24, v25"); a("v_mul_f32 v26, v24, v26")
    a("v_cvt_pk_bf16_f32 v25, v25, v26")
    a("ds_write_b32 v4, v25")
    for k in range(8): a(f"v_mov_b32 v{8+k}, 0")
    a("s_waitcnt lgkmcnt(0)")
    for k in range(4): a(f"ds_read_b128 v[{16+4*k}:{19+4*k}], v3 offset:{16*k}")
    for k in range(16):
        if k % 4 == 0: a(f"s_waitcnt lgkmcnt({3-k//4})")
        A = WREG + 8 * k; B = A + 4
        for d in range(4):
            a(f"v_dot2c_f32_bf16 v{8+2*d}, v{A+d}, v{16+k}")
            a(f"v_dot2c_f32_bf16 v{9+2*d}, v{B+d}, v{16+k}")
    nop(3)
    for k in range(4): a(f"v_permlane32_swap_b32 v{8+k}, v{12+k}")
    for k in range(4): a(f"v_add_f32 v{8+k}, v{8+k}, v{12+k}")
    for k in range(4): a(f"v_mov_b32 v{12+k}, v{8+k}")
    for k in range(4): a(f"v_permlane16_swap_b32 v{8+k}, v{12+k}")
    for k in range(4): a(f"v_add_f32 v{8+k}, v{8+k}, v{12+k}")
    for k in range(4): a(f"v_min_u32 v{20+k}, s47, v{8+k}")
    a("s_mov_b32 exec_lo, 0xffff"); a("s_mov_b32 exec_hi, 0xffff")
    a(f"buffer_store_dwordx4 v[20:23], v5, s[48:51], s44 offen {spol}")
    a("s_mov_b64 exec, -1")
    a("s_cmp_lg_u32 s3, 1"); a("s_cbranch_scc1 L_done")
    stamp(6)
    a("v_lshlrev_b32 v24, 16, v0"); a("v_and_b32 v25, s43, v0"); a("v_lshlrev_b32 v26, 16, v39"); a("v_and_b32 v27, s43, v39")
    a("v_lshlrev_b32 v28, 16, v2"); a("v_and_b32 v29, s43, v2"); a("v_lshlrev_b32 v30, 16, v38"); a("v_and_b32 v31, s43, v38")
    gather(48, "L_gs", True)
    for k in range(4): a(f"v_mul_f32 v{8+k}, v{8+k}, v{24+k}")
    a("v_cvt_pk_bf16_f32 v12, v8, v9"); a("v_cvt_pk_bf16_f32 v13, v10, v11")
    a("v_lshlrev_b32 v8, 16, v12"); a("v_and_b32 v9, s43, v12"); a("v_lshlrev_b32 v10, 16, v13"); a("v_and_b32 v11, s43, v13")
    for k in range(4): a(f"v_add_f32 v{8+k}, v{8+k}, v{28+k}")
    a("v_cvt_pk_bf16_f32 v12, v8, v9"); a("v_cvt_pk_bf16_f32 v13, v10, v11")
    a("s_mov_b64 exec, 15")
    a("buffer_store_dwordx2 v[12:13], v6, s[56:59], 0 offen")
    if diag:
        stamp(7)
        a("s_mov_b64 exec, -1")
        put_stamp(7, 8, 20); put_stamp(5, 40, 20); put_stamp(6, 48, 20)
    lab("L_done")
    a("s_endpgm")
    L.append(".p2align 10")
    lab("L_end")
    L.append('.section .rodata,"a"'); L.append(".p2align 6"); L.append(f".amdhsa_kernel {KN}")
    a(".amdhsa_next_free_vgpr 168"); a(".amdhsa_next_free_sgpr 80"); a(".amdhsa_accum_offset 168")
    a(".amdhsa_group_segment_fixed_size 0"); a(".amdhsa_kernarg_size 96"); a(".amdhsa_user_sgpr_count 2")
    a(".amdhsa_user_sgpr_kernarg_segment_ptr 1"); a(".amdhsa_system_sgpr_workgroup_id_x 1")
    a(".amdhsa_float_denorm_mode_32 3")
    L.append(".end_amdhsa_kernel")
    return "\n".join(L) + "\n"

if __name__ == "__main__":
    for spec in sys.argv[1:]:
        out, _, kvs = spec.partition(":")
        kw = {}
        if kvs:
            for kv in kvs.split(","):
                k, v = kv.split("=")
                kw[k] = int(v) if v.lstrip("-").isdigit() else v.replace("+", " ")
        open(out, "w").write(gen(**kw))
```

```python
import sys
KN = "recurrent_scan__mha_block_cached__geglu_ffn__decode_kernel"
HEADER = open("recurrent_scan__mha_block_cached__geglu_ffn__decode.s.ref").read().split("; Override launch")[0]

XN, QP, SP, ML, CT, OB, HB = 0, 1024, 1024, 3072, 3136, 3328, 4352
MISC = 4608
YOFF = 0x80000
STOFF = 0x30000000
LOG2E = 0x3fb8aa3b
SCALE = 0x3db504f3

def gen(D=18, D1=0, N1=4, D3=0, N3=0, FW=4, WOS=0, WQWIN=5, WOWIN=2, wpol="nt", diag=0, kvpol="nt", noffn=0, nowo=0, nocomp=0, noq=0, nosync=0,
        MID=448, tl=0, hitx=0, lgk=1, prog=0, NSLOT=19, xpol='', gpol='sc1 nt', spol='sc1', pfpol='', rot=1, SNAP=60, pf=1, lprio=3, hprio=0):
    L = []
    RING = NSLOT * 8192
    LDS_BYTES = RING + MISC
    assert LDS_BYTES <= 163840
    def a(s): L.append("  " + s)
    def lab(s): L.append(s + ":")
    def nop(n): a(f"s_nop {n-1}")
    def stamp(i):
        if diag: a(f"s_memrealtime s[{60+2*i}:{61+2*i}]")
    def put_stamp(i, off, vt):
        a("s_waitcnt lgkmcnt(0)")
        a("s_lshl_b32 s45, s2, 6"); a(f"s_add_u32 s45, s45, {STOFF}"); a(f"v_mov_b32 v{vt+2}, s45")
        a(f"v_mov_b32 v{vt}, s{60+2*i}"); a(f"v_mov_b32 v{vt+1}, s{61+2*i}")
        a("s_mov_b64 exec, 1")
        a(f"global_store_dwordx2 v{vt+2}, v[{vt}:{vt+1}], s[26:27] offset:{off}")
        a("s_mov_b64 exec, -1")
        nop(2)
    L.append(HEADER.rstrip("\n"))
    L.append(f"; @launch grid=(256,1,1) block=(576,1,1) lds={LDS_BYTES}")
    L.append('.amdgcn_target "amdgcn-amd-amdhsa--gfx950"')
    L.append(".text"); L.append(f".globl {KN}"); L.append(".p2align 8"); L.append(f".type {KN},@function"); lab(KN)
    a("s_cmp_ge_u32 s2, 256")
    a("s_cbranch_scc1 L_done")
    a("s_load_dwordx8 s[4:11], s[0:1], 0")
    stamp(0)
    a("v_lshrrev_b32 v1, 6, v0")
    a("v_and_b32 v2, 63, v0")
    a("v_readfirstlane_b32 s3, v1")
    a("v_lshlrev_b32 v1, 4, v2")
    a("s_and_b32 s36, s2, 7")
    a("s_lshl_b32 s36, s36, 2")
    a("s_bfe_u32 s37, s2, 0x20003")
    a("s_add_u32 s36, s36, s37")
    a("s_lshr_b32 s37, s2, 5")
    a("s_cmp_lg_u32 s3, 0")
    a("s_cbranch_scc1 L_notloader")

    if lprio: a(f"s_setprio {lprio}")
    a("s_lshl_b32 s38, s37, 5"); a("s_add_u32 s38, s38, s36"); a("s_lshl_b32 s38, s38, 20")
    a("s_mov_b32 s30, 0x100000"); a("s_mov_b32 s31, 0x20000"); a("s_mov_b32 s34, 0x100000"); a("s_mov_b32 s35, 0x20000")
    a("s_mov_b32 s40, 0"); a("s_mov_b32 s41, 0")
    a(f"v_mov_b32 v3, {RING+CT}")
    a("v_lshl_add_u32 v4, v2, 2, v3"); a("v_mov_b32 v5, 0")
    a("s_mov_b64 exec, 0xff")
    a("ds_write_b32 v4, v5")
    a("s_mov_b64 exec, -1")
    a("s_mov_b32 m0, 0")
    a("s_waitcnt lgkmcnt(0)")
    a("s_add_u32 s28, s6, s38"); a("s_addc_u32 s29, s7, 0"); a("s_add_u32 s32, s8, s38"); a("s_addc_u32 s33, s9, 0")
    def publish(k):
        a(f"v_add_u32 v5, {k}, v7"); a("ds_write_b32 v3, v5")
    def ld_step(m, Dw, first=False, issue=True, rem=None):
        j = m & 7
        if issue:
            if j == 0 and not (first and m == 0): a("s_mov_b32 m0, s41")
            if j == 4: a("s_add_u32 m0, s41, 4096")
        waited = not (first and m < Dw)
        if waited: a(f"s_waitcnt vmcnt({Dw-1 if issue else rem})")
        elif j in (0, 4) and m: nop(1)
        if issue:
            srd = 28 if j < 4 else 32
            a(f"buffer_load_dwordx4 v1, s[{srd}:{srd+3}], s40 offen offset:{(j&3)*1024} {kvpol} lds")
        if waited and (m - Dw + 1) % 4 == 0: publish((m - Dw + 1) // 4)
        if issue and j == 7:
            a("s_add_u32 s40, s40, 4096"); a("s_add_u32 s41, s41, 8192")
            a(f"s_cmp_eq_u32 s41, {RING}"); a("s_cselect_b32 s41, 0, s41")
    phases = []
    if D1: phases.append((D1, N1))
    if D3: phases += [(D, 64 - N3), (D3, 64)]
    else: phases.append((D, 64))
    a("v_mov_b32 v7, 0")
    if prog: a("v_mov_b32 v10, 0"); lgk = 0
    for m in range(32):
        ld_step(m, phases[0][0], first=True)
        if m == 7: a("s_barrier")
    a("v_mov_b32 v7, 8")
    def fw(w): return (w - NSLOT) % 4
    def fo(w): return (w - NSLOT) // 4 + 1
    a("s_mov_b32 s44, 1")
    a(f"ds_read_b32 v6, v3 offset:{16 + 4 * fw(0)}")
    a("s_waitcnt lgkmcnt(0)")
    for pi, (Dw, upto) in enumerate(phases):
        npub = sum(1 for j in range(5, 8) if (j - Dw + 1) % 4 == 0) if lgk else 0
        if pi: a("s_waitcnt lgkmcnt(0)")
        lab(f"L_lloop{pi}")
        if prog: a("s_memrealtime s[76:77]")
        for w in range(4):
            a(f"s_waitcnt lgkmcnt({npub})")
            a("v_readfirstlane_b32 s45, v6")
            a(f"s_sub_i32 s45, s45, {fo(w)}")
            a("s_cmp_ge_i32 s45, s44")
            a(f"s_cbranch_scc0 L_lslow{pi}_{w}")
            lab(f"L_lfree{pi}_{w}")
            for j in range(8):
                ld_step(8 * w + j, Dw)
                if j == 4: a(f"ds_read_b32 v6, v3 offset:{16 + 4 * fw((w + 1) & 3)}")
        if prog:
            a("s_mov_b32 m0, s44"); nop(4); a("v_writelane_b32 v10, s76, m0")
        a("v_add_u32 v7, 8, v7")
        a("s_add_u32 s44, s44, 1")
        a(f"s_cmp_lg_u32 s44, {upto}")
        a(f"s_cbranch_scc1 L_lloop{pi}")
    Dl = phases[-1][0]
    for k in range(Dl):
        ld_step(k, Dl, issue=False, rem=Dl - 1 - k)
    if diag:
        stamp(2)
        a("s_load_dwordx2 s[26:27], s[0:1], 88")
        if prog:
            a("s_waitcnt lgkmcnt(0)")
            a("v_writelane_b32 v10, s64, 0")
            a("s_lshl_b32 s45, s2, 8"); a(f"s_add_u32 s45, s45, {STOFF + 0x4000}"); a("v_lshrrev_b32 v11, 2, v1"); a("v_add_u32 v11, s45, v11")
            a("global_store_dword v11, v10, s[26:27]")
        put_stamp(0, 0, 12); put_stamp(2, 24, 12)
    a("s_endpgm")
    for pi in range(len(phases)):
        for w in range(4):
            lab(f"L_lslow{pi}_{w}")
            a("s_sleep 1")
            a(f"ds_read_b32 v6, v3 offset:{16 + 4 * fw(w)}")
            a("s_waitcnt lgkmcnt(0)")
            a("v_readfirstlane_b32 s45, v6")
            a(f"s_sub_i32 s45, s45, {fo(w)}")
            a("s_cmp_ge_i32 s45, s44")
            a(f"s_cbranch_scc0 L_lslow{pi}_{w}")
            a(f"s_branch L_lfree{pi}_{w}")

    def wave_allsum(r, t):
        for ro in (8, 4, 2, 1):
            nop(2)
            a(f"v_add_f32_dpp v{r}, v{r}, v{r} row_ror:{ro} row_mask:0xf bank_mask:0xf")
        a(f"v_mov_b32 v{t}, v{r}"); nop(2)
        a(f"v_permlane16_swap_b32 v{r}, v{t}"); a(f"v_add_f32 v{r}, v{r}, v{t}"); a(f"v_mov_b32 v{t}, v{r}"); nop(2)
        a(f"v_permlane32_swap_b32 v{r}, v{t}"); a(f"v_add_f32 v{r}, v{r}, v{t}")
    def layernorm(hook):
        for k in range(4):
            a(f"v_lshlrev_b32 v{12+2*k}, 16, v{8+k}"); a(f"v_and_b32 v{13+2*k}, s43, v{8+k}")
        a("v_add_f32 v20, v12, v13"); a("v_add_f32 v21, v14, v15"); a("v_add_f32 v22, v16, v17"); a("v_add_f32 v23, v18, v19")
        a("v_add_f32 v20, v20, v21"); a("v_add_f32 v22, v22, v23"); a("v_add_f32 v20, v20, v22")
        wave_allsum(20, 21); hook()
        a("v_mul_f32 v20, 0x3b000000, v20")
        a("v_mov_b32 v22, 0")
        for k in range(8):
            a(f"v_sub_f32 v21, v{12+k}, v20"); a("v_fmac_f32 v22, v21, v21")
        hook(); wave_allsum(22, 21); hook()
        a("v_mul_f32 v22, 0x3b000000, v22")
        a("v_cvt_pk_bf16_f32 v20, v20, v22")
        a("v_and_b32 v22, s43, v20"); a("v_lshlrev_b32 v20, 16, v20")
        a("v_add_f32 v22, 0x3727c5ac, v22")
        a("v_cvt_pk_bf16_f32 v22, v22, v22"); a("v_and_b32 v22, s43, v22")
        a("v_sqrt_f32 v22, v22"); nop(1)
        a("v_cvt_pk_bf16_f32 v22, v22, v22"); a("v_and_b32 v22, s43, v22")
        a("v_rcp_f32 v22, v22"); hook()
        for k in range(8): a(f"v_sub_f32 v{12+k}, v{12+k}, v20")
        for k in range(4): a(f"v_cvt_pk_bf16_f32 v{8+k}, v{12+2*k}, v{13+2*k}")
        for k in range(4):
            a(f"v_lshlrev_b32 v{12+2*k}, 16, v{8+k}"); a(f"v_and_b32 v{13+2*k}, s43, v{8+k}")
        for k in range(8): a(f"v_mul_f32 v{12+k}, v22, v{12+k}")
        for k in range(4): a(f"v_cvt_pk_bf16_f32 v{8+k}, v{12+2*k}, v{13+2*k}")
    def forms(pair, odd, lo, hi):
        if not odd:
            a(f"v_and_b32 v{lo}, 0xffff, v{pair}"); a(f"v_lshlrev_b32 v{hi}, 16, v{pair}")
        else:
            a(f"v_lshrrev_b32 v{lo}, 16, v{pair}"); a(f"v_and_b32 v{hi}, s43, v{pair}")
    def mac8(acc, w, lo, hi):
        for d in range(4):
            a(f"v_dot2c_f32_bf16 v{acc+2*d}, v{w+d}, v{lo}")
            a(f"v_dot2c_f32_bf16 v{acc+2*d+1}, v{w+d}, v{hi}")
    def lds_poll(lbl, addr, off, tgt, vt, sleep):
        lab(lbl)
        a(f"ds_read_b32 v{vt}, v{addr} offset:{off}")
        a("s_waitcnt lgkmcnt(0)")
        a(f"v_readfirstlane_b32 s45, v{vt}")
        a(f"s_cmp_ge_u32 s45, {tgt}")
        a(f"s_cbranch_scc1 {lbl}_ok")
        a(f"s_sleep {sleep}")
        a(f"s_branch {lbl}")
        lab(lbl + "_ok")
    WREG = 40

    lab("L_notloader")
    a("v_lshrrev_b32 v3, 4, v2")
    a("v_and_b32 v4, 15, v2")
    a("s_mov_b32 s43, 0xffff0000")
    a("s_mov_b32 s42, " + hex(LOG2E))
    a("s_lshl_b32 s39, s37, 10")
    a("s_mov_b32 s30, 1024"); a("s_mov_b32 s31, 0x20000"); a("s_mov_b32 s35, 0x20000")
    a("s_cmp_ge_u32 s3, 5")
    a("s_cbranch_scc1 L_helper")

    a("s_sub_u32 s3, s3, 1")
    a("s_lshl_b32 s38, s3, 20"); a("s_lshl_b32 s46, s36, 8"); a("s_add_u32 s38, s38, s46")
    a(f"v_lshlrev_b32 v5, {13 if tl else 18}, v3"); a("v_lshl_add_u32 v5, v4, 4, v5"); a("v_add_u32 v5, s38, v5")
    a("s_mov_b32 s34, 0x400000")
    if rot: a("s_lshl_b32 s40, s37, 15")
    else: a("s_mov_b32 s40, 0")
    a("s_waitcnt lgkmcnt(0)")
    a("s_add_u32 s28, s4, s39"); a("s_addc_u32 s29, s5, 0")
    a("s_mov_b32 s32, s10"); a("s_mov_b32 s33, s11")
    a(f"buffer_load_dwordx4 v[8:11], v1, s[28:31], 0 offen {xpol}")
    wq = {"issued": 0}
    def issue_wq(window=True):
        i = wq["issued"]
        if i >= 32 or noq: return
        if window: a(f"s_waitcnt vmcnt({WQWIN-1})")
        r = WREG + i * 4
        a(f"buffer_load_dwordx4 v[{r}:{r+3}], v5, s[32:35], s40 offen {wpol}")
        a("s_add_u32 s40, s40, 0x2000")
        if rot and i % 4 == 3: a("s_and_b32 s40, s40, 0x3ffff")
        wq["issued"] += 1
    for i in range(WQWIN): issue_wq(False)
    a("s_barrier")
    a(f"s_waitcnt vmcnt({WQWIN if not noq else 0})")
    layernorm(issue_wq)
    a(f"s_mov_b32 s45, {RING+XN}")
    a("v_add_u32 v6, s45, v1")
    a("ds_write_b128 v6, v[8:11]")
    issue_wq()
    a("s_lshl_b32 s46, s3, 8"); a("s_add_u32 s46, s46, s45")
    a("v_lshlrev_b32 v7, 6, v3"); a("v_add_u32 v7, s46, v7")
    a("s_waitcnt lgkmcnt(0)")
    if rot:
        for k in range(8):
            a(f"s_add_u32 s46, s37, {k}"); a("s_and_b32 s46, s46, 7"); a("s_lshl_b32 s46, s46, 3")
            a("v_add_u32 v12, s46, v7")
            a(f"ds_read_b64 v[{16+2*k}:{17+2*k}], v12")
    else:
        for k in range(4): a(f"ds_read_b128 v[{16+4*k}:{19+4*k}], v7 offset:{16*k}")
    for k in range(8): a(f"v_mov_b32 v{32+k}, 0")
    a("s_waitcnt lgkmcnt(0)")
    for i in range(32 if not noq else 0):
        forms(16 + i // 2, i & 1, 12, 13)
        if wq["issued"] < 32: issue_wq()
        else: a(f"s_waitcnt vmcnt({31 - i})")
        mac8(32, WREG + i * 4, 12, 13)
    a("v_lshlrev_b32 v7, 5, v4")
    a(f"v_add_u32 v7, {RING}, v7")
    a("v_lshl_add_u32 v6, v3, 2, v7")
    a("s_lshl_b32 s46, s3, 9"); a("v_add_u32 v6, s46, v6")
    for k in range(4): a(f"v_permlane16_swap_b32 v{32+2*k}, v{33+2*k}")
    for k in range(4): a(f"v_add_f32 v{32+2*k}, v{32+2*k}, v{33+2*k}")
    a(f"v_mov_b32 v38+1, 1".replace("v38+1", "v39"))
    a("v_permlane32_swap_b32 v32, v34"); a("v_permlane32_swap_b32 v36, v38")
    a("v_add_f32 v32, v32, v34"); a("v_add_f32 v36, v36, v38")
    a(f"ds_write_b32 v6, v32 offset:{QP}"); a(f"ds_write_b32 v6, v36 offset:{QP+16}")
    a(f"v_mov_b32 v38, {RING+CT}")
    a("s_waitcnt lgkmcnt(0)")
    a("s_mov_b64 exec, 1")
    a("ds_add_u32 v38, v39 offset:4")
    a("s_mov_b64 exec, -1")
    lds_poll("L_qw", 38, 4, 4, 39, 1)
    for w in range(4):
        a(f"ds_read_b128 v[{40+w*8}:{43+w*8}], v7 offset:{QP+w*512}")
        a(f"ds_read_b128 v[{44+w*8}:{47+w*8}], v7 offset:{QP+w*512+16}")
    a("s_mov_b32 s41, " + hex(SCALE))
    for k in range(8): a(f"v_mov_b32 v{8+k}, 0")
    a("v_mov_b32 v16, 0xff800000"); a("v_mov_b32 v17, 0")
    a("s_lshl_b32 s44, s3, 13"); a("v_add_u32 v36, s44, v1")
    a("s_lshl_b32 s46, s3, 2"); a("v_add_u32 v37, s46, v38")
    a("s_lshl_b32 s47, s3, 1"); a("s_add_u32 s47, s47, 1")
    a("v_mov_b32 v27, 0")
    a("s_waitcnt lgkmcnt(4)")
    for k in range(8): a(f"v_add_f32 v{40+k}, v{40+k}, v{48+k}")
    a("s_waitcnt lgkmcnt(0)")
    for k in range(8): a(f"v_add_f32 v{56+k}, v{56+k}, v{64+k}")
    for k in range(8): a(f"v_add_f32 v{40+k}, v{40+k}, v{56+k}")
    for k in range(4): a(f"v_cvt_pk_bf16_f32 v{72+k}, v{40+2*k}, v{41+2*k}")
    stamp(1)
    Q = 72; KR = 40; VR = 56
    S = [18, 19, 20, 21]; T = [22, 23]; MN = 24; MS = 25; AL = 26
    PLO = [28, 29, 30, 31]; PHI = [32, 33, 34, 35]
    def unpack():
        a(f"v_cvt_pk_bf16_f32 v{T[0]}, v{S[0]}, v{S[1]}")
        a(f"v_cvt_pk_bf16_f32 v{T[1]}, v{S[2]}, v{S[3]}")
        a(f"v_lshlrev_b32 v{S[0]}, 16, v{T[0]}")
        a(f"v_and_b32 v{S[1]}, s43, v{T[0]}")
        a(f"v_lshlrev_b32 v{S[2]}, 16, v{T[1]}")
        a(f"v_and_b32 v{S[3]}, s43, v{T[1]}")
    lab("L_cloop")
    lds_poll("L_pk", 38, 0, "s47", 39, 1)
    for j in range(4): a(f"ds_read_b128 v[{KR+4*j}:{KR+4*j+3}], v36 offset:{j*1024}")
    if not nocomp:
        for j in range(4): a(f"v_mov_b32 v{S[j]}, 0")
        for j in range(4):
            a(f"s_waitcnt lgkmcnt({3-j})")
            for d in range(4): a(f"v_dot2c_f32_bf16 v{S[j]}, v{KR+4*j+d}, v{Q+d}")
        for ri, r in enumerate((8, 4, 2, 1)):
            for j in range(4):
                if ri == 0 and j == 3: nop(1)
                a(f"v_add_f32_dpp v{S[j]}, v{S[j]}, v{S[j]} row_ror:{r} row_mask:0xf bank_mask:0xf")
        unpack()
        for j in range(4): a(f"v_mul_f32 v{S[j]}, s41, v{S[j]}")
        unpack()
        a(f"v_max3_f32 v{MN}, v{S[0]}, v{S[1]}, v16")
        a(f"v_max3_f32 v{MN}, v{S[2]}, v{S[3]}, v{MN}")
        a(f"v_mul_f32 v{MS}, s42, v{MN}")
        a(f"v_fma_f32 v{AL}, v16, s42, -v{MS}")
        for j in range(4): a(f"v_fma_f32 v{S[j]}, v{S[j]}, s42, -v{MS}")
        a(f"v_exp_f32 v{AL}, v{AL}")
        for j in range(4): a(f"v_exp_f32 v{S[j]}, v{S[j]}")
        a(f"v_mov_b32 v16, v{MN}")
        for q in range(8): a(f"v_mul_f32 v{8+q}, v{AL}, v{8+q}")
        a(f"v_fma_f32 v17, v17, v{AL}, v{S[0]}")
        a(f"v_add_f32 v{T[0]}, v{S[1]}, v{S[2]}")
        for j in range(4): a(f"v_cvt_pk_bf16_f32 v{PLO[j]}, v{S[j]}, 0")
        for j in range(4): a(f"v_cvt_pk_bf16_f32 v{PHI[j]}, 0, v{S[j]}")
        a(f"v_add_f32 v17, v17, v{S[3]}")
        a(f"v_add_f32 v17, v17, v{T[0]}")
    a("s_cmp_gt_u32 s45, s47")
    a("s_cbranch_scc1 L_pv_ok")
    a("s_add_u32 s46, s47, 1")
    lds_poll("L_pv", 38, 0, "s46", 39, 1)
    for j in range(4): a(f"ds_read_b128 v[{VR+4*j}:{VR+4*j+3}], v36 offset:{4096+j*1024}")
    a("v_add_u32 v27, 1, v27")
    a("s_add_u32 s44, s44, 0x8000"); a(f"s_sub_u32 s46, s44, {RING}"); a("s_cselect_b32 s44, s44, s46")
    a("v_add_u32 v36, s44, v1")
    a("s_add_u32 s47, s47, 8")
    for j in range(4):
        a(f"s_waitcnt lgkmcnt({3-j})")
        if j == 3: a("ds_write_b32 v37, v27 offset:16")
        if not nocomp:
            for d in range(4):
                a(f"v_dot2c_f32_bf16 v{8+2*d}, v{VR+4*j+d}, v{PLO[j]}")
                a(f"v_dot2c_f32_bf16 v{9+2*d}, v{VR+4*j+d}, v{PHI[j]}")
    a("s_cmp_lt_u32 s47, 512")
    a("s_cbranch_scc1 L_cloop")
    a("v_mov_b32 v18, v16"); a("v_mov_b32 v19, v16"); nop(2)
    a("v_permlane16_swap_b32 v18, v19"); a("v_max_f32 v18, v18, v19"); a("v_mov_b32 v19, v18"); nop(2)
    a("v_permlane32_swap_b32 v18, v19"); a("v_max_f32 v18, v18, v19")
    a("v_sub_f32 v20, v16, v18"); a("v_mul_f32 v20, s42, v20"); a("v_exp_f32 v20, v20"); nop(1)
    for k in range(8): a(f"v_mul_f32 v{8+k}, v20, v{8+k}")
    a("v_mul_f32 v17, v20, v17")
    a("v_mov_b32 v21, v17")
    for k in range(4): a(f"v_permlane16_swap_b32 v{8+2*k}, v{9+2*k}")
    a("v_permlane16_swap_b32 v17, v21")
    for k in range(4): a(f"v_add_f32 v{8+2*k}, v{8+2*k}, v{9+2*k}")
    a("v_add_f32 v17, v17, v21"); a("v_mov_b32 v21, v17")
    a("v_permlane32_swap_b32 v8, v10"); a("v_permlane32_swap_b32 v12, v14"); a("v_permlane32_swap_b32 v17, v21")
    a("v_add_f32 v8, v8, v10"); a("v_add_f32 v12, v12, v14"); a("v_add_f32 v17, v17, v21")
    a(f"ds_write_b32 v6, v8 offset:{SP}"); a(f"ds_write_b32 v6, v12 offset:{SP+16}")
    a(f"v_subrev_u32 v37, {CT-ML}, v37")
    a("ds_write_b32 v37, v18"); a("ds_write_b32 v37, v17 offset:16")
    a("s_waitcnt lgkmcnt(0)")
    a("s_barrier")
    if diag:
        a("s_cmp_lg_u32 s3, 0"); a("s_cbranch_scc1 L_done")
        a("s_load_dwordx2 s[26:27], s[0:1], 88")
        put_stamp(1, 16, 8)
    a("s_endpgm")

    lab("L_helper")
    if hprio: a(f"s_setprio {hprio}")
    a("s_sub_u32 s3, s3, 5")
    if pf:
        a("s_cmp_lg_u32 s3, 2"); a("s_cbranch_scc1 L_nopf")
        a("s_getpc_b64 s[46:47]")
        lab("L_pc")
        a(f"s_sub_u32 s46, s46, L_pc-{KN}"); a("s_subb_u32 s47, s47, 0")
        a("s_lshr_b32 s45, s2, 3"); a("s_min_u32 s45, s45, (L_end-" + KN + ")/1024-1"); a("s_lshl_b32 s45, s45, 10")
        a("v_add_u32 v6, s45, v1")
        a(f"global_load_dwordx4 v[8:11], v6, s[46:47] {pfpol}")
        lab("L_nopf")
    a("s_load_dwordx2 s[12:13], s[0:1], 32")
    a("s_load_dwordx8 s[16:23], s[0:1], 48")
    a("s_load_dwordx4 s[24:27], s[0:1], 80")
    a("s_barrier")
    a("s_waitcnt lgkmcnt(0)")
    a("s_add_u32 s28, s4, s39"); a("s_addc_u32 s29, s5, 0")
    a("s_lshl_b32 s38, s37, 16")
    a("s_add_u32 s48, s26, s38"); a("s_addc_u32 s49, s27, 0"); a("s_mov_b32 s50, 0x10000"); a("s_mov_b32 s51, 0x20000")
    a(f"s_add_u32 s52, s48, {YOFF}"); a("s_addc_u32 s53, s49, 0"); a(f"s_mov_b32 s54, {28*2048}"); a("s_mov_b32 s55, 0x20000")
    a(f"v_mov_b32 v38, {RING+CT}")
    lds_poll("L_hq", 38, 4, 4, 39, 16)
    a("v_lshrrev_b32 v32, 2, v2"); a("v_lshlrev_b32 v32, 11, v32"); a("v_and_b32 v33, 48, v1"); a("v_add_u32 v32, v32, v33")
    a("v_add_u32 v33, 0x8000, v32")
    a("v_lshlrev_b32 v34, 5, v4"); a("v_lshrrev_b32 v7, 1, v3"); a("v_lshl_add_u32 v34, v7, 4, v34")
    a("s_lshl_b32 s14, s3, 9"); a("s_lshl_b32 s46, s36, 11"); a("s_add_u32 s14, s14, s46")
    a("s_lshl_b32 s15, s36, 6")
    if SNAP: lds_poll("L_sw", 38, 0, SNAP, 39, 16)
    a(f"buffer_load_dwordx4 v[8:11], v34, s[48:51], s14 offen {gpol}")
    a("s_cmp_lg_u32 s3, 1"); a("s_cbranch_scc1 L_nosnap")
    a(f"buffer_load_dwordx4 v[12:15], v32, s[48:51], s15 offen {gpol}")
    a(f"buffer_load_dwordx4 v[16:19], v33, s[48:51], s15 offen {gpol}")
    a("s_waitcnt vmcnt(0)")
    a("v_and_b32 v36, 1, v12")
    for k in range(1, 8):
        a(f"v_and_b32 v20, 1, v{12+k}"); a(f"v_lshl_or_b32 v36, v20, {k}, v36")
    a("v_mov_b32 v20, 1")
    a("ds_write_b32 v38, v20 offset:8")
    lab("L_nosnap")
    a("s_waitcnt vmcnt(0)")
    a("v_and_b32 v35, 1, v8")
    for k in range(1, 4):
        a(f"v_and_b32 v20, 1, v{8+k}"); a(f"v_lshl_or_b32 v35, v20, {k}, v35")
    a("v_xor_b32 v35, 15, v35")
    a("s_cmp_lg_u32 s3, 0"); a("s_cbranch_scc1 L_noffn")
    a("s_cmp_ge_u32 s36, 28"); a("s_cbranch_scc1 L_clr")
    FA = 40; FREG = 56
    if not noffn:
        a("s_mov_b32 s28, s16"); a("s_mov_b32 s29, s17"); a("s_mov_b32 s30, 0x1c0000")
        a("s_mov_b32 s32, s18"); a("s_mov_b32 s33, s19"); a("s_mov_b32 s34, 0x1c0000")
        a("v_lshrrev_b32 v6, 3, v2"); a("v_and_b32 v7, 7, v2")
        a(f"s_mov_b32 s46, {7168 if tl else 229376}"); a("v_mul_lo_u32 v8, v6, s46")
        a("v_lshl_add_u32 v8, v7, 4, v8"); a("s_lshl_b32 s46, s36, 7"); a("v_add_u32 v8, s46, v8")
        a("v_lshlrev_b32 v9, 7, v6"); a(f"v_add_u32 v9, {RING+XN}, v9")
        a("s_mov_b32 s40, 0")
        def issue_f(n):
            r = FREG + (n % 4) * 4; srd = 28 if n % 2 == 0 else 32
            so = "s40" if n < 4 else "s41"
            a(f"buffer_load_dwordx4 v[{r}:{r+3}], v8, s[{srd}:{srd+3}], {so} offen offset:{3584*((n%4)//2)} {wpol}")
        for n in range(FW): issue_f(n)
        a(f"s_mov_b32 s41, {0 if hitx else 7168*8 if tl else 7168}")
        a("ds_read_b32 v10, v9")
        for k in range(16): a(f"v_mov_b32 v{FA+k}, 0")
        a("s_mov_b32 s44, 31")
        def fbody(last):
            a("s_waitcnt lgkmcnt(0)")
            forms(10, 0, 12, 13); forms(10, 1, 14, 15)
            if not last:
                a("v_add_u32 v9, 4, v9"); a("ds_read_b32 v10, v9")
            for n in range(4):
                a(f"s_waitcnt vmcnt({FW-1 if not last else min(FW-1, 3-n)})")
                mac8(FA + 8 * (n % 2), FREG + n * 4, 12 + 2 * (n // 2), 13 + 2 * (n // 2))
                if not last or n + FW < 4: issue_f(n + FW)
            if not last:
                a("s_mov_b32 s40, s41"); a(f"s_add_u32 s41, s41, {0 if hitx else 7168*8 if tl else 7168}")
        lab("L_floop")
        fbody(False)
        a("s_sub_u32 s44, s44, 1"); a("s_cmp_lg_u32 s44, 0"); a("s_cbranch_scc1 L_floop")
        fbody(True)
        a("s_mov_b32 s28, s20"); a("s_mov_b32 s29, s21")
        a("s_lshl_b32 s40, s36, 16")
        a(f"s_add_u32 s41, s40, {0 if hitx else 4096}")
        def issue_d(n):
            r = FREG + (n % 4) * 4
            so = "s40" if n < 4 else "s41"
            a(f"buffer_load_dwordx4 v[{r}:{r+3}], v1, s[28:31], {so} offen offset:{(n%4)*1024} {wpol}")
        for n in range(FW): issue_d(n)
        a("v_and_b32 v14, 8, v2"); a("v_cmp_ne_u32 vcc, 0, v14")
        for acc in (FA, FA + 8):
            for k in range(4): a(f"v_permlane32_swap_b32 v{acc+k}, v{acc+4+k}")
            for k in range(4): a(f"v_add_f32 v{acc+k}, v{acc+k}, v{acc+4+k}")
            nop(1)
            a(f"v_permlane16_swap_b32 v{acc}, v{acc+2}"); a(f"v_permlane16_swap_b32 v{acc+1}, v{acc+3}")
            a(f"v_add_f32 v{acc}, v{acc}, v{acc+2}"); a(f"v_add_f32 v{acc+1}, v{acc+1}, v{acc+3}")
            nop(2)
            a(f"v_add_f32_dpp v{acc}, v{acc}, v{acc} row_ror:8 row_mask:0xf bank_mask:0xf")
            a(f"v_add_f32_dpp v{acc+1}, v{acc+1}, v{acc+1} row_ror:8 row_mask:0xf bank_mask:0xf")
            a(f"v_cndmask_b32 v{acc}, v{acc}, v{acc+1}, vcc")
        a(f"v_cvt_pk_bf16_f32 v14, v{FA}, v{FA+8}")
        a("v_lshlrev_b32 v15, 16, v14"); a("v_and_b32 v16, s43, v14")
        a("v_mul_f32 v17, v15, v15"); a("v_mul_f32 v17, v17, v15")
        a("v_mov_b32 v18, 0x3d372713"); a("v_fma_f32 v17, v17, v18, v15")
        a("v_mul_f32 v17, 0xc0135761, v17")
        a("v_exp_f32 v17, v17"); nop(1)
        a("v_add_f32 v17, 1.0, v17"); a("v_rcp_f32 v17, v17"); nop(1)
        a("v_mul_f32 v17, v15, v17")
        a("v_cvt_pk_bf16_f32 v17, v17, v17"); a("v_and_b32 v17, s43, v17")
        a("v_mul_f32 v17, v17, v16")
        a("v_cvt_pk_bf16_f32 v17, v17, v17")
        a("v_lshlrev_b32 v14, 4, v7")
        a("v_lshrrev_b32 v15, 5, v2"); a("v_lshl_add_u32 v14, v15, 3, v14")
        a("v_bfe_u32 v15, v2, 4, 1"); a("v_lshl_add_u32 v14, v15, 2, v14")
        a("v_bfe_u32 v15, v2, 3, 1"); a("v_lshl_add_u32 v14, v15, 1, v14")
        a(f"v_mov_b32 v9, {RING+HB}"); a("v_add_u32 v14, v9, v14")
        a("ds_write_b16 v14, v17")
        a("s_waitcnt lgkmcnt(0)")
        a("ds_read_b64 v[10:11], v9")
        for k in range(8): a(f"v_mov_b32 v{FA+k}, 0")
        a("s_mov_b32 s44, 15")
        def dbody(last):
            a("s_waitcnt lgkmcnt(0)")
            forms(10, 0, 12, 13); forms(10, 1, 14, 15); forms(11, 0, 16, 17); forms(11, 1, 18, 19)
            if not last:
                a("v_add_u32 v9, 8, v9"); a("ds_read_b64 v[10:11], v9")
            for n in range(4):
                a(f"s_waitcnt vmcnt({FW-1 if not last else min(FW-1, 3-n)})")
                mac8(FA, FREG + n * 4, 12 + 2 * n, 13 + 2 * n)
                if not last or n + FW < 4: issue_d(n + FW)
            if not last:
                a("s_mov_b32 s40, s41"); a(f"s_add_u32 s41, s41, {0 if hitx else 4096}")
        lab("L_dloop")
        dbody(False)
        a("s_sub_u32 s44, s44, 1"); a("s_cmp_lg_u32 s44, 0"); a("s_cbranch_scc1 L_dloop")
        dbody(True)
    if noffn: lds_poll("L_nf", 38, 0, 200, 39, 64)
    a("v_lshlrev_b32 v12, 1, v1"); a("s_lshl_b32 s46, s36, 11")
    nop(2)
    if not nosync:
        a(f"buffer_store_dwordx4 v[{FA}:{FA+3}], v12, s[52:55], s46 offen {spol}")
        a(f"buffer_store_dwordx4 v[{FA+4}:{FA+7}], v12, s[52:55], s46 offen offset:16 {spol}")
        a("s_waitcnt vmcnt(0)")
    lab("L_clr")
    lds_poll("L_sn", 38, 8, 1, 39, 8)
    if not nosync:
        a("s_lshl_b32 s46, s37, 5"); a("v_mov_b32 v12, s46"); a("v_mov_b32 v13, 1")
        a("s_mov_b64 exec, 1")
        a("global_atomic_add v12, v13, s[24:25] sc1")
        a("s_mov_b64 exec, -1")
    if diag:
        stamp(4); put_stamp(4, 56, 12)
    lab("L_noffn")
    a("s_mov_b32 s32, s12"); a("s_mov_b32 s33, s13"); a("s_mov_b32 s34, 0x400000")
    a("s_lshl_b32 s46, s36, 17"); a("s_lshl_b32 s47, s3, 8"); a("s_add_u32 s46, s46, s47")
    a("v_lshlrev_b32 v5, 15, v3"); a("v_lshl_add_u32 v5, v4, 4, v5"); a("v_add_u32 v5, s46, v5")
    a("s_mov_b32 s40, 0"); a("s_mov_b32 s46, 0x05040100"); a("s_mov_b32 s47, 0x07060302")
    def issue_o(i):
        r = WREG + i * 4
        a(f"buffer_load_dwordx4 v[{r}:{r+3}], v5, s[32:35], s40 offen offset:{(i%4)*1024} {wpol}")
        if i % 4 == 3: a(f"s_add_u32 s40, s40, {0 if hitx else 4096}")
    if WOS:
        a(f"s_mul_i32 s44, s3, {WOS}"); a(f"s_sub_u32 s44, s44, {WOS}"); a("s_max_i32 s44, s44, 0")
        lds_poll("L_wos", 38, 0, "s44", 39, 32)
    for i in range(WOWIN if not nowo else 0): issue_o(i)
    for i in range(32 if not nowo else 0):
        a(f"s_waitcnt vmcnt({min(WOWIN - 1, 31 - i)})")
        if i + WOWIN < 32: issue_o(i + WOWIN)
        if i & 1:
            A = WREG + 8 * (i // 2); B = A + 4
            for d in range(4):
                a(f"v_perm_b32 v12, v{B+d}, v{A+d}, s46")
                a(f"v_perm_b32 v{B+d}, v{B+d}, v{A+d}, s47")
                a(f"v_mov_b32 v{A+d}, v12")
    def gather(srd, lbl, poll):
        if poll:
            a("s_mov_b32 s47, 0x40000")
            lab(lbl)
        a(f"buffer_load_dwordx4 v[8:11], v32, s[{srd}:{srd+3}], s15 offen {gpol}")
        a(f"buffer_load_dwordx4 v[12:15], v33, s[{srd}:{srd+3}], s15 offen {gpol}")
        a("s_waitcnt vmcnt(0)")
        if poll:
            a("v_and_b32 v16, 1, v8")
            for k in range(1, 8):
                a(f"v_and_b32 v17, 1, v{8+k}"); a(f"v_lshl_or_b32 v16, v17, {k}, v16")
            a("v_xor_b32 v16, v16, v36")
            a("v_cmp_ne_u32 vcc, 0xff, v16")
            a("s_sub_u32 s47, s47, 1"); a("s_cmp_eq_u32 s47, 0"); a(f"s_cbranch_scc1 {lbl}_ok")
            a("s_cmp_eq_u64 vcc, 0")
            if not nosync: a(f"s_cbranch_scc0 {lbl}")
            lab(lbl + "_ok")
            for k in range(8): a(f"v_and_b32 v{8+k}, -2, v{8+k}")
        for k in range(4): a(f"v_add_f32 v{8+k}, v{8+k}, v{12+k}")
        for ro in (4, 8):
            if ro == 4: nop(1)
            for k in range(4): a(f"v_add_f32_dpp v{8+k}, v{8+k}, v{8+k} row_ror:{ro} row_mask:0xf bank_mask:0xf")
        for k in range(4): a(f"v_mov_b32 v{12+k}, v{8+k}")
        for k in range(4): a(f"v_permlane16_swap_b32 v{8+k}, v{12+k}")
        for k in range(4): a(f"v_add_f32 v{8+k}, v{8+k}, v{12+k}")
        for k in range(4): a(f"v_mov_b32 v{12+k}, v{8+k}")
        for k in range(4): a(f"v_permlane32_swap_b32 v{8+k}, v{12+k}")
        for k in range(4): a(f"v_add_f32 v{8+k}, v{8+k}, v{12+k}")
        a("v_cvt_pk_bf16_f32 v12, v8, v9"); a("v_cvt_pk_bf16_f32 v13, v10, v11")
        a("v_lshlrev_b32 v8, 16, v12"); a("v_and_b32 v9, s43, v12"); a("v_lshlrev_b32 v10, 16, v13"); a("v_and_b32 v11, s43, v13")
    a("s_cmp_lg_u32 s3, 1"); a("s_cbranch_scc1 L_noy")
    lds_poll("L_mid", 38, 0, MID, 39, 32)
    if not nosync:
        a("s_lshl_b32 s46, s37, 5"); a("v_mov_b32 v12, s46"); a("s_mov_b32 s47, 0x20000")
        a("s_mov_b64 exec, 1")
        lab("L_rdy")
        a(f"global_load_dword v13, v12, s[24:25] {gpol}")
        a("s_waitcnt vmcnt(0)")
        a("v_readfirstlane_b32 s46, v13")
        a("s_sub_u32 s47, s47, 1"); a("s_cmp_eq_u32 s47, 0"); a("s_cbranch_scc1 L_rdy_ok")
        a("s_cmp_ge_u32 s46, 32"); a("s_cbranch_scc1 L_rdy_ok")
        a("s_sleep 16"); a("s_branch L_rdy")
        lab("L_rdy_ok")
        a("s_mov_b64 exec, -1")
    a("v_and_b32 v6, 3, v2"); a("v_lshlrev_b32 v6, 3, v6"); a("s_lshl_b32 s46, s36, 5"); a("v_add_u32 v6, s46, v6")
    a(f"buffer_load_dwordx2 v[18:19], v6, s[28:31], 0 offen {xpol}")
    gather(52, "L_gy", False)
    for k in range(4): a(f"v_mul_f32 v{12+k}, 0xbfb8aa3b, v{8+k}")
    for k in range(4): a(f"v_exp_f32 v{12+k}, v{12+k}")
    for k in range(4): a(f"v_add_f32 v{12+k}, 1.0, v{12+k}")
    for k in range(4): a(f"v_rcp_f32 v{12+k}, v{12+k}")
    for k in range(4): a(f"v_mul_f32 v{8+k}, v{8+k}, v{12+k}")
    a("v_cvt_pk_bf16_f32 v0, v8, v9"); a("v_cvt_pk_bf16_f32 v39, v10, v11")
    a("v_mov_b32 v2, v18"); a("v_mov_b32 v38, v19")
    lab("L_noy")
    a("v_lshrrev_b32 v6, 1, v1"); a("v_and_b32 v6, 24, v6"); a("s_lshl_b32 s46, s36, 5"); a("v_add_u32 v6, s46, v6")
    a("s_lshl_b32 s46, s37, 10"); a("s_add_u32 s56, s22, s46"); a("s_addc_u32 s57, s23, 0"); a("s_mov_b32 s58, 1024"); a("s_mov_b32 s59, 0x20000")
    a("v_lshrrev_b32 v7, 1, v1"); a(f"v_add_u32 v7, {RING}, v7")
    a("s_lshl_b32 s45, s3, 8"); a(f"s_add_u32 s45, s45, {RING+OB}")
    a("v_lshrrev_b32 v4, 2, v1"); a("v_add_u32 v4, s45, v4")
    a("v_lshlrev_b32 v3, 6, v3"); a("v_add_u32 v3, s45, v3")
    a(f"v_mov_b32 v37, {RING+ML}")
    stamp(5)
    a("s_barrier")
    a("ds_read_b128 v[8:11], v37"); a("ds_read_b128 v[12:15], v37 offset:16")
    for w in range(4): a(f"ds_read_b64 v[{16+2*w}:{17+2*w}], v7 offset:{SP+w*512}")
    a("s_waitcnt lgkmcnt(4)")
    a("v_max3_f32 v24, v8, v9, v10"); a("v_max_f32 v24, v24, v11")
    for w in range(4): a(f"v_sub_f32 v{8+w}, v{8+w}, v24")
    for w in range(4): a(f"v_mul_f32 v{8+w}, s42, v{8+w}")
    for w in range(4): a(f"v_exp_f32 v{8+w}, v{8+w}")
    a("v_mul_f32 v24, v8, v12"); a("v_fmac_f32 v24, v9, v13"); a("v_fmac_f32 v24, v10, v14"); a("v_fmac_f32 v24, v11, v15")
    a("v_rcp_f32 v24, v24")
    a("s_waitcnt lgkmcnt(0)")
    a("v_mul_f32 v25, v8, v16"); a("v_mul_f32 v26, v8, v17")
    for w in range(1, 4):
        a(f"v_fmac_f32 v25, v{8+w}, v{16+2*w}"); a(f"v_fmac_f32 v26, v{8+w}, v{17+2*w}")
    a("v_mul_f32 v25, v24, v25"); a("v_mul_f32 v26, v24, v26")
    a("v_cvt_pk_bf16_f32 v25, v25, v26")
    a("ds_write_b32 v4, v25")
    for k in range(8): a(f"v_mov_b32 v{8+k}, 0")
    a("s_waitcnt lgkmcnt(0)")
    for k in range(4): a(f"ds_read_b128 v[{16+4*k}:{19+4*k}], v3 offset:{16*k}")
    for k in range(16):
        if k % 4 == 0: a(f"s_waitcnt lgkmcnt({3-k//4})")
        A = WREG + 8 * k; B = A + 4
        for d in range(4):
            a(f"v_dot2c_f32_bf16 v{8+2*d}, v{A+d}, v{16+k}")
            a(f"v_dot2c_f32_bf16 v{9+2*d}, v{B+d}, v{16+k}")
    nop(3)
    for k in range(4): a(f"v_permlane32_swap_b32 v{8+k}, v{12+k}")
    for k in range(4): a(f"v_add_f32 v{8+k}, v{8+k}, v{12+k}")
    for k in range(4): a(f"v_mov_b32 v{12+k}, v{8+k}")
    for k in range(4): a(f"v_permlane16_swap_b32 v{8+k}, v{12+k}")
    for k in range(4): a(f"v_add_f32 v{8+k}, v{8+k}, v{12+k}")
    for k in range(4): a(f"v_bfe_u32 v{24+k}, v35, {k}, 1")
    for k in range(4): a(f"v_and_or_b32 v{20+k}, v{8+k}, -2, v{24+k}")
    a("s_mov_b32 exec_lo, 0xffff"); a("s_mov_b32 exec_hi, 0xffff")
    a(f"buffer_store_dwordx4 v[20:23], v34, s[48:51], s14 offen {spol}")
    a("s_mov_b64 exec, -1")
    a("s_cmp_lg_u32 s3, 1"); a("s_cbranch_scc1 L_done")
    stamp(6)
    a("v_lshlrev_b32 v24, 16, v0"); a("v_and_b32 v25, s43, v0"); a("v_lshlrev_b32 v26, 16, v39"); a("v_and_b32 v27, s43, v39")
    a("v_lshlrev_b32 v28, 16, v2"); a("v_and_b32 v29, s43, v2"); a("v_lshlrev_b32 v30, 16, v38"); a("v_and_b32 v31, s43, v38")
    gather(48, "L_gs", True)
    for k in range(4): a(f"v_mul_f32 v{8+k}, v{8+k}, v{24+k}")
    a("v_cvt_pk_bf16_f32 v12, v8, v9"); a("v_cvt_pk_bf16_f32 v13, v10, v11")
    a("v_lshlrev_b32 v8, 16, v12"); a("v_and_b32 v9, s43, v12"); a("v_lshlrev_b32 v10, 16, v13"); a("v_and_b32 v11, s43, v13")
    for k in range(4): a(f"v_add_f32 v{8+k}, v{8+k}, v{28+k}")
    a("v_cvt_pk_bf16_f32 v12, v8, v9"); a("v_cvt_pk_bf16_f32 v13, v10, v11")
    a("s_mov_b64 exec, 15")
    a("buffer_store_dwordx2 v[12:13], v6, s[56:59], 0 offen")
    if diag:
        stamp(7)
        a("s_mov_b64 exec, -1")
        put_stamp(7, 8, 20); put_stamp(5, 40, 20); put_stamp(6, 48, 20)
    lab("L_done")
    a("s_endpgm")
    L.append(".p2align 10")
    lab("L_end")
    L.append('.section .rodata,"a"'); L.append(".p2align 6"); L.append(f".amdhsa_kernel {KN}")
    a(".amdhsa_next_free_vgpr 168"); a(".amdhsa_next_free_sgpr 80"); a(".amdhsa_accum_offset 168")
    a(".amdhsa_group_segment_fixed_size 0"); a(".amdhsa_kernarg_size 96"); a(".amdhsa_user_sgpr_count 2")
    a(".amdhsa_user_sgpr_kernarg_segment_ptr 1"); a(".amdhsa_system_sgpr_workgroup_id_x 1")
    a(".amdhsa_float_denorm_mode_32 3")
    L.append(".end_amdhsa_kernel")
    return "\n".join(L) + "\n"

if __name__ == "__main__":
    for spec in sys.argv[1:]:
        out, _, kvs = spec.partition(":")
        kw = {}
        if kvs:
            for kv in kvs.split(","):
                k, v = kv.split("=")
                kw[k] = int(v) if v.lstrip("-").isdigit() else v.replace("+", " ")
        open(out, "w").write(gen(**kw))
```

```python
import sys, struct
KN = "recurrent_scan__mha_block_cached__geglu_ffn__decode_kernel"
HEADER = open("recurrent_scan__mha_block_cached__geglu_ffn__decode.s.ref").read().split("; Override launch")[0]

XN, QP, SP, ML, CT, OB, HB = 0, 1024, 1024, 3072, 3136, 3328, 4352
MISC = 4608
YOFF = 0x80000
TOFF = 0x100000
STOFF = 0x30000000
LOG2E = 0x3fb8aa3b
SCALE = 0x3db504f3
f2u = lambda x: hex(struct.unpack("<I", struct.pack("<f", x))[0])

def gen(D=19, D1=0, FW=3, WOS=90, WO0=40, WQWIN=8, WOWIN=1, wpol="nt", diag=0, kvpol="nt", noffn=0, nowo=0, noq=0,
        MID=440, YP=506, prog=0, NSLOT=19, xpol="", gpol="sc1", spol="sc1", snpol="sc1 nt", pfpol="", SNAP=0,
        ctl=1, DMIN=14, DMAX=23, CKI=4, LT=0, G=50, G2=50, pf=1, lprio=3, gsl=0):
    L = []
    RING = NSLOT * 8192
    LDS_BYTES = RING + MISC
    assert LDS_BYTES <= 163840
    def a(s): L.append("  " + s)
    def lab(s): L.append(s + ":")
    def nop(n): a(f"s_nop {n-1}")
    def stamp(i):
        if diag: a(f"s_memrealtime s[{60+2*i}:{61+2*i}]")
    def put_stamp(i, off, vt):
        a("s_waitcnt lgkmcnt(0)")
        a("s_lshl_b32 s45, s2, 6"); a(f"s_add_u32 s45, s45, {STOFF}"); a(f"v_mov_b32 v{vt+2}, s45")
        a(f"v_mov_b32 v{vt}, s{60+2*i}"); a(f"v_mov_b32 v{vt+1}, s{61+2*i}")
        a("s_mov_b64 exec, 1")
        a(f"global_store_dwordx2 v{vt+2}, v[{vt}:{vt+1}], s[26:27] offset:{off}")
        a("s_mov_b64 exec, -1")
        nop(2)
    L.append(HEADER.rstrip("\n"))
    L.append(f"; @launch grid=(256,1,1) block=({704 if ctl else 640},1,1) lds={LDS_BYTES}")
    L.append('.amdgcn_target "amdgcn-amd-amdhsa--gfx950"')
    L.append(".text"); L.append(f".globl {KN}"); L.append(".p2align 8"); L.append(f".type {KN},@function"); lab(KN)
    a("s_cmp_ge_u32 s2, 256")
    a("s_cbranch_scc1 L_done")
    a("s_load_dwordx8 s[4:11], s[0:1], 0")
    stamp(0)
    a("v_lshrrev_b32 v1, 6, v0")
    a("v_and_b32 v2, 63, v0")
    a("v_readfirstlane_b32 s3, v1")
    a("v_lshlrev_b32 v1, 4, v2")
    a("s_and_b32 s36, s2, 7")
    a("s_lshl_b32 s36, s36, 2")
    a("s_bfe_u32 s37, s2, 0x20003")
    a("s_add_u32 s36, s36, s37")
    a("s_lshr_b32 s37, s2, 5")
    a("s_cmp_lg_u32 s3, 0")
    a("s_cbranch_scc1 L_notloader")

    if lprio: a(f"s_setprio {lprio}")
    a("s_lshl_b32 s38, s37, 5"); a("s_add_u32 s38, s38, s36"); a("s_lshl_b32 s38, s38, 20")
    a("s_mov_b32 s30, 0x100000"); a("s_mov_b32 s31, 0x20000"); a("s_mov_b32 s34, 0x100000"); a("s_mov_b32 s35, 0x20000")
    a("s_mov_b32 s40, 0"); a("s_mov_b32 s41, 0")
    a(f"v_mov_b32 v3, {RING+CT}")
    a("v_lshl_add_u32 v4, v2, 2, v3"); a("v_mov_b32 v5, 0")
    a("s_mov_b64 exec, 0xff")
    a("ds_write_b32 v4, v5")
    a("s_mov_b64 exec, -1")
    a(f"v_mov_b32 v8, {D * 16}"); a("ds_write_b32 v3, v8 offset:12")
    a("s_mov_b32 m0, 0")
    a("s_waitcnt lgkmcnt(0)")
    a("s_add_u32 s28, s6, s38"); a("s_addc_u32 s29, s7, 0"); a("s_add_u32 s32, s8, s38"); a("s_addc_u32 s33, s9, 0")
    def publish(k):
        a(f"v_add_u32 v5, {k}, v7"); a("ds_write_b32 v3, v5")
    def ld_step(m, Dw, first=False):
        j = m & 7
        if j == 0 and not (first and m == 0): a("s_mov_b32 m0, s41")
        if j == 4: a("s_add_u32 m0, s41, 4096")
        waited = not (first and m < Dw)
        if waited: a(f"s_waitcnt vmcnt({Dw-1})")
        elif j in (0, 4) and m: nop(1)
        srd = 28 if j < 4 else 32
        a(f"buffer_load_dwordx4 v1, s[{srd}:{srd+3}], s40 offen offset:{(j&3)*1024} {kvpol} lds")
        if waited and (m - Dw + 1) % 4 == 0: publish((m - Dw + 1) // 4)
        if j == 7:
            a("s_add_u32 s40, s40, 4096"); a("s_add_u32 s41, s41, 8192")
            a(f"s_cmp_eq_u32 s41, {RING}"); a("s_cselect_b32 s41, 0, s41")
    Dfirst = D1 if D1 else D
    a("v_mov_b32 v7, 0")
    if prog: a("v_mov_b32 v10, 0"); a("v_mov_b32 v11, 0")
    for m in range(32):
        ld_step(m, Dfirst, first=True)
        if m == 7: a("s_barrier")
    def fw(w): return (w - NSLOT) % 4
    def fo(w): return (w - NSLOT) // 4 + 1
    a("s_mov_b32 s44, 0")
    a("s_mov_b32 s47, 8")
    a(f"ds_read_b32 v6, v3 offset:{16 + 4 * fw(0)}")
    a("ds_read_b32 v8, v3 offset:12")
    Ds = list(range(DMIN, DMAX + 1)) if ctl else [D]
    def slow(lbl, w, back):
        lab(lbl)
        a("s_sleep 1")
        a(f"ds_read_b32 v6, v3 offset:{16 + 4 * fw(w)}")
        a("s_waitcnt lgkmcnt(0)")
        a("v_readfirstlane_b32 s45, v6")
        a(f"s_sub_i32 s45, s45, {fo(w)}")
        a("s_cmp_ge_i32 s45, s44")
        a(f"s_cbranch_scc0 {lbl}")
        a(f"s_branch {back}")
    lab("L_disp")
    a("v_add_u32 v7, 8, v7")
    a("s_add_u32 s44, s44, 1")
    a("s_cmp_eq_u32 s44, 64")
    a("s_cbranch_scc1 L_drain")
    if prog: a("s_memrealtime s[76:77]")
    a("s_waitcnt lgkmcnt(0)")
    a("v_readfirstlane_b32 s45, v6")
    a("v_readfirstlane_b32 s46, v8")
    if prog:
        a("s_mov_b32 m0, s44"); nop(4); a("v_writelane_b32 v10, s76, m0"); a("v_writelane_b32 v11, s46, m0")
    a(f"s_sub_i32 s45, s45, {fo(0)}")
    a("s_cmp_ge_i32 s45, s44")
    a("s_cbranch_scc0 L_lslow_0")
    lab("L_lfree_0")
    if ctl:
        a("s_add_u32 s47, s47, s46"); a("s_lshr_b32 s46, s47, 4"); a("s_and_b32 s47, s47, 15")
        def casc(lst):
            if len(lst) == 1:
                a(f"s_branch L_c{lst[0]}"); return
            mid = len(lst) // 2
            a(f"s_cmp_ge_u32 s46, {lst[mid]}")
            if len(lst) - mid == 1:
                a(f"s_cbranch_scc1 L_c{lst[mid]}")
                casc(lst[:mid])
            else:
                l2 = f"L_k{lst[mid]}_{len(lst)}"
                a(f"s_cbranch_scc1 {l2}")
                casc(lst[:mid]); lab(l2); casc(lst[mid:])
        casc(Ds)
    for Dw in Ds:
        npub = sum(1 for j in range(5, 8) if (j - Dw + 1) % 4 == 0)
        lab(f"L_c{Dw}")
        for w in range(4):
            if w:
                a(f"s_waitcnt lgkmcnt({npub})")
                a("v_readfirstlane_b32 s45, v6")
                a(f"s_sub_i32 s45, s45, {fo(w)}")
                a("s_cmp_ge_i32 s45, s44")
                a(f"s_cbranch_scc0 L_lslow{Dw}_{w}")
                lab(f"L_lfree{Dw}_{w}")
            for j in range(8):
                ld_step(8 * w + j, Dw)
                if j == 4:
                    a(f"ds_read_b32 v6, v3 offset:{16 + 4 * fw((w + 1) & 3)}")
                    if w == 3: a("ds_read_b32 v8, v3 offset:12")
        a("s_branch L_disp")
    slow("L_lslow_0", 0, "L_lfree_0")
    for Dw in Ds:
        for w in range(1, 4): slow(f"L_lslow{Dw}_{w}", w, f"L_lfree{Dw}_{w}")
    lab("L_drain")
    for r in range((max(Ds) - 1) // 4 * 4, -1, -4):
        a(f"s_waitcnt vmcnt({r})"); publish(-(r // 4))
    if diag:
        stamp(2)
        a("s_load_dwordx2 s[26:27], s[0:1], 88")
        if prog:
            a("s_waitcnt lgkmcnt(0)")
            a("v_writelane_b32 v10, s64, 0")
            a("s_lshl_b32 s45, s2, 8"); a(f"s_add_u32 s45, s45, {STOFF + 0x4000}"); a("v_lshrrev_b32 v9, 2, v1"); a("v_add_u32 v9, s45, v9")
            a("global_store_dword v9, v10, s[26:27]")
            a("v_add_u32 v9, 0x10000, v9")
            a("global_store_dword v9, v11, s[26:27]")
        put_stamp(0, 0, 12); put_stamp(2, 24, 12)
    a("s_endpgm")

    def wave_allsum(r, t):
        for ro in (8, 4, 2, 1):
            nop(2)
            a(f"v_add_f32_dpp v{r}, v{r}, v{r} row_ror:{ro} row_mask:0xf bank_mask:0xf")
        a(f"v_mov_b32 v{t}, v{r}"); nop(2)
        a(f"v_permlane16_swap_b32 v{r}, v{t}"); a(f"v_add_f32 v{r}, v{r}, v{t}"); a(f"v_mov_b32 v{t}, v{r}"); nop(2)
        a(f"v_permlane32_swap_b32 v{r}, v{t}"); a(f"v_add_f32 v{r}, v{r}, v{t}")
    def layernorm(hook):
        for k in range(4):
            a(f"v_lshlrev_b32 v{12+2*k}, 16, v{8+k}"); a(f"v_and_b32 v{13+2*k}, s43, v{8+k}")
        a("v_add_f32 v20, v12, v13"); a("v_add_f32 v21, v14, v15"); a("v_add_f32 v22, v16, v17"); a("v_add_f32 v23, v18, v19")
        a("v_add_f32 v20, v20, v21"); a("v_add_f32 v22, v22, v23"); a("v_add_f32 v20, v20, v22")
        wave_allsum(20, 21); hook()
        a("v_mul_f32 v20, 0x3b000000, v20")
        a("v_mov_b32 v22, 0")
        for k in range(8):
            a(f"v_sub_f32 v21, v{12+k}, v20"); a("v_fmac_f32 v22, v21, v21")
        hook(); wave_allsum(22, 21); hook()
        a("v_mul_f32 v22, 0x3b000000, v22")
        a("v_cvt_pk_bf16_f32 v20, v20, v22")
        a("v_and_b32 v22, s43, v20"); a("v_lshlrev_b32 v20, 16, v20")
        a("v_add_f32 v22, 0x3727c5ac, v22")
        a("v_cvt_pk_bf16_f32 v22, v22, v22"); a("v_and_b32 v22, s43, v22")
        a("v_sqrt_f32 v22, v22"); nop(1)
        a("v_cvt_pk_bf16_f32 v22, v22, v22"); a("v_and_b32 v22, s43, v22")
        a("v_rcp_f32 v22, v22"); hook()
        for k in range(8): a(f"v_sub_f32 v{12+k}, v{12+k}, v20")
        for k in range(4): a(f"v_cvt_pk_bf16_f32 v{8+k}, v{12+2*k}, v{13+2*k}")
        for k in range(4):
            a(f"v_lshlrev_b32 v{12+2*k}, 16, v{8+k}"); a(f"v_and_b32 v{13+2*k}, s43, v{8+k}")
        for k in range(8): a(f"v_mul_f32 v{12+k}, v22, v{12+k}")
        for k in range(4): a(f"v_cvt_pk_bf16_f32 v{8+k}, v{12+2*k}, v{13+2*k}")
    def forms(pair, odd, lo, hi):
        if not odd:
            a(f"v_and_b32 v{lo}, 0xffff, v{pair}"); a(f"v_lshlrev_b32 v{hi}, 16, v{pair}")
        else:
            a(f"v_lshrrev_b32 v{lo}, 16, v{pair}"); a(f"v_and_b32 v{hi}, s43, v{pair}")
    def mac8(acc, w, lo, hi):
        for d in range(4):
            a(f"v_dot2c_f32_bf16 v{acc+2*d}, v{w+d}, v{lo}")
            a(f"v_dot2c_f32_bf16 v{acc+2*d+1}, v{w+d}, v{hi}")
    def lds_poll(lbl, addr, off, tgt, vt, sleep):
        lab(lbl)
        a(f"ds_read_b32 v{vt}, v{addr} offset:{off}")
        a("s_waitcnt lgkmcnt(0)")
        a(f"v_readfirstlane_b32 s45, v{vt}")
        a(f"s_cmp_ge_u32 s45, {tgt}")
        a(f"s_cbranch_scc1 {lbl}_ok")
        a(f"s_sleep {sleep}")
        a(f"s_branch {lbl}")
        lab(lbl + "_ok")
    def packbits(dst, src, n, t):
        a(f"v_and_b32 v{dst}, 1, v{src}")
        for k in range(1, n):
            a(f"v_and_b32 v{t}, 1, v{src+k}"); a(f"v_lshl_or_b32 v{dst}, v{t}, {k}, v{dst}")
    WREG = 40

    lab("L_notloader")
    a("v_lshrrev_b32 v3, 4, v2")
    a("v_and_b32 v4, 15, v2")
    a("s_mov_b32 s43, 0xffff0000")
    a("s_mov_b32 s42, " + hex(LOG2E))
    a("s_lshl_b32 s39, s37, 10")
    a("s_mov_b32 s30, 1024"); a("s_mov_b32 s31, 0x20000"); a("s_mov_b32 s35, 0x20000")
    a("s_cmp_ge_u32 s3, 5")
    a("s_cbranch_scc1 L_helper")

    a("s_sub_u32 s3, s3, 1")
    a("s_lshl_b32 s38, s3, 20"); a("s_lshl_b32 s46, s36, 8"); a("s_add_u32 s38, s38, s46")
    a("v_lshlrev_b32 v5, 18, v3"); a("v_lshl_add_u32 v5, v4, 4, v5"); a("v_add_u32 v5, s38, v5")
    a("s_mov_b32 s34, 0x400000")
    a("s_lshl_b32 s40, s37, 15")
    a("s_waitcnt lgkmcnt(0)")
    a("s_add_u32 s28, s4, s39"); a("s_addc_u32 s29, s5, 0")
    a("s_mov_b32 s32, s10"); a("s_mov_b32 s33, s11")
    a(f"buffer_load_dwordx4 v[8:11], v1, s[28:31], 0 offen {xpol}")
    wq = {"issued": 0}
    def issue_wq(window=True):
        i = wq["issued"]
        if i >= 32 or noq: return
        if window: a(f"s_waitcnt vmcnt({WQWIN-1})")
        r = WREG + i * 4
        a(f"buffer_load_dwordx4 v[{r}:{r+3}], v5, s[32:35], s40 offen {wpol}")
        a("s_add_u32 s40, s40, 0x2000")
        if i % 4 == 3: a("s_and_b32 s40, s40, 0x3ffff")
        wq["issued"] += 1
    for i in range(WQWIN): issue_wq(False)
    a("s_barrier")
    a(f"s_waitcnt vmcnt({WQWIN if not noq else 0})")
    layernorm(issue_wq)
    a(f"s_mov_b32 s45, {RING+XN}")
    a("v_add_u32 v6, s45, v1")
    a("ds_write_b128 v6, v[8:11]")
    issue_wq()
    a("s_lshl_b32 s46, s3, 8"); a("s_add_u32 s46, s46, s45")
    a("v_lshlrev_b32 v7, 6, v3"); a("v_add_u32 v7, s46, v7")
    a("s_waitcnt lgkmcnt(0)")
    for k in range(8):
        a(f"s_add_u32 s46, s37, {k}"); a("s_and_b32 s46, s46, 7"); a("s_lshl_b32 s46, s46, 3")
        a("v_add_u32 v12, s46, v7")
        a(f"ds_read_b64 v[{16+2*k}:{17+2*k}], v12")
    for k in range(8): a(f"v_mov_b32 v{32+k}, 0")
    a("s_waitcnt lgkmcnt(0)")
    for i in range(32 if not noq else 0):
        forms(16 + i // 2, i & 1, 12, 13)
        if wq["issued"] < 32: issue_wq()
        else: a(f"s_waitcnt vmcnt({31 - i})")
        mac8(32, WREG + i * 4, 12, 13)
    a("v_lshlrev_b32 v7, 5, v4")
    a(f"v_add_u32 v7, {RING}, v7")
    a("v_lshl_add_u32 v6, v3, 2, v7")
    a("s_lshl_b32 s46, s3, 9"); a("v_add_u32 v6, s46, v6")
    for k in range(4): a(f"v_permlane16_swap_b32 v{32+2*k}, v{33+2*k}")
    for k in range(4): a(f"v_add_f32 v{32+2*k}, v{32+2*k}, v{33+2*k}")
    a("v_mov_b32 v39, 1")
    a("v_permlane32_swap_b32 v32, v34"); a("v_permlane32_swap_b32 v36, v38")
    a("v_add_f32 v32, v32, v34"); a("v_add_f32 v36, v36, v38")
    a(f"ds_write_b32 v6, v32 offset:{QP}"); a(f"ds_write_b32 v6, v36 offset:{QP+16}")
    a(f"v_mov_b32 v38, {RING+CT}")
    a("s_waitcnt lgkmcnt(0)")
    a("s_mov_b64 exec, 1")
    a("ds_add_u32 v38, v39 offset:4")
    a("s_mov_b64 exec, -1")
    lds_poll("L_qw", 38, 4, 4, 39, 1)
    for w in range(4):
        a(f"ds_read_b128 v[{40+w*8}:{43+w*8}], v7 offset:{QP+w*512}")
        a(f"ds_read_b128 v[{44+w*8}:{47+w*8}], v7 offset:{QP+w*512+16}")
    a("s_mov_b32 s41, " + hex(SCALE))
    for k in range(8): a(f"v_mov_b32 v{8+k}, 0")
    a("v_mov_b32 v16, 0xff800000"); a("v_mov_b32 v17, 0")
    a("s_lshl_b32 s44, s3, 13"); a("v_add_u32 v36, s44, v1")
    a("s_lshl_b32 s46, s3, 2"); a("v_add_u32 v37, s46, v38")
    a("s_lshl_b32 s47, s3, 1"); a("s_add_u32 s47, s47, 1")
    a("v_mov_b32 v27, 0")
    a("s_waitcnt lgkmcnt(4)")
    for k in range(8): a(f"v_add_f32 v{40+k}, v{40+k}, v{48+k}")
    a("s_waitcnt lgkmcnt(0)")
    for k in range(8): a(f"v_add_f32 v{56+k}, v{56+k}, v{64+k}")
    for k in range(8): a(f"v_add_f32 v{40+k}, v{40+k}, v{56+k}")
    for k in range(4): a(f"v_cvt_pk_bf16_f32 v{72+k}, v{40+2*k}, v{41+2*k}")
    stamp(1)
    Q = 72; KR = 40; VR = 56
    S = [18, 19, 20, 21]; T = [22, 23]; MN = 24; MS = 25; AL = 26
    PLO = [28, 29, 30, 31]; PHI = [32, 33, 34, 35]
    def unpack():
        a(f"v_cvt_pk_bf16_f32 v{T[0]}, v{S[0]}, v{S[1]}")
        a(f"v_cvt_pk_bf16_f32 v{T[1]}, v{S[2]}, v{S[3]}")
        a(f"v_lshlrev_b32 v{S[0]}, 16, v{T[0]}")
        a(f"v_and_b32 v{S[1]}, s43, v{T[0]}")
        a(f"v_lshlrev_b32 v{S[2]}, 16, v{T[1]}")
        a(f"v_and_b32 v{S[3]}, s43, v{T[1]}")
    lab("L_cloop")
    lds_poll("L_pk", 38, 0, "s47", 39, 1)
    for j in range(4): a(f"ds_read_b128 v[{KR+4*j}:{KR+4*j+3}], v36 offset:{j*1024}")
    for j in range(4): a(f"v_mov_b32 v{S[j]}, 0")
    for j in range(4):
        a(f"s_waitcnt lgkmcnt({3-j})")
        for d in range(4): a(f"v_dot2c_f32_bf16 v{S[j]}, v{KR+4*j+d}, v{Q+d}")
    for ri, r in enumerate((8, 4, 2, 1)):
        for j in range(4):
            if ri == 0 and j == 3: nop(1)
            a(f"v_add_f32_dpp v{S[j]}, v{S[j]}, v{S[j]} row_ror:{r} row_mask:0xf bank_mask:0xf")
    unpack()
    for j in range(4): a(f"v_mul_f32 v{S[j]}, s41, v{S[j]}")
    unpack()
    a(f"v_max3_f32 v{MN}, v{S[0]}, v{S[1]}, v16")
    a(f"v_max3_f32 v{MN}, v{S[2]}, v{S[3]}, v{MN}")
    a(f"v_mul_f32 v{MS}, s42, v{MN}")
    a(f"v_fma_f32 v{AL}, v16, s42, -v{MS}")
    for j in range(4): a(f"v_fma_f32 v{S[j]}, v{S[j]}, s42, -v{MS}")
    a(f"v_exp_f32 v{AL}, v{AL}")
    for j in range(4): a(f"v_exp_f32 v{S[j]}, v{S[j]}")
    a(f"v_mov_b32 v16, v{MN}")
    for q in range(8): a(f"v_mul_f32 v{8+q}, v{AL}, v{8+q}")
    a(f"v_fma_f32 v17, v17, v{AL}, v{S[0]}")
    a(f"v_add_f32 v{T[0]}, v{S[1]}, v{S[2]}")
    for j in range(4): a(f"v_cvt_pk_bf16_f32 v{PLO[j]}, v{S[j]}, 0")
    for j in range(4): a(f"v_cvt_pk_bf16_f32 v{PHI[j]}, 0, v{S[j]}")
    a(f"v_add_f32 v17, v17, v{S[3]}")
    a(f"v_add_f32 v17, v17, v{T[0]}")
    a("s_cmp_gt_u32 s45, s47")
    a("s_cbranch_scc1 L_pv_ok")
    a("s_add_u32 s46, s47, 1")
    lds_poll("L_pv", 38, 0, "s46", 39, 1)
    for j in range(4): a(f"ds_read_b128 v[{VR+4*j}:{VR+4*j+3}], v36 offset:{4096+j*1024}")
    a("v_add_u32 v27, 1, v27")
    a("s_add_u32 s44, s44, 0x8000"); a(f"s_sub_u32 s46, s44, {RING}"); a("s_cselect_b32 s44, s44, s46")
    a("v_add_u32 v36, s44, v1")
    a("s_add_u32 s47, s47, 8")
    for j in range(4):
        a(f"s_waitcnt lgkmcnt({3-j})")
        if j == 3: a("ds_write_b32 v37, v27 offset:16")
        for d in range(4):
            a(f"v_dot2c_f32_bf16 v{8+2*d}, v{VR+4*j+d}, v{PLO[j]}")
            a(f"v_dot2c_f32_bf16 v{9+2*d}, v{VR+4*j+d}, v{PHI[j]}")
    a("s_cmp_lt_u32 s47, 512")
    a("s_cbranch_scc1 L_cloop")
    a("v_mov_b32 v18, v16"); a("v_mov_b32 v19, v16"); nop(2)
    a("v_permlane16_swap_b32 v18, v19"); a("v_max_f32 v18, v18, v19"); a("v_mov_b32 v19, v18"); nop(2)
    a("v_permlane32_swap_b32 v18, v19"); a("v_max_f32 v18, v18, v19")
    a("v_sub_f32 v20, v16, v18"); a("v_mul_f32 v20, s42, v20"); a("v_exp_f32 v20, v20"); nop(1)
    for k in range(8): a(f"v_mul_f32 v{8+k}, v20, v{8+k}")
    a("v_mul_f32 v17, v20, v17")
    a("v_mov_b32 v21, v17")
    for k in range(4): a(f"v_permlane16_swap_b32 v{8+2*k}, v{9+2*k}")
    a("v_permlane16_swap_b32 v17, v21")
    for k in range(4): a(f"v_add_f32 v{8+2*k}, v{8+2*k}, v{9+2*k}")
    a("v_add_f32 v17, v17, v21"); a("v_mov_b32 v21, v17")
    a("v_permlane32_swap_b32 v8, v10"); a("v_permlane32_swap_b32 v12, v14"); a("v_permlane32_swap_b32 v17, v21")
    a("v_add_f32 v8, v8, v10"); a("v_add_f32 v12, v12, v14"); a("v_add_f32 v17, v17, v21")
    a(f"ds_write_b32 v6, v8 offset:{SP}"); a(f"ds_write_b32 v6, v12 offset:{SP+16}")
    a(f"v_subrev_u32 v37, {CT-ML}, v37")
    a("ds_write_b32 v37, v18"); a("ds_write_b32 v37, v17 offset:16")
    a("s_waitcnt lgkmcnt(0)")
    a("s_barrier")
    if diag:
        a("s_cmp_lg_u32 s3, 0"); a("s_cbranch_scc1 L_done")
        a("s_load_dwordx2 s[26:27], s[0:1], 88")
        put_stamp(1, 16, 8)
    a("s_endpgm")

    lab("L_helper")
    a("s_sub_u32 s3, s3, 5")
    if pf:
        a("s_cmp_lg_u32 s3, 2"); a("s_cbranch_scc1 L_nopf")
        a("s_getpc_b64 s[46:47]")
        lab("L_pc")
        a(f"s_sub_u32 s46, s46, L_pc-{KN}"); a("s_subb_u32 s47, s47, 0")
        a("s_lshr_b32 s45, s2, 3"); a("s_min_u32 s45, s45, (L_end-" + KN + ")/1024-1"); a("s_lshl_b32 s45, s45, 10")
        a("v_add_u32 v6, s45, v1")
        a(f"global_load_dwordx4 v[8:11], v6, s[46:47] {pfpol}")
        lab("L_nopf")
    a("s_load_dwordx2 s[12:13], s[0:1], 32")
    a("s_load_dwordx8 s[16:23], s[0:1], 48")
    a("s_load_dwordx4 s[24:27], s[0:1], 80")
    a(f"v_mov_b32 v38, {RING+CT}")
    a("s_barrier")
    a("s_waitcnt lgkmcnt(0)")
    a("s_lshl_b32 s38, s37, 16")
    a("s_add_u32 s48, s26, s38"); a("s_addc_u32 s49, s27, 0"); a("s_mov_b32 s50, 0x10000"); a("s_mov_b32 s51, 0x20000")
    a("s_cmp_ge_u32 s3, 4"); a("s_cbranch_scc1 L_notwo")

    a("v_lshlrev_b32 v34, 5, v4"); a("v_lshrrev_b32 v7, 1, v3"); a("v_lshl_add_u32 v34, v7, 4, v34")
    a("s_lshl_b32 s14, s3, 9"); a("s_lshl_b32 s46, s36, 11"); a("s_add_u32 s14, s14, s46")
    a("s_mov_b32 s32, s12"); a("s_mov_b32 s33, s13"); a("s_mov_b32 s34, 0x400000")
    a("s_lshl_b32 s46, s36, 17"); a("s_lshl_b32 s47, s3, 8"); a("s_add_u32 s46, s46, s47")
    a("v_lshlrev_b32 v5, 15, v3"); a("v_lshl_add_u32 v5, v4, 4, v5"); a("v_add_u32 v5, s46, v5")
    a("s_mov_b32 s40, 0"); a("s_mov_b32 s46, 0x05040100"); a("s_mov_b32 s47, 0x07060302")
    a(f"s_mul_i32 s44, s3, {WOS}"); a(f"s_add_u32 s44, s44, {WO0}")
    lds_poll("L_wos", 38, 0, "s44", 39, 32)
    a(f"buffer_load_dwordx4 v[8:11], v34, s[48:51], s14 offen {snpol}")
    a("s_waitcnt vmcnt(0)")
    packbits(35, 8, 4, 20)
    a("v_xor_b32 v35, 15, v35")
    def issue_o(i):
        r = WREG + i * 4
        a(f"buffer_load_dwordx4 v[{r}:{r+3}], v5, s[32:35], s40 offen offset:{(i%4)*1024} {wpol}")
        if i % 4 == 3: a("s_add_u32 s40, s40, 4096")
    for i in range(WOWIN if not nowo else 0): issue_o(i)
    for i in range(32 if not nowo else 0):
        a(f"s_waitcnt vmcnt({min(WOWIN - 1, 31 - i)})")
        if i + WOWIN < 32: issue_o(i + WOWIN)
        if i & 1:
            A = WREG + 8 * (i // 2); B = A + 4
            for d in range(4):
                a(f"v_perm_b32 v12, v{B+d}, v{A+d}, s46")
                a(f"v_perm_b32 v{B+d}, v{B+d}, v{A+d}, s47")
                a(f"v_mov_b32 v{A+d}, v12")
    a("v_lshrrev_b32 v7, 1, v1"); a(f"v_add_u32 v7, {RING}, v7")
    a("s_lshl_b32 s45, s3, 8"); a(f"s_add_u32 s45, s45, {RING+OB}")
    a("v_lshrrev_b32 v4, 2, v1"); a("v_add_u32 v4, s45, v4")
    a("v_lshlrev_b32 v3, 6, v3"); a("v_add_u32 v3, s45, v3")
    a(f"v_mov_b32 v37, {RING+ML}")
    for k in range(4): a(f"v_bfe_u32 v{k if k < 3 else 5}, v35, {k}, 1".replace("v0,", "v0,"))
    TB = [0, 1, 2, 5]
    stamp(5)
    a("s_barrier")
    a("ds_read_b128 v[8:11], v37"); a("ds_read_b128 v[12:15], v37 offset:16")
    for w in range(4): a(f"ds_read_b64 v[{16+2*w}:{17+2*w}], v7 offset:{SP+w*512}")
    a("s_waitcnt lgkmcnt(4)")
    a("v_max3_f32 v24, v8, v9, v10"); a("v_max_f32 v24, v24, v11")
    for w in range(4): a(f"v_sub_f32 v{8+w}, v{8+w}, v24")
    for w in range(4): a(f"v_mul_f32 v{8+w}, s42, v{8+w}")
    for w in range(4): a(f"v_exp_f32 v{8+w}, v{8+w}")
    a("v_mul_f32 v24, v8, v12"); a("v_fmac_f32 v24, v9, v13"); a("v_fmac_f32 v24, v10, v14"); a("v_fmac_f32 v24, v11, v15")
    a("v_rcp_f32 v24, v24")
    a("s_waitcnt lgkmcnt(0)")
    a("v_mul_f32 v25, v8, v16"); a("v_mul_f32 v26, v8, v17")
    for w in range(1, 4):
        a(f"v_fmac_f32 v25, v{8+w}, v{16+2*w}"); a(f"v_fmac_f32 v26, v{8+w}, v{17+2*w}")
    a("v_mul_f32 v25, v24, v25"); a("v_mul_f32 v26, v24, v26")
    a("v_cvt_pk_bf16_f32 v25, v25, v26")
    a("ds_write_b32 v4, v25")
    for k in range(8): a(f"v_mov_b32 v{8+k}, 0")
    a("s_waitcnt lgkmcnt(0)")
    for k in range(4): a(f"ds_read_b128 v[{16+4*k}:{19+4*k}], v3 offset:{16*k}")
    for k in range(16):
        if k % 4 == 0: a(f"s_waitcnt lgkmcnt({3-k//4})")
        A = WREG + 8 * k; B = A + 4
        for d in range(4):
            a(f"v_dot2c_f32_bf16 v{8+2*d}, v{A+d}, v{16+k}")
            a(f"v_dot2c_f32_bf16 v{9+2*d}, v{B+d}, v{16+k}")
    nop(3)
    for k in range(4): a(f"v_permlane32_swap_b32 v{8+k}, v{12+k}")
    for k in range(4): a(f"v_add_f32 v{8+k}, v{8+k}, v{12+k}")
    for k in range(4): a(f"v_mov_b32 v{12+k}, v{8+k}")
    for k in range(4): a(f"v_permlane16_swap_b32 v{8+k}, v{12+k}")
    for k in range(4): a(f"v_add_f32 v{8+k}, v{8+k}, v{12+k}")
    for k in range(4): a(f"v_and_or_b32 v{20+k}, v{8+k}, -2, v{TB[k]}")
    a("s_mov_b32 exec_lo, 0xffff"); a("s_mov_b32 exec_hi, 0xffff")
    a(f"buffer_store_dwordx4 v[20:23], v34, s[48:51], s14 offen {spol}")
    if diag:
        a("s_mov_b64 exec, -1")
        a("s_cmp_lg_u32 s3, 3"); a("s_cbranch_scc1 L_done")
        stamp(6); put_stamp(5, 40, 24); put_stamp(6, 48, 24)
    a("s_endpgm")

    lab("L_notwo")
    if ctl:
        a("s_cmp_eq_u32 s3, 5"); a("s_cbranch_scc1 L_ctl")
    a(f"s_add_u32 s52, s48, {YOFF}"); a("s_addc_u32 s53, s49, 0"); a(f"s_mov_b32 s54, {28*2048}"); a("s_mov_b32 s55, 0x20000")
    a("s_add_u32 s28, s4, s39"); a("s_addc_u32 s29, s5, 0")
    a("s_add_u32 s56, s22, s39"); a("s_addc_u32 s57, s23, 0"); a("s_mov_b32 s58, 1024"); a("s_mov_b32 s59, 0x20000")
    a("v_lshrrev_b32 v32, 2, v2"); a("v_lshlrev_b32 v32, 11, v32"); a("v_and_b32 v33, 48, v1"); a("v_add_u32 v32, v32, v33")
    a("v_add_u32 v33, 0x8000, v32")
    a("v_lshlrev_b32 v34, 1, v1")
    a("s_lshl_b32 s14, s36, 11"); a("s_lshl_b32 s15, s36, 6")
    a("v_lshrrev_b32 v31, 1, v1"); a("v_and_b32 v31, 24, v31"); a("s_lshl_b32 s46, s36, 5"); a("v_add_u32 v31, s46, v31")
    if SNAP: lds_poll("L_sw", 38, 0, SNAP, 39, 8)
    a(f"buffer_load_dwordx4 v[8:11], v32, s[48:51], s15 offen {snpol}")
    a(f"buffer_load_dwordx4 v[12:15], v33, s[48:51], s15 offen {snpol}")
    a(f"buffer_load_dwordx4 v[16:19], v32, s[52:55], s15 offen {snpol}")
    a(f"buffer_load_dwordx4 v[20:23], v33, s[52:55], s15 offen {snpol}")
    a("s_lshl_b32 s46, s37, 5"); a("v_mov_b32 v30, s46"); a("v_mov_b32 v29, 1")
    a("v_cmp_le_u32 vcc, 48, v2")
    a("s_waitcnt vmcnt(0)")
    a("s_mov_b64 exec, 1")
    a("global_atomic_add v30, v29, s[24:25] sc1")
    a("s_mov_b64 exec, -1")
    packbits(36, 8, 8, 24)
    packbits(37, 16, 8, 24)
    a("v_mov_b32 v24, 0xf0"); a("v_cndmask_b32 v24, 0, v24, vcc"); a("v_or_b32 v37, v37, v24")
    lds_poll("L_hq", 38, 4, 4, 39, 8)
    a(f"buffer_load_dwordx4 v[8:11], v34, s[52:55], s14 offen {snpol}")
    a(f"buffer_load_dwordx4 v[12:15], v34, s[52:55], s14 offen offset:16 {snpol}")
    a(f"buffer_load_dwordx2 v[26:27], v31, s[28:31], 0 offen {xpol}")
    a("s_waitcnt vmcnt(0)")
    packbits(35, 8, 8, 24)
    a("v_xor_b32 v35, 0xff, v35")
    a("s_cmp_ge_u32 s36, 28"); a("s_cbranch_scc1 L_noffn")
    FA = 40; FREG = 56
    if not noffn:
        a("s_mov_b32 s28, s16"); a("s_mov_b32 s29, s17"); a("s_mov_b32 s30, 0x1c0000")
        a("s_mov_b32 s32, s18"); a("s_mov_b32 s33, s19"); a("s_mov_b32 s34, 0x1c0000")
        a("v_lshrrev_b32 v6, 3, v2"); a("v_and_b32 v7, 7, v2")
        a("s_mov_b32 s46, 229376"); a("v_mul_lo_u32 v8, v6, s46")
        a("v_lshl_add_u32 v8, v7, 4, v8"); a("s_lshl_b32 s46, s36, 7"); a("v_add_u32 v8, s46, v8")
        a("v_lshlrev_b32 v9, 7, v6"); a(f"v_add_u32 v9, {RING+XN}, v9")
        a("s_mov_b32 s40, 0")
        def issue_f(n):
            r = FREG + (n % 4) * 4; srd = 28 if n % 2 == 0 else 32
            so = "s40" if n < 4 else "s41"
            a(f"buffer_load_dwordx4 v[{r}:{r+3}], v8, s[{srd}:{srd+3}], {so} offen offset:{3584*((n%4)//2)} {wpol}")
        for n in range(FW): issue_f(n)
        a("s_mov_b32 s41, 7168")
        a("ds_read_b32 v10, v9")
        for k in range(16): a(f"v_mov_b32 v{FA+k}, 0")
        a("s_mov_b32 s44, 31")
        def fbody(last):
            a("s_waitcnt lgkmcnt(0)")
            forms(10, 0, 12, 13); forms(10, 1, 14, 15)
            if not last:
                a("v_add_u32 v9, 4, v9"); a("ds_read_b32 v10, v9")
            for n in range(4):
                a(f"s_waitcnt vmcnt({FW-1 if not last else min(FW-1, 3-n)})")
                mac8(FA + 8 * (n % 2), FREG + n * 4, 12 + 2 * (n // 2), 13 + 2 * (n // 2))
                if not last or n + FW < 4: issue_f(n + FW)
            if not last:
                a("s_mov_b32 s40, s41"); a("s_add_u32 s41, s41, 7168")
        lab("L_floop")
        fbody(False)
        a("s_sub_u32 s44, s44, 1"); a("s_cmp_lg_u32 s44, 0"); a("s_cbranch_scc1 L_floop")
        fbody(True)
        a("s_mov_b32 s28, s20"); a("s_mov_b32 s29, s21")
        a("s_lshl_b32 s40, s36, 16")
        a("s_add_u32 s41, s40, 4096")
        def issue_d(n):
            r = FREG + (n % 4) * 4
            so = "s40" if n < 4 else "s41"
            a(f"buffer_load_dwordx4 v[{r}:{r+3}], v1, s[28:31], {so} offen offset:{(n%4)*1024} {wpol}")
        for n in range(FW): issue_d(n)
        a("v_and_b32 v14, 8, v2"); a("v_cmp_ne_u32 vcc, 0, v14")
        for acc in (FA, FA + 8):
            for k in range(4): a(f"v_permlane32_swap_b32 v{acc+k}, v{acc+4+k}")
            for k in range(4): a(f"v_add_f32 v{acc+k}, v{acc+k}, v{acc+4+k}")
            nop(1)
            a(f"v_permlane16_swap_b32 v{acc}, v{acc+2}"); a(f"v_permlane16_swap_b32 v{acc+1}, v{acc+3}")
            a(f"v_add_f32 v{acc}, v{acc}, v{acc+2}"); a(f"v_add_f32 v{acc+1}, v{acc+1}, v{acc+3}")
            nop(2)
            a(f"v_add_f32_dpp v{acc}, v{acc}, v{acc} row_ror:8 row_mask:0xf bank_mask:0xf")
            a(f"v_add_f32_dpp v{acc+1}, v{acc+1}, v{acc+1} row_ror:8 row_mask:0xf bank_mask:0xf")
            a(f"v_cndmask_b32 v{acc}, v{acc}, v{acc+1}, vcc")
        a(f"v_cvt_pk_bf16_f32 v14, v{FA}, v{FA+8}")
        a("v_lshlrev_b32 v15, 16, v14"); a("v_and_b32 v16, s43, v14")
        a("v_mul_f32 v17, v15, v15"); a("v_mul_f32 v17, v17, v15")
        a("v_mov_b32 v18, 0x3d372713"); a("v_fma_f32 v17, v17, v18, v15")
        a("v_mul_f32 v17, 0xc0135761, v17")
        a("v_exp_f32 v17, v17"); nop(1)
        a("v_add_f32 v17, 1.0, v17"); a("v_rcp_f32 v17, v17"); nop(1)
        a("v_mul_f32 v17, v15, v17")
        a("v_cvt_pk_bf16_f32 v17, v17, v17"); a("v_and_b32 v17, s43, v17")
        a("v_mul_f32 v17, v17, v16")
        a("v_cvt_pk_bf16_f32 v17, v17, v17")
        a("v_lshlrev_b32 v14, 4, v7")
        a("v_lshrrev_b32 v15, 5, v2"); a("v_lshl_add_u32 v14, v15, 3, v14")
        a("v_bfe_u32 v15, v2, 4, 1"); a("v_lshl_add_u32 v14, v15, 2, v14")
        a("v_bfe_u32 v15, v2, 3, 1"); a("v_lshl_add_u32 v14, v15, 1, v14")
        a(f"v_mov_b32 v9, {RING+HB}"); a("v_add_u32 v14, v9, v14")
        a("ds_write_b16 v14, v17")
        a("s_waitcnt lgkmcnt(0)")
        a("ds_read_b64 v[10:11], v9")
        for k in range(8): a(f"v_mov_b32 v{FA+k}, 0")
        a("s_mov_b32 s44, 15")
        def dbody(last):
            a("s_waitcnt lgkmcnt(0)")
            forms(10, 0, 12, 13); forms(10, 1, 14, 15); forms(11, 0, 16, 17); forms(11, 1, 18, 19)
            if not last:
                a("v_add_u32 v9, 8, v9"); a("ds_read_b64 v[10:11], v9")
            for n in range(4):
                a(f"s_waitcnt vmcnt({FW-1 if not last else min(FW-1, 3-n)})")
                mac8(FA, FREG + n * 4, 12 + 2 * n, 13 + 2 * n)
                if not last or n + FW < 4: issue_d(n + FW)
            if not last:
                a("s_mov_b32 s40, s41"); a("s_add_u32 s41, s41, 4096")
        lab("L_dloop")
        dbody(False)
        a("s_sub_u32 s44, s44, 1"); a("s_cmp_lg_u32 s44, 0"); a("s_cbranch_scc1 L_dloop")
        dbody(True)
    for k in range(8): a(f"v_bfe_u32 v{8+k}, v35, {k}, 1")
    for k in range(8): a(f"v_and_or_b32 v{FA+k}, v{FA+k}, -2, v{8+k}")
    lab("L_noffn")
    if diag:
        stamp(4); put_stamp(4, 56, 12)
    lds_poll("L_mid", 38, 0, MID, 39, 32)
    a("s_mov_b32 s47, 0x20000")
    a("s_mov_b64 exec, 1")
    lab("L_rdy")
    a(f"global_load_dword v13, v30, s[24:25] sc1")
    a("s_waitcnt vmcnt(0)")
    a("v_readfirstlane_b32 s46, v13")
    a("s_sub_u32 s47, s47, 1"); a("s_cmp_eq_u32 s47, 0"); a("s_cbranch_scc1 L_rdy_ok")
    a("s_cmp_ge_u32 s46, 32"); a("s_cbranch_scc1 L_rdy_ok")
    a("s_sleep 16"); a("s_branch L_rdy")
    lab("L_rdy_ok")
    a("s_mov_b64 exec, -1")
    a("v_lshlrev_b32 v24, 16, v26"); a("v_and_b32 v25, s43, v26"); a("v_lshlrev_b32 v26, 16, v27"); a("v_and_b32 v27, s43, v27")
    lds_poll("L_yp", 38, 0, YP, 39, 2)
    a(f"buffer_store_dwordx4 v[{FA}:{FA+3}], v34, s[52:55], s14 offen {spol}")
    a(f"buffer_store_dwordx4 v[{FA+4}:{FA+7}], v34, s[52:55], s14 offen offset:16 {spol}")
    a("s_barrier")
    def gather(srd, lbl, snap):
        a("s_mov_b32 s47, 0x40000")
        lab(lbl)
        a(f"buffer_load_dwordx4 v[8:11], v32, s[{srd}:{srd+3}], s15 offen {gpol}")
        a(f"buffer_load_dwordx4 v[12:15], v33, s[{srd}:{srd+3}], s15 offen {gpol}")
        a("s_waitcnt vmcnt(0)")
        packbits(16, 8, 8, 17)
        a(f"v_xor_b32 v16, v16, v{snap}")
        a("v_cmp_ne_u32 vcc, 0xff, v16")
        a("s_sub_u32 s47, s47, 1"); a("s_cmp_eq_u32 s47, 0"); a(f"s_cbranch_scc1 {lbl}_ok")
        a("s_cmp_eq_u64 vcc, 0")
        if gsl:
            a(f"s_cbranch_scc1 {lbl}_ok"); a(f"s_sleep {gsl}"); a(f"s_branch {lbl}")
        else:
            a(f"s_cbranch_scc0 {lbl}")
        lab(lbl + "_ok")
        for k in range(8): a(f"v_and_b32 v{8+k}, -2, v{8+k}")
        for k in range(4): a(f"v_add_f32 v{8+k}, v{8+k}, v{12+k}")
        for ro in (4, 8):
            if ro == 4: nop(1)
            for k in range(4): a(f"v_add_f32_dpp v{8+k}, v{8+k}, v{8+k} row_ror:{ro} row_mask:0xf bank_mask:0xf")
        for k in range(4): a(f"v_mov_b32 v{12+k}, v{8+k}")
        for k in range(4): a(f"v_permlane16_swap_b32 v{8+k}, v{12+k}")
        for k in range(4): a(f"v_add_f32 v{8+k}, v{8+k}, v{12+k}")
        for k in range(4): a(f"v_mov_b32 v{12+k}, v{8+k}")
        for k in range(4): a(f"v_permlane32_swap_b32 v{8+k}, v{12+k}")
        for k in range(4): a(f"v_add_f32 v{8+k}, v{8+k}, v{12+k}")
        a("v_cvt_pk_bf16_f32 v12, v8, v9"); a("v_cvt_pk_bf16_f32 v13, v10, v11")
        a("v_lshlrev_b32 v8, 16, v12"); a("v_and_b32 v9, s43, v12"); a("v_lshlrev_b32 v10, 16, v13"); a("v_and_b32 v11, s43, v13")
    gather(52, "L_gy", 37)
    for k in range(4): a(f"v_mul_f32 v{12+k}, 0xbfb8aa3b, v{8+k}")
    for k in range(4): a(f"v_exp_f32 v{12+k}, v{12+k}")
    for k in range(4): a(f"v_add_f32 v{12+k}, 1.0, v{12+k}")
    for k in range(4): a(f"v_rcp_f32 v{12+k}, v{12+k}")
    for k in range(4): a(f"v_mul_f32 v{8+k}, v{8+k}, v{12+k}")
    a("v_cvt_pk_bf16_f32 v12, v8, v9"); a("v_cvt_pk_bf16_f32 v13, v10, v11")
    a("v_lshlrev_b32 v20, 16, v12"); a("v_and_b32 v21, s43, v12"); a("v_lshlrev_b32 v22, 16, v13"); a("v_and_b32 v23, s43, v13")
    stamp(3)
    gather(48, "L_gs", 36)
    for k in range(4): a(f"v_mul_f32 v{8+k}, v{8+k}, v{20+k}")
    a("v_cvt_pk_bf16_f32 v12, v8, v9"); a("v_cvt_pk_bf16_f32 v13, v10, v11")
    a("v_lshlrev_b32 v8, 16, v12"); a("v_and_b32 v9, s43, v12"); a("v_lshlrev_b32 v10, 16, v13"); a("v_and_b32 v11, s43, v13")
    for k in range(4): a(f"v_add_f32 v{8+k}, v{8+k}, v{24+k}")
    a("v_cvt_pk_bf16_f32 v12, v8, v9"); a("v_cvt_pk_bf16_f32 v13, v10, v11")
    a("s_mov_b64 exec, 15")
    a("buffer_store_dwordx2 v[12:13], v31, s[56:59], 0 offen")
    if diag:
        stamp(7)
        a("s_mov_b64 exec, -1")
        put_stamp(7, 8, 20); put_stamp(3, 32, 20)
    lab("L_done")
    a("s_endpgm")
    if ctl:
        NCK = 62 // CKI
        lab("L_ctl")
        a("s_and_b32 s12, s2, 7"); a("s_lshr_b32 s13, s2, 3")
        a("s_lshl_b32 s46, s12, 11"); a(f"s_add_u32 s46, s46, {TOFF}")
        a("s_add_u32 s28, s26, s46"); a("s_addc_u32 s29, s27, 0"); a("s_mov_b32 s30, 2048")
        a(f"s_add_u32 s32, s26, {TOFF + 0x4000}"); a("s_addc_u32 s33, s27, 0"); a("s_mov_b32 s34, 2048")
        a("s_lshl_b32 s46, s13, 2"); a("v_mov_b32 v7, s46")
        a("s_lshl_b32 s46, s12, 2"); a("v_mov_b32 v6, s46")
        a(f"s_mov_b32 s44, {CKI * 8}")
        a("s_mov_b32 s40, 0")
        a("s_mov_b32 s50, 0"); a("s_mov_b32 s51, 0"); a("s_mov_b32 s56, 0")
        a("s_mov_b64 exec, 1")
        lab("L_cl")
        lds_poll("L_cp", 38, 0, "s44", 39, 2)
        a("s_memrealtime s[48:49]")
        a("s_waitcnt lgkmcnt(0)")
        a("v_mov_b32 v8, s48")
        a("buffer_store_dword v8, v7, s[28:31], s40 offen")
        a("s_cmp_eq_u32 s40, 0"); a("s_cbranch_scc1 L_cnext")
        a("s_sub_u32 s41, s40, 128")
        a("s_load_dwordx16 s[64:79], s[28:29], s41")
        a("s_add_u32 s46, s41, 64")
        a("s_load_dwordx16 s[80:95], s[28:29], s46")
        a("s_cmp_eq_u32 s41, 0"); a("s_cbranch_scc1 L_cn2")
        a("s_sub_u32 s46, s41, 128")
        a("s_load_dwordx8 s[4:11], s[32:33], s46")
        lab("L_cn2")
        a("s_mov_b32 s52, 0"); a("s_mov_b32 s53, 0"); a("s_sub_u32 s54, s50, 2000")
        a("s_waitcnt lgkmcnt(0)")
        for t in range(32):
            a(f"s_sub_u32 s55, s{64+t}, s54"); a("s_cmp_lt_u32 s55, 4000")
            a("s_cselect_b32 s55, s55, 2000"); a("s_addc_u32 s53, s53, 0"); a("s_add_u32 s52, s52, s55")
        a("s_sub_u32 s52, s52, 64000"); a("s_max_u32 s53, s53, 1")
        a("v_cvt_f32_i32 v11, s52"); a("v_cvt_f32_u32 v12, s53")
        a("v_rcp_f32 v12, v12")
        a("s_mov_b32 s52, 0"); a("s_mov_b32 s53, 0"); a("s_sub_u32 s54, s56, 2000")
        for t in range(8):
            a(f"s_sub_u32 s55, s{4+t}, s54"); a("s_cmp_lt_u32 s55, 4000")
            a("s_cselect_b32 s55, s55, 2000"); a("s_addc_u32 s53, s53, 0"); a("s_add_u32 s52, s52, s55")
        a("s_sub_u32 s52, s52, 16000"); a("s_max_u32 s53, s53, 1")
        a("v_mul_f32 v11, v11, v12")
        a("v_cvt_f32_i32 v13, s52"); a("v_cvt_f32_u32 v14, s53"); a("v_rcp_f32 v14, v14")
        a("v_cvt_i32_f32 v12, v11"); a("v_add_u32 v12, s50, v12")
        a("v_mul_f32 v13, v13, v14")
        a("v_readfirstlane_b32 s57, v12")
        a("s_cmp_lg_u32 s13, 0"); a("s_cbranch_scc1 L_cnl")
        a("buffer_store_dword v12, v6, s[32:35], s41 offen sc1")
        lab("L_cnl")
        a("s_sub_u32 s46, s48, s50"); a("s_sub_u32 s47, s57, s56"); a("s_cmp_eq_u32 s41, 0"); a("s_cselect_b32 s46, s46, s47")
        a("v_cvt_f32_i32 v14, s46"); a("v_rcp_f32 v14, v14")
        a("s_mov_b32 s56, s57")
        a(f"v_mul_f32 v11, {f2u(-G / 100.0)}, v11"); a(f"v_mul_f32 v13, {f2u(-G2 / 100.0)}, v13"); a("v_add_f32 v11, v11, v13")
        if LT: a(f"v_mul_f32 v15, {f2u(32.0 * CKI * LT * 16.0)}, v14")
        else: a(f"v_mov_b32 v15, {f2u(D * 16.0)}")
        a("v_mul_f32 v11, v11, v14")
        a("v_fma_f32 v15, v15, v11, v15")
        a(f"v_max_f32 v15, {f2u(DMIN * 16.0)}, v15"); a(f"v_min_f32 v15, {f2u(DMAX * 16.0)}, v15")
        a("v_cvt_u32_f32 v15, v15")
        a("ds_write_b32 v38, v15 offset:12")
        lab("L_cnext")
        a("s_mov_b32 s50, s48")
        a(f"s_add_u32 s44, s44, {CKI * 8}")
        a("s_add_u32 s40, s40, 128")
        a(f"s_cmp_lt_u32 s40, {NCK * 128}")
        a("s_cbranch_scc1 L_cl")
        a("s_endpgm")
    L.append(".p2align 10")
    lab("L_end")
    L.append('.section .rodata,"a"'); L.append(".p2align 6"); L.append(f".amdhsa_kernel {KN}")
    a(".amdhsa_next_free_vgpr 168"); a(".amdhsa_next_free_sgpr 96"); a(".amdhsa_accum_offset 168")
    a(".amdhsa_group_segment_fixed_size 0"); a(".amdhsa_kernarg_size 96"); a(".amdhsa_user_sgpr_count 2")
    a(".amdhsa_user_sgpr_kernarg_segment_ptr 1"); a(".amdhsa_system_sgpr_workgroup_id_x 1")
    a(".amdhsa_float_denorm_mode_32 3")
    L.append(".end_amdhsa_kernel")
    return "\n".join(L) + "\n"

if __name__ == "__main__":
    for spec in sys.argv[1:]:
        out, _, kvs = spec.partition(":")
        kw = {}
        if kvs:
            for kv in kvs.split(","):
                k, v = kv.split("=")
                kw[k] = int(v) if v.lstrip("-").isdigit() else v.replace("+", " ")
        open(out, "w").write(gen(**kw))
```

```python
import sys, struct
KN = "recurrent_scan__mha_block_cached__geglu_ffn__decode_kernel"
HEADER = open("recurrent_scan__mha_block_cached__geglu_ffn__decode.s.ref").read().split("; Override launch")[0]

XN, QP, SP, ML, CT, OB, HB, SC = 0, 1024, 1024, 3072, 3136, 3328, 4352, 4608
MISC = 4608 + 8192
YOFF = 0x80000
TOFF = 0x100000
STOFF = 0x30000000
LOG2E = 0x3fb8aa3b
SCALE = 0x3db504f3
f2u = lambda x: hex(struct.unpack("<I", struct.pack("<f", x))[0])

def gen(D=19, D1=0, FW=3, WOS=90, WO0=40, WQWIN=8, WOWIN=1, wpol="nt", diag=0, kvpol="nt", noffn=0, nowo=0, noq=0,
        MID=440, YP=506, prog=0, NSLOT=18, xpol="", gpol="sc1", spol="sc1", snpol="sc1 nt", pfpol="", SNAP=0,
        ctl=1, DMIN=14, DMAX=23, CKI=4, LT=0, G=50, G2=50, pf=1, lprio=3, gsl=0):
    L = []
    RING = NSLOT * 8192
    LDS_BYTES = RING + MISC
    assert LDS_BYTES <= 163840
    def a(s): L.append("  " + s)
    def lab(s): L.append(s + ":")
    def nop(n): a(f"s_nop {n-1}")
    def stamp(i):
        if diag: a(f"s_memrealtime s[{60+2*i}:{61+2*i}]")
    def put_stamp(i, off, vt):
        a("s_waitcnt lgkmcnt(0)")
        a("s_lshl_b32 s45, s2, 6"); a(f"s_add_u32 s45, s45, {STOFF}"); a(f"v_mov_b32 v{vt+2}, s45")
        a(f"v_mov_b32 v{vt}, s{60+2*i}"); a(f"v_mov_b32 v{vt+1}, s{61+2*i}")
        a("s_mov_b64 exec, 1")
        a(f"global_store_dwordx2 v{vt+2}, v[{vt}:{vt+1}], s[26:27] offset:{off}")
        a("s_mov_b64 exec, -1")
        nop(2)
    L.append(HEADER.rstrip("\n"))
    L.append(f"; @launch grid=(256,1,1) block=({704 if ctl else 640},1,1) lds={LDS_BYTES}")
    L.append('.amdgcn_target "amdgcn-amd-amdhsa--gfx950"')
    L.append(".text"); L.append(f".globl {KN}"); L.append(".p2align 8"); L.append(f".type {KN},@function"); lab(KN)
    a("s_cmp_ge_u32 s2, 256")
    a("s_cbranch_scc1 L_done")
    a("s_load_dwordx8 s[4:11], s[0:1], 0")
    stamp(0)
    a("v_lshrrev_b32 v1, 6, v0")
    a("v_and_b32 v2, 63, v0")
    a("v_readfirstlane_b32 s3, v1")
    a("v_lshlrev_b32 v1, 4, v2")
    a("s_and_b32 s36, s2, 7")
    a("s_lshl_b32 s36, s36, 2")
    a("s_bfe_u32 s37, s2, 0x20003")
    a("s_add_u32 s36, s36, s37")
    a("s_lshr_b32 s37, s2, 5")
    a("s_cmp_lg_u32 s3, 0")
    a("s_cbranch_scc1 L_notloader")

    if lprio: a(f"s_setprio {lprio}")
    a("s_lshl_b32 s38, s37, 5"); a("s_add_u32 s38, s38, s36"); a("s_lshl_b32 s38, s38, 20")
    a("s_mov_b32 s30, 0x100000"); a("s_mov_b32 s31, 0x20000")
    a("s_mov_b32 s40, 0"); a("s_mov_b32 s41, 0")
    a(f"v_mov_b32 v3, {RING+CT}")
    a("v_lshl_add_u32 v4, v2, 2, v3"); a("v_mov_b32 v5, 0")
    a("s_mov_b64 exec, 0xff")
    a("ds_write_b32 v4, v5")
    a("s_mov_b64 exec, -1")
    a(f"v_mov_b32 v8, {D * 16}"); a("ds_write_b32 v3, v8 offset:12")
    a("s_mov_b32 m0, 0")
    a("s_waitcnt lgkmcnt(0)")
    a("s_add_u32 s28, s6, s38"); a("s_addc_u32 s29, s7, 0"); a("s_add_u32 s32, s8, s38"); a("s_addc_u32 s33, s9, 0")
    def publish(k):
        a(f"v_add_u32 v5, {k}, v7"); a("ds_write_b32 v3, v5")
    def ld_step(m, Dw, first=False):
        j = m & 7
        if j == 0 and not (first and m == 0): a("s_mov_b32 m0, s41")
        if j == 4: a("s_add_u32 m0, s41, 4096")
        waited = not (first and m < Dw)
        if waited: a(f"s_waitcnt vmcnt({Dw-1})")
        elif j in (0, 4) and m: nop(1)
        a(f"buffer_load_dwordx4 v1, s[28:31], s40 offen offset:{(j&3)*1024} {kvpol} lds")
        if waited and (m - Dw + 1) % 4 == 0: publish((m - Dw + 1) // 4)
        if j == 3: a("s_add_u32 s40, s40, 4096")
        if j == 7:
            a("s_add_u32 s40, s40, 4096"); a("s_add_u32 s41, s41, 8192")
            a(f"s_cmp_eq_u32 s41, {RING}"); a("s_cselect_b32 s41, 0, s41")
    Dfirst = D1 if D1 else D
    a("v_mov_b32 v7, 0")
    if prog: a("v_mov_b32 v10, 0"); a("v_mov_b32 v11, 0")
    for m in range(32):
        ld_step(m, Dfirst, first=True)
        if m == 7: a("s_barrier")
    def fw(w): return (w - NSLOT) % 4
    def fo(w): return (w - NSLOT) // 4 + 1
    a("s_mov_b32 s44, 0")
    a("s_mov_b32 s47, 8")
    a(f"ds_read_b32 v6, v3 offset:{16 + 4 * fw(0)}")
    a("ds_read_b32 v8, v3 offset:12")
    Ds = list(range(DMIN, DMAX + 1)) if ctl else [D]
    def slow(lbl, w, back):
        lab(lbl)
        a("s_sleep 1")
        a(f"ds_read_b32 v6, v3 offset:{16 + 4 * fw(w)}")
        a("s_waitcnt lgkmcnt(0)")
        a("v_readfirstlane_b32 s45, v6")
        a(f"s_sub_i32 s45, s45, {fo(w)}")
        a("s_cmp_ge_i32 s45, s44")
        a(f"s_cbranch_scc0 {lbl}")
        a(f"s_branch {back}")
    lab("L_disp")
    a("v_add_u32 v7, 8, v7")
    a("s_add_u32 s44, s44, 1")
    a("s_cmp_eq_u32 s44, 64")
    a("s_cbranch_scc1 L_drain")
    a("s_cmp_eq_u32 s44, 32")
    a("s_cselect_b32 s28, s32, s28"); a("s_cselect_b32 s29, s33, s29"); a("s_cselect_b32 s40, 0, s40")
    if prog: a("s_memrealtime s[76:77]")
    a("s_waitcnt lgkmcnt(0)")
    a("v_readfirstlane_b32 s45, v6")
    a("v_readfirstlane_b32 s46, v8")
    if prog:
        a("s_mov_b32 m0, s44"); nop(4); a("v_writelane_b32 v10, s76, m0"); a("v_writelane_b32 v11, s46, m0")
    a(f"s_sub_i32 s45, s45, {fo(0)}")
    a("s_cmp_ge_i32 s45, s44")
    a("s_cbranch_scc0 L_lslow_0")
    lab("L_lfree_0")
    if ctl:
        a("s_add_u32 s47, s47, s46"); a("s_lshr_b32 s46, s47, 4"); a("s_and_b32 s47, s47, 15")
        def casc(lst):
            if len(lst) == 1:
                a(f"s_branch L_c{lst[0]}"); return
            mid = len(lst) // 2
            a(f"s_cmp_ge_u32 s46, {lst[mid]}")
            if len(lst) - mid == 1:
                a(f"s_cbranch_scc1 L_c{lst[mid]}")
                casc(lst[:mid])
            else:
                l2 = f"L_k{lst[mid]}_{len(lst)}"
                a(f"s_cbranch_scc1 {l2}")
                casc(lst[:mid]); lab(l2); casc(lst[mid:])
        casc(Ds)
    for Dw in Ds:
        npub = sum(1 for j in range(5, 8) if (j - Dw + 1) % 4 == 0)
        lab(f"L_c{Dw}")
        for w in range(4):
            if w:
                a(f"s_waitcnt lgkmcnt({npub})")
                a("v_readfirstlane_b32 s45, v6")
                a(f"s_sub_i32 s45, s45, {fo(w)}")
                a("s_cmp_ge_i32 s45, s44")
                a(f"s_cbranch_scc0 L_lslow{Dw}_{w}")
                lab(f"L_lfree{Dw}_{w}")
            for j in range(8):
                ld_step(8 * w + j, Dw)
                if j == 4:
                    a(f"ds_read_b32 v6, v3 offset:{16 + 4 * fw((w + 1) & 3)}")
                    if w == 3: a("ds_read_b32 v8, v3 offset:12")
        a("s_branch L_disp")
    slow("L_lslow_0", 0, "L_lfree_0")
    for Dw in Ds:
        for w in range(1, 4): slow(f"L_lslow{Dw}_{w}", w, f"L_lfree{Dw}_{w}")
    lab("L_drain")
    for r in range((max(Ds) - 1) // 4 * 4, -1, -4):
        a(f"s_waitcnt vmcnt({r})"); publish(-(r // 4))
    if diag:
        stamp(2)
        a("s_load_dwordx2 s[26:27], s[0:1], 88")
        if prog:
            a("s_waitcnt lgkmcnt(0)")
            a("v_writelane_b32 v10, s64, 0")
            a("s_lshl_b32 s45, s2, 8"); a(f"s_add_u32 s45, s45, {STOFF + 0x4000}"); a("v_lshrrev_b32 v9, 2, v1"); a("v_add_u32 v9, s45, v9")
            a("global_store_dword v9, v10, s[26:27]")
            a("v_add_u32 v9, 0x10000, v9")
            a("global_store_dword v9, v11, s[26:27]")
        put_stamp(0, 0, 12); put_stamp(2, 24, 12)
    a("s_endpgm")

    def wave_allsum(r, t):
        for ro in (8, 4, 2, 1):
            nop(2)
            a(f"v_add_f32_dpp v{r}, v{r}, v{r} row_ror:{ro} row_mask:0xf bank_mask:0xf")
        a(f"v_mov_b32 v{t}, v{r}"); nop(2)
        a(f"v_permlane16_swap_b32 v{r}, v{t}"); a(f"v_add_f32 v{r}, v{r}, v{t}"); a(f"v_mov_b32 v{t}, v{r}"); nop(2)
        a(f"v_permlane32_swap_b32 v{r}, v{t}"); a(f"v_add_f32 v{r}, v{r}, v{t}")
    def layernorm(hook):
        for k in range(4):
            a(f"v_lshlrev_b32 v{12+2*k}, 16, v{8+k}"); a(f"v_and_b32 v{13+2*k}, s43, v{8+k}")
        a("v_add_f32 v20, v12, v13"); a("v_add_f32 v21, v14, v15"); a("v_add_f32 v22, v16, v17"); a("v_add_f32 v23, v18, v19")
        a("v_add_f32 v20, v20, v21"); a("v_add_f32 v22, v22, v23"); a("v_add_f32 v20, v20, v22")
        wave_allsum(20, 21); hook()
        a("v_mul_f32 v20, 0x3b000000, v20")
        a("v_mov_b32 v22, 0")
        for k in range(8):
            a(f"v_sub_f32 v21, v{12+k}, v20"); a("v_fmac_f32 v22, v21, v21")
        hook(); wave_allsum(22, 21); hook()
        a("v_mul_f32 v22, 0x3b000000, v22")
        a("v_cvt_pk_bf16_f32 v20, v20, v22")
        a("v_and_b32 v22, s43, v20"); a("v_lshlrev_b32 v20, 16, v20")
        a("v_add_f32 v22, 0x3727c5ac, v22")
        a("v_cvt_pk_bf16_f32 v22, v22, v22"); a("v_and_b32 v22, s43, v22")
        a("v_sqrt_f32 v22, v22"); nop(1)
        a("v_cvt_pk_bf16_f32 v22, v22, v22"); a("v_and_b32 v22, s43, v22")
        a("v_rcp_f32 v22, v22"); hook()
        for k in range(8): a(f"v_sub_f32 v{12+k}, v{12+k}, v20")
        for k in range(4): a(f"v_cvt_pk_bf16_f32 v{8+k}, v{12+2*k}, v{13+2*k}")
        for k in range(4):
            a(f"v_lshlrev_b32 v{12+2*k}, 16, v{8+k}"); a(f"v_and_b32 v{13+2*k}, s43, v{8+k}")
        for k in range(8): a(f"v_mul_f32 v{12+k}, v22, v{12+k}")
        for k in range(4): a(f"v_cvt_pk_bf16_f32 v{8+k}, v{12+2*k}, v{13+2*k}")
    def forms(pair, odd, lo, hi):
        if not odd:
            a(f"v_and_b32 v{lo}, 0xffff, v{pair}"); a(f"v_lshlrev_b32 v{hi}, 16, v{pair}")
        else:
            a(f"v_lshrrev_b32 v{lo}, 16, v{pair}"); a(f"v_and_b32 v{hi}, s43, v{pair}")
    def mac8(acc, w, lo, hi):
        for d in range(4):
            a(f"v_dot2c_f32_bf16 v{acc+2*d}, v{w+d}, v{lo}")
            a(f"v_dot2c_f32_bf16 v{acc+2*d+1}, v{w+d}, v{hi}")
    def lds_poll(lbl, addr, off, tgt, vt, sleep):
        lab(lbl)
        a(f"ds_read_b32 v{vt}, v{addr} offset:{off}")
        a("s_waitcnt lgkmcnt(0)")
        a(f"v_readfirstlane_b32 s45, v{vt}")
        a(f"s_cmp_ge_u32 s45, {tgt}")
        a(f"s_cbranch_scc1 {lbl}_ok")
        a(f"s_sleep {sleep}")
        a(f"s_branch {lbl}")
        lab(lbl + "_ok")
    def packbits(dst, src, n, t):
        a(f"v_and_b32 v{dst}, 1, v{src}")
        for k in range(1, n):
            a(f"v_and_b32 v{t}, 1, v{src+k}"); a(f"v_lshl_or_b32 v{dst}, v{t}, {k}, v{dst}")
    WREG = 40

    lab("L_notloader")
    a("v_lshrrev_b32 v3, 4, v2")
    a("v_and_b32 v4, 15, v2")
    a("s_mov_b32 s43, 0xffff0000")
    a("s_mov_b32 s42, " + hex(LOG2E))
    a("s_lshl_b32 s39, s37, 10")
    a("s_mov_b32 s30, 1024"); a("s_mov_b32 s31, 0x20000"); a("s_mov_b32 s35, 0x20000")
    a("s_cmp_ge_u32 s3, 5")
    a("s_cbranch_scc1 L_helper")

    a("s_sub_u32 s3, s3, 1")
    a("s_lshl_b32 s38, s3, 20"); a("s_lshl_b32 s46, s36, 8"); a("s_add_u32 s38, s38, s46")
    a("v_lshlrev_b32 v5, 18, v3"); a("v_lshl_add_u32 v5, v4, 4, v5"); a("v_add_u32 v5, s38, v5")
    a("s_mov_b32 s34, 0x400000")
    a("s_lshl_b32 s40, s37, 15")
    a("s_waitcnt lgkmcnt(0)")
    a("s_add_u32 s28, s4, s39"); a("s_addc_u32 s29, s5, 0")
    a("s_mov_b32 s32, s10"); a("s_mov_b32 s33, s11")
    a(f"buffer_load_dwordx4 v[8:11], v1, s[28:31], 0 offen {xpol}")
    wq = {"issued": 0}
    def issue_wq(window=True):
        i = wq["issued"]
        if i >= 32 or noq: return
        if window: a(f"s_waitcnt vmcnt({WQWIN-1})")
        r = WREG + i * 4
        a(f"buffer_load_dwordx4 v[{r}:{r+3}], v5, s[32:35], s40 offen {wpol}")
        a("s_add_u32 s40, s40, 0x2000")
        if i % 4 == 3: a("s_and_b32 s40, s40, 0x3ffff")
        wq["issued"] += 1
    for i in range(WQWIN): issue_wq(False)
    a("s_barrier")
    a(f"s_waitcnt vmcnt({WQWIN if not noq else 0})")
    layernorm(issue_wq)
    a(f"s_mov_b32 s45, {RING+XN}")
    a("v_add_u32 v6, s45, v1")
    a("ds_write_b128 v6, v[8:11]")
    issue_wq()
    a("s_lshl_b32 s46, s3, 8"); a("s_add_u32 s46, s46, s45")
    a("v_lshlrev_b32 v7, 6, v3"); a("v_add_u32 v7, s46, v7")
    a("s_waitcnt lgkmcnt(0)")
    for k in range(8):
        a(f"s_add_u32 s46, s37, {k}"); a("s_and_b32 s46, s46, 7"); a("s_lshl_b32 s46, s46, 3")
        a("v_add_u32 v12, s46, v7")
        a(f"ds_read_b64 v[{16+2*k}:{17+2*k}], v12")
    for k in range(8): a(f"v_mov_b32 v{32+k}, 0")
    a("s_waitcnt lgkmcnt(0)")
    for i in range(32 if not noq else 0):
        forms(16 + i // 2, i & 1, 12, 13)
        if wq["issued"] < 32: issue_wq()
        else: a(f"s_waitcnt vmcnt({31 - i})")
        mac8(32, WREG + i * 4, 12, 13)
    a("v_lshlrev_b32 v7, 5, v4")
    a(f"v_add_u32 v7, {RING}, v7")
    a("v_lshl_add_u32 v6, v3, 2, v7")
    a("s_lshl_b32 s46, s3, 9"); a("v_add_u32 v6, s46, v6")
    for k in range(4): a(f"v_permlane16_swap_b32 v{32+2*k}, v{33+2*k}")
    for k in range(4): a(f"v_add_f32 v{32+2*k}, v{32+2*k}, v{33+2*k}")
    a("v_mov_b32 v39, 1")
    a("v_permlane32_swap_b32 v32, v34"); a("v_permlane32_swap_b32 v36, v38")
    a("v_add_f32 v32, v32, v34"); a("v_add_f32 v36, v36, v38")
    a(f"ds_write_b32 v6, v32 offset:{QP}"); a(f"ds_write_b32 v6, v36 offset:{QP+16}")
    a(f"v_mov_b32 v38, {RING+CT}")
    a("s_waitcnt lgkmcnt(0)")
    a("s_mov_b64 exec, 1")
    a("ds_add_u32 v38, v39 offset:4")
    a("s_mov_b64 exec, -1")
    lds_poll("L_qw", 38, 4, 4, 39, 1)
    for w in range(4):
        a(f"ds_read_b128 v[{40+w*8}:{43+w*8}], v7 offset:{QP+w*512}")
        a(f"ds_read_b128 v[{44+w*8}:{47+w*8}], v7 offset:{QP+w*512+16}")
    a("s_mov_b32 s41, " + hex(SCALE))
    a("v_mov_b32 v16, 0xff800000")
    a("s_lshl_b32 s44, s3, 13"); a("v_add_u32 v36, s44, v1")
    a("s_lshl_b32 s46, s3, 2"); a("v_add_u32 v37, s46, v38")
    a("s_lshl_b32 s47, s3, 1"); a("s_add_u32 s47, s47, 1")
    a("v_mov_b32 v27, 0")
    a("s_lshl_b32 s40, s3, 11"); a(f"s_add_u32 s40, s40, {RING+SC}")
    a("v_lshlrev_b32 v17, 4, v3"); a("v_add_u32 v17, s40, v17")
    a("v_and_b32 v5, 14, v4"); a("v_add_u32 v5, v5, v17")
    a("v_and_b32 v26, 2, v2"); a("v_cmp_ne_u32 vcc, 0, v26")
    a("s_waitcnt lgkmcnt(4)")
    for k in range(8): a(f"v_add_f32 v{40+k}, v{40+k}, v{48+k}")
    a("s_waitcnt lgkmcnt(0)")
    for k in range(8): a(f"v_add_f32 v{56+k}, v{56+k}, v{64+k}")
    for k in range(8): a(f"v_add_f32 v{40+k}, v{40+k}, v{56+k}")
    for k in range(4): a(f"v_cvt_pk_bf16_f32 v{72+k}, v{40+2*k}, v{41+2*k}")
    stamp(1)
    Q = 72; DR = 40
    S = list(range(18, 26))
    def half2(lbl):
        a("s_cmp_gt_u32 s45, s47")
        a(f"s_cbranch_scc1 {lbl}_ok")
        a("s_add_u32 s46, s47, 1")
        lds_poll(lbl, 38, 0, "s46", 39, 1)
        for j in range(4, 8): a(f"ds_read_b128 v[{DR+4*j}:{DR+4*j+3}], v36 offset:{j*1024}")
        a("v_add_u32 v27, 1, v27")
        a("s_add_u32 s44, s44, 0x8000"); a(f"s_sub_u32 s46, s44, {RING}"); a("s_cselect_b32 s44, s44, s46")
        a("v_add_u32 v36, s44, v1")
        a("s_add_u32 s47, s47, 8")
    lab("L_kloop")
    lds_poll("L_pk", 38, 0, "s47", 39, 1)
    for j in range(4): a(f"ds_read_b128 v[{DR+4*j}:{DR+4*j+3}], v36 offset:{j*1024}")
    for j in range(8): a(f"v_mov_b32 v{S[j]}, 0")
    for j in range(4):
        a(f"s_waitcnt lgkmcnt({3-j})")
        for d in range(4): a(f"v_dot2c_f32_bf16 v{S[j]}, v{DR+4*j+d}, v{Q+d}")
    half2("L_pk2")
    for j in range(4, 8):
        a(f"s_waitcnt lgkmcnt({7-j})")
        if j == 7: a("ds_write_b32 v37, v27 offset:16")
        for d in range(4): a(f"v_dot2c_f32_bf16 v{S[j]}, v{DR+4*j+d}, v{Q+d}")
    for j in range(4): a(f"v_add_f32_dpp v{S[j]}, v{S[j]}, v{S[j]} row_ror:8 row_mask:0xf bank_mask:0x3")
    for j in range(4): a(f"v_add_f32_dpp v{S[j]}, v{S[j+4]}, v{S[j+4]} row_ror:8 row_mask:0xf bank_mask:0xc")
    for j in range(2): a(f"v_add_f32_dpp v{S[j]}, v{S[j]}, v{S[j]} row_ror:12 row_mask:0xf bank_mask:0x5")
    nop(1)
    for j in range(2): a(f"v_add_f32_dpp v{S[j]}, v{S[j+2]}, v{S[j+2]} row_ror:4 row_mask:0xf bank_mask:0xa")
    nop(1)
    for j in range(2): a(f"v_add_f32_dpp v{S[j]}, v{S[j]}, v{S[j]} quad_perm:[2,3,0,1] row_mask:0xf bank_mask:0xf")
    a(f"v_cndmask_b32 v{S[2]}, v{S[0]}, v{S[1]}, vcc")
    nop(2)
    a(f"v_add_f32_dpp v{S[2]}, v{S[2]}, v{S[2]} quad_perm:[1,0,3,2] row_mask:0xf bank_mask:0xf")
    a(f"v_cvt_pk_bf16_f32 v{S[2]}, 0, v{S[2]}")
    a(f"v_mul_f32 v{S[2]}, s41, v{S[2]}")
    a(f"v_cvt_pk_bf16_f32 v{S[2]}, v{S[2]}, v{S[2]}")
    a(f"ds_write_b16 v5, v{S[2]}")
    a(f"v_and_b32 v{S[3]}, s43, v{S[2]}")
    a(f"v_max_f32 v16, v16, v{S[3]}")
    a("v_add_u32 v5, 64, v5")
    a("s_cmp_lt_u32 s47, 256")
    a("s_cbranch_scc1 L_kloop")
    a("v_lshlrev_b32 v5, 1, v1"); a("v_add_u32 v5, s40, v5")
    a("s_waitcnt lgkmcnt(0)")
    a("ds_read_b128 v[40:43], v5"); a("ds_read_b128 v[44:47], v5 offset:16")
    for ro in (8, 4, 2, 1):
        a(f"v_max_f32_dpp v16, v16, v16 row_ror:{ro} row_mask:0xf bank_mask:0xf"); nop(2)
    a("v_mov_b32 v18, v16"); nop(2)
    a("v_permlane16_swap_b32 v16, v18"); a("v_max_f32 v16, v16, v18"); a("v_mov_b32 v18, v16"); nop(2)
    a("v_permlane32_swap_b32 v16, v18"); a("v_max_f32 v16, v16, v18")
    a("v_mul_f32 v18, s42, v16")
    a("s_waitcnt lgkmcnt(0)")
    for k in range(8):
        a(f"v_lshlrev_b32 v{48+2*k}, 16, v{40+k}"); a(f"v_and_b32 v{49+2*k}, s43, v{40+k}")
    for k in range(16): a(f"v_fma_f32 v{48+k}, v{48+k}, s42, -v18")
    for k in range(16): a(f"v_exp_f32 v{48+k}, v{48+k}")
    a("v_add_f32 v19, v48, v49"); a("v_add_f32 v20, v50, v51")
    for k in range(4, 16, 2):
        a(f"v_add_f32 v19, v19, v{48+k}"); a(f"v_add_f32 v20, v20, v{49+k}")
    a("v_add_f32 v19, v19, v20")
    wave_allsum(19, 20)
    a(f"v_subrev_u32 v21, {CT-ML}, v37")
    a("ds_write_b32 v21, v16"); a("ds_write_b32 v21, v19 offset:16")
    a("v_mov_b32 v39, 1")
    a("s_waitcnt lgkmcnt(0)")
    a("s_mov_b64 exec, 1")
    a("ds_add_u32 v38, v39 offset:8")
    a("s_mov_b64 exec, -1")
    lds_poll("L_mw", 38, 8, 4, 39, 1)
    a(f"v_subrev_u32 v21, {CT-ML}, v38")
    a("ds_read_b128 v[8:11], v21"); a("ds_read_b128 v[12:15], v21 offset:16")
    a("s_waitcnt lgkmcnt(1)")
    a("v_max3_f32 v20, v8, v9, v10"); a("v_max_f32 v20, v20, v11")
    for w in range(4): a(f"v_sub_f32 v{8+w}, v{8+w}, v20")
    a("v_sub_f32 v16, v16, v20")
    for w in range(4): a(f"v_mul_f32 v{8+w}, s42, v{8+w}")
    a("v_mul_f32 v16, s42, v16")
    for w in range(4): a(f"v_exp_f32 v{8+w}, v{8+w}")
    a("v_exp_f32 v16, v16")
    a("s_waitcnt lgkmcnt(0)")
    a("v_mul_f32 v20, v8, v12"); a("v_fmac_f32 v20, v9, v13"); a("v_fmac_f32 v20, v10, v14"); a("v_fmac_f32 v20, v11, v15")
    a("v_rcp_f32 v20, v20"); nop(1)
    a("v_mul_f32 v16, v16, v20")
    for k in range(16): a(f"v_mul_f32 v{48+k}, v16, v{48+k}")
    for k in range(8): a(f"v_cvt_pk_bf16_f32 v{40+k}, v{48+2*k}, v{49+2*k}")
    a("ds_write_b128 v5, v[40:43]"); a("ds_write_b128 v5, v[44:47] offset:16")
    for k in range(8): a(f"v_mov_b32 v{8+k}, 0")
    a("s_waitcnt lgkmcnt(0)")
    lab("L_vloop")
    a("ds_read_b128 v[28:31], v17")
    a("v_add_u32 v17, 64, v17")
    lds_poll("L_pv", 38, 0, "s47", 39, 1)
    for j in range(4): a(f"ds_read_b128 v[{DR+4*j}:{DR+4*j+3}], v36 offset:{j*1024}")
    for j in range(8): forms(28 + j // 2, j & 1, 76 + 2 * j, 77 + 2 * j)
    for j in range(4):
        a(f"s_waitcnt lgkmcnt({3-j})")
        mac8(8, DR + 4 * j, 76 + 2 * j, 77 + 2 * j)
    half2("L_pv2")
    for j in range(4, 8):
        a(f"s_waitcnt lgkmcnt({7-j})")
        if j == 7: a("ds_write_b32 v37, v27 offset:16")
        mac8(8, DR + 4 * j, 76 + 2 * j, 77 + 2 * j)
    a("s_cmp_lt_u32 s47, 512")
    a("s_cbranch_scc1 L_vloop")
    nop(2)
    for k in range(4): a(f"v_permlane16_swap_b32 v{8+2*k}, v{9+2*k}")
    for k in range(4): a(f"v_add_f32 v{8+2*k}, v{8+2*k}, v{9+2*k}")
    nop(1)
    a("v_permlane32_swap_b32 v8, v10"); a("v_permlane32_swap_b32 v12, v14")
    a("v_add_f32 v8, v8, v10"); a("v_add_f32 v12, v12, v14")
    a(f"ds_write_b32 v6, v8 offset:{SP}"); a(f"ds_write_b32 v6, v12 offset:{SP+16}")
    a("s_waitcnt lgkmcnt(0)")
    a("s_barrier")
    if diag:
        a("s_cmp_lg_u32 s3, 0"); a("s_cbranch_scc1 L_done")
        a("s_load_dwordx2 s[26:27], s[0:1], 88")
        put_stamp(1, 16, 8)
    a("s_endpgm")

    lab("L_helper")
    a("s_sub_u32 s3, s3, 5")
    if pf:
        a("s_cmp_lg_u32 s3, 2"); a("s_cbranch_scc1 L_nopf")
        a("s_getpc_b64 s[46:47]")
        lab("L_pc")
        a(f"s_sub_u32 s46, s46, L_pc-{KN}"); a("s_subb_u32 s47, s47, 0")
        a("s_lshr_b32 s45, s2, 3"); a("s_min_u32 s45, s45, (L_end-" + KN + ")/1024-1"); a("s_lshl_b32 s45, s45, 10")
        a("v_add_u32 v6, s45, v1")
        a(f"global_load_dwordx4 v[8:11], v6, s[46:47] {pfpol}")
        lab("L_nopf")
    a("s_load_dwordx2 s[12:13], s[0:1], 32")
    a("s_load_dwordx8 s[16:23], s[0:1], 48")
    a("s_load_dwordx4 s[24:27], s[0:1], 80")
    a(f"v_mov_b32 v38, {RING+CT}")
    a("s_barrier")
    a("s_waitcnt lgkmcnt(0)")
    a("s_lshl_b32 s38, s37, 16")
    a("s_add_u32 s48, s26, s38"); a("s_addc_u32 s49, s27, 0"); a("s_mov_b32 s50, 0x10000"); a("s_mov_b32 s51, 0x20000")
    a("s_cmp_ge_u32 s3, 4"); a("s_cbranch_scc1 L_notwo")

    a("v_lshlrev_b32 v34, 5, v4"); a("v_lshrrev_b32 v7, 1, v3"); a("v_lshl_add_u32 v34, v7, 4, v34")
    a("s_lshl_b32 s14, s3, 9"); a("s_lshl_b32 s46, s36, 11"); a("s_add_u32 s14, s14, s46")
    a("s_mov_b32 s32, s12"); a("s_mov_b32 s33, s13"); a("s_mov_b32 s34, 0x400000")
    a("s_lshl_b32 s46, s36, 17"); a("s_lshl_b32 s47, s3, 8"); a("s_add_u32 s46, s46, s47")
    a("v_lshlrev_b32 v5, 15, v3"); a("v_lshl_add_u32 v5, v4, 4, v5"); a("v_add_u32 v5, s46, v5")
    a("s_mov_b32 s40, 0"); a("s_mov_b32 s46, 0x05040100"); a("s_mov_b32 s47, 0x07060302")
    a(f"s_mul_i32 s44, s3, {WOS}"); a(f"s_add_u32 s44, s44, {WO0}")
    lds_poll("L_wos", 38, 0, "s44", 39, 32)
    a(f"buffer_load_dwordx4 v[8:11], v34, s[48:51], s14 offen {snpol}")
    a("s_waitcnt vmcnt(0)")
    packbits(35, 8, 4, 20)
    a("v_xor_b32 v35, 15, v35")
    def issue_o(i):
        r = WREG + i * 4
        a(f"buffer_load_dwordx4 v[{r}:{r+3}], v5, s[32:35], s40 offen offset:{(i%4)*1024} {wpol}")
        if i % 4 == 3: a("s_add_u32 s40, s40, 4096")
    for i in range(WOWIN if not nowo else 0): issue_o(i)
    for i in range(32 if not nowo else 0):
        a(f"s_waitcnt vmcnt({min(WOWIN - 1, 31 - i)})")
        if i + WOWIN < 32: issue_o(i + WOWIN)
        if i & 1:
            A = WREG + 8 * (i // 2); B = A + 4
            for d in range(4):
                a(f"v_perm_b32 v12, v{B+d}, v{A+d}, s46")
                a(f"v_perm_b32 v{B+d}, v{B+d}, v{A+d}, s47")
                a(f"v_mov_b32 v{A+d}, v12")
    a("v_lshrrev_b32 v7, 1, v1"); a(f"v_add_u32 v7, {RING}, v7")
    a("s_lshl_b32 s45, s3, 8"); a(f"s_add_u32 s45, s45, {RING+OB}")
    a("v_lshrrev_b32 v4, 2, v1"); a("v_add_u32 v4, s45, v4")
    a("v_lshlrev_b32 v3, 6, v3"); a("v_add_u32 v3, s45, v3")
    for k in range(4): a(f"v_bfe_u32 v{k if k < 3 else 5}, v35, {k}, 1".replace("v0,", "v0,"))
    TB = [0, 1, 2, 5]
    for k in range(8): a(f"v_mov_b32 v{8+k}, 0")
    stamp(5)
    a("s_barrier")
    for w in range(4): a(f"ds_read_b64 v[{16+2*w}:{17+2*w}], v7 offset:{SP+w*512}")
    a("s_waitcnt lgkmcnt(2)")
    a("v_add_f32 v16, v16, v18"); a("v_add_f32 v17, v17, v19")
    a("s_waitcnt lgkmcnt(0)")
    a("v_add_f32 v20, v20, v22"); a("v_add_f32 v21, v21, v23")
    a("v_add_f32 v16, v16, v20"); a("v_add_f32 v17, v17, v21")
    a("v_cvt_pk_bf16_f32 v25, v16, v17")
    a("ds_write_b32 v4, v25")
    a("s_waitcnt lgkmcnt(0)")
    for k in range(4): a(f"ds_read_b128 v[{16+4*k}:{19+4*k}], v3 offset:{16*k}")
    for k in range(16):
        if k % 4 == 0: a(f"s_waitcnt lgkmcnt({3-k//4})")
        A = WREG + 8 * k; B = A + 4
        for d in range(4):
            a(f"v_dot2c_f32_bf16 v{8+2*d}, v{A+d}, v{16+k}")
            a(f"v_dot2c_f32_bf16 v{9+2*d}, v{B+d}, v{16+k}")
    nop(3)
    for k in range(4): a(f"v_permlane32_swap_b32 v{8+k}, v{12+k}")
    for k in range(4): a(f"v_add_f32 v{8+k}, v{8+k}, v{12+k}")
    for k in range(4): a(f"v_mov_b32 v{12+k}, v{8+k}")
    for k in range(4): a(f"v_permlane16_swap_b32 v{8+k}, v{12+k}")
    for k in range(4): a(f"v_add_f32 v{8+k}, v{8+k}, v{12+k}")
    for k in range(4): a(f"v_and_or_b32 v{20+k}, v{8+k}, -2, v{TB[k]}")
    a("s_mov_b32 exec_lo, 0xffff"); a("s_mov_b32 exec_hi, 0xffff")
    a(f"buffer_store_dwordx4 v[20:23], v34, s[48:51], s14 offen {spol}")
    if diag:
        a("s_mov_b64 exec, -1")
        a("s_cmp_lg_u32 s3, 3"); a("s_cbranch_scc1 L_done")
        stamp(6); put_stamp(5, 40, 24); put_stamp(6, 48, 24)
    a("s_endpgm")

    lab("L_notwo")
    if ctl:
        a("s_cmp_eq_u32 s3, 5"); a("s_cbranch_scc1 L_ctl")
    a(f"s_add_u32 s52, s48, {YOFF}"); a("s_addc_u32 s53, s49, 0"); a(f"s_mov_b32 s54, {28*2048}"); a("s_mov_b32 s55, 0x20000")
    a("s_add_u32 s28, s4, s39"); a("s_addc_u32 s29, s5, 0")
    a("s_add_u32 s56, s22, s39"); a("s_addc_u32 s57, s23, 0"); a("s_mov_b32 s58, 1024"); a("s_mov_b32 s59, 0x20000")
    a("v_lshrrev_b32 v32, 2, v2"); a("v_lshlrev_b32 v32, 11, v32"); a("v_and_b32 v33, 48, v1"); a("v_add_u32 v32, v32, v33")
    a("v_add_u32 v33, 0x8000, v32")
    a("v_lshlrev_b32 v34, 1, v1")
    a("s_lshl_b32 s14, s36, 11"); a("s_lshl_b32 s15, s36, 6")
    a("v_lshrrev_b32 v31, 1, v1"); a("v_and_b32 v31, 24, v31"); a("s_lshl_b32 s46, s36, 5"); a("v_add_u32 v31, s46, v31")
    if SNAP: lds_poll("L_sw", 38, 0, SNAP, 39, 8)
    a(f"buffer_load_dwordx4 v[8:11], v32, s[48:51], s15 offen {snpol}")
    a(f"buffer_load_dwordx4 v[12:15], v33, s[48:51], s15 offen {snpol}")
    a(f"buffer_load_dwordx4 v[16:19], v32, s[52:55], s15 offen {snpol}")
    a(f"buffer_load_dwordx4 v[20:23], v33, s[52:55], s15 offen {snpol}")
    a("s_lshl_b32 s46, s37, 5"); a("v_mov_b32 v30, s46"); a("v_mov_b32 v29, 1")
    a("v_cmp_le_u32 vcc, 48, v2")
    a("s_waitcnt vmcnt(0)")
    a("s_mov_b64 exec, 1")
    a("global_atomic_add v30, v29, s[24:25] sc1")
    a("s_mov_b64 exec, -1")
    packbits(36, 8, 8, 24)
    packbits(37, 16, 8, 24)
    a("v_mov_b32 v24, 0xf0"); a("v_cndmask_b32 v24, 0, v24, vcc"); a("v_or_b32 v37, v37, v24")
    lds_poll("L_hq", 38, 4, 4, 39, 8)
    a(f"buffer_load_dwordx4 v[8:11], v34, s[52:55], s14 offen {snpol}")
    a(f"buffer_load_dwordx4 v[12:15], v34, s[52:55], s14 offen offset:16 {snpol}")
    a(f"buffer_load_dwordx2 v[26:27], v31, s[28:31], 0 offen {xpol}")
    a("s_waitcnt vmcnt(0)")
    packbits(35, 8, 8, 24)
    a("v_xor_b32 v35, 0xff, v35")
    a("s_cmp_ge_u32 s36, 28"); a("s_cbranch_scc1 L_noffn")
    FA = 40; FREG = 56
    if not noffn:
        a("s_mov_b32 s28, s16"); a("s_mov_b32 s29, s17"); a("s_mov_b32 s30, 0x1c0000")
        a("s_mov_b32 s32, s18"); a("s_mov_b32 s33, s19"); a("s_mov_b32 s34, 0x1c0000")
        a("v_lshrrev_b32 v6, 3, v2"); a("v_and_b32 v7, 7, v2")
        a("s_mov_b32 s46, 229376"); a("v_mul_lo_u32 v8, v6, s46")
        a("v_lshl_add_u32 v8, v7, 4, v8"); a("s_lshl_b32 s46, s36, 7"); a("v_add_u32 v8, s46, v8")
        a("v_lshlrev_b32 v9, 7, v6"); a(f"v_add_u32 v9, {RING+XN}, v9")
        a("s_mov_b32 s40, 0")
        def issue_f(n):
            r = FREG + (n % 4) * 4; srd = 28 if n % 2 == 0 else 32
            so = "s40" if n < 4 else "s41"
            a(f"buffer_load_dwordx4 v[{r}:{r+3}], v8, s[{srd}:{srd+3}], {so} offen offset:{3584*((n%4)//2)} {wpol}")
        for n in range(FW): issue_f(n)
        a("s_mov_b32 s41, 7168")
        a("ds_read_b32 v10, v9")
        for k in range(16): a(f"v_mov_b32 v{FA+k}, 0")
        a("s_mov_b32 s44, 31")
        def fbody(last):
            a("s_waitcnt lgkmcnt(0)")
            forms(10, 0, 12, 13); forms(10, 1, 14, 15)
            if not last:
                a("v_add_u32 v9, 4, v9"); a("ds_read_b32 v10, v9")
            for n in range(4):
                a(f"s_waitcnt vmcnt({FW-1 if not last else min(FW-1, 3-n)})")
                mac8(FA + 8 * (n % 2), FREG + n * 4, 12 + 2 * (n // 2), 13 + 2 * (n // 2))
                if not last or n + FW < 4: issue_f(n + FW)
            if not last:
                a("s_mov_b32 s40, s41"); a("s_add_u32 s41, s41, 7168")
        lab("L_floop")
        fbody(False)
        a("s_sub_u32 s44, s44, 1"); a("s_cmp_lg_u32 s44, 0"); a("s_cbranch_scc1 L_floop")
        fbody(True)
        a("s_mov_b32 s28, s20"); a("s_mov_b32 s29, s21")
        a("s_lshl_b32 s40, s36, 16")
        a("s_add_u32 s41, s40, 4096")
        def issue_d(n):
            r = FREG + (n % 4) * 4
            so = "s40" if n < 4 else "s41"
            a(f"buffer_load_dwordx4 v[{r}:{r+3}], v1, s[28:31], {so} offen offset:{(n%4)*1024} {wpol}")
        for n in range(FW): issue_d(n)
        a("v_and_b32 v14, 8, v2"); a("v_cmp_ne_u32 vcc, 0, v14")
        for acc in (FA, FA + 8):
            for k in range(4): a(f"v_permlane32_swap_b32 v{acc+k}, v{acc+4+k}")
            for k in range(4): a(f"v_add_f32 v{acc+k}, v{acc+k}, v{acc+4+k}")
            nop(1)
            a(f"v_permlane16_swap_b32 v{acc}, v{acc+2}"); a(f"v_permlane16_swap_b32 v{acc+1}, v{acc+3}")
            a(f"v_add_f32 v{acc}, v{acc}, v{acc+2}"); a(f"v_add_f32 v{acc+1}, v{acc+1}, v{acc+3}")
            nop(2)
            a(f"v_add_f32_dpp v{acc}, v{acc}, v{acc} row_ror:8 row_mask:0xf bank_mask:0xf")
            a(f"v_add_f32_dpp v{acc+1}, v{acc+1}, v{acc+1} row_ror:8 row_mask:0xf bank_mask:0xf")
            a(f"v_cndmask_b32 v{acc}, v{acc}, v{acc+1}, vcc")
        a(f"v_cvt_pk_bf16_f32 v14, v{FA}, v{FA+8}")
        a("v_lshlrev_b32 v15, 16, v14"); a("v_and_b32 v16, s43, v14")
        a("v_mul_f32 v17, v15, v15"); a("v_mul_f32 v17, v17, v15")
        a("v_mov_b32 v18, 0x3d372713"); a("v_fma_f32 v17, v17, v18, v15")
        a("v_mul_f32 v17, 0xc0135761, v17")
        a("v_exp_f32 v17, v17"); nop(1)
        a("v_add_f32 v17, 1.0, v17"); a("v_rcp_f32 v17, v17"); nop(1)
        a("v_mul_f32 v17, v15, v17")
        a("v_cvt_pk_bf16_f32 v17, v17, v17"); a("v_and_b32 v17, s43, v17")
        a("v_mul_f32 v17, v17, v16")
        a("v_cvt_pk_bf16_f32 v17, v17, v17")
        a("v_lshlrev_b32 v14, 4, v7")
        a("v_lshrrev_b32 v15, 5, v2"); a("v_lshl_add_u32 v14, v15, 3, v14")
        a("v_bfe_u32 v15, v2, 4, 1"); a("v_lshl_add_u32 v14, v15, 2, v14")
        a("v_bfe_u32 v15, v2, 3, 1"); a("v_lshl_add_u32 v14, v15, 1, v14")
        a(f"v_mov_b32 v9, {RING+HB}"); a("v_add_u32 v14, v9, v14")
        a("ds_write_b16 v14, v17")
        a("s_waitcnt lgkmcnt(0)")
        a("ds_read_b64 v[10:11], v9")
        for k in range(8): a(f"v_mov_b32 v{FA+k}, 0")
        a("s_mov_b32 s44, 15")
        def dbody(last):
            a("s_waitcnt lgkmcnt(0)")
            forms(10, 0, 12, 13); forms(10, 1, 14, 15); forms(11, 0, 16, 17); forms(11, 1, 18, 19)
            if not last:
                a("v_add_u32 v9, 8, v9"); a("ds_read_b64 v[10:11], v9")
            for n in range(4):
                a(f"s_waitcnt vmcnt({FW-1 if not last else min(FW-1, 3-n)})")
                mac8(FA, FREG + n * 4, 12 + 2 * n, 13 + 2 * n)
                if not last or n + FW < 4: issue_d(n + FW)
            if not last:
                a("s_mov_b32 s40, s41"); a("s_add_u32 s41, s41, 4096")
        lab("L_dloop")
        dbody(False)
        a("s_sub_u32 s44, s44, 1"); a("s_cmp_lg_u32 s44, 0"); a("s_cbranch_scc1 L_dloop")
        dbody(True)
    for k in range(8): a(f"v_bfe_u32 v{8+k}, v35, {k}, 1")
    for k in range(8): a(f"v_and_or_b32 v{FA+k}, v{FA+k}, -2, v{8+k}")
    lab("L_noffn")
    if diag:
        stamp(4); put_stamp(4, 56, 12)
    lds_poll("L_mid", 38, 0, MID, 39, 32)
    a("s_mov_b32 s47, 0x20000")
    a("s_mov_b64 exec, 1")
    lab("L_rdy")
    a(f"global_load_dword v13, v30, s[24:25] sc1")
    a("s_waitcnt vmcnt(0)")
    a("v_readfirstlane_b32 s46, v13")
    a("s_sub_u32 s47, s47, 1"); a("s_cmp_eq_u32 s47, 0"); a("s_cbranch_scc1 L_rdy_ok")
    a("s_cmp_ge_u32 s46, 32"); a("s_cbranch_scc1 L_rdy_ok")
    a("s_sleep 16"); a("s_branch L_rdy")
    lab("L_rdy_ok")
    a("s_mov_b64 exec, -1")
    a("v_lshlrev_b32 v24, 16, v26"); a("v_and_b32 v25, s43, v26"); a("v_lshlrev_b32 v26, 16, v27"); a("v_and_b32 v27, s43, v27")
    lds_poll("L_yp", 38, 0, YP, 39, 2)
    a(f"buffer_store_dwordx4 v[{FA}:{FA+3}], v34, s[52:55], s14 offen {spol}")
    a(f"buffer_store_dwordx4 v[{FA+4}:{FA+7}], v34, s[52:55], s14 offen offset:16 {spol}")
    a("s_barrier")
    def gather(srd, lbl, snap):
        a("s_mov_b32 s47, 0x40000")
        lab(lbl)
        a(f"buffer_load_dwordx4 v[8:11], v32, s[{srd}:{srd+3}], s15 offen {gpol}")
        a(f"buffer_load_dwordx4 v[12:15], v33, s[{srd}:{srd+3}], s15 offen {gpol}")
        a("s_waitcnt vmcnt(0)")
        packbits(16, 8, 8, 17)
        a(f"v_xor_b32 v16, v16, v{snap}")
        a("v_cmp_ne_u32 vcc, 0xff, v16")
        a("s_sub_u32 s47, s47, 1"); a("s_cmp_eq_u32 s47, 0"); a(f"s_cbranch_scc1 {lbl}_ok")
        a("s_cmp_eq_u64 vcc, 0")
        if gsl:
            a(f"s_cbranch_scc1 {lbl}_ok"); a(f"s_sleep {gsl}"); a(f"s_branch {lbl}")
        else:
            a(f"s_cbranch_scc0 {lbl}")
        lab(lbl + "_ok")
        for k in range(8): a(f"v_and_b32 v{8+k}, -2, v{8+k}")
        for k in range(4): a(f"v_add_f32 v{8+k}, v{8+k}, v{12+k}")
        for ro in (4, 8):
            if ro == 4: nop(1)
            for k in range(4): a(f"v_add_f32_dpp v{8+k}, v{8+k}, v{8+k} row_ror:{ro} row_mask:0xf bank_mask:0xf")
        for k in range(4): a(f"v_mov_b32 v{12+k}, v{8+k}")
        for k in range(4): a(f"v_permlane16_swap_b32 v{8+k}, v{12+k}")
        for k in range(4): a(f"v_add_f32 v{8+k}, v{8+k}, v{12+k}")
        for k in range(4): a(f"v_mov_b32 v{12+k}, v{8+k}")
        for k in range(4): a(f"v_permlane32_swap_b32 v{8+k}, v{12+k}")
        for k in range(4): a(f"v_add_f32 v{8+k}, v{8+k}, v{12+k}")
        a("v_cvt_pk_bf16_f32 v12, v8, v9"); a("v_cvt_pk_bf16_f32 v13, v10, v11")
        a("v_lshlrev_b32 v8, 16, v12"); a("v_and_b32 v9, s43, v12"); a("v_lshlrev_b32 v10, 16, v13"); a("v_and_b32 v11, s43, v13")
    gather(52, "L_gy", 37)
    for k in range(4): a(f"v_mul_f32 v{12+k}, 0xbfb8aa3b, v{8+k}")
    for k in range(4): a(f"v_exp_f32 v{12+k}, v{12+k}")
    for k in range(4): a(f"v_add_f32 v{12+k}, 1.0, v{12+k}")
    for k in range(4): a(f"v_rcp_f32 v{12+k}, v{12+k}")
    for k in range(4): a(f"v_mul_f32 v{8+k}, v{8+k}, v{12+k}")
    a("v_cvt_pk_bf16_f32 v12, v8, v9"); a("v_cvt_pk_bf16_f32 v13, v10, v11")
    a("v_lshlrev_b32 v20, 16, v12"); a("v_and_b32 v21, s43, v12"); a("v_lshlrev_b32 v22, 16, v13"); a("v_and_b32 v23, s43, v13")
    stamp(3)
    gather(48, "L_gs", 36)
    for k in range(4): a(f"v_mul_f32 v{8+k}, v{8+k}, v{20+k}")
    a("v_cvt_pk_bf16_f32 v12, v8, v9"); a("v_cvt_pk_bf16_f32 v13, v10, v11")
    a("v_lshlrev_b32 v8, 16, v12"); a("v_and_b32 v9, s43, v12"); a("v_lshlrev_b32 v10, 16, v13"); a("v_and_b32 v11, s43, v13")
    for k in range(4): a(f"v_add_f32 v{8+k}, v{8+k}, v{24+k}")
    a("v_cvt_pk_bf16_f32 v12, v8, v9"); a("v_cvt_pk_bf16_f32 v13, v10, v11")
    a("s_mov_b64 exec, 15")
    a("buffer_store_dwordx2 v[12:13], v31, s[56:59], 0 offen")
    if diag:
        stamp(7)
        a("s_mov_b64 exec, -1")
        put_stamp(7, 8, 20); put_stamp(3, 32, 20)
    lab("L_done")
    a("s_endpgm")
    if ctl:
        NCK = 62 // CKI
        lab("L_ctl")
        a("s_and_b32 s12, s2, 7"); a("s_lshr_b32 s13, s2, 3")
        a("s_lshl_b32 s46, s12, 11"); a(f"s_add_u32 s46, s46, {TOFF}")
        a("s_add_u32 s28, s26, s46"); a("s_addc_u32 s29, s27, 0"); a("s_mov_b32 s30, 2048")
        a(f"s_add_u32 s32, s26, {TOFF + 0x4000}"); a("s_addc_u32 s33, s27, 0"); a("s_mov_b32 s34, 2048")
        a("s_lshl_b32 s46, s13, 2"); a("v_mov_b32 v7, s46")
        a("s_lshl_b32 s46, s12, 2"); a("v_mov_b32 v6, s46")
        a(f"s_mov_b32 s44, {CKI * 8}")
        a("s_mov_b32 s40, 0")
        a("s_mov_b32 s50, 0"); a("s_mov_b32 s51, 0"); a("s_mov_b32 s56, 0")
        a("s_mov_b64 exec, 1")
        lab("L_cl")
        lds_poll("L_cp", 38, 0, "s44", 39, 2)
        a("s_memrealtime s[48:49]")
        a("s_waitcnt lgkmcnt(0)")
        a("v_mov_b32 v8, s48")
        a("buffer_store_dword v8, v7, s[28:31], s40 offen")
        a("s_cmp_eq_u32 s40, 0"); a("s_cbranch_scc1 L_cnext")
        a("s_sub_u32 s41, s40, 128")
        a("s_load_dwordx16 s[64:79], s[28:29], s41")
        a("s_add_u32 s46, s41, 64")
        a("s_load_dwordx16 s[80:95], s[28:29], s46")
        a("s_cmp_eq_u32 s41, 0"); a("s_cbranch_scc1 L_cn2")
        a("s_sub_u32 s46, s41, 128")
        a("s_load_dwordx8 s[4:11], s[32:33], s46")
        lab("L_cn2")
        a("s_mov_b32 s52, 0"); a("s_mov_b32 s53, 0"); a("s_sub_u32 s54, s50, 2000")
        a("s_waitcnt lgkmcnt(0)")
        for t in range(32):
            a(f"s_sub_u32 s55, s{64+t}, s54"); a("s_cmp_lt_u32 s55, 4000")
            a("s_cselect_b32 s55, s55, 2000"); a("s_addc_u32 s53, s53, 0"); a("s_add_u32 s52, s52, s55")
        a("s_sub_u32 s52, s52, 64000"); a("s_max_u32 s53, s53, 1")
        a("v_cvt_f32_i32 v11, s52"); a("v_cvt_f32_u32 v12, s53")
        a("v_rcp_f32 v12, v12")
        a("s_mov_b32 s52, 0"); a("s_mov_b32 s53, 0"); a("s_sub_u32 s54, s56, 2000")
        for t in range(8):
            a(f"s_sub_u32 s55, s{4+t}, s54"); a("s_cmp_lt_u32 s55, 4000")
            a("s_cselect_b32 s55, s55, 2000"); a("s_addc_u32 s53, s53, 0"); a("s_add_u32 s52, s52, s55")
        a("s_sub_u32 s52, s52, 16000"); a("s_max_u32 s53, s53, 1")
        a("v_mul_f32 v11, v11, v12")
        a("v_cvt_f32_i32 v13, s52"); a("v_cvt_f32_u32 v14, s53"); a("v_rcp_f32 v14, v14")
        a("v_cvt_i32_f32 v12, v11"); a("v_add_u32 v12, s50, v12")
        a("v_mul_f32 v13, v13, v14")
        a("v_readfirstlane_b32 s57, v12")
        a("s_cmp_lg_u32 s13, 0"); a("s_cbranch_scc1 L_cnl")
        a("buffer_store_dword v12, v6, s[32:35], s41 offen sc1")
        lab("L_cnl")
        a("s_sub_u32 s46, s48, s50"); a("s_sub_u32 s47, s57, s56"); a("s_cmp_eq_u32 s41, 0"); a("s_cselect_b32 s46, s46, s47")
        a("v_cvt_f32_i32 v14, s46"); a("v_rcp_f32 v14, v14")
        a("s_mov_b32 s56, s57")
        a(f"v_mul_f32 v11, {f2u(-G / 100.0)}, v11"); a(f"v_mul_f32 v13, {f2u(-G2 / 100.0)}, v13"); a("v_add_f32 v11, v11, v13")
        if LT: a(f"v_mul_f32 v15, {f2u(32.0 * CKI * LT * 16.0)}, v14")
        else: a(f"v_mov_b32 v15, {f2u(D * 16.0)}")
        a("v_mul_f32 v11, v11, v14")
        a("v_fma_f32 v15, v15, v11, v15")
        a(f"v_max_f32 v15, {f2u(DMIN * 16.0)}, v15"); a(f"v_min_f32 v15, {f2u(DMAX * 16.0)}, v15")
        a("v_cvt_u32_f32 v15, v15")
        a("ds_write_b32 v38, v15 offset:12")
        lab("L_cnext")
        a("s_mov_b32 s50, s48")
        a(f"s_add_u32 s44, s44, {CKI * 8}")
        a("s_add_u32 s40, s40, 128")
        a(f"s_cmp_lt_u32 s40, {NCK * 128}")
        a("s_cbranch_scc1 L_cl")
        a("s_endpgm")
    L.append(".p2align 10")
    lab("L_end")
    L.append('.section .rodata,"a"'); L.append(".p2align 6"); L.append(f".amdhsa_kernel {KN}")
    a(".amdhsa_next_free_vgpr 168"); a(".amdhsa_next_free_sgpr 96"); a(".amdhsa_accum_offset 168")
    a(".amdhsa_group_segment_fixed_size 0"); a(".amdhsa_kernarg_size 96"); a(".amdhsa_user_sgpr_count 2")
    a(".amdhsa_user_sgpr_kernarg_segment_ptr 1"); a(".amdhsa_system_sgpr_workgroup_id_x 1")
    a(".amdhsa_float_denorm_mode_32 3")
    L.append(".end_amdhsa_kernel")
    return "\n".join(L) + "\n"

if __name__ == "__main__":
    for spec in sys.argv[1:]:
        out, _, kvs = spec.partition(":")
        kw = {}
        if kvs:
            for kv in kvs.split(","):
                k, v = kv.split("=")
                kw[k] = int(v) if v.lstrip("-").isdigit() else v.replace("+", " ")
        open(out, "w").write(gen(**kw))
```

```python
import sys, struct
KN = "recurrent_scan__mha_block_cached__geglu_ffn__decode_kernel"
HEADER = open("recurrent_scan__mha_block_cached__geglu_ffn__decode.s.ref").read().split("; Override launch")[0]

XN, QP, SP, ML, CT, OB, HB, SC = 0, 1024, 1024, 3072, 3136, 3328, 4352, 4608
MISC = 4608 + 8192
YOFF = 0x80000
TOFF = 0x100000
STOFF = 0x30000000
LOG2E = 0x3fb8aa3b
SCALE = 0x3db504f3
f2u = lambda x: hex(struct.unpack("<I", struct.pack("<f", x))[0])

def gen(D=20, D1=0, FW=3, WOS=90, WO0=80, WQWIN=8, WOWIN=2, wpol="", diag=0, kvpol="nt", noffn=0, nowo=0, noq=0,
        MID=440, YP=506, prog=0, NSLOT=18, xpol="", gpol="sc1", spol="sc1", snpol="sc1", pfpol="", SNAP=0,
        ctl=1, DMIN=15, DMAX=25, CKI=3, LT=0, G=45, G2=45, pf=1, lprio=3, gsl=0, vpol=None, hitx=0, wide=0, mpf=1, PF0=0, PFW=4, FF0=70, pp=0, YG=0, csl=1, sno=0, KI=0, DE=28, NE=1, nosnap=0, fast=1, csl1=1, bc=1, ft=1, cont=0):
    L = []
    RING = NSLOT * 8192
    LDS_BYTES = RING + MISC
    assert LDS_BYTES <= 163840
    def a(s): L.append("  " + s)
    def lab(s): L.append(s + ":")
    def nop(n): a(f"s_nop {n-1}")
    def stamp(i):
        if diag: a(f"s_memrealtime s[{60+2*i}:{61+2*i}]")
    def put_stamp(i, off, vt):
        a("s_waitcnt lgkmcnt(0)")
        a("s_lshl_b32 s45, s2, 6"); a(f"s_add_u32 s45, s45, {STOFF}"); a(f"v_mov_b32 v{vt+2}, s45")
        a(f"v_mov_b32 v{vt}, s{60+2*i}"); a(f"v_mov_b32 v{vt+1}, s{61+2*i}")
        a("s_mov_b64 exec, 1")
        a(f"global_store_dwordx2 v{vt+2}, v[{vt}:{vt+1}], s[26:27] offset:{off}")
        a("s_mov_b64 exec, -1")
        nop(2)
    L.append(HEADER.rstrip("\n"))
    L.append(f"; @launch grid=(256,1,1) block=({704 if ctl else 640},1,1) lds={LDS_BYTES}")
    L.append('.amdgcn_target "amdgcn-amd-amdhsa--gfx950"')
    L.append(".text"); L.append(f".globl {KN}"); L.append(".p2align 8"); L.append(f".type {KN},@function"); lab(KN)
    a("s_cmp_ge_u32 s2, 256")
    a("s_cbranch_scc1 L_done")
    a("s_load_dwordx8 s[4:11], s[0:1], 0")
    stamp(0)
    a("v_lshrrev_b32 v1, 6, v0")
    a("v_and_b32 v2, 63, v0")
    a("v_readfirstlane_b32 s3, v1")
    a("v_lshlrev_b32 v1, 4, v2")
    a("s_and_b32 s36, s2, 7")
    a("s_lshl_b32 s36, s36, 2")
    a("s_bfe_u32 s37, s2, 0x20003")
    a("s_add_u32 s36, s36, s37")
    a("s_lshr_b32 s37, s2, 5")
    a("s_cmp_lg_u32 s3, 0")
    a("s_cbranch_scc1 L_notloader")

    if lprio: a(f"s_setprio {lprio}")
    a("s_lshl_b32 s38, s37, 5"); a("s_add_u32 s38, s38, s36"); a("s_lshl_b32 s38, s38, 20")
    a("s_mov_b32 s30, 0x100000"); a("s_mov_b32 s31, 0x20000")
    a("s_mov_b32 s40, 0"); a("s_mov_b32 s41, 0")
    def lds_init():
        a(f"v_mov_b32 v3, {RING+CT}")
        a("v_lshl_add_u32 v4, v2, 2, v3"); a("v_mov_b32 v5, 0")
        a("s_mov_b64 exec, 0xff")
        a("ds_write_b32 v4, v5")
        a("s_mov_b64 exec, -1")
        a(f"v_mov_b32 v8, {D * 16}"); a("ds_write_b32 v3, v8 offset:12")
    if not fast: lds_init()
    a("s_mov_b32 m0, 0")
    a("s_waitcnt lgkmcnt(0)")
    a("s_add_u32 s28, s6, s38"); a("s_addc_u32 s29, s7, 0"); a("s_add_u32 s32, s8, s38"); a("s_addc_u32 s33, s9, 0")
    def publish(k):
        a(f"v_add_u32 v5, {k}, v7"); a("ds_write_b32 v3, v5")
    def ld_step(m, Dw, first=False, kvpol=kvpol):
        j = m & 7
        if j == 0 and not (first and m == 0): a("s_mov_b32 m0, s41")
        if j == 4: a("s_add_u32 m0, s41, 4096")
        waited = not (first and m < Dw)
        if waited: a(f"s_waitcnt vmcnt({Dw-1})")
        elif j in (0, 4) and m: nop(1)
        a(f"buffer_load_dwordx4 v1, s[28:31], s40 offen offset:{(j&3)*1024} {kvpol} lds")
        if waited and (m - Dw + 1) % 4 == 0: publish((m - Dw + 1) // 4)
        if j == 3: a("s_add_u32 s40, s40, 4096")
        if j == 7:
            a("s_add_u32 s40, s40, 4096"); a("s_add_u32 s41, s41, 8192")
            a(f"s_cmp_eq_u32 s41, {RING}"); a("s_cselect_b32 s41, 0, s41")
    Dfirst = D1 if D1 else D
    a("v_mov_b32 v7, 0")
    if prog: a("v_mov_b32 v10, 0"); a("v_mov_b32 v11, 0")
    for m in range(32):
        ld_step(m, Dfirst, first=True)
        if m == (Dfirst - 1 if fast else 7):
            if fast:
                lds_init(); a("s_waitcnt lgkmcnt(0)")
            a("s_barrier")
    def fw(w): return (w - NSLOT) % 4
    def fo(w): return (w - NSLOT) // 4 + 1
    a("s_mov_b32 s44, 0")
    a("s_mov_b32 s47, 8")
    a(f"ds_read_b32 v6, v3 offset:{16 + 4 * fw(0)}")
    a("ds_read_b32 v8, v3 offset:12")
    Ds = list(range(DMIN, DMAX + 1)) if ctl else [D]
    def slow(lbl, w, back):
        lab(lbl)
        a("s_sleep 1")
        a(f"ds_read_b32 v6, v3 offset:{16 + 4 * fw(w)}")
        a("s_waitcnt lgkmcnt(0)")
        a("v_readfirstlane_b32 s45, v6")
        a(f"s_sub_i32 s45, s45, {fo(w)}")
        a("s_cmp_ge_i32 s45, s44")
        a(f"s_cbranch_scc0 {lbl}")
        a(f"s_branch {back}")
    lab("L_disp")
    a("v_add_u32 v7, 8, v7")
    a("s_add_u32 s44, s44, 1")
    a("s_cmp_eq_u32 s44, 64")
    a("s_cbranch_scc1 L_drain")
    a("s_cmp_eq_u32 s44, 32")
    a("s_cselect_b32 s28, s32, s28"); a("s_cselect_b32 s29, s33, s29"); a("s_cselect_b32 s40, 0, s40")
    if prog: a("s_memrealtime s[76:77]")
    a("s_waitcnt lgkmcnt(0)")
    a("v_readfirstlane_b32 s45, v6")
    a("v_readfirstlane_b32 s46, v8")
    if prog:
        a("s_mov_b32 m0, s44"); nop(4); a("v_writelane_b32 v10, s76, m0"); a("v_writelane_b32 v11, s46, m0")
    a(f"s_sub_i32 s45, s45, {fo(0)}")
    a("s_cmp_ge_i32 s45, s44")
    a("s_cbranch_scc0 L_lslow_0")
    lab("L_lfree_0")
    if ctl:
        a("s_add_u32 s47, s47, s46"); a("s_lshr_b32 s46, s47, 4"); a("s_and_b32 s47, s47, 15")
        def casc(lst):
            if len(lst) == 1:
                a(f"s_branch L_c{lst[0]}"); return
            mid = len(lst) // 2
            a(f"s_cmp_ge_u32 s46, {lst[mid]}")
            if len(lst) - mid == 1:
                a(f"s_cbranch_scc1 L_c{lst[mid]}")
                casc(lst[:mid])
            else:
                l2 = f"L_k{lst[mid]}_{len(lst)}"
                a(f"s_cbranch_scc1 {l2}")
                casc(lst[:mid]); lab(l2); casc(lst[mid:])
        if vpol is not None:
            a("s_cmp_ge_u32 s44, 32"); a("s_cbranch_scc1 L_vc")
        if DE:
            a(f"s_cmp_ge_u32 s44, {64 - NE}"); a(f"s_cbranch_scc1 L_c{DE}")
        casc(Ds)
        if DE and DE not in Ds: Ds = Ds + [DE]
    if vpol is not None:
        lab("L_vc")
        for w in range(4):
            if w:
                a("s_waitcnt lgkmcnt(0)")
                a("v_readfirstlane_b32 s45, v6")
                a(f"s_sub_i32 s45, s45, {fo(w)}")
                a("s_cmp_ge_i32 s45, s44")
                a(f"s_cbranch_scc0 L_vslow_{w}")
                lab(f"L_vfree_{w}")
            for j in range(8):
                ld_step(8 * w + j, D, kvpol=vpol)
                if j == 4:
                    a(f"ds_read_b32 v6, v3 offset:{16 + 4 * fw((w + 1) & 3)}")
                    if w == 3: a("ds_read_b32 v8, v3 offset:12")
        a("s_branch L_disp")
        for w in range(1, 4): slow(f"L_vslow_{w}", w, f"L_vfree_{w}")
    for Dw in Ds:
        npub = sum(1 for j in range(5, 8) if (j - Dw + 1) % 4 == 0)
        lab(f"L_c{Dw}")
        for w in range(4):
            if w:
                a(f"s_waitcnt lgkmcnt({npub})")
                a("v_readfirstlane_b32 s45, v6")
                a(f"s_sub_i32 s45, s45, {fo(w)}")
                a("s_cmp_ge_i32 s45, s44")
                a(f"s_cbranch_scc0 L_lslow{Dw}_{w}")
                lab(f"L_lfree{Dw}_{w}")
            for j in range(8):
                ld_step(8 * w + j, Dw)
                if j == 4:
                    a(f"ds_read_b32 v6, v3 offset:{16 + 4 * fw((w + 1) & 3)}")
                    if w == 3: a("ds_read_b32 v8, v3 offset:12")
        a("s_branch L_disp")
    slow("L_lslow_0", 0, "L_lfree_0")
    for Dw in Ds:
        for w in range(1, 4): slow(f"L_lslow{Dw}_{w}", w, f"L_lfree{Dw}_{w}")
    lab("L_drain")
    for r in range((max(Ds) - 1) // 4 * 4, -1, -4):
        a(f"s_waitcnt vmcnt({r})"); publish(-(r // 4))
    if diag:
        stamp(2)
        a("s_load_dwordx2 s[26:27], s[0:1], 88")
        if prog:
            a("s_waitcnt lgkmcnt(0)")
            a("v_writelane_b32 v10, s64, 0")
            a("s_lshl_b32 s45, s2, 8"); a(f"s_add_u32 s45, s45, {STOFF + 0x4000}"); a("v_lshrrev_b32 v9, 2, v1"); a("v_add_u32 v9, s45, v9")
            a("global_store_dword v9, v10, s[26:27]")
            a("v_add_u32 v9, 0x10000, v9")
            a("global_store_dword v9, v11, s[26:27]")
        put_stamp(0, 0, 12); put_stamp(2, 24, 12)
    a("s_endpgm")

    def wave_allsum(r, t):
        for ro in (8, 4, 2, 1):
            nop(2)
            a(f"v_add_f32_dpp v{r}, v{r}, v{r} row_ror:{ro} row_mask:0xf bank_mask:0xf")
        a(f"v_mov_b32 v{t}, v{r}"); nop(2)
        a(f"v_permlane16_swap_b32 v{r}, v{t}"); a(f"v_add_f32 v{r}, v{r}, v{t}"); a(f"v_mov_b32 v{t}, v{r}"); nop(2)
        a(f"v_permlane32_swap_b32 v{r}, v{t}"); a(f"v_add_f32 v{r}, v{r}, v{t}")
    def layernorm(hook):
        for k in range(4):
            a(f"v_lshlrev_b32 v{12+2*k}, 16, v{8+k}"); a(f"v_and_b32 v{13+2*k}, s43, v{8+k}")
        a("v_add_f32 v20, v12, v13"); a("v_add_f32 v21, v14, v15"); a("v_add_f32 v22, v16, v17"); a("v_add_f32 v23, v18, v19")
        a("v_add_f32 v20, v20, v21"); a("v_add_f32 v22, v22, v23"); a("v_add_f32 v20, v20, v22")
        wave_allsum(20, 21); hook()
        a("v_mul_f32 v20, 0x3b000000, v20")
        a("v_mov_b32 v22, 0")
        for k in range(8):
            a(f"v_sub_f32 v21, v{12+k}, v20"); a("v_fmac_f32 v22, v21, v21")
        hook(); wave_allsum(22, 21); hook()
        a("v_mul_f32 v22, 0x3b000000, v22")
        a("v_cvt_pk_bf16_f32 v20, v20, v22")
        a("v_and_b32 v22, s43, v20"); a("v_lshlrev_b32 v20, 16, v20")
        a("v_add_f32 v22, 0x3727c5ac, v22")
        a("v_cvt_pk_bf16_f32 v22, v22, v22"); a("v_and_b32 v22, s43, v22")
        a("v_sqrt_f32 v22, v22"); nop(1)
        a("v_cvt_pk_bf16_f32 v22, v22, v22"); a("v_and_b32 v22, s43, v22")
        a("v_rcp_f32 v22, v22"); hook()
        for k in range(8): a(f"v_sub_f32 v{12+k}, v{12+k}, v20")
        for k in range(4): a(f"v_cvt_pk_bf16_f32 v{8+k}, v{12+2*k}, v{13+2*k}")
        for k in range(4):
            a(f"v_lshlrev_b32 v{12+2*k}, 16, v{8+k}"); a(f"v_and_b32 v{13+2*k}, s43, v{8+k}")
        for k in range(8): a(f"v_mul_f32 v{12+k}, v22, v{12+k}")
        for k in range(4): a(f"v_cvt_pk_bf16_f32 v{8+k}, v{12+2*k}, v{13+2*k}")
    def forms(pair, odd, lo, hi):
        if not odd:
            a(f"v_and_b32 v{lo}, 0xffff, v{pair}"); a(f"v_lshlrev_b32 v{hi}, 16, v{pair}")
        else:
            a(f"v_lshrrev_b32 v{lo}, 16, v{pair}"); a(f"v_and_b32 v{hi}, s43, v{pair}")
    def mac8(acc, w, lo, hi):
        for d in range(4):
            a(f"v_dot2c_f32_bf16 v{acc+2*d}, v{w+d}, v{lo}")
            a(f"v_dot2c_f32_bf16 v{acc+2*d+1}, v{w+d}, v{hi}")
    def lds_poll(lbl, addr, off, tgt, vt, sleep):
        lab(lbl)
        a(f"ds_read_b32 v{vt}, v{addr} offset:{off}")
        a("s_waitcnt lgkmcnt(0)")
        a(f"v_readfirstlane_b32 s45, v{vt}")
        a(f"s_cmp_ge_u32 s45, {tgt}")
        a(f"s_cbranch_scc1 {lbl}_ok")
        if sleep: a(f"s_sleep {sleep}")
        a(f"s_branch {lbl}")
        lab(lbl + "_ok")
    def packbits(dst, src, n, t):
        a(f"v_and_b32 v{dst}, 1, v{src}")
        for k in range(1, n):
            a(f"v_and_b32 v{t}, 1, v{src+k}"); a(f"v_lshl_or_b32 v{dst}, v{t}, {k}, v{dst}")
    WREG = 40

    lab("L_notloader")
    a("v_lshrrev_b32 v3, 4, v2")
    a("v_and_b32 v4, 15, v2")
    a("s_mov_b32 s43, 0xffff0000")
    a("s_mov_b32 s42, " + hex(LOG2E))
    a("s_lshl_b32 s39, s37, 10")
    a("s_mov_b32 s30, 1024"); a("s_mov_b32 s31, 0x20000"); a("s_mov_b32 s35, 0x20000")
    a("s_cmp_ge_u32 s3, 5")
    a("s_cbranch_scc1 L_helper")

    a("s_sub_u32 s3, s3, 1")
    a("s_lshl_b32 s38, s3, 20"); a("s_lshl_b32 s46, s36, 8"); a("s_add_u32 s38, s38, s46")
    a("v_lshlrev_b32 v5, 18, v3"); a("v_lshl_add_u32 v5, v4, 4, v5"); a("v_add_u32 v5, s38, v5")
    a("s_mov_b32 s34, 0x400000")
    a("s_lshl_b32 s40, s37, 15")
    a("s_waitcnt lgkmcnt(0)")
    a("s_add_u32 s28, s4, s39"); a("s_addc_u32 s29, s5, 0")
    a("s_mov_b32 s32, s10"); a("s_mov_b32 s33, s11")
    a(f"buffer_load_dwordx4 v[8:11], v1, s[28:31], 0 offen {xpol}")
    wq = {"issued": 0}
    def issue_wq(window=True):
        i = wq["issued"]
        if i >= 32 or noq: return
        if window: a(f"s_waitcnt vmcnt({WQWIN-1})")
        r = WREG + i * 4
        a(f"buffer_load_dwordx4 v[{r}:{r+3}], v5, s[32:35], s40 offen {wpol}")
        a("s_add_u32 s40, s40, 0x2000")
        if i % 4 == 3: a("s_and_b32 s40, s40, 0x3ffff")
        wq["issued"] += 1
    for i in range(WQWIN): issue_wq(False)
    a("s_barrier")
    a(f"s_waitcnt vmcnt({WQWIN if not noq else 0})")
    layernorm(issue_wq)
    a(f"s_mov_b32 s45, {RING+XN}")
    a("v_add_u32 v6, s45, v1")
    a("ds_write_b128 v6, v[8:11]")
    issue_wq()
    a("s_lshl_b32 s46, s3, 8"); a("s_add_u32 s46, s46, s45")
    a("v_lshlrev_b32 v7, 6, v3"); a("v_add_u32 v7, s46, v7")
    a("s_waitcnt lgkmcnt(0)")
    for k in range(8):
        a(f"s_add_u32 s46, s37, {k}"); a("s_and_b32 s46, s46, 7"); a("s_lshl_b32 s46, s46, 3")
        a("v_add_u32 v12, s46, v7")
        a(f"ds_read_b64 v[{16+2*k}:{17+2*k}], v12")
    for k in range(8): a(f"v_mov_b32 v{32+k}, 0")
    a("s_waitcnt lgkmcnt(0)")
    for i in range(32 if not noq else 0):
        forms(16 + i // 2, i & 1, 12, 13)
        if wq["issued"] < 32: issue_wq()
        else: a(f"s_waitcnt vmcnt({31 - i})")
        mac8(32, WREG + i * 4, 12, 13)
    a("v_lshlrev_b32 v7, 5, v4")
    a(f"v_add_u32 v7, {RING}, v7")
    a("v_lshl_add_u32 v6, v3, 2, v7")
    a("s_lshl_b32 s46, s3, 9"); a("v_add_u32 v6, s46, v6")
    for k in range(4): a(f"v_permlane16_swap_b32 v{32+2*k}, v{33+2*k}")
    for k in range(4): a(f"v_add_f32 v{32+2*k}, v{32+2*k}, v{33+2*k}")
    a("v_mov_b32 v39, 1")
    a("v_permlane32_swap_b32 v32, v34"); a("v_permlane32_swap_b32 v36, v38")
    a("v_add_f32 v32, v32, v34"); a("v_add_f32 v36, v36, v38")
    a(f"ds_write_b32 v6, v32 offset:{QP}"); a(f"ds_write_b32 v6, v36 offset:{QP+16}")
    a(f"v_mov_b32 v38, {RING+CT}")
    a("s_waitcnt lgkmcnt(0)")
    a("s_mov_b64 exec, 1")
    a("ds_add_u32 v38, v39 offset:4")
    a("s_mov_b64 exec, -1")
    lds_poll("L_qw", 38, 4, 4, 39, 1)
    for w in range(4):
        a(f"ds_read_b128 v[{40+w*8}:{43+w*8}], v7 offset:{QP+w*512}")
        a(f"ds_read_b128 v[{44+w*8}:{47+w*8}], v7 offset:{QP+w*512+16}")
    a("s_mov_b32 s41, " + hex(SCALE))
    a("v_mov_b32 v16, 0xff800000")
    a("s_lshl_b32 s44, s3, 13"); a("v_add_u32 v36, s44, v1")
    a("s_lshl_b32 s46, s3, 2"); a("v_add_u32 v37, s46, v38")
    a("s_lshl_b32 s47, s3, 1"); a("s_add_u32 s47, s47, 1")
    a("v_mov_b32 v27, 0")
    a("s_lshl_b32 s40, s3, 11"); a(f"s_add_u32 s40, s40, {RING+SC}")
    a("v_lshlrev_b32 v17, 4, v3"); a("v_add_u32 v17, s40, v17")
    a("v_and_b32 v5, 14, v4"); a("v_add_u32 v5, v5, v17")
    a("v_and_b32 v26, 2, v2"); a("v_cmp_ne_u32 vcc, 0, v26")
    a("s_waitcnt lgkmcnt(4)")
    for k in range(8): a(f"v_add_f32 v{40+k}, v{40+k}, v{48+k}")
    a("s_waitcnt lgkmcnt(0)")
    for k in range(8): a(f"v_add_f32 v{56+k}, v{56+k}, v{64+k}")
    for k in range(8): a(f"v_add_f32 v{40+k}, v{40+k}, v{56+k}")
    for k in range(4): a(f"v_cvt_pk_bf16_f32 v{72+k}, v{40+2*k}, v{41+2*k}")
    stamp(1)
    Q = 72; DR = 40
    S = list(range(18, 26))
    def half2(lbl):
        a("s_cmp_gt_u32 s45, s47")
        a(f"s_cbranch_scc1 {lbl}_ok")
        a("s_add_u32 s46, s47, 1")
        lds_poll(lbl, 38, 0, "s46", 39, csl)
        for j in range(4, 8): a(f"ds_read_b128 v[{DR+4*j}:{DR+4*j+3}], v36 offset:{j*1024}")
        a("v_add_u32 v27, 1, v27")
        a("s_add_u32 s44, s44, 0x8000"); a(f"s_sub_u32 s46, s44, {RING}"); a("s_cselect_b32 s44, s44, s46")
        a("v_add_u32 v36, s44, v1")
        a("s_add_u32 s47, s47, 8")
    lab("L_kloop")
    lds_poll("L_pk", 38, 0, "s47", 39, csl1)
    for j in range(4): a(f"ds_read_b128 v[{DR+4*j}:{DR+4*j+3}], v36 offset:{j*1024}")
    for j in range(8): a(f"v_mov_b32 v{S[j]}, 0")
    for j in range(4):
        a(f"s_waitcnt lgkmcnt({3-j})")
        for d in range(4): a(f"v_dot2c_f32_bf16 v{S[j]}, v{DR+4*j+d}, v{Q+d}")
    half2("L_pk2")
    for j in range(4, 8):
        a(f"s_waitcnt lgkmcnt({7-j})")
        if j == 7: a("ds_write_b32 v37, v27 offset:16")
        for d in range(4): a(f"v_dot2c_f32_bf16 v{S[j]}, v{DR+4*j+d}, v{Q+d}")
    for j in range(4): a(f"v_add_f32_dpp v{S[j]}, v{S[j]}, v{S[j]} row_ror:8 row_mask:0xf bank_mask:0x3")
    for j in range(4): a(f"v_add_f32_dpp v{S[j]}, v{S[j+4]}, v{S[j+4]} row_ror:8 row_mask:0xf bank_mask:0xc")
    for j in range(2): a(f"v_add_f32_dpp v{S[j]}, v{S[j]}, v{S[j]} row_ror:12 row_mask:0xf bank_mask:0x5")
    nop(1)
    for j in range(2): a(f"v_add_f32_dpp v{S[j]}, v{S[j+2]}, v{S[j+2]} row_ror:4 row_mask:0xf bank_mask:0xa")
    nop(1)
    for j in range(2): a(f"v_add_f32_dpp v{S[j]}, v{S[j]}, v{S[j]} quad_perm:[2,3,0,1] row_mask:0xf bank_mask:0xf")
    a(f"v_cndmask_b32 v{S[2]}, v{S[0]}, v{S[1]}, vcc")
    nop(2)
    a(f"v_add_f32_dpp v{S[2]}, v{S[2]}, v{S[2]} quad_perm:[1,0,3,2] row_mask:0xf bank_mask:0xf")
    a(f"v_cvt_pk_bf16_f32 v{S[2]}, 0, v{S[2]}")
    a(f"v_mul_f32 v{S[2]}, s41, v{S[2]}")
    a(f"v_cvt_pk_bf16_f32 v{S[2]}, v{S[2]}, v{S[2]}")
    a(f"ds_write_b16 v5, v{S[2]}")
    a(f"v_and_b32 v{S[3]}, s43, v{S[2]}")
    a(f"v_max_f32 v16, v16, v{S[3]}")
    a("v_add_u32 v5, 64, v5")
    a("s_cmp_lt_u32 s47, 256")
    a("s_cbranch_scc1 L_kloop")
    a("v_lshlrev_b32 v5, 1, v1"); a("v_add_u32 v5, s40, v5")
    a("s_waitcnt lgkmcnt(0)")
    a("ds_read_b128 v[40:43], v5"); a("ds_read_b128 v[44:47], v5 offset:16")
    for ro in (8, 4, 2, 1):
        a(f"v_max_f32_dpp v16, v16, v16 row_ror:{ro} row_mask:0xf bank_mask:0xf"); nop(2)
    a("v_mov_b32 v18, v16"); nop(2)
    a("v_permlane16_swap_b32 v16, v18"); a("v_max_f32 v16, v16, v18"); a("v_mov_b32 v18, v16"); nop(2)
    a("v_permlane32_swap_b32 v16, v18"); a("v_max_f32 v16, v16, v18")
    a("v_mul_f32 v18, s42, v16")
    a("s_waitcnt lgkmcnt(0)")
    for k in range(8):
        a(f"v_lshlrev_b32 v{48+2*k}, 16, v{40+k}"); a(f"v_and_b32 v{49+2*k}, s43, v{40+k}")
    for k in range(16): a(f"v_fma_f32 v{48+k}, v{48+k}, s42, -v18")
    for k in range(16): a(f"v_exp_f32 v{48+k}, v{48+k}")
    a("v_add_f32 v19, v48, v49"); a("v_add_f32 v20, v50, v51")
    for k in range(4, 16, 2):
        a(f"v_add_f32 v19, v19, v{48+k}"); a(f"v_add_f32 v20, v20, v{49+k}")
    a("v_add_f32 v19, v19, v20")
    wave_allsum(19, 20)
    a(f"v_subrev_u32 v21, {CT-ML}, v37")
    a("ds_write_b32 v21, v16"); a("ds_write_b32 v21, v19 offset:16")
    a("v_mov_b32 v39, 1")
    a("s_waitcnt lgkmcnt(0)")
    a("s_mov_b64 exec, 1")
    a("ds_add_u32 v38, v39 offset:8")
    a("s_mov_b64 exec, -1")
    lds_poll("L_mw", 38, 8, 4, 39, 1)
    a(f"v_subrev_u32 v21, {CT-ML}, v38")
    a("ds_read_b128 v[8:11], v21"); a("ds_read_b128 v[12:15], v21 offset:16")
    a("s_waitcnt lgkmcnt(1)")
    a("v_max3_f32 v20, v8, v9, v10"); a("v_max_f32 v20, v20, v11")
    for w in range(4): a(f"v_sub_f32 v{8+w}, v{8+w}, v20")
    a("v_sub_f32 v16, v16, v20")
    for w in range(4): a(f"v_mul_f32 v{8+w}, s42, v{8+w}")
    a("v_mul_f32 v16, s42, v16")
    for w in range(4): a(f"v_exp_f32 v{8+w}, v{8+w}")
    a("v_exp_f32 v16, v16")
    a("s_waitcnt lgkmcnt(0)")
    a("v_mul_f32 v20, v8, v12"); a("v_fmac_f32 v20, v9, v13"); a("v_fmac_f32 v20, v10, v14"); a("v_fmac_f32 v20, v11, v15")
    a("v_rcp_f32 v20, v20"); nop(1)
    a("v_mul_f32 v16, v16, v20")
    for k in range(16): a(f"v_mul_f32 v{48+k}, v16, v{48+k}")
    for k in range(8): a(f"v_cvt_pk_bf16_f32 v{40+k}, v{48+2*k}, v{49+2*k}")
    a("ds_write_b128 v5, v[40:43]"); a("ds_write_b128 v5, v[44:47] offset:16")
    for k in range(8): a(f"v_mov_b32 v{8+k}, 0")
    a("s_waitcnt lgkmcnt(0)")
    lab("L_vloop")
    a("ds_read_b128 v[28:31], v17")
    a("v_add_u32 v17, 64, v17")
    lds_poll("L_pv", 38, 0, "s47", 39, csl1)
    for j in range(4): a(f"ds_read_b128 v[{DR+4*j}:{DR+4*j+3}], v36 offset:{j*1024}")
    for j in range(8): forms(28 + j // 2, j & 1, 76 + 2 * j, 77 + 2 * j)
    for j in range(4):
        a(f"s_waitcnt lgkmcnt({3-j})")
        mac8(8, DR + 4 * j, 76 + 2 * j, 77 + 2 * j)
    half2("L_pv2")
    for j in range(4, 8):
        a(f"s_waitcnt lgkmcnt({7-j})")
        if j == 7: a("ds_write_b32 v37, v27 offset:16")
        mac8(8, DR + 4 * j, 76 + 2 * j, 77 + 2 * j)
    a("s_cmp_lt_u32 s47, 512")
    a("s_cbranch_scc1 L_vloop")
    nop(2)
    for k in range(4): a(f"v_permlane16_swap_b32 v{8+2*k}, v{9+2*k}")
    for k in range(4): a(f"v_add_f32 v{8+2*k}, v{8+2*k}, v{9+2*k}")
    nop(1)
    a("v_permlane32_swap_b32 v8, v10"); a("v_permlane32_swap_b32 v12, v14")
    a("v_add_f32 v8, v8, v10"); a("v_add_f32 v12, v12, v14")
    a(f"ds_write_b32 v6, v8 offset:{SP}"); a(f"ds_write_b32 v6, v12 offset:{SP+16}")
    a("s_waitcnt lgkmcnt(0)")
    a("s_barrier")
    if diag:
        a("s_cmp_lg_u32 s3, 0"); a("s_cbranch_scc1 L_done")
        a("s_load_dwordx2 s[26:27], s[0:1], 88")
        put_stamp(1, 16, 8)
    a("s_endpgm")

    lab("L_helper")
    a("s_sub_u32 s3, s3, 5")
    if pf:
        a("s_cmp_lg_u32 s3, 2"); a("s_cbranch_scc1 L_nopf")
        a("s_getpc_b64 s[46:47]")
        lab("L_pc")
        a(f"s_sub_u32 s46, s46, L_pc-{KN}"); a("s_subb_u32 s47, s47, 0")
        a("s_lshr_b32 s45, s2, 3"); a("s_min_u32 s45, s45, (L_end-" + KN + ")/1024-1"); a("s_lshl_b32 s45, s45, 10")
        a("v_add_u32 v6, s45, v1")
        a(f"global_load_dwordx4 v[8:11], v6, s[46:47] {pfpol}")
        lab("L_nopf")
    a("s_load_dwordx2 s[12:13], s[0:1], 32")
    a("s_load_dwordx8 s[16:23], s[0:1], 48")
    a("s_load_dwordx4 s[24:27], s[0:1], 80")
    a(f"v_mov_b32 v38, {RING+CT}")
    a("s_barrier")
    a("s_waitcnt lgkmcnt(0)")
    a("s_lshl_b32 s38, s37, 16")
    a("s_add_u32 s48, s26, s38"); a("s_addc_u32 s49, s27, 0"); a("s_mov_b32 s50, 0x10000"); a("s_mov_b32 s51, 0x20000")
    a("s_cmp_ge_u32 s3, 4"); a("s_cbranch_scc1 L_notwo")

    a("v_lshlrev_b32 v34, 5, v4"); a("v_lshrrev_b32 v7, 1, v3"); a("v_lshl_add_u32 v34, v7, 4, v34")
    if cont: a("v_lshlrev_b32 v34, 4, v4"); a("v_lshl_add_u32 v34, v7, 8, v34")
    a("s_lshl_b32 s14, s3, 9"); a("s_lshl_b32 s46, s36, 11"); a("s_add_u32 s14, s14, s46")
    a("s_mov_b32 s32, s12"); a("s_mov_b32 s33, s13"); a("s_mov_b32 s34, 0x400000")
    a("s_lshl_b32 s46, s36, 17"); a("s_lshl_b32 s47, s3, 8"); a("s_add_u32 s46, s46, s47")
    a("v_lshlrev_b32 v5, 15, v3"); a("v_lshl_add_u32 v5, v4, 4, v5"); a("v_add_u32 v5, s46, v5")
    a("s_mov_b32 s40, 0"); a("s_mov_b32 s46, 0x05040100"); a("s_mov_b32 s47, 0x07060302")
    if mpf:
        a("s_cmp_eq_u32 s3, 1"); a("s_cselect_b32 s28, s18, s16"); a("s_cselect_b32 s29, s19, s17")
        a("s_cmp_eq_u32 s3, 2"); a("s_cselect_b32 s28, s20, s28"); a("s_cselect_b32 s29, s21, s29")
        a("s_cmp_eq_u32 s3, 3"); a("s_cselect_b32 s30, 0, 0x1c0000")
        a("s_mul_i32 s41, s2, 7168")
        a("s_lshl_b32 s44, s2, 14"); a("s_lshl_b32 s45, s3, 12"); a("s_add_u32 s15, s44, s45")
        lds_poll("L_pf0", 38, 0, PF0, 39, 8)
        for i in range(11):
            if i >= PFW: a(f"s_waitcnt vmcnt({PFW - 1})")
            r = WREG + 4 * i
            if i < 7:
                a(f"buffer_load_dwordx4 v[{r}:{r+3}], v1, s[28:31], s41 offen offset:{(i % 4) * 1024}")
                if i == 3: a("s_add_u32 s41, s41, 4096")
            else:
                a(f"buffer_load_dwordx4 v[{r}:{r+3}], v1, s[32:35], s15 offen offset:{(i - 7) * 1024}")
    a(f"s_mul_i32 s44, s3, {WOS}"); a(f"s_add_u32 s44, s44, {WO0}")
    lds_poll("L_wos", 38, 0, "s44", 39, 32)
    a(f"buffer_load_dwordx4 v[8:11], v34, s[48:51], s14 offen {snpol}")
    a("s_waitcnt vmcnt(0)")
    packbits(35, 8, 4, 20)
    a("v_xor_b32 v35, 15, v35")
    def issue_o(i):
        r = WREG + i * 4
        a(f"buffer_load_dwordx4 v[{r}:{r+3}], v5, s[32:35], s40 offen offset:{(i%4)*1024} {wpol}")
        if i % 4 == 3: a(f"s_add_u32 s40, s40, {0 if hitx else 4096}")
    for i in range(WOWIN if not nowo else 0): issue_o(i)
    for i in range(32 if not nowo else 0):
        a(f"s_waitcnt vmcnt({min(WOWIN - 1, 31 - i)})")
        if i + WOWIN < 32: issue_o(i + WOWIN)
        if i & 1:
            A = WREG + 8 * (i // 2); B = A + 4
            for d in range(4):
                a(f"v_perm_b32 v12, v{B+d}, v{A+d}, s46")
                a(f"v_perm_b32 v{B+d}, v{B+d}, v{A+d}, s47")
                a(f"v_mov_b32 v{A+d}, v12")
    a("v_lshrrev_b32 v7, 1, v1"); a(f"v_add_u32 v7, {RING}, v7")
    a("s_lshl_b32 s45, s3, 8"); a(f"s_add_u32 s45, s45, {RING+OB}")
    a("v_lshrrev_b32 v4, 2, v1"); a("v_add_u32 v4, s45, v4")
    a("v_lshlrev_b32 v3, 6, v3"); a("v_add_u32 v3, s45, v3")
    for k in range(4): a(f"v_bfe_u32 v{k if k < 3 else 5}, v35, {k}, 1".replace("v0,", "v0,"))
    TB = [0, 1, 2, 5]
    for k in range(8): a(f"v_mov_b32 v{8+k}, 0")
    stamp(5)
    a("s_barrier")
    for w in range(4): a(f"ds_read_b64 v[{16+2*w}:{17+2*w}], v7 offset:{SP+w*512}")
    a("s_waitcnt lgkmcnt(2)")
    a("v_add_f32 v16, v16, v18"); a("v_add_f32 v17, v17, v19")
    a("s_waitcnt lgkmcnt(0)")
    a("v_add_f32 v20, v20, v22"); a("v_add_f32 v21, v21, v23")
    a("v_add_f32 v16, v16, v20"); a("v_add_f32 v17, v17, v21")
    a("v_cvt_pk_bf16_f32 v25, v16, v17")
    if bc:
        nop(2)
        for k in range(16):
            A = WREG + 8 * k; B = A + 4
            for d in range(4):
                a(f"v_dot2c_f32_bf16_dpp v{8+2*d}, v25, v{A+d} row_newbcast:{k} row_mask:0xf bank_mask:0xf")
                a(f"v_dot2c_f32_bf16_dpp v{9+2*d}, v25, v{B+d} row_newbcast:{k} row_mask:0xf bank_mask:0xf")
    else:
        a("ds_write_b32 v4, v25")
        a("s_waitcnt lgkmcnt(0)")
        for k in range(4): a(f"ds_read_b128 v[{16+4*k}:{19+4*k}], v3 offset:{16*k}")
        for k in range(16):
            if k % 4 == 0: a(f"s_waitcnt lgkmcnt({3-k//4})")
            A = WREG + 8 * k; B = A + 4
            for d in range(4):
                a(f"v_dot2c_f32_bf16 v{8+2*d}, v{A+d}, v{16+k}")
                a(f"v_dot2c_f32_bf16 v{9+2*d}, v{B+d}, v{16+k}")
    nop(3)
    for k in range(4): a(f"v_permlane32_swap_b32 v{8+k}, v{12+k}")
    for k in range(4): a(f"v_add_f32 v{8+k}, v{8+k}, v{12+k}")
    for k in range(4): a(f"v_mov_b32 v{12+k}, v{8+k}")
    for k in range(4): a(f"v_permlane16_swap_b32 v{8+k}, v{12+k}")
    for k in range(4): a(f"v_add_f32 v{8+k}, v{8+k}, v{12+k}")
    for k in range(4): a(f"v_and_or_b32 v{20+k}, v{8+k}, -2, v{TB[k]}")
    a("s_mov_b32 exec_lo, 0xffff"); a("s_mov_b32 exec_hi, 0xffff")
    a(f"buffer_store_dwordx4 v[20:23], v34, s[48:51], s14 offen {spol}")
    if diag:
        a("s_mov_b64 exec, -1")
        a("s_cmp_lg_u32 s3, 3"); a("s_cbranch_scc1 L_done")
        stamp(6); put_stamp(5, 40, 24); put_stamp(6, 48, 24)
    a("s_endpgm")

    lab("L_notwo")
    if ctl:
        a("s_cmp_eq_u32 s3, 5"); a("s_cbranch_scc1 L_ctl")
    a(f"s_add_u32 s52, s48, {YOFF}"); a("s_addc_u32 s53, s49, 0"); a(f"s_mov_b32 s54, {28*2048}"); a("s_mov_b32 s55, 0x20000")
    a("s_add_u32 s28, s4, s39"); a("s_addc_u32 s29, s5, 0")
    a("s_add_u32 s56, s22, s39"); a("s_addc_u32 s57, s23, 0"); a("s_mov_b32 s58, 1024"); a("s_mov_b32 s59, 0x20000")
    a("v_lshrrev_b32 v32, 2, v2"); a("v_lshlrev_b32 v32, 11, v32"); a("v_and_b32 v33, 48, v1"); a("v_add_u32 v32, v32, v33")
    a("v_add_u32 v33, 0x8000, v32")
    a("v_lshlrev_b32 v34, 1, v1")
    a("s_lshl_b32 s14, s36, 11"); a("s_lshl_b32 s15, s36, 6")
    a("v_lshrrev_b32 v31, 1, v1"); a("v_and_b32 v31, 24, v31"); a("s_lshl_b32 s46, s36, 5"); a("v_add_u32 v31, s46, v31")
    def snap_gather():
        if nosnap:
            a("s_lshl_b32 s46, s37, 5"); a("v_mov_b32 v30, s46"); a("v_mov_b32 v29, 1")
            a("s_mov_b64 exec, 1"); a("global_atomic_add v30, v29, s[24:25] sc1"); a("s_mov_b64 exec, -1")
            return
        a(f"buffer_load_dwordx4 v[8:11], v32, s[48:51], s15 offen {snpol}")
        a(f"buffer_load_dwordx4 v[12:15], v33, s[48:51], s15 offen {snpol}")
        a(f"buffer_load_dwordx4 v[16:19], v32, s[52:55], s15 offen {snpol}")
        a(f"buffer_load_dwordx4 v[20:23], v33, s[52:55], s15 offen {snpol}")
        a("s_lshl_b32 s46, s37, 5"); a("v_mov_b32 v30, s46"); a("v_mov_b32 v29, 1")
        a("v_cmp_le_u32 vcc, 48, v2")
        a("s_waitcnt vmcnt(0)")
        a("s_mov_b64 exec, 1")
        a("global_atomic_add v30, v29, s[24:25] sc1")
        a("s_mov_b64 exec, -1")
        packbits(36, 8, 8, 24)
        packbits(37, 16, 8, 24)
        a("v_mov_b32 v24, 0xf0"); a("v_cndmask_b32 v24, 0, v24, vcc"); a("v_or_b32 v37, v37, v24")
    def snap_own():
        a(f"buffer_load_dwordx4 v[8:11], v34, s[52:55], s14 offen {snpol}")
        a(f"buffer_load_dwordx4 v[12:15], v34, s[52:55], s14 offen offset:16 {snpol}")
        a(f"buffer_load_dwordx2 v[26:27], v31, s[28:31], 0 offen {xpol}")
        if sno:
            a(f"buffer_load_dwordx4 v[16:19], v1, s[48:51], s14 offen {snpol}")
            a(f"buffer_load_dwordx4 v[20:23], v1, s[48:51], s14 offen offset:1024 {snpol}")
        a("s_waitcnt vmcnt(0)")
        packbits(35, 8, 8, 24)
        a("v_xor_b32 v35, 0xff, v35")
    if sno:
        snap_own()
        lds_poll("L_hq", 38, 4, 4, 39, 8)
        if SNAP: lds_poll("L_sw", 38, 0, SNAP, 39, 8)
        snap_gather()
    else:
        if SNAP: lds_poll("L_sw", 38, 0, SNAP, 39, 8)
        snap_gather()
        lds_poll("L_hq", 38, 4, 4, 39, 8)
        snap_own()
    a("s_cmp_ge_u32 s36, 28"); a("s_cbranch_scc1 L_noffn")
    if FF0: lds_poll("L_ff0", 38, 0, FF0, 39, 16)
    FA = 40; FREG = 56
    if not noffn:
        a("s_mov_b32 s28, s16"); a("s_mov_b32 s29, s17"); a("s_mov_b32 s30, 0x1c0000")
        a("s_mov_b32 s32, s18"); a("s_mov_b32 s33, s19"); a("s_mov_b32 s34, 0x1c0000")
        a("v_lshrrev_b32 v6, 3, v2"); a("v_and_b32 v7, 7, v2")
        a("s_mov_b32 s46, 229376"); a("v_mul_lo_u32 v8, v6, s46")
        a("v_lshl_add_u32 v8, v7, 4, v8"); a("s_lshl_b32 s46, s36, 7"); a("v_add_u32 v8, s46, v8")
        if wide:
            a("s_mov_b32 s46, 229376"); a("v_mul_lo_u32 v8, v3, s46"); a("v_lshl_add_u32 v8, v4, 4, v8")
            a("s_lshr_b32 s46, s36, 1"); a("s_lshl_b32 s46, s46, 8"); a("v_add_u32 v8, s46, v8")
            a("s_and_b32 s46, s36, 1"); a("s_mul_i32 s46, s46, 917504"); a("v_add_u32 v8, s46, v8")
        a("v_lshlrev_b32 v9, 7, v6"); a(f"v_add_u32 v9, {RING+XN}, v9")
        a("s_mov_b32 s40, 0")
        def issue_f(n):
            r = FREG + (n % 4) * 4; srd = 28 if n % 2 == 0 else 32
            so = "s40" if n < 4 else "s41"
            a(f"buffer_load_dwordx4 v[{r}:{r+3}], v8, s[{srd}:{srd+3}], {so} offen offset:{3584*((n%4)//2)} {wpol}")
        for n in range(FW): issue_f(n)
        a(f"s_mov_b32 s41, {0 if hitx else 7168}")
        a("ds_read_b32 v10, v9")
        for k in range(16): a(f"v_mov_b32 v{FA+k}, 0")
        a("s_mov_b32 s44, 31")
        def fbody(last):
            a("s_waitcnt lgkmcnt(0)")
            forms(10, 0, 12, 13); forms(10, 1, 14, 15)
            if not last:
                a("v_add_u32 v9, 4, v9"); a("ds_read_b32 v10, v9")
            for n in range(4):
                a(f"s_waitcnt vmcnt({FW-1 if not last else min(FW-1, 3-n)})")
                mac8(FA + 8 * (n % 2), FREG + n * 4, 12 + 2 * (n // 2), 13 + 2 * (n // 2))
                if not last or n + FW < 4: issue_f(n + FW)
            if not last:
                a("s_mov_b32 s40, s41"); a(f"s_add_u32 s41, s41, {0 if hitx else 7168}")
        lab("L_floop")
        fbody(False)
        a("s_sub_u32 s44, s44, 1"); a("s_cmp_lg_u32 s44, 0"); a("s_cbranch_scc1 L_floop")
        fbody(True)
        a("s_mov_b32 s28, s20"); a("s_mov_b32 s29, s21")
        a("s_lshl_b32 s40, s36, 16")
        a(f"s_add_u32 s41, s40, {0 if hitx else 4096}")
        def issue_d(n):
            r = FREG + (n % 4) * 4
            so = "s40" if n < 4 else "s41"
            a(f"buffer_load_dwordx4 v[{r}:{r+3}], v1, s[28:31], {so} offen offset:{(n%4)*1024} {wpol}")
        for n in range(FW): issue_d(n)
        a("v_and_b32 v14, 8, v2"); a("v_cmp_ne_u32 vcc, 0, v14")
        for acc in (FA, FA + 8):
            for k in range(4): a(f"v_permlane32_swap_b32 v{acc+k}, v{acc+4+k}")
            for k in range(4): a(f"v_add_f32 v{acc+k}, v{acc+k}, v{acc+4+k}")
            nop(1)
            a(f"v_permlane16_swap_b32 v{acc}, v{acc+2}"); a(f"v_permlane16_swap_b32 v{acc+1}, v{acc+3}")
            a(f"v_add_f32 v{acc}, v{acc}, v{acc+2}"); a(f"v_add_f32 v{acc+1}, v{acc+1}, v{acc+3}")
            nop(2)
            a(f"v_add_f32_dpp v{acc}, v{acc}, v{acc} row_ror:8 row_mask:0xf bank_mask:0xf")
            a(f"v_add_f32_dpp v{acc+1}, v{acc+1}, v{acc+1} row_ror:8 row_mask:0xf bank_mask:0xf")
            a(f"v_cndmask_b32 v{acc}, v{acc}, v{acc+1}, vcc")
        a(f"v_cvt_pk_bf16_f32 v14, v{FA}, v{FA+8}")
        a("v_lshlrev_b32 v15, 16, v14"); a("v_and_b32 v16, s43, v14")
        a("v_mul_f32 v17, v15, v15"); a("v_mul_f32 v17, v17, v15")
        a("v_mov_b32 v18, 0x3d372713"); a("v_fma_f32 v17, v17, v18, v15")
        a("v_mul_f32 v17, 0xc0135761, v17")
        a("v_exp_f32 v17, v17"); nop(1)
        a("v_add_f32 v17, 1.0, v17"); a("v_rcp_f32 v17, v17"); nop(1)
        a("v_mul_f32 v17, v15, v17")
        a("v_cvt_pk_bf16_f32 v17, v17, v17"); a("v_and_b32 v17, s43, v17")
        a("v_mul_f32 v17, v17, v16")
        a("v_cvt_pk_bf16_f32 v17, v17, v17")
        a("v_lshlrev_b32 v14, 4, v7")
        a("v_lshrrev_b32 v15, 5, v2"); a("v_lshl_add_u32 v14, v15, 3, v14")
        a("v_bfe_u32 v15, v2, 4, 1"); a("v_lshl_add_u32 v14, v15, 2, v14")
        a("v_bfe_u32 v15, v2, 3, 1"); a("v_lshl_add_u32 v14, v15, 1, v14")
        a(f"v_mov_b32 v9, {RING+HB}"); a("v_add_u32 v14, v9, v14")
        a("ds_write_b16 v14, v17")
        a("s_waitcnt lgkmcnt(0)")
        a("ds_read_b64 v[10:11], v9")
        for k in range(8): a(f"v_mov_b32 v{FA+k}, 0")
        a("s_mov_b32 s44, 15")
        def dbody(last):
            a("s_waitcnt lgkmcnt(0)")
            forms(10, 0, 12, 13); forms(10, 1, 14, 15); forms(11, 0, 16, 17); forms(11, 1, 18, 19)
            if not last:
                a("v_add_u32 v9, 8, v9"); a("ds_read_b64 v[10:11], v9")
            for n in range(4):
                a(f"s_waitcnt vmcnt({FW-1 if not last else min(FW-1, 3-n)})")
                mac8(FA, FREG + n * 4, 12 + 2 * n, 13 + 2 * n)
                if not last or n + FW < 4: issue_d(n + FW)
            if not last:
                a("s_mov_b32 s40, s41"); a(f"s_add_u32 s41, s41, {0 if hitx else 4096}")
        lab("L_dloop")
        dbody(False)
        a("s_sub_u32 s44, s44, 1"); a("s_cmp_lg_u32 s44, 0"); a("s_cbranch_scc1 L_dloop")
        dbody(True)
    for k in range(8): a(f"v_bfe_u32 v{8+k}, v35, {k}, 1")
    for k in range(8): a(f"v_and_or_b32 v{FA+k}, v{FA+k}, -2, v{8+k}")
    lab("L_noffn")
    if diag:
        stamp(4); put_stamp(4, 56, 12)
    lds_poll("L_mid", 38, 0, MID, 39, 32)
    a("s_mov_b32 s47, 0x20000")
    a("s_mov_b64 exec, 1")
    lab("L_rdy")
    a(f"global_load_dword v13, v30, s[24:25] sc1")
    a("s_waitcnt vmcnt(0)")
    a("v_readfirstlane_b32 s46, v13")
    a("s_sub_u32 s47, s47, 1"); a("s_cmp_eq_u32 s47, 0"); a("s_cbranch_scc1 L_rdy_ok")
    a("s_cmp_ge_u32 s46, 32"); a("s_cbranch_scc1 L_rdy_ok")
    a("s_sleep 16"); a("s_branch L_rdy")
    lab("L_rdy_ok")
    a("s_mov_b64 exec, -1")
    a("v_lshlrev_b32 v24, 16, v26"); a("v_and_b32 v25, s43, v26"); a("v_lshlrev_b32 v26, 16, v27"); a("v_and_b32 v27, s43, v27")
    lds_poll("L_yp", 38, 0, YP, 39, 2)
    a(f"buffer_store_dwordx4 v[{FA}:{FA+3}], v34, s[52:55], s14 offen {spol}")
    a(f"buffer_store_dwordx4 v[{FA+4}:{FA+7}], v34, s[52:55], s14 offen offset:16 {spol}")
    if YG:
        lds_poll("L_yg", 38, 0, YG, 39, 4)
        a("s_mov_b32 s12, 0")
    else:
        a("s_barrier")
    def gather(srd, lbl, snap, load=True, early=False):
      if load:
        a("s_mov_b32 s47, 0x40000")
        lab(lbl)
        a(f"buffer_load_dwordx4 v[8:11], v32, s[{srd}:{srd+3}], s15 offen {gpol}")
        a(f"buffer_load_dwordx4 v[12:15], v33, s[{srd}:{srd+3}], s15 offen {gpol}")
        a("s_waitcnt vmcnt(0)")
        packbits(16, 8, 8, 17)
        a(f"v_xor_b32 v16, v16, v{snap}")
        a("v_cmp_ne_u32 vcc, 0xff, v16")
        a("s_sub_u32 s47, s47, 1"); a("s_cmp_eq_u32 s47, 0"); a(f"s_cbranch_scc1 {lbl}_ok")
        a("s_cmp_eq_u64 vcc, 0")
        if nosnap: a(f"s_branch {lbl}_ok")
        if early:
            a(f"s_cbranch_scc1 {lbl}_ok")
            a("s_cmp_lg_u32 s12, 0"); a(f"s_cbranch_scc1 {lbl}")
            a("s_mov_b32 s12, 1"); a("s_barrier"); a(f"s_branch {lbl}")
        elif gsl:
            a(f"s_cbranch_scc1 {lbl}_ok"); a(f"s_sleep {gsl}"); a(f"s_branch {lbl}")
        else:
            a(f"s_cbranch_scc0 {lbl}")
        lab(lbl + "_ok")
        for k in range(8): a(f"v_and_b32 v{8+k}, -2, v{8+k}")
      for k in range(4): a(f"v_add_f32 v{8+k}, v{8+k}, v{12+k}")
      for ro in (4, 8):
          if ro == 4: nop(1)
          for k in range(4): a(f"v_add_f32_dpp v{8+k}, v{8+k}, v{8+k} row_ror:{ro} row_mask:0xf bank_mask:0xf")
      for k in range(4): a(f"v_mov_b32 v{12+k}, v{8+k}")
      for k in range(4): a(f"v_permlane16_swap_b32 v{8+k}, v{12+k}")
      for k in range(4): a(f"v_add_f32 v{8+k}, v{8+k}, v{12+k}")
      for k in range(4): a(f"v_mov_b32 v{12+k}, v{8+k}")
      for k in range(4): a(f"v_permlane32_swap_b32 v{8+k}, v{12+k}")
      for k in range(4): a(f"v_add_f32 v{8+k}, v{8+k}, v{12+k}")
      a("v_cvt_pk_bf16_f32 v12, v8, v9"); a("v_cvt_pk_bf16_f32 v13, v10, v11")
      a("v_lshlrev_b32 v8, 16, v12"); a("v_and_b32 v9, s43, v12"); a("v_lshlrev_b32 v10, 16, v13"); a("v_and_b32 v11, s43, v13")
    gather(52, "L_gy", 37, early=bool(YG))
    for k in range(4): a(f"v_mul_f32 v{12+k}, 0xbfb8aa3b, v{8+k}")
    for k in range(4): a(f"v_exp_f32 v{12+k}, v{12+k}")
    for k in range(4): a(f"v_add_f32 v{12+k}, 1.0, v{12+k}")
    for k in range(4): a(f"v_rcp_f32 v{12+k}, v{12+k}")
    for k in range(4): a(f"v_mul_f32 v{8+k}, v{8+k}, v{12+k}")
    a("v_cvt_pk_bf16_f32 v12, v8, v9"); a("v_cvt_pk_bf16_f32 v13, v10, v11")
    a("v_lshlrev_b32 v20, 16, v12"); a("v_and_b32 v21, s43, v12"); a("v_lshlrev_b32 v22, 16, v13"); a("v_and_b32 v23, s43, v13")
    if ft:
        a("v_cmp_gt_u32 vcc, 32, v2"); a("v_and_b32 v12, 16, v2"); a("v_cmp_eq_u32 s[12:13], 0, v12")
        nop(1)
        a("v_cndmask_b32 v20, v22, v20, vcc"); a("v_cndmask_b32 v21, v23, v21, vcc")
        a("v_cndmask_b32 v24, v26, v24, vcc"); a("v_cndmask_b32 v25, v27, v25, vcc")
        a("v_cndmask_b32 v20, v21, v20, s[12:13]"); a("v_cndmask_b32 v24, v25, v24, s[12:13]")
        a("v_lshrrev_b32 v12, 5, v2"); a("v_lshl_add_u32 v31, v12, 2, v31"); a("v_bfe_u32 v12, v2, 4, 1"); a("v_lshl_add_u32 v31, v12, 1, v31")
        for k in range(8): a(f"v_bfe_u32 v{40+k}, v36, {k}, 1")
        stamp(3)
        a("s_mov_b32 s47, 0x40000")
        lab("L_gs")
        a(f"buffer_load_dwordx4 v[8:11], v32, s[48:51], s15 offen {gpol}")
        a(f"buffer_load_dwordx4 v[12:15], v33, s[48:51], s15 offen {gpol}")
        a("s_sub_u32 s47, s47, 1"); a("s_cmp_eq_u32 s47, 0"); a("s_cbranch_scc1 L_gs_to")
        a("s_waitcnt vmcnt(1)")
        a("v_xor_b32 v16, v8, v40")
        for k in range(1, 4): a(f"v_bitop3_b32 v16, v16, v{8+k}, v{40+k} bitop3:0x60")
        a("s_waitcnt vmcnt(0)")
        for k in range(4, 8): a(f"v_bitop3_b32 v16, v16, v{8+k}, v{40+k} bitop3:0x60")
        a("v_and_b32 v16, 1, v16")
        a("v_cmp_eq_u32 vcc, 0, v16")
        for k in range(8): a(f"v_and_b32 v{8+k}, -2, v{8+k}")
        if not nosnap: a("s_cbranch_vccnz L_gs")
        lab("L_gs_to")
        a("s_waitcnt vmcnt(0)")
        for k in range(4): a(f"v_add_f32 v{8+k}, v{8+k}, v{12+k}")
        nop(1)
        a("v_permlane32_swap_b32 v8, v10"); a("v_permlane32_swap_b32 v9, v11")
        a("v_add_f32 v8, v8, v10"); a("v_add_f32 v9, v9, v11")
        nop(2)
        a("v_permlane16_swap_b32 v8, v9")
        a("v_add_f32 v8, v8, v9")
        nop(2)
        a("v_add_f32_dpp v8, v8, v8 row_ror:4 row_mask:0xf bank_mask:0xf")
        nop(2)
        a("v_add_f32_dpp v8, v8, v8 row_ror:8 row_mask:0xf bank_mask:0xf")
        a("v_cvt_pk_bf16_f32 v8, 0, v8")
        a("v_mul_f32 v8, v8, v20")
        a("v_cvt_pk_bf16_f32 v8, 0, v8")
        a("v_add_f32 v8, v8, v24")
        a("v_cvt_pk_bf16_f32 v8, v8, v8")
        a("s_mov_b32 exec_lo, 0x000f000f"); a("s_mov_b32 exec_hi, 0x000f000f")
        a("buffer_store_short v8, v31, s[56:59], 0 offen")
    else:
        stamp(3)
        if YG:
            a("s_cmp_lg_u32 s12, 0"); a("s_cbranch_scc1 L_nb"); a("s_barrier"); lab("L_nb")
        if pp:
            PB = [40, 48, 56]
            def pissue(b):
                a(f"buffer_load_dwordx4 v[{b}:{b+3}], v32, s[48:51], s15 offen {gpol}")
                a(f"buffer_load_dwordx4 v[{b+4}:{b+7}], v33, s[48:51], s15 offen {gpol}")
            pissue(PB[0]); a(f"s_sleep {pp}"); pissue(PB[1]); a(f"s_sleep {pp}")
            a("s_mov_b32 s47, 0x20000")
            lab("L_pp")
            for i in range(3):
                pissue(PB[(i + 2) % 3])
                a("s_waitcnt vmcnt(4)")
                packbits(16, PB[i], 8, 17)
                a("v_xor_b32 v16, v16, v36")
                a("v_cmp_ne_u32 vcc, 0xff, v16")
                nop(1)
                a("s_cmp_eq_u64 vcc, 0")
                a(f"s_cbranch_scc1 L_pp{i}")
            a("s_sub_u32 s47, s47, 1"); a("s_cmp_lg_u32 s47, 0"); a("s_cbranch_scc1 L_pp")
            for i in (2, 1, 0):
                lab(f"L_pp{i}")
                for k in range(8): a(f"v_and_b32 v{8+k}, -2, v{PB[i]+k}")
                if i: a("s_branch L_ppd")
            lab("L_ppd")
            gather(48, "L_gs", 36, load=False)
        else:
            gather(48, "L_gs", 36)
        for k in range(4): a(f"v_mul_f32 v{8+k}, v{8+k}, v{20+k}")
        a("v_cvt_pk_bf16_f32 v12, v8, v9"); a("v_cvt_pk_bf16_f32 v13, v10, v11")
        a("v_lshlrev_b32 v8, 16, v12"); a("v_and_b32 v9, s43, v12"); a("v_lshlrev_b32 v10, 16, v13"); a("v_and_b32 v11, s43, v13")
        for k in range(4): a(f"v_add_f32 v{8+k}, v{8+k}, v{24+k}")
        a("v_cvt_pk_bf16_f32 v12, v8, v9"); a("v_cvt_pk_bf16_f32 v13, v10, v11")
        a("s_mov_b64 exec, 15")
        a("buffer_store_dwordx2 v[12:13], v31, s[56:59], 0 offen")
    if diag:
        stamp(7)
        a("s_mov_b64 exec, -1")
        put_stamp(7, 8, 20); put_stamp(3, 32, 20)
    lab("L_done")
    a("s_endpgm")
    if ctl:
        NCK = 62 // CKI
        lab("L_ctl")
        a("s_and_b32 s12, s2, 7"); a("s_lshr_b32 s13, s2, 3")
        a("s_lshl_b32 s46, s12, 12"); a(f"s_add_u32 s46, s46, {TOFF}")
        a("s_add_u32 s28, s26, s46"); a("s_addc_u32 s29, s27, 0"); a("s_mov_b32 s30, 4096")
        a(f"s_add_u32 s32, s26, {TOFF + 0x8000}"); a("s_addc_u32 s33, s27, 0"); a("s_mov_b32 s34, 4096")
        a("s_lshl_b32 s46, s13, 2"); a("v_mov_b32 v7, s46")
        a("s_lshl_b32 s46, s12, 2"); a("v_mov_b32 v6, s46")
        a(f"s_mov_b32 s44, {CKI * 8}")
        a("s_mov_b32 s40, 0")
        a("s_mov_b32 s50, 0"); a("s_mov_b32 s51, 0"); a("s_mov_b32 s56, 0"); a("v_mov_b32 v20, 0")
        a("s_mov_b64 exec, 1")
        lab("L_cl")
        lds_poll("L_cp", 38, 0, "s44", 39, 2)
        a("s_memrealtime s[48:49]")
        a("s_waitcnt lgkmcnt(0)")
        a("v_mov_b32 v8, s48")
        a("buffer_store_dword v8, v7, s[28:31], s40 offen")
        a("s_cmp_eq_u32 s40, 0"); a("s_cbranch_scc1 L_cnext")
        a("s_sub_u32 s41, s40, 128")
        a("s_load_dwordx16 s[64:79], s[28:29], s41")
        a("s_add_u32 s46, s41, 64")
        a("s_load_dwordx16 s[80:95], s[28:29], s46")
        a("s_cmp_eq_u32 s41, 0"); a("s_cbranch_scc1 L_cn2")
        a("s_sub_u32 s46, s41, 128")
        a("s_load_dwordx8 s[4:11], s[32:33], s46")
        lab("L_cn2")
        a("s_mov_b32 s52, 0"); a("s_mov_b32 s53, 0"); a("s_sub_u32 s54, s50, 2000")
        a("s_waitcnt lgkmcnt(0)")
        for t in range(32):
            a(f"s_sub_u32 s55, s{64+t}, s54"); a("s_cmp_lt_u32 s55, 4000")
            a("s_cselect_b32 s55, s55, 2000"); a("s_addc_u32 s53, s53, 0"); a("s_add_u32 s52, s52, s55")
        a("s_sub_u32 s52, s52, 64000"); a("s_max_u32 s53, s53, 1")
        a("v_cvt_f32_i32 v11, s52"); a("v_cvt_f32_u32 v12, s53")
        a("v_rcp_f32 v12, v12")
        a("s_mov_b32 s52, 0"); a("s_mov_b32 s53, 0"); a("s_sub_u32 s54, s56, 2000")
        for t in range(8):
            a(f"s_sub_u32 s55, s{4+t}, s54"); a("s_cmp_lt_u32 s55, 4000")
            a("s_cselect_b32 s55, s55, 2000"); a("s_addc_u32 s53, s53, 0"); a("s_add_u32 s52, s52, s55")
        a("s_sub_u32 s52, s52, 16000"); a("s_max_u32 s53, s53, 1")
        a("v_mul_f32 v11, v11, v12")
        a("v_cvt_f32_i32 v13, s52"); a("v_cvt_f32_u32 v14, s53"); a("v_rcp_f32 v14, v14")
        a("v_cvt_i32_f32 v12, v11"); a("v_add_u32 v12, s50, v12")
        a("v_mul_f32 v13, v13, v14")
        a("v_readfirstlane_b32 s57, v12")
        a("s_cmp_lg_u32 s13, 0"); a("s_cbranch_scc1 L_cnl")
        a("buffer_store_dword v12, v6, s[32:35], s41 offen sc1")
        lab("L_cnl")
        a("s_sub_u32 s46, s48, s50"); a("s_sub_u32 s47, s57, s56"); a("s_cmp_eq_u32 s41, 0"); a("s_cselect_b32 s46, s46, s47")
        a("v_cvt_f32_i32 v14, s46"); a("v_rcp_f32 v14, v14")
        a("s_mov_b32 s56, s57")
        a(f"v_mul_f32 v11, {f2u(-G / 100.0)}, v11"); a(f"v_mul_f32 v13, {f2u(-G2 / 100.0)}, v13"); a("v_add_f32 v11, v11, v13")
        if LT: a(f"v_mul_f32 v15, {f2u(32.0 * CKI * LT * 16.0)}, v14")
        else: a(f"v_mov_b32 v15, {f2u(D * 16.0)}")
        a("v_mul_f32 v11, v11, v14")
        if KI:
            a(f"v_mul_f32 v13, {f2u(KI / 100.0)}, v11"); a("v_add_f32 v20, v20, v13")
            a("v_add_f32 v11, v11, v20")
        a("v_fma_f32 v15, v15, v11, v15")
        a(f"v_max_f32 v15, {f2u(DMIN * 16.0)}, v15"); a(f"v_min_f32 v15, {f2u(DMAX * 16.0)}, v15")
        a("v_cvt_u32_f32 v15, v15")
        a("ds_write_b32 v38, v15 offset:12")
        lab("L_cnext")
        a("s_mov_b32 s50, s48")
        a(f"s_add_u32 s44, s44, {CKI * 8}")
        a("s_add_u32 s40, s40, 128")
        a(f"s_cmp_lt_u32 s40, {NCK * 128}")
        a("s_cbranch_scc1 L_cl")
        a("s_endpgm")
    L.append(".p2align 10")
    lab("L_end")
    L.append('.section .rodata,"a"'); L.append(".p2align 6"); L.append(f".amdhsa_kernel {KN}")
    a(".amdhsa_next_free_vgpr 168"); a(".amdhsa_next_free_sgpr 96"); a(".amdhsa_accum_offset 168")
    a(".amdhsa_group_segment_fixed_size 0"); a(".amdhsa_kernarg_size 96"); a(".amdhsa_user_sgpr_count 2")
    a(".amdhsa_user_sgpr_kernarg_segment_ptr 1"); a(".amdhsa_system_sgpr_workgroup_id_x 1")
    a(".amdhsa_float_denorm_mode_32 3")
    L.append(".end_amdhsa_kernel")
    return "\n".join(L) + "\n"

if __name__ == "__main__":
    for spec in sys.argv[1:]:
        out, _, kvs = spec.partition(":")
        kw = {}
        if kvs:
            for kv in kvs.split(","):
                k, v = kv.split("=")
                kw[k] = int(v) if v.lstrip("-").isdigit() else v.replace("+", " ")
        open(out, "w").write(gen(**kw))
```

```python
import sys, struct
KN = "recurrent_scan__mha_block_cached__geglu_ffn__decode_kernel"
HEADER = open("recurrent_scan__mha_block_cached__geglu_ffn__decode.s.ref").read().split("; Override launch")[0]

XN, QP, SP, ML, CT, OB, HB, SC = 0, 1024, 1024, 3072, 3136, 3328, 4352, 4608
MISC = 4608 + 8192
YOFF = 0x80000
TOFF = 0x100000
STOFF = 0x30000000
LOG2E = 0x3fb8aa3b
SCALE = 0x3db504f3
f2u = lambda x: hex(struct.unpack("<I", struct.pack("<f", x))[0])

def gen(D=20, D1=0, FW=3, WOS=90, WO0=80, WQWIN=8, WOWIN=2, wpol="", diag=0, kvpol="nt", noffn=0, nowo=0, noq=0,
        MID=440, YP=506, prog=0, NSLOT=18, xpol="", gpol="sc1", spol="sc1", snpol="sc1", pfpol="", SNAP=0,
        ctl=1, DMIN=15, DMAX=25, CKI=3, LT=0, G=45, G2=45, pf=1, lprio=3, gsl=0, vpol=None, hitx=0, wide=0, mpf=1, PF0=0, PFW=4, FF0=70, pp=0, YG=0, csl=1, sno=0, KI=0, DE=28, NE=1, nosnap=0, fast=1, csl1=1, bc=1, ft=1, cont=0, HS=3, dual=3):
    L = []
    RING = NSLOT * 8192
    LDS_BYTES = RING + MISC
    assert LDS_BYTES <= 163840
    def a(s): L.append("  " + s)
    def lab(s): L.append(s + ":")
    def nop(n): a(f"s_nop {n-1}")
    def stamp(i):
        if diag: a(f"s_memrealtime s[{60+2*i}:{61+2*i}]")
    def put_stamp(i, off, vt):
        a("s_waitcnt lgkmcnt(0)")
        a("s_lshl_b32 s45, s2, 6"); a(f"s_add_u32 s45, s45, {STOFF}"); a(f"v_mov_b32 v{vt+2}, s45")
        a(f"v_mov_b32 v{vt}, s{60+2*i}"); a(f"v_mov_b32 v{vt+1}, s{61+2*i}")
        a("s_mov_b64 exec, 1")
        a(f"global_store_dwordx2 v{vt+2}, v[{vt}:{vt+1}], s[26:27] offset:{off}")
        a("s_mov_b64 exec, -1")
        nop(2)
    L.append(HEADER.rstrip("\n"))
    L.append(f"; @launch grid=(256,1,1) block=({704 if ctl else 640},1,1) lds={LDS_BYTES}")
    L.append('.amdgcn_target "amdgcn-amd-amdhsa--gfx950"')
    L.append(".text"); L.append(f".globl {KN}"); L.append(".p2align 8"); L.append(f".type {KN},@function"); lab(KN)
    a("s_cmp_ge_u32 s2, 256")
    a("s_cbranch_scc1 L_done")
    a("s_load_dwordx8 s[4:11], s[0:1], 0")
    stamp(0)
    a("v_lshrrev_b32 v1, 6, v0")
    a("v_and_b32 v2, 63, v0")
    a("v_readfirstlane_b32 s3, v1")
    a("v_lshlrev_b32 v1, 4, v2")
    a("s_and_b32 s36, s2, 7")
    a("s_lshl_b32 s36, s36, 2")
    a("s_bfe_u32 s37, s2, 0x20003")
    a("s_add_u32 s36, s36, s37")
    a("s_lshr_b32 s37, s2, 5")
    a("s_cmp_lg_u32 s3, 0")
    a("s_cbranch_scc1 L_notloader")

    if lprio: a(f"s_setprio {lprio}")
    a("s_lshl_b32 s38, s37, 5"); a("s_add_u32 s38, s38, s36"); a("s_lshl_b32 s38, s38, 20")
    a("s_mov_b32 s30, 0x100000"); a("s_mov_b32 s31, 0x20000")
    a("s_mov_b32 s40, 0"); a("s_mov_b32 s41, 0")
    def lds_init():
        a(f"v_mov_b32 v3, {RING+CT}")
        a("v_lshl_add_u32 v4, v2, 2, v3"); a("v_mov_b32 v5, 0")
        a("s_mov_b64 exec, 0x1ff")
        a("ds_write_b32 v4, v5")
        a("s_mov_b64 exec, -1")
        a(f"v_mov_b32 v8, {D * 16}"); a("ds_write_b32 v3, v8 offset:12")
    if not fast: lds_init()
    a("s_mov_b32 m0, 0")
    a("s_waitcnt lgkmcnt(0)")
    a("s_add_u32 s28, s6, s38"); a("s_addc_u32 s29, s7, 0"); a("s_add_u32 s32, s8, s38"); a("s_addc_u32 s33, s9, 0")
    def publish(k):
        a(f"v_add_u32 v5, {k}, v7"); a("ds_write_b32 v3, v5")
    def ld_step(m, Dw, first=False, kvpol=kvpol):
        j = m & 7
        if j == 0 and not (first and m == 0): a("s_mov_b32 m0, s41")
        if j == 4: a("s_add_u32 m0, s41, 4096")
        waited = not (first and m < Dw)
        if waited: a(f"s_waitcnt vmcnt({Dw-1})")
        elif j in (0, 4) and m: nop(1)
        a(f"buffer_load_dwordx4 v1, s[28:31], s40 offen offset:{(j&3)*1024} {kvpol} lds")
        if waited and (m - Dw + 1) % 4 == 0: publish((m - Dw + 1) // 4)
        if j == 3: a("s_add_u32 s40, s40, 4096")
        if j == 7:
            a("s_add_u32 s40, s40, 4096"); a("s_add_u32 s41, s41, 8192")
            a(f"s_cmp_eq_u32 s41, {RING}"); a("s_cselect_b32 s41, 0, s41")
    Dfirst = D1 if D1 else D
    a("v_mov_b32 v7, 0")
    if prog: a("v_mov_b32 v10, 0"); a("v_mov_b32 v11, 0")
    for m in range(32):
        ld_step(m, Dfirst, first=True)
        if m == (Dfirst - 1 if fast else 7):
            if fast:
                lds_init(); a("s_waitcnt lgkmcnt(0)")
            a("s_barrier")
    def fw(w): return (w - NSLOT) % 4
    def fo(w): return (w - NSLOT) // 4 + 1
    a("s_mov_b32 s44, 0")
    a("s_mov_b32 s47, 8")
    a(f"ds_read_b32 v6, v3 offset:{16 + 4 * fw(0)}")
    a("ds_read_b32 v8, v3 offset:12")
    Ds = list(range(DMIN, DMAX + 1)) if ctl else [D]
    def slow(lbl, w, back):
        lab(lbl)
        a("s_sleep 1")
        a(f"ds_read_b32 v6, v3 offset:{16 + 4 * fw(w)}")
        a("s_waitcnt lgkmcnt(0)")
        a("v_readfirstlane_b32 s45, v6")
        a(f"s_sub_i32 s45, s45, {fo(w)}")
        a("s_cmp_ge_i32 s45, s44")
        a(f"s_cbranch_scc0 {lbl}")
        a(f"s_branch {back}")
    lab("L_disp")
    a("v_add_u32 v7, 8, v7")
    a("s_add_u32 s44, s44, 1")
    a("s_cmp_eq_u32 s44, 64")
    a("s_cbranch_scc1 L_drain")
    a("s_cmp_eq_u32 s44, 32")
    a("s_cselect_b32 s28, s32, s28"); a("s_cselect_b32 s29, s33, s29"); a("s_cselect_b32 s40, 0, s40")
    if prog: a("s_memrealtime s[76:77]")
    a("s_waitcnt lgkmcnt(0)")
    a("v_readfirstlane_b32 s45, v6")
    a("v_readfirstlane_b32 s46, v8")
    if prog:
        a("s_mov_b32 m0, s44"); nop(4); a("v_writelane_b32 v10, s76, m0"); a("v_writelane_b32 v11, s46, m0")
    a(f"s_sub_i32 s45, s45, {fo(0)}")
    a("s_cmp_ge_i32 s45, s44")
    a("s_cbranch_scc0 L_lslow_0")
    lab("L_lfree_0")
    if ctl:
        a("s_add_u32 s47, s47, s46"); a("s_lshr_b32 s46, s47, 4"); a("s_and_b32 s47, s47, 15")
        def casc(lst):
            if len(lst) == 1:
                a(f"s_branch L_c{lst[0]}"); return
            mid = len(lst) // 2
            a(f"s_cmp_ge_u32 s46, {lst[mid]}")
            if len(lst) - mid == 1:
                a(f"s_cbranch_scc1 L_c{lst[mid]}")
                casc(lst[:mid])
            else:
                l2 = f"L_k{lst[mid]}_{len(lst)}"
                a(f"s_cbranch_scc1 {l2}")
                casc(lst[:mid]); lab(l2); casc(lst[mid:])
        if vpol is not None:
            a("s_cmp_ge_u32 s44, 32"); a("s_cbranch_scc1 L_vc")
        if DE:
            a(f"s_cmp_ge_u32 s44, {64 - NE}"); a(f"s_cbranch_scc1 L_c{DE}")
        casc(Ds)
        if DE and DE not in Ds: Ds = Ds + [DE]
    if vpol is not None:
        lab("L_vc")
        for w in range(4):
            if w:
                a("s_waitcnt lgkmcnt(0)")
                a("v_readfirstlane_b32 s45, v6")
                a(f"s_sub_i32 s45, s45, {fo(w)}")
                a("s_cmp_ge_i32 s45, s44")
                a(f"s_cbranch_scc0 L_vslow_{w}")
                lab(f"L_vfree_{w}")
            for j in range(8):
                ld_step(8 * w + j, D, kvpol=vpol)
                if j == 4:
                    a(f"ds_read_b32 v6, v3 offset:{16 + 4 * fw((w + 1) & 3)}")
                    if w == 3: a("ds_read_b32 v8, v3 offset:12")
        a("s_branch L_disp")
        for w in range(1, 4): slow(f"L_vslow_{w}", w, f"L_vfree_{w}")
    for Dw in Ds:
        npub = sum(1 for j in range(5, 8) if (j - Dw + 1) % 4 == 0)
        lab(f"L_c{Dw}")
        for w in range(4):
            if w:
                a(f"s_waitcnt lgkmcnt({npub})")
                a("v_readfirstlane_b32 s45, v6")
                a(f"s_sub_i32 s45, s45, {fo(w)}")
                a("s_cmp_ge_i32 s45, s44")
                a(f"s_cbranch_scc0 L_lslow{Dw}_{w}")
                lab(f"L_lfree{Dw}_{w}")
            for j in range(8):
                ld_step(8 * w + j, Dw)
                if j == 4:
                    a(f"ds_read_b32 v6, v3 offset:{16 + 4 * fw((w + 1) & 3)}")
                    if w == 3: a("ds_read_b32 v8, v3 offset:12")
        a("s_branch L_disp")
    slow("L_lslow_0", 0, "L_lfree_0")
    for Dw in Ds:
        for w in range(1, 4): slow(f"L_lslow{Dw}_{w}", w, f"L_lfree{Dw}_{w}")
    lab("L_drain")
    for r in range((max(Ds) - 1) // 4 * 4, -1, -4):
        a(f"s_waitcnt vmcnt({r})"); publish(-(r // 4))
    if diag:
        stamp(2)
        a("s_load_dwordx2 s[26:27], s[0:1], 88")
        if prog:
            a("s_waitcnt lgkmcnt(0)")
            a("v_writelane_b32 v10, s64, 0")
            a("s_lshl_b32 s45, s2, 8"); a(f"s_add_u32 s45, s45, {STOFF + 0x4000}"); a("v_lshrrev_b32 v9, 2, v1"); a("v_add_u32 v9, s45, v9")
            a("global_store_dword v9, v10, s[26:27]")
            a("v_add_u32 v9, 0x10000, v9")
            a("global_store_dword v9, v11, s[26:27]")
        put_stamp(0, 0, 12); put_stamp(2, 24, 12)
    a("s_endpgm")

    def wave_allsum(r, t):
        for ro in (8, 4, 2, 1):
            nop(2)
            a(f"v_add_f32_dpp v{r}, v{r}, v{r} row_ror:{ro} row_mask:0xf bank_mask:0xf")
        a(f"v_mov_b32 v{t}, v{r}"); nop(2)
        a(f"v_permlane16_swap_b32 v{r}, v{t}"); a(f"v_add_f32 v{r}, v{r}, v{t}"); a(f"v_mov_b32 v{t}, v{r}"); nop(2)
        a(f"v_permlane32_swap_b32 v{r}, v{t}"); a(f"v_add_f32 v{r}, v{r}, v{t}")
    def layernorm(hook):
        for k in range(4):
            a(f"v_lshlrev_b32 v{12+2*k}, 16, v{8+k}"); a(f"v_and_b32 v{13+2*k}, s43, v{8+k}")
        a("v_add_f32 v20, v12, v13"); a("v_add_f32 v21, v14, v15"); a("v_add_f32 v22, v16, v17"); a("v_add_f32 v23, v18, v19")
        a("v_add_f32 v20, v20, v21"); a("v_add_f32 v22, v22, v23"); a("v_add_f32 v20, v20, v22")
        wave_allsum(20, 21); hook()
        a("v_mul_f32 v20, 0x3b000000, v20")
        a("v_mov_b32 v22, 0")
        for k in range(8):
            a(f"v_sub_f32 v21, v{12+k}, v20"); a("v_fmac_f32 v22, v21, v21")
        hook(); wave_allsum(22, 21); hook()
        a("v_mul_f32 v22, 0x3b000000, v22")
        a("v_cvt_pk_bf16_f32 v20, v20, v22")
        a("v_and_b32 v22, s43, v20"); a("v_lshlrev_b32 v20, 16, v20")
        a("v_add_f32 v22, 0x3727c5ac, v22")
        a("v_cvt_pk_bf16_f32 v22, v22, v22"); a("v_and_b32 v22, s43, v22")
        a("v_sqrt_f32 v22, v22"); nop(1)
        a("v_cvt_pk_bf16_f32 v22, v22, v22"); a("v_and_b32 v22, s43, v22")
        a("v_rcp_f32 v22, v22"); hook()
        for k in range(8): a(f"v_sub_f32 v{12+k}, v{12+k}, v20")
        for k in range(4): a(f"v_cvt_pk_bf16_f32 v{8+k}, v{12+2*k}, v{13+2*k}")
        for k in range(4):
            a(f"v_lshlrev_b32 v{12+2*k}, 16, v{8+k}"); a(f"v_and_b32 v{13+2*k}, s43, v{8+k}")
        for k in range(8): a(f"v_mul_f32 v{12+k}, v22, v{12+k}")
        for k in range(4): a(f"v_cvt_pk_bf16_f32 v{8+k}, v{12+2*k}, v{13+2*k}")
    def forms(pair, odd, lo, hi):
        if not odd:
            a(f"v_and_b32 v{lo}, 0xffff, v{pair}"); a(f"v_lshlrev_b32 v{hi}, 16, v{pair}")
        else:
            a(f"v_lshrrev_b32 v{lo}, 16, v{pair}"); a(f"v_and_b32 v{hi}, s43, v{pair}")
    def mac8(acc, w, lo, hi):
        for d in range(4):
            a(f"v_dot2c_f32_bf16 v{acc+2*d}, v{w+d}, v{lo}")
            a(f"v_dot2c_f32_bf16 v{acc+2*d+1}, v{w+d}, v{hi}")
    def lds_poll(lbl, addr, off, tgt, vt, sleep):
        lab(lbl)
        a(f"ds_read_b32 v{vt}, v{addr} offset:{off}")
        a("s_waitcnt lgkmcnt(0)")
        a(f"v_readfirstlane_b32 s45, v{vt}")
        a(f"s_cmp_ge_u32 s45, {tgt}")
        a(f"s_cbranch_scc1 {lbl}_ok")
        if sleep: a(f"s_sleep {sleep}")
        a(f"s_branch {lbl}")
        lab(lbl + "_ok")
    def packbits(dst, src, n, t):
        a(f"v_and_b32 v{dst}, 1, v{src}")
        for k in range(1, n):
            a(f"v_and_b32 v{t}, 1, v{src+k}"); a(f"v_lshl_or_b32 v{dst}, v{t}, {k}, v{dst}")
    WREG = 40

    lab("L_notloader")
    a("v_lshrrev_b32 v3, 4, v2")
    a("v_and_b32 v4, 15, v2")
    a("s_mov_b32 s43, 0xffff0000")
    a("s_mov_b32 s42, " + hex(LOG2E))
    a("s_lshl_b32 s39, s37, 10")
    a("s_mov_b32 s30, 1024"); a("s_mov_b32 s31, 0x20000"); a("s_mov_b32 s35, 0x20000")
    a("s_cmp_ge_u32 s3, 5")
    a("s_cbranch_scc1 L_helper")

    a("s_sub_u32 s3, s3, 1")
    a("s_lshl_b32 s38, s3, 20"); a("s_lshl_b32 s46, s36, 8"); a("s_add_u32 s38, s38, s46")
    a("v_lshlrev_b32 v5, 18, v3"); a("v_lshl_add_u32 v5, v4, 4, v5"); a("v_add_u32 v5, s38, v5")
    a("s_mov_b32 s34, 0x400000")
    a("s_lshl_b32 s40, s37, 15")
    a("s_waitcnt lgkmcnt(0)")
    a("s_add_u32 s28, s4, s39"); a("s_addc_u32 s29, s5, 0")
    a("s_mov_b32 s32, s10"); a("s_mov_b32 s33, s11")
    a(f"buffer_load_dwordx4 v[8:11], v1, s[28:31], 0 offen {xpol}")
    wq = {"issued": 0}
    def issue_wq(window=True):
        i = wq["issued"]
        if i >= 32 or noq: return
        if window: a(f"s_waitcnt vmcnt({WQWIN-1})")
        r = WREG + i * 4
        a(f"buffer_load_dwordx4 v[{r}:{r+3}], v5, s[32:35], s40 offen {wpol}")
        a("s_add_u32 s40, s40, 0x2000")
        if i % 4 == 3: a("s_and_b32 s40, s40, 0x3ffff")
        wq["issued"] += 1
    for i in range(WQWIN): issue_wq(False)
    a("s_barrier")
    a(f"s_waitcnt vmcnt({WQWIN if not noq else 0})")
    layernorm(issue_wq)
    a(f"s_mov_b32 s45, {RING+XN}")
    a("v_add_u32 v6, s45, v1")
    a("ds_write_b128 v6, v[8:11]")
    issue_wq()
    a("s_lshl_b32 s46, s3, 8"); a("s_add_u32 s46, s46, s45")
    a("v_lshlrev_b32 v7, 6, v3"); a("v_add_u32 v7, s46, v7")
    a("s_waitcnt lgkmcnt(0)")
    for k in range(8):
        a(f"s_add_u32 s46, s37, {k}"); a("s_and_b32 s46, s46, 7"); a("s_lshl_b32 s46, s46, 3")
        a("v_add_u32 v12, s46, v7")
        a(f"ds_read_b64 v[{16+2*k}:{17+2*k}], v12")
    for k in range(8): a(f"v_mov_b32 v{32+k}, 0")
    a("s_waitcnt lgkmcnt(0)")
    for i in range(32 if not noq else 0):
        forms(16 + i // 2, i & 1, 12, 13)
        if wq["issued"] < 32: issue_wq()
        else: a(f"s_waitcnt vmcnt({31 - i})")
        mac8(32, WREG + i * 4, 12, 13)
    a("v_lshlrev_b32 v7, 5, v4")
    a(f"v_add_u32 v7, {RING}, v7")
    a("v_lshl_add_u32 v6, v3, 2, v7")
    a("s_lshl_b32 s46, s3, 9"); a("v_add_u32 v6, s46, v6")
    for k in range(4): a(f"v_permlane16_swap_b32 v{32+2*k}, v{33+2*k}")
    for k in range(4): a(f"v_add_f32 v{32+2*k}, v{32+2*k}, v{33+2*k}")
    a("v_mov_b32 v39, 1")
    a("v_permlane32_swap_b32 v32, v34"); a("v_permlane32_swap_b32 v36, v38")
    a("v_add_f32 v32, v32, v34"); a("v_add_f32 v36, v36, v38")
    a(f"ds_write_b32 v6, v32 offset:{QP}"); a(f"ds_write_b32 v6, v36 offset:{QP+16}")
    a(f"v_mov_b32 v38, {RING+CT}")
    a("s_waitcnt lgkmcnt(0)")
    a("s_mov_b64 exec, 1")
    a("ds_add_u32 v38, v39 offset:4")
    a("s_mov_b64 exec, -1")
    lds_poll("L_qw", 38, 4, 4, 39, 1)
    for w in range(4):
        a(f"ds_read_b128 v[{40+w*8}:{43+w*8}], v7 offset:{QP+w*512}")
        a(f"ds_read_b128 v[{44+w*8}:{47+w*8}], v7 offset:{QP+w*512+16}")
    a("s_mov_b32 s41, " + hex(SCALE))
    a("v_mov_b32 v16, 0xff800000")
    a("s_lshl_b32 s44, s3, 13"); a("v_add_u32 v36, s44, v1")
    a("s_lshl_b32 s46, s3, 2"); a("v_add_u32 v37, s46, v38")
    a("s_lshl_b32 s47, s3, 1"); a("s_add_u32 s47, s47, 1")
    a("v_mov_b32 v27, 0")
    a("s_lshl_b32 s40, s3, 11"); a(f"s_add_u32 s40, s40, {RING+SC}")
    a("v_lshlrev_b32 v17, 4, v3"); a("v_add_u32 v17, s40, v17")
    a("v_and_b32 v5, 14, v4"); a("v_add_u32 v5, v5, v17")
    a("v_and_b32 v26, 2, v2"); a("v_cmp_ne_u32 vcc, 0, v26")
    a("s_waitcnt lgkmcnt(4)")
    for k in range(8): a(f"v_add_f32 v{40+k}, v{40+k}, v{48+k}")
    a("s_waitcnt lgkmcnt(0)")
    for k in range(8): a(f"v_add_f32 v{56+k}, v{56+k}, v{64+k}")
    for k in range(8): a(f"v_add_f32 v{40+k}, v{40+k}, v{56+k}")
    for k in range(4): a(f"v_cvt_pk_bf16_f32 v{72+k}, v{40+2*k}, v{41+2*k}")
    stamp(1)
    Q = 72; DR = 40
    S = list(range(18, 26))
    def half2(lbl):
        a("s_cmp_gt_u32 s45, s47")
        a(f"s_cbranch_scc1 {lbl}_ok")
        a("s_add_u32 s46, s47, 1")
        lds_poll(lbl, 38, 0, "s46", 39, csl)
        for j in range(4, 8): a(f"ds_read_b128 v[{DR+4*j}:{DR+4*j+3}], v36 offset:{j*1024}")
        a("v_add_u32 v27, 1, v27")
        a("s_add_u32 s44, s44, 0x8000"); a(f"s_sub_u32 s46, s44, {RING}"); a("s_cselect_b32 s44, s44, s46")
        a("v_add_u32 v36, s44, v1")
        a("s_add_u32 s47, s47, 8")
    lab("L_kloop")
    lds_poll("L_pk", 38, 0, "s47", 39, csl1)
    for j in range(4): a(f"ds_read_b128 v[{DR+4*j}:{DR+4*j+3}], v36 offset:{j*1024}")
    for j in range(8): a(f"v_mov_b32 v{S[j]}, 0")
    for j in range(4):
        a(f"s_waitcnt lgkmcnt({3-j})")
        for d in range(4): a(f"v_dot2c_f32_bf16 v{S[j]}, v{DR+4*j+d}, v{Q+d}")
    half2("L_pk2")
    for j in range(4, 8):
        a(f"s_waitcnt lgkmcnt({7-j})")
        if j == 7: a("ds_write_b32 v37, v27 offset:16")
        for d in range(4): a(f"v_dot2c_f32_bf16 v{S[j]}, v{DR+4*j+d}, v{Q+d}")
    for j in range(4): a(f"v_add_f32_dpp v{S[j]}, v{S[j]}, v{S[j]} row_ror:8 row_mask:0xf bank_mask:0x3")
    for j in range(4): a(f"v_add_f32_dpp v{S[j]}, v{S[j+4]}, v{S[j+4]} row_ror:8 row_mask:0xf bank_mask:0xc")
    for j in range(2): a(f"v_add_f32_dpp v{S[j]}, v{S[j]}, v{S[j]} row_ror:12 row_mask:0xf bank_mask:0x5")
    nop(1)
    for j in range(2): a(f"v_add_f32_dpp v{S[j]}, v{S[j+2]}, v{S[j+2]} row_ror:4 row_mask:0xf bank_mask:0xa")
    nop(1)
    for j in range(2): a(f"v_add_f32_dpp v{S[j]}, v{S[j]}, v{S[j]} quad_perm:[2,3,0,1] row_mask:0xf bank_mask:0xf")
    a(f"v_cndmask_b32 v{S[2]}, v{S[0]}, v{S[1]}, vcc")
    nop(2)
    a(f"v_add_f32_dpp v{S[2]}, v{S[2]}, v{S[2]} quad_perm:[1,0,3,2] row_mask:0xf bank_mask:0xf")
    a(f"v_cvt_pk_bf16_f32 v{S[2]}, 0, v{S[2]}")
    a(f"v_mul_f32 v{S[2]}, s41, v{S[2]}")
    a(f"v_cvt_pk_bf16_f32 v{S[2]}, v{S[2]}, v{S[2]}")
    a(f"ds_write_b16 v5, v{S[2]}")
    a(f"v_and_b32 v{S[3]}, s43, v{S[2]}")
    a(f"v_max_f32 v16, v16, v{S[3]}")
    a("v_add_u32 v5, 64, v5")
    a("s_cmp_lt_u32 s47, 256")
    a("s_cbranch_scc1 L_kloop")
    a("v_lshlrev_b32 v5, 1, v1"); a("v_add_u32 v5, s40, v5")
    a("s_waitcnt lgkmcnt(0)")
    a("ds_read_b128 v[40:43], v5"); a("ds_read_b128 v[44:47], v5 offset:16")
    for ro in (8, 4, 2, 1):
        a(f"v_max_f32_dpp v16, v16, v16 row_ror:{ro} row_mask:0xf bank_mask:0xf"); nop(2)
    a("v_mov_b32 v18, v16"); nop(2)
    a("v_permlane16_swap_b32 v16, v18"); a("v_max_f32 v16, v16, v18"); a("v_mov_b32 v18, v16"); nop(2)
    a("v_permlane32_swap_b32 v16, v18"); a("v_max_f32 v16, v16, v18")
    a("v_mul_f32 v18, s42, v16")
    a("s_waitcnt lgkmcnt(0)")
    for k in range(8):
        a(f"v_lshlrev_b32 v{48+2*k}, 16, v{40+k}"); a(f"v_and_b32 v{49+2*k}, s43, v{40+k}")
    for k in range(16): a(f"v_fma_f32 v{48+k}, v{48+k}, s42, -v18")
    for k in range(16): a(f"v_exp_f32 v{48+k}, v{48+k}")
    a("v_add_f32 v19, v48, v49"); a("v_add_f32 v20, v50, v51")
    for k in range(4, 16, 2):
        a(f"v_add_f32 v19, v19, v{48+k}"); a(f"v_add_f32 v20, v20, v{49+k}")
    a("v_add_f32 v19, v19, v20")
    wave_allsum(19, 20)
    a(f"v_subrev_u32 v21, {CT-ML}, v37")
    a("ds_write_b32 v21, v16"); a("ds_write_b32 v21, v19 offset:16")
    a("v_mov_b32 v39, 1")
    a("s_waitcnt lgkmcnt(0)")
    a("s_mov_b64 exec, 1")
    a("ds_add_u32 v38, v39 offset:8")
    a("s_mov_b64 exec, -1")
    lds_poll("L_mw", 38, 8, 4, 39, 1)
    a(f"v_subrev_u32 v21, {CT-ML}, v38")
    a("ds_read_b128 v[8:11], v21"); a("ds_read_b128 v[12:15], v21 offset:16")
    a("s_waitcnt lgkmcnt(1)")
    a("v_max3_f32 v20, v8, v9, v10"); a("v_max_f32 v20, v20, v11")
    for w in range(4): a(f"v_sub_f32 v{8+w}, v{8+w}, v20")
    a("v_sub_f32 v16, v16, v20")
    for w in range(4): a(f"v_mul_f32 v{8+w}, s42, v{8+w}")
    a("v_mul_f32 v16, s42, v16")
    for w in range(4): a(f"v_exp_f32 v{8+w}, v{8+w}")
    a("v_exp_f32 v16, v16")
    a("s_waitcnt lgkmcnt(0)")
    a("v_mul_f32 v20, v8, v12"); a("v_fmac_f32 v20, v9, v13"); a("v_fmac_f32 v20, v10, v14"); a("v_fmac_f32 v20, v11, v15")
    a("v_rcp_f32 v20, v20"); nop(1)
    a("v_mul_f32 v16, v16, v20")
    for k in range(16): a(f"v_mul_f32 v{48+k}, v16, v{48+k}")
    for k in range(8): a(f"v_cvt_pk_bf16_f32 v{40+k}, v{48+2*k}, v{49+2*k}")
    a("ds_write_b128 v5, v[40:43]"); a("ds_write_b128 v5, v[44:47] offset:16")
    for k in range(8): a(f"v_mov_b32 v{8+k}, 0")
    a("s_waitcnt lgkmcnt(0)")
    lab("L_vloop")
    a("ds_read_b128 v[28:31], v17")
    a("v_add_u32 v17, 64, v17")
    lds_poll("L_pv", 38, 0, "s47", 39, csl1)
    for j in range(4): a(f"ds_read_b128 v[{DR+4*j}:{DR+4*j+3}], v36 offset:{j*1024}")
    for j in range(8): forms(28 + j // 2, j & 1, 76 + 2 * j, 77 + 2 * j)
    for j in range(4):
        a(f"s_waitcnt lgkmcnt({3-j})")
        mac8(8, DR + 4 * j, 76 + 2 * j, 77 + 2 * j)
    half2("L_pv2")
    for j in range(4, 8):
        a(f"s_waitcnt lgkmcnt({7-j})")
        if j == 7: a("ds_write_b32 v37, v27 offset:16")
        mac8(8, DR + 4 * j, 76 + 2 * j, 77 + 2 * j)
    a("s_cmp_lt_u32 s47, 512")
    a("s_cbranch_scc1 L_vloop")
    nop(2)
    for k in range(4): a(f"v_permlane16_swap_b32 v{8+2*k}, v{9+2*k}")
    for k in range(4): a(f"v_add_f32 v{8+2*k}, v{8+2*k}, v{9+2*k}")
    nop(1)
    a("v_permlane32_swap_b32 v8, v10"); a("v_permlane32_swap_b32 v12, v14")
    a("v_add_f32 v8, v8, v10"); a("v_add_f32 v12, v12, v14")
    a(f"ds_write_b32 v6, v8 offset:{SP}"); a(f"ds_write_b32 v6, v12 offset:{SP+16}")
    a("v_mov_b32 v39, 1")
    a("s_mov_b64 exec, 1")
    a("ds_add_u32 v38, v39 offset:32")
    if diag:
        a("s_mov_b64 exec, -1")
        a("s_cmp_lg_u32 s3, 0"); a("s_cbranch_scc1 L_done")
        a("s_load_dwordx2 s[26:27], s[0:1], 88")
        put_stamp(1, 16, 8)
    a("s_endpgm")

    lab("L_helper")
    a("s_sub_u32 s3, s3, 5")
    if pf:
        a("s_cmp_lg_u32 s3, 2"); a("s_cbranch_scc1 L_nopf")
        a("s_getpc_b64 s[46:47]")
        lab("L_pc")
        a(f"s_sub_u32 s46, s46, L_pc-{KN}"); a("s_subb_u32 s47, s47, 0")
        a("s_lshr_b32 s45, s2, 3"); a("s_min_u32 s45, s45, (L_end-" + KN + ")/1024-1"); a("s_lshl_b32 s45, s45, 10")
        a("v_add_u32 v6, s45, v1")
        a(f"global_load_dwordx4 v[8:11], v6, s[46:47] {pfpol}")
        lab("L_nopf")
    a("s_load_dwordx2 s[12:13], s[0:1], 32")
    a("s_load_dwordx8 s[16:23], s[0:1], 48")
    a("s_load_dwordx4 s[24:27], s[0:1], 80")
    a(f"v_mov_b32 v38, {RING+CT}")
    a("s_barrier")
    a("s_waitcnt lgkmcnt(0)")
    a("s_lshl_b32 s38, s37, 16")
    a("s_add_u32 s48, s26, s38"); a("s_addc_u32 s49, s27, 0"); a("s_mov_b32 s50, 0x10000"); a("s_mov_b32 s51, 0x20000")
    a("s_cmp_ge_u32 s3, 4"); a("s_cbranch_scc1 L_notwo")

    a("v_lshlrev_b32 v34, 5, v4"); a("v_lshrrev_b32 v7, 1, v3"); a("v_lshl_add_u32 v34, v7, 4, v34")
    if cont: a("v_lshlrev_b32 v34, 4, v4"); a("v_lshl_add_u32 v34, v7, 8, v34")
    a("s_lshl_b32 s14, s3, 9"); a("s_lshl_b32 s46, s36, 11"); a("s_add_u32 s14, s14, s46")
    a("s_mov_b32 s32, s12"); a("s_mov_b32 s33, s13"); a("s_mov_b32 s34, 0x400000")
    a("s_lshl_b32 s46, s36, 17"); a("s_lshl_b32 s47, s3, 8"); a("s_add_u32 s46, s46, s47")
    a("v_lshlrev_b32 v5, 15, v3"); a("v_lshl_add_u32 v5, v4, 4, v5"); a("v_add_u32 v5, s46, v5")
    a("s_mov_b32 s40, 0"); a("s_mov_b32 s46, 0x05040100"); a("s_mov_b32 s47, 0x07060302")
    if mpf:
        a("s_cmp_eq_u32 s3, 1"); a("s_cselect_b32 s28, s18, s16"); a("s_cselect_b32 s29, s19, s17")
        a("s_cmp_eq_u32 s3, 2"); a("s_cselect_b32 s28, s20, s28"); a("s_cselect_b32 s29, s21, s29")
        a("s_cmp_eq_u32 s3, 3"); a("s_cselect_b32 s30, 0, 0x1c0000")
        a("s_mul_i32 s41, s2, 7168")
        a("s_lshl_b32 s44, s2, 14"); a("s_lshl_b32 s45, s3, 12"); a("s_add_u32 s15, s44, s45")
        lds_poll("L_pf0", 38, 0, PF0, 39, 8)
        for i in range(11):
            if i >= PFW: a(f"s_waitcnt vmcnt({PFW - 1})")
            r = WREG + 4 * i
            if i < 7:
                a(f"buffer_load_dwordx4 v[{r}:{r+3}], v1, s[28:31], s41 offen offset:{(i % 4) * 1024}")
                if i == 3: a("s_add_u32 s41, s41, 4096")
            else:
                a(f"buffer_load_dwordx4 v[{r}:{r+3}], v1, s[32:35], s15 offen offset:{(i - 7) * 1024}")
    a(f"s_mul_i32 s44, s3, {WOS}"); a(f"s_add_u32 s44, s44, {WO0}")
    lds_poll("L_wos", 38, 0, "s44", 39, 32)
    a(f"buffer_load_dwordx4 v[8:11], v34, s[48:51], s14 offen {snpol}")
    a("s_waitcnt vmcnt(0)")
    packbits(35, 8, 4, 20)
    a("v_xor_b32 v35, 15, v35")
    def issue_o(i):
        r = WREG + i * 4
        a(f"buffer_load_dwordx4 v[{r}:{r+3}], v5, s[32:35], s40 offen offset:{(i%4)*1024} {wpol}")
        if i % 4 == 3: a(f"s_add_u32 s40, s40, {0 if hitx else 4096}")
    for i in range(WOWIN if not nowo else 0): issue_o(i)
    for i in range(32 if not nowo else 0):
        a(f"s_waitcnt vmcnt({min(WOWIN - 1, 31 - i)})")
        if i + WOWIN < 32: issue_o(i + WOWIN)
        if i & 1:
            A = WREG + 8 * (i // 2); B = A + 4
            for d in range(4):
                a(f"v_perm_b32 v12, v{B+d}, v{A+d}, s46")
                a(f"v_perm_b32 v{B+d}, v{B+d}, v{A+d}, s47")
                a(f"v_mov_b32 v{A+d}, v12")
    a("v_lshrrev_b32 v7, 1, v1"); a(f"v_add_u32 v7, {RING}, v7")
    a("s_lshl_b32 s45, s3, 8"); a(f"s_add_u32 s45, s45, {RING+OB}")
    a("v_lshrrev_b32 v4, 2, v1"); a("v_add_u32 v4, s45, v4")
    a("v_lshlrev_b32 v3, 6, v3"); a("v_add_u32 v3, s45, v3")
    for k in range(4): a(f"v_bfe_u32 v{k if k < 3 else 5}, v35, {k}, 1".replace("v0,", "v0,"))
    TB = [0, 1, 2, 5]
    for k in range(8): a(f"v_mov_b32 v{8+k}, 0")
    stamp(5)
    lds_poll("L_hw", 38, 0, 500, 39, 8)
    lds_poll("L_hz", 38, 32, 5, 39, 0)
    for w in range(4): a(f"ds_read_b64 v[{16+2*w}:{17+2*w}], v7 offset:{SP+w*512}")
    a("s_waitcnt lgkmcnt(2)")
    a("v_add_f32 v16, v16, v18"); a("v_add_f32 v17, v17, v19")
    a("s_waitcnt lgkmcnt(0)")
    a("v_add_f32 v20, v20, v22"); a("v_add_f32 v21, v21, v23")
    a("v_add_f32 v16, v16, v20"); a("v_add_f32 v17, v17, v21")
    a("v_cvt_pk_bf16_f32 v25, v16, v17")
    if bc:
        nop(2)
        for k in range(16):
            A = WREG + 8 * k; B = A + 4
            for d in range(4):
                a(f"v_dot2c_f32_bf16_dpp v{8+2*d}, v25, v{A+d} row_newbcast:{k} row_mask:0xf bank_mask:0xf")
                a(f"v_dot2c_f32_bf16_dpp v{9+2*d}, v25, v{B+d} row_newbcast:{k} row_mask:0xf bank_mask:0xf")
    else:
        a("ds_write_b32 v4, v25")
        a("s_waitcnt lgkmcnt(0)")
        for k in range(4): a(f"ds_read_b128 v[{16+4*k}:{19+4*k}], v3 offset:{16*k}")
        for k in range(16):
            if k % 4 == 0: a(f"s_waitcnt lgkmcnt({3-k//4})")
            A = WREG + 8 * k; B = A + 4
            for d in range(4):
                a(f"v_dot2c_f32_bf16 v{8+2*d}, v{A+d}, v{16+k}")
                a(f"v_dot2c_f32_bf16 v{9+2*d}, v{B+d}, v{16+k}")
    nop(3)
    for k in range(4): a(f"v_permlane32_swap_b32 v{8+k}, v{12+k}")
    for k in range(4): a(f"v_add_f32 v{8+k}, v{8+k}, v{12+k}")
    for k in range(4): a(f"v_mov_b32 v{12+k}, v{8+k}")
    for k in range(4): a(f"v_permlane16_swap_b32 v{8+k}, v{12+k}")
    for k in range(4): a(f"v_add_f32 v{8+k}, v{8+k}, v{12+k}")
    for k in range(4): a(f"v_and_or_b32 v{20+k}, v{8+k}, -2, v{TB[k]}")
    a("s_mov_b32 exec_lo, 0xffff"); a("s_mov_b32 exec_hi, 0xffff")
    a(f"buffer_store_dwordx4 v[20:23], v34, s[48:51], s14 offen {spol}")
    if diag:
        a("s_mov_b64 exec, -1")
        a("s_cmp_lg_u32 s3, 3"); a("s_cbranch_scc1 L_done")
        stamp(6); put_stamp(5, 40, 24); put_stamp(6, 48, 24)
    a("s_endpgm")

    lab("L_notwo")
    if ctl:
        a("s_cmp_eq_u32 s3, 5"); a("s_cbranch_scc1 L_ctl")
    a(f"s_add_u32 s52, s48, {YOFF}"); a("s_addc_u32 s53, s49, 0"); a(f"s_mov_b32 s54, {28*2048}"); a("s_mov_b32 s55, 0x20000")
    a("s_add_u32 s28, s4, s39"); a("s_addc_u32 s29, s5, 0")
    a("s_add_u32 s56, s22, s39"); a("s_addc_u32 s57, s23, 0"); a("s_mov_b32 s58, 1024"); a("s_mov_b32 s59, 0x20000")
    a("v_lshrrev_b32 v32, 2, v2"); a("v_lshlrev_b32 v32, 11, v32"); a("v_and_b32 v33, 48, v1"); a("v_add_u32 v32, v32, v33")
    a("v_add_u32 v33, 0x8000, v32")
    a("v_lshlrev_b32 v34, 1, v1")
    a("s_lshl_b32 s14, s36, 11"); a("s_lshl_b32 s15, s36, 6")
    a("v_lshrrev_b32 v31, 1, v1"); a("v_and_b32 v31, 24, v31"); a("s_lshl_b32 s46, s36, 5"); a("v_add_u32 v31, s46, v31")
    def snap_gather():
        if nosnap:
            a("s_lshl_b32 s46, s37, 5"); a("v_mov_b32 v30, s46"); a("v_mov_b32 v29, 1")
            a("s_mov_b64 exec, 1"); a("global_atomic_add v30, v29, s[24:25] sc1"); a("s_mov_b64 exec, -1")
            return
        a(f"buffer_load_dwordx4 v[8:11], v32, s[48:51], s15 offen {snpol}")
        a(f"buffer_load_dwordx4 v[12:15], v33, s[48:51], s15 offen {snpol}")
        a(f"buffer_load_dwordx4 v[16:19], v32, s[52:55], s15 offen {snpol}")
        a(f"buffer_load_dwordx4 v[20:23], v33, s[52:55], s15 offen {snpol}")
        a("s_lshl_b32 s46, s37, 5"); a("v_mov_b32 v30, s46"); a("v_mov_b32 v29, 1")
        a("v_cmp_le_u32 vcc, 48, v2")
        a("s_waitcnt vmcnt(0)")
        a("s_mov_b64 exec, 1")
        a("global_atomic_add v30, v29, s[24:25] sc1")
        a("s_mov_b64 exec, -1")
        packbits(36, 8, 8, 24)
        packbits(37, 16, 8, 24)
        a("v_mov_b32 v24, 0xf0"); a("v_cndmask_b32 v24, 0, v24, vcc"); a("v_or_b32 v37, v37, v24")
    def snap_own():
        a(f"buffer_load_dwordx4 v[8:11], v34, s[52:55], s14 offen {snpol}")
        a(f"buffer_load_dwordx4 v[12:15], v34, s[52:55], s14 offen offset:16 {snpol}")
        a(f"buffer_load_dwordx2 v[26:27], v31, s[28:31], 0 offen {xpol}")
        if sno:
            a(f"buffer_load_dwordx4 v[16:19], v1, s[48:51], s14 offen {snpol}")
            a(f"buffer_load_dwordx4 v[20:23], v1, s[48:51], s14 offen offset:1024 {snpol}")
        a("s_waitcnt vmcnt(0)")
        packbits(35, 8, 8, 24)
        a("v_xor_b32 v35, 0xff, v35")
    if sno:
        snap_own()
        lds_poll("L_hq", 38, 4, 4, 39, 8)
        if SNAP: lds_poll("L_sw", 38, 0, SNAP, 39, 8)
        snap_gather()
    else:
        if SNAP: lds_poll("L_sw", 38, 0, SNAP, 39, 8)
        snap_gather()
        lds_poll("L_hq", 38, 4, 4, 39, 8)
        snap_own()
    a("s_cmp_ge_u32 s36, 28"); a("s_cbranch_scc1 L_noffn")
    if FF0: lds_poll("L_ff0", 38, 0, FF0, 39, 16)
    FA = 40; FREG = 56
    if not noffn:
        a("s_mov_b32 s28, s16"); a("s_mov_b32 s29, s17"); a("s_mov_b32 s30, 0x1c0000")
        a("s_mov_b32 s32, s18"); a("s_mov_b32 s33, s19"); a("s_mov_b32 s34, 0x1c0000")
        a("v_lshrrev_b32 v6, 3, v2"); a("v_and_b32 v7, 7, v2")
        a("s_mov_b32 s46, 229376"); a("v_mul_lo_u32 v8, v6, s46")
        a("v_lshl_add_u32 v8, v7, 4, v8"); a("s_lshl_b32 s46, s36, 7"); a("v_add_u32 v8, s46, v8")
        if wide:
            a("s_mov_b32 s46, 229376"); a("v_mul_lo_u32 v8, v3, s46"); a("v_lshl_add_u32 v8, v4, 4, v8")
            a("s_lshr_b32 s46, s36, 1"); a("s_lshl_b32 s46, s46, 8"); a("v_add_u32 v8, s46, v8")
            a("s_and_b32 s46, s36, 1"); a("s_mul_i32 s46, s46, 917504"); a("v_add_u32 v8, s46, v8")
        a("v_lshlrev_b32 v9, 7, v6"); a(f"v_add_u32 v9, {RING+XN}, v9")
        a("s_mov_b32 s40, 0")
        def issue_f(n):
            r = FREG + (n % 4) * 4; srd = 28 if n % 2 == 0 else 32
            so = "s40" if n < 4 else "s41"
            a(f"buffer_load_dwordx4 v[{r}:{r+3}], v8, s[{srd}:{srd+3}], {so} offen offset:{3584*((n%4)//2)} {wpol}")
        for n in range(FW): issue_f(n)
        a(f"s_mov_b32 s41, {0 if hitx else 7168}")
        a("ds_read_b32 v10, v9")
        for k in range(16): a(f"v_mov_b32 v{FA+k}, 0")
        a("s_mov_b32 s44, 31")
        def fbody(last):
            a("s_waitcnt lgkmcnt(0)")
            forms(10, 0, 12, 13); forms(10, 1, 14, 15)
            if not last:
                a("v_add_u32 v9, 4, v9"); a("ds_read_b32 v10, v9")
            for n in range(4):
                a(f"s_waitcnt vmcnt({FW-1 if not last else min(FW-1, 3-n)})")
                mac8(FA + 8 * (n % 2), FREG + n * 4, 12 + 2 * (n // 2), 13 + 2 * (n // 2))
                if not last or n + FW < 4: issue_f(n + FW)
            if not last:
                a("s_mov_b32 s40, s41"); a(f"s_add_u32 s41, s41, {0 if hitx else 7168}")
        lab("L_floop")
        fbody(False)
        a("s_sub_u32 s44, s44, 1"); a("s_cmp_lg_u32 s44, 0"); a("s_cbranch_scc1 L_floop")
        fbody(True)
        a("s_mov_b32 s28, s20"); a("s_mov_b32 s29, s21")
        a("s_lshl_b32 s40, s36, 16")
        a(f"s_add_u32 s41, s40, {0 if hitx else 4096}")
        def issue_d(n):
            r = FREG + (n % 4) * 4
            so = "s40" if n < 4 else "s41"
            a(f"buffer_load_dwordx4 v[{r}:{r+3}], v1, s[28:31], {so} offen offset:{(n%4)*1024} {wpol}")
        for n in range(FW): issue_d(n)
        a("v_and_b32 v14, 8, v2"); a("v_cmp_ne_u32 vcc, 0, v14")
        for acc in (FA, FA + 8):
            for k in range(4): a(f"v_permlane32_swap_b32 v{acc+k}, v{acc+4+k}")
            for k in range(4): a(f"v_add_f32 v{acc+k}, v{acc+k}, v{acc+4+k}")
            nop(1)
            a(f"v_permlane16_swap_b32 v{acc}, v{acc+2}"); a(f"v_permlane16_swap_b32 v{acc+1}, v{acc+3}")
            a(f"v_add_f32 v{acc}, v{acc}, v{acc+2}"); a(f"v_add_f32 v{acc+1}, v{acc+1}, v{acc+3}")
            nop(2)
            a(f"v_add_f32_dpp v{acc}, v{acc}, v{acc} row_ror:8 row_mask:0xf bank_mask:0xf")
            a(f"v_add_f32_dpp v{acc+1}, v{acc+1}, v{acc+1} row_ror:8 row_mask:0xf bank_mask:0xf")
            a(f"v_cndmask_b32 v{acc}, v{acc}, v{acc+1}, vcc")
        a(f"v_cvt_pk_bf16_f32 v14, v{FA}, v{FA+8}")
        a("v_lshlrev_b32 v15, 16, v14"); a("v_and_b32 v16, s43, v14")
        a("v_mul_f32 v17, v15, v15"); a("v_mul_f32 v17, v17, v15")
        a("v_mov_b32 v18, 0x3d372713"); a("v_fma_f32 v17, v17, v18, v15")
        a("v_mul_f32 v17, 0xc0135761, v17")
        a("v_exp_f32 v17, v17"); nop(1)
        a("v_add_f32 v17, 1.0, v17"); a("v_rcp_f32 v17, v17"); nop(1)
        a("v_mul_f32 v17, v15, v17")
        a("v_cvt_pk_bf16_f32 v17, v17, v17"); a("v_and_b32 v17, s43, v17")
        a("v_mul_f32 v17, v17, v16")
        a("v_cvt_pk_bf16_f32 v17, v17, v17")
        a("v_lshlrev_b32 v14, 4, v7")
        a("v_lshrrev_b32 v15, 5, v2"); a("v_lshl_add_u32 v14, v15, 3, v14")
        a("v_bfe_u32 v15, v2, 4, 1"); a("v_lshl_add_u32 v14, v15, 2, v14")
        a("v_bfe_u32 v15, v2, 3, 1"); a("v_lshl_add_u32 v14, v15, 1, v14")
        a(f"v_mov_b32 v9, {RING+HB}"); a("v_add_u32 v14, v9, v14")
        a("ds_write_b16 v14, v17")
        a("s_waitcnt lgkmcnt(0)")
        a("ds_read_b64 v[10:11], v9")
        for k in range(8): a(f"v_mov_b32 v{FA+k}, 0")
        a("s_mov_b32 s44, 15")
        def dbody(last):
            a("s_waitcnt lgkmcnt(0)")
            forms(10, 0, 12, 13); forms(10, 1, 14, 15); forms(11, 0, 16, 17); forms(11, 1, 18, 19)
            if not last:
                a("v_add_u32 v9, 8, v9"); a("ds_read_b64 v[10:11], v9")
            for n in range(4):
                a(f"s_waitcnt vmcnt({FW-1 if not last else min(FW-1, 3-n)})")
                mac8(FA, FREG + n * 4, 12 + 2 * n, 13 + 2 * n)
                if not last or n + FW < 4: issue_d(n + FW)
            if not last:
                a("s_mov_b32 s40, s41"); a(f"s_add_u32 s41, s41, {0 if hitx else 4096}")
        lab("L_dloop")
        dbody(False)
        a("s_sub_u32 s44, s44, 1"); a("s_cmp_lg_u32 s44, 0"); a("s_cbranch_scc1 L_dloop")
        dbody(True)
    for k in range(8): a(f"v_bfe_u32 v{8+k}, v35, {k}, 1")
    for k in range(8): a(f"v_and_or_b32 v{FA+k}, v{FA+k}, -2, v{8+k}")
    lab("L_noffn")
    if diag:
        stamp(4); put_stamp(4, 56, 12)
    lds_poll("L_mid", 38, 0, MID, 39, 32)
    a("s_mov_b32 s47, 0x20000")
    a("s_mov_b64 exec, 1")
    lab("L_rdy")
    a(f"global_load_dword v13, v30, s[24:25] sc1")
    a("s_waitcnt vmcnt(0)")
    a("v_readfirstlane_b32 s46, v13")
    a("s_sub_u32 s47, s47, 1"); a("s_cmp_eq_u32 s47, 0"); a("s_cbranch_scc1 L_rdy_ok")
    a("s_cmp_ge_u32 s46, 32"); a("s_cbranch_scc1 L_rdy_ok")
    a("s_sleep 16"); a("s_branch L_rdy")
    lab("L_rdy_ok")
    a("s_mov_b64 exec, -1")
    a("s_mov_b64 exec, 1")
    a("ds_add_u32 v38, v29 offset:32")
    a("s_mov_b64 exec, -1")
    a("v_lshlrev_b32 v24, 16, v26"); a("v_and_b32 v25, s43, v26"); a("v_lshlrev_b32 v26, 16, v27"); a("v_and_b32 v27, s43, v27")
    a("v_cmp_gt_u32 vcc, 32, v2"); a("v_and_b32 v12, 16, v2"); a("v_cmp_eq_u32 s[12:13], 0, v12")
    nop(1)
    a("v_cndmask_b32 v24, v26, v24, vcc"); a("v_cndmask_b32 v25, v27, v25, vcc")
    a("v_cndmask_b32 v24, v25, v24, s[12:13]")
    a("v_lshrrev_b32 v12, 5, v2"); a("v_lshl_add_u32 v31, v12, 2, v31"); a("v_bfe_u32 v12, v2, 4, 1"); a("v_lshl_add_u32 v31, v12, 1, v31")
    for k in range(8): a(f"v_bfe_u32 v{48+k}, v36, {k}, 1")
    for k in range(8): a(f"v_bfe_u32 v{56+k}, v37, {k}, 1")
    lds_poll("L_yp", 38, 0, YP, 39, 2)
    a(f"buffer_store_dwordx4 v[{FA}:{FA+3}], v34, s[52:55], s14 offen {spol}")
    a(f"buffer_store_dwordx4 v[{FA+4}:{FA+7}], v34, s[52:55], s14 offen offset:16 {spol}")
    def pissue(b, srd):
        a(f"buffer_load_dwordx4 v[{b}:{b+3}], v32, s[{srd}:{srd+3}], s15 offen {gpol}")
        a(f"buffer_load_dwordx4 v[{b+4}:{b+7}], v33, s[{srd}:{srd+3}], s15 offen {gpol}")
    def pcheck(b, sn):
        a(f"v_xor_b32 v16, v{b}, v{sn}")
        for k in range(1, 8): a(f"v_bitop3_b32 v16, v16, v{b+k}, v{sn+k} bitop3:0x60")
        a("v_and_b32 v16, 1, v16")
        a("v_cmp_eq_u32 vcc, 0, v16")
    def reduce16(b):
        for k in range(8): a(f"v_and_b32 v{8+k}, -2, v{b+k}")
        for k in range(4): a(f"v_add_f32 v{8+k}, v{8+k}, v{12+k}")
        nop(1)
        a("v_permlane32_swap_b32 v8, v10"); a("v_permlane32_swap_b32 v9, v11")
        a("v_add_f32 v8, v8, v10"); a("v_add_f32 v9, v9, v11")
        nop(2)
        a("v_permlane16_swap_b32 v8, v9")
        a("v_add_f32 v8, v8, v9")
        nop(2)
        a("v_add_f32_dpp v8, v8, v8 row_ror:4 row_mask:0xf bank_mask:0xf")
        nop(2)
        a("v_add_f32_dpp v8, v8, v8 row_ror:8 row_mask:0xf bank_mask:0xf")
        a("v_cvt_pk_bf16_f32 v8, 0, v8")
    a("s_mov_b32 s47, 0x40000")
    lab("L_gy")
    pissue(64, 52)
    a("s_waitcnt vmcnt(0)")
    pcheck(64, 56)
    a("s_sub_u32 s47, s47, 1"); a("s_cmp_eq_u32 s47, 0"); a("s_cbranch_scc1 L_gy_ok")
    if nosnap: a("s_branch L_gy_ok")
    a("s_and_b64 exec, exec, vcc")
    a("s_cbranch_scc1 L_gy")
    lab("L_gy_ok")
    a("s_mov_b64 exec, -1")
    reduce16(64)
    a("v_mul_f32 v9, 0xbfb8aa3b, v8"); a("v_exp_f32 v9, v9"); nop(1)
    a("v_add_f32 v9, 1.0, v9"); a("v_rcp_f32 v9, v9"); nop(1)
    a("v_mul_f32 v8, v8, v9")
    a("v_cvt_pk_bf16_f32 v20, 0, v8")
    stamp(3)
    lds_poll("L_sw2", 38, 32, 5, 39, 1)
    if HS: a(f"s_sleep {HS}")
    a("s_mov_b64 s[8:9], -1"); a("s_mov_b64 s[10:11], -1")
    pissue(64, 48)
    if dual:
        a(f"s_sleep {dual}")
        pissue(72, 48)
    a("s_mov_b32 s47, 0x40000")
    lab("L_gs")
    for (b, m) in ((64, "s[8:9]"), (72, "s[10:11]")) if dual else ((64, "s[8:9]"),):
        a(f"s_waitcnt vmcnt({2 if dual else 0})")
        a(f"s_mov_b64 exec, {m}")
        pcheck(b, 48)
        nop(1)
        a(f"s_and_b64 {m}, {m}, vcc")
        if nosnap: a(f"s_branch L_gs{b}")
        a(f"s_cbranch_scc0 L_gs{b}")
        a(f"s_mov_b64 exec, {m}")
        pissue(b, 48)
    a("s_sub_u32 s47, s47, 1"); a("s_cmp_lg_u32 s47, 0"); a("s_cbranch_scc1 L_gs")
    a("s_waitcnt vmcnt(0)")
    for b in (64, 72) if dual else (64,):
        lab(f"L_gs{b}")
        a("s_mov_b64 exec, -1")
        reduce16(b)
        a("v_mul_f32 v8, v8, v20")
        a("v_cvt_pk_bf16_f32 v8, 0, v8")
        a("v_add_f32 v8, v8, v24")
        a("v_cvt_pk_bf16_f32 v8, v8, v8")
        a("s_mov_b32 exec_lo, 0x000f000f"); a("s_mov_b32 exec_hi, 0x000f000f")
        a("buffer_store_short v8, v31, s[56:59], 0 offen")
        if b == 64 and dual: a("s_branch L_fin")
    lab("L_fin")
    if diag:
        stamp(7)
        a("s_mov_b64 exec, -1")
        put_stamp(7, 8, 20); put_stamp(3, 32, 20)
    lab("L_done")
    a("s_endpgm")
    if ctl:
        NCK = 62 // CKI
        lab("L_ctl")
        a("s_and_b32 s12, s2, 7"); a("s_lshr_b32 s13, s2, 3")
        a("s_lshl_b32 s46, s12, 12"); a(f"s_add_u32 s46, s46, {TOFF}")
        a("s_add_u32 s28, s26, s46"); a("s_addc_u32 s29, s27, 0"); a("s_mov_b32 s30, 4096")
        a(f"s_add_u32 s32, s26, {TOFF + 0x8000}"); a("s_addc_u32 s33, s27, 0"); a("s_mov_b32 s34, 4096")
        a("s_lshl_b32 s46, s13, 2"); a("v_mov_b32 v7, s46")
        a("s_lshl_b32 s46, s12, 2"); a("v_mov_b32 v6, s46")
        a(f"s_mov_b32 s44, {CKI * 8}")
        a("s_mov_b32 s40, 0")
        a("s_mov_b32 s50, 0"); a("s_mov_b32 s51, 0"); a("s_mov_b32 s56, 0"); a("v_mov_b32 v20, 0")
        a("s_mov_b64 exec, 1")
        lab("L_cl")
        lds_poll("L_cp", 38, 0, "s44", 39, 2)
        a("s_memrealtime s[48:49]")
        a("s_waitcnt lgkmcnt(0)")
        a("v_mov_b32 v8, s48")
        a("buffer_store_dword v8, v7, s[28:31], s40 offen")
        a("s_cmp_eq_u32 s40, 0"); a("s_cbranch_scc1 L_cnext")
        a("s_sub_u32 s41, s40, 128")
        a("s_load_dwordx16 s[64:79], s[28:29], s41")
        a("s_add_u32 s46, s41, 64")
        a("s_load_dwordx16 s[80:95], s[28:29], s46")
        a("s_cmp_eq_u32 s41, 0"); a("s_cbranch_scc1 L_cn2")
        a("s_sub_u32 s46, s41, 128")
        a("s_load_dwordx8 s[4:11], s[32:33], s46")
        lab("L_cn2")
        a("s_mov_b32 s52, 0"); a("s_mov_b32 s53, 0"); a("s_sub_u32 s54, s50, 2000")
        a("s_waitcnt lgkmcnt(0)")
        for t in range(32):
            a(f"s_sub_u32 s55, s{64+t}, s54"); a("s_cmp_lt_u32 s55, 4000")
            a("s_cselect_b32 s55, s55, 2000"); a("s_addc_u32 s53, s53, 0"); a("s_add_u32 s52, s52, s55")
        a("s_sub_u32 s52, s52, 64000"); a("s_max_u32 s53, s53, 1")
        a("v_cvt_f32_i32 v11, s52"); a("v_cvt_f32_u32 v12, s53")
        a("v_rcp_f32 v12, v12")
        a("s_mov_b32 s52, 0"); a("s_mov_b32 s53, 0"); a("s_sub_u32 s54, s56, 2000")
        for t in range(8):
            a(f"s_sub_u32 s55, s{4+t}, s54"); a("s_cmp_lt_u32 s55, 4000")
            a("s_cselect_b32 s55, s55, 2000"); a("s_addc_u32 s53, s53, 0"); a("s_add_u32 s52, s52, s55")
        a("s_sub_u32 s52, s52, 16000"); a("s_max_u32 s53, s53, 1")
        a("v_mul_f32 v11, v11, v12")
        a("v_cvt_f32_i32 v13, s52"); a("v_cvt_f32_u32 v14, s53"); a("v_rcp_f32 v14, v14")
        a("v_cvt_i32_f32 v12, v11"); a("v_add_u32 v12, s50, v12")
        a("v_mul_f32 v13, v13, v14")
        a("v_readfirstlane_b32 s57, v12")
        a("s_cmp_lg_u32 s13, 0"); a("s_cbranch_scc1 L_cnl")
        a("buffer_store_dword v12, v6, s[32:35], s41 offen sc1")
        lab("L_cnl")
        a("s_sub_u32 s46, s48, s50"); a("s_sub_u32 s47, s57, s56"); a("s_cmp_eq_u32 s41, 0"); a("s_cselect_b32 s46, s46, s47")
        a("v_cvt_f32_i32 v14, s46"); a("v_rcp_f32 v14, v14")
        a("s_mov_b32 s56, s57")
        a(f"v_mul_f32 v11, {f2u(-G / 100.0)}, v11"); a(f"v_mul_f32 v13, {f2u(-G2 / 100.0)}, v13"); a("v_add_f32 v11, v11, v13")
        if LT: a(f"v_mul_f32 v15, {f2u(32.0 * CKI * LT * 16.0)}, v14")
        else: a(f"v_mov_b32 v15, {f2u(D * 16.0)}")
        a("v_mul_f32 v11, v11, v14")
        if KI:
            a(f"v_mul_f32 v13, {f2u(KI / 100.0)}, v11"); a("v_add_f32 v20, v20, v13")
            a("v_add_f32 v11, v11, v20")
        a("v_fma_f32 v15, v15, v11, v15")
        a(f"v_max_f32 v15, {f2u(DMIN * 16.0)}, v15"); a(f"v_min_f32 v15, {f2u(DMAX * 16.0)}, v15")
        a("v_cvt_u32_f32 v15, v15")
        a("ds_write_b32 v38, v15 offset:12")
        lab("L_cnext")
        a("s_mov_b32 s50, s48")
        a(f"s_add_u32 s44, s44, {CKI * 8}")
        a("s_add_u32 s40, s40, 128")
        a(f"s_cmp_lt_u32 s40, {NCK * 128}")
        a("s_cbranch_scc1 L_cl")
        a("s_endpgm")
    L.append(".p2align 10")
    lab("L_end")
    L.append('.section .rodata,"a"'); L.append(".p2align 6"); L.append(f".amdhsa_kernel {KN}")
    a(".amdhsa_next_free_vgpr 168"); a(".amdhsa_next_free_sgpr 96"); a(".amdhsa_accum_offset 168")
    a(".amdhsa_group_segment_fixed_size 0"); a(".amdhsa_kernarg_size 96"); a(".amdhsa_user_sgpr_count 2")
    a(".amdhsa_user_sgpr_kernarg_segment_ptr 1"); a(".amdhsa_system_sgpr_workgroup_id_x 1")
    a(".amdhsa_float_denorm_mode_32 3")
    L.append(".end_amdhsa_kernel")
    return "\n".join(L) + "\n"

if __name__ == "__main__":
    for spec in sys.argv[1:]:
        out, _, kvs = spec.partition(":")
        kw = {}
        if kvs:
            for kv in kvs.split(","):
                k, v = kv.split("=")
                kw[k] = int(v) if v.lstrip("-").isdigit() else v.replace("+", " ")
        open(out, "w").write(gen(**kw))
```

```python
import sys, struct
KN = "recurrent_scan__mha_block_cached__geglu_ffn__decode_kernel"
HEADER = open("recurrent_scan__mha_block_cached__geglu_ffn__decode.s.ref").read().split("; Override launch")[0]

XN, QP, SP, ML, CT, OB, HB, SC = 0, 1024, 1024, 3072, 3136, 3328, 4352, 4608
MISC = 4608 + 8192
YOFF = 0x80000
TOFF = 0x100000
STOFF = 0x30000000
LOG2E = 0x3fb8aa3b
SCALE = 0x3db504f3
f2u = lambda x: hex(struct.unpack("<I", struct.pack("<f", x))[0])

DOC = '''; ---------------------------------------------------------------------------------------------------------
; ---------------------------------------------------------------------------------------------------------'''

def gen(D=20, D1=0, FW=3, WOS=90, WO0=80, WQWIN=8, WOWIN=2, wpol="", diag=0, kvpol="nt", noffn=0, nowo=0, noq=0,
        MID=440, YP=506, prog=0, NSLOT=18, xpol="", gpol="sc1", spol="sc1", snpol="sc1", pfpol="", SNAP=0,
        ctl=1, DMIN=15, DMAX=25, CKI=3, LT=0, G=45, G2=45, pf=1, lprio=3, gsl=0, vpol=None, hitx=0, wide=0, mpf=1, PF0=0, PFW=4, FF0=70, pp=0, YG=0, csl=1, sno=0, KI=0, DE=28, NE=1, nosnap=0, fast=1, csl1=1, bc=1, ft=1, cont=0, own=1, nolds=0):
    L = []
    RING = NSLOT * 8192
    LDS_BYTES = RING + MISC
    assert LDS_BYTES <= 163840
    def a(s): L.append("  " + s)
    def lab(s): L.append(s + ":")
    def nop(n): a(f"s_nop {n-1}")
    def stamp(i):
        if diag: a(f"s_memrealtime s[{60+2*i}:{61+2*i}]")
    def put_stamp(i, off, vt):
        a("s_waitcnt lgkmcnt(0)")
        a("s_lshl_b32 s45, s2, 6"); a(f"s_add_u32 s45, s45, {STOFF}"); a(f"v_mov_b32 v{vt+2}, s45")
        a(f"v_mov_b32 v{vt}, s{60+2*i}"); a(f"v_mov_b32 v{vt+1}, s{61+2*i}")
        a("s_mov_b64 exec, 1")
        a(f"global_store_dwordx2 v{vt+2}, v[{vt}:{vt+1}], s[26:27] offset:{off}")
        a("s_mov_b64 exec, -1")
        nop(2)
    L.append(HEADER.rstrip("\n"))
    L.append(f"; @launch grid=(256,1,1) block=({704 if ctl else 640},1,1) lds={LDS_BYTES}")
    L.append(DOC)
    L.append('.amdgcn_target "amdgcn-amd-amdhsa--gfx950"')
    L.append(".text"); L.append(f".globl {KN}"); L.append(".p2align 8"); L.append(f".type {KN},@function"); lab(KN)
    a("s_cmp_ge_u32 s2, 256")
    a("s_cbranch_scc1 L_done")
    a("s_load_dwordx8 s[4:11], s[0:1], 0")
    stamp(0)
    a("v_lshrrev_b32 v1, 6, v0")
    a("v_and_b32 v2, 63, v0")
    a("v_readfirstlane_b32 s3, v1")
    a("v_lshlrev_b32 v1, 4, v2")
    a("s_and_b32 s36, s2, 7")
    a("s_lshl_b32 s36, s36, 2")
    a("s_bfe_u32 s37, s2, 0x20003")
    a("s_add_u32 s36, s36, s37")
    a("s_lshr_b32 s37, s2, 5")
    a("s_cmp_lg_u32 s3, 0")
    a("s_cbranch_scc1 L_notloader")

    L.append("; ======== loader")
    if lprio: a(f"s_setprio {lprio}")
    a("s_lshl_b32 s38, s37, 5"); a("s_add_u32 s38, s38, s36"); a("s_lshl_b32 s38, s38, 20")
    a("s_mov_b32 s30, 0x100000"); a("s_mov_b32 s31, 0x20000")
    a("s_mov_b32 s40, 0"); a("s_mov_b32 s41, 0")
    def lds_init():
        a(f"v_mov_b32 v3, {RING+CT}")
        a("v_lshl_add_u32 v4, v2, 2, v3"); a("v_mov_b32 v5, 0")
        a("s_mov_b64 exec, 0xff")
        a("ds_write_b32 v4, v5")
        a("s_mov_b64 exec, -1")
        a(f"v_mov_b32 v8, {D * 16}"); a("ds_write_b32 v3, v8 offset:12")
    if not fast: lds_init()
    a("s_mov_b32 m0, 0")
    a("s_waitcnt lgkmcnt(0)")
    a("s_add_u32 s28, s6, s38"); a("s_addc_u32 s29, s7, 0"); a("s_add_u32 s32, s8, s38"); a("s_addc_u32 s33, s9, 0")
    def publish(k):
        a(f"v_add_u32 v5, {k}, v7"); a("ds_write_b32 v3, v5")
    def ld_step(m, Dw, first=False, kvpol=kvpol):
        j = m & 7
        if j == 0 and not (first and m == 0): a("s_mov_b32 m0, s41")
        if j == 4: a("s_add_u32 m0, s41, 4096")
        waited = not (first and m < Dw)
        if waited: a(f"s_waitcnt vmcnt({Dw-1})")
        elif j in (0, 4) and m: nop(1)
        a(f"buffer_load_dwordx4 v1, s[28:31], s40 offen offset:{(j&3)*1024} {kvpol} lds")
        if waited and (m - Dw + 1) % 4 == 0: publish((m - Dw + 1) // 4)
        if j == 3: a("s_add_u32 s40, s40, 4096")
        if j == 7:
            a("s_add_u32 s40, s40, 4096"); a("s_add_u32 s41, s41, 8192")
            a(f"s_cmp_eq_u32 s41, {RING}"); a("s_cselect_b32 s41, 0, s41")
    Dfirst = D1 if D1 else D
    a("v_mov_b32 v7, 0")
    if prog: a("v_mov_b32 v10, 0"); a("v_mov_b32 v11, 0")
    for m in range(32):
        ld_step(m, Dfirst, first=True)
        if m == (Dfirst - 1 if fast else 7):
            if fast:
                lds_init(); a("s_waitcnt lgkmcnt(0)")
            a("s_barrier")
    def fw(w): return (w - NSLOT) % 4
    def fo(w): return (w - NSLOT) // 4 + 1
    a("s_mov_b32 s44, 0")
    a("s_mov_b32 s47, 8")
    a(f"ds_read_b32 v6, v3 offset:{16 + 4 * fw(0)}")
    a("ds_read_b32 v8, v3 offset:12")
    Ds = list(range(DMIN, DMAX + 1)) if ctl else [D]
    def slow(lbl, w, back):
        lab(lbl)
        a("s_sleep 1")
        a(f"ds_read_b32 v6, v3 offset:{16 + 4 * fw(w)}")
        a("s_waitcnt lgkmcnt(0)")
        a("v_readfirstlane_b32 s45, v6")
        a(f"s_sub_i32 s45, s45, {fo(w)}")
        a("s_cmp_ge_i32 s45, s44")
        a(f"s_cbranch_scc0 {lbl}")
        a(f"s_branch {back}")
    lab("L_disp")
    a("v_add_u32 v7, 8, v7")
    a("s_add_u32 s44, s44, 1")
    a("s_cmp_eq_u32 s44, 64")
    a("s_cbranch_scc1 L_drain")
    a("s_cmp_eq_u32 s44, 32")
    a("s_cselect_b32 s28, s32, s28"); a("s_cselect_b32 s29, s33, s29"); a("s_cselect_b32 s40, 0, s40")
    if prog: a("s_memrealtime s[76:77]")
    a("s_waitcnt lgkmcnt(0)")
    a("v_readfirstlane_b32 s45, v6")
    a("v_readfirstlane_b32 s46, v8")
    if prog:
        a("s_mov_b32 m0, s44"); nop(4); a("v_writelane_b32 v10, s76, m0"); a("v_writelane_b32 v11, s46, m0")
    a(f"s_sub_i32 s45, s45, {fo(0)}")
    a("s_cmp_ge_i32 s45, s44")
    a("s_cbranch_scc0 L_lslow_0")
    lab("L_lfree_0")
    if ctl:
        a("s_add_u32 s47, s47, s46"); a("s_lshr_b32 s46, s47, 4"); a("s_and_b32 s47, s47, 15")
        def casc(lst):
            if len(lst) == 1:
                a(f"s_branch L_c{lst[0]}"); return
            mid = len(lst) // 2
            a(f"s_cmp_ge_u32 s46, {lst[mid]}")
            if len(lst) - mid == 1:
                a(f"s_cbranch_scc1 L_c{lst[mid]}")
                casc(lst[:mid])
            else:
                l2 = f"L_k{lst[mid]}_{len(lst)}"
                a(f"s_cbranch_scc1 {l2}")
                casc(lst[:mid]); lab(l2); casc(lst[mid:])
        if vpol is not None:
            a("s_cmp_ge_u32 s44, 32"); a("s_cbranch_scc1 L_vc")
        if DE:
            a(f"s_cmp_ge_u32 s44, {64 - NE}"); a(f"s_cbranch_scc1 L_c{DE}")
        casc(Ds)
        if DE and DE not in Ds: Ds = Ds + [DE]
    if vpol is not None:
        lab("L_vc")
        for w in range(4):
            if w:
                a("s_waitcnt lgkmcnt(0)")
                a("v_readfirstlane_b32 s45, v6")
                a(f"s_sub_i32 s45, s45, {fo(w)}")
                a("s_cmp_ge_i32 s45, s44")
                a(f"s_cbranch_scc0 L_vslow_{w}")
                lab(f"L_vfree_{w}")
            for j in range(8):
                ld_step(8 * w + j, D, kvpol=vpol)
                if j == 4:
                    a(f"ds_read_b32 v6, v3 offset:{16 + 4 * fw((w + 1) & 3)}")
                    if w == 3: a("ds_read_b32 v8, v3 offset:12")
        a("s_branch L_disp")
        for w in range(1, 4): slow(f"L_vslow_{w}", w, f"L_vfree_{w}")
    for Dw in Ds:
        npub = sum(1 for j in range(5, 8) if (j - Dw + 1) % 4 == 0)
        lab(f"L_c{Dw}")
        for w in range(4):
            if w:
                a(f"s_waitcnt lgkmcnt({npub})")
                a("v_readfirstlane_b32 s45, v6")
                a(f"s_sub_i32 s45, s45, {fo(w)}")
                a("s_cmp_ge_i32 s45, s44")
                a(f"s_cbranch_scc0 L_lslow{Dw}_{w}")
                lab(f"L_lfree{Dw}_{w}")
            for j in range(8):
                ld_step(8 * w + j, Dw)
                if j == 4:
                    a(f"ds_read_b32 v6, v3 offset:{16 + 4 * fw((w + 1) & 3)}")
                    if w == 3: a("ds_read_b32 v8, v3 offset:12")
        a("s_branch L_disp")
    slow("L_lslow_0", 0, "L_lfree_0")
    for Dw in Ds:
        for w in range(1, 4): slow(f"L_lslow{Dw}_{w}", w, f"L_lfree{Dw}_{w}")
    lab("L_drain")
    for r in range((max(Ds) - 1) // 4 * 4, -1, -4):
        a(f"s_waitcnt vmcnt({r})"); publish(-(r // 4))
    if diag:
        stamp(2)
        a("s_load_dwordx2 s[26:27], s[0:1], 88")
        if prog:
            a("s_waitcnt lgkmcnt(0)")
            a("v_writelane_b32 v10, s64, 0")
            a("s_lshl_b32 s45, s2, 8"); a(f"s_add_u32 s45, s45, {STOFF + 0x4000}"); a("v_lshrrev_b32 v9, 2, v1"); a("v_add_u32 v9, s45, v9")
            a("global_store_dword v9, v10, s[26:27]")
            a("v_add_u32 v9, 0x10000, v9")
            a("global_store_dword v9, v11, s[26:27]")
        put_stamp(0, 0, 12); put_stamp(2, 24, 12)
    a("s_endpgm")

    def wave_allsum(r, t):
        for ro in (8, 4, 2, 1):
            nop(2)
            a(f"v_add_f32_dpp v{r}, v{r}, v{r} row_ror:{ro} row_mask:0xf bank_mask:0xf")
        a(f"v_mov_b32 v{t}, v{r}"); nop(2)
        a(f"v_permlane16_swap_b32 v{r}, v{t}"); a(f"v_add_f32 v{r}, v{r}, v{t}"); a(f"v_mov_b32 v{t}, v{r}"); nop(2)
        a(f"v_permlane32_swap_b32 v{r}, v{t}"); a(f"v_add_f32 v{r}, v{r}, v{t}")
    def layernorm(hook):
        for k in range(4):
            a(f"v_lshlrev_b32 v{12+2*k}, 16, v{8+k}"); a(f"v_and_b32 v{13+2*k}, s43, v{8+k}")
        a("v_add_f32 v20, v12, v13"); a("v_add_f32 v21, v14, v15"); a("v_add_f32 v22, v16, v17"); a("v_add_f32 v23, v18, v19")
        a("v_add_f32 v20, v20, v21"); a("v_add_f32 v22, v22, v23"); a("v_add_f32 v20, v20, v22")
        wave_allsum(20, 21); hook()
        a("v_mul_f32 v20, 0x3b000000, v20")
        a("v_mov_b32 v22, 0")
        for k in range(8):
            a(f"v_sub_f32 v21, v{12+k}, v20"); a("v_fmac_f32 v22, v21, v21")
        hook(); wave_allsum(22, 21); hook()
        a("v_mul_f32 v22, 0x3b000000, v22")
        a("v_cvt_pk_bf16_f32 v20, v20, v22")
        a("v_and_b32 v22, s43, v20"); a("v_lshlrev_b32 v20, 16, v20")
        a("v_add_f32 v22, 0x3727c5ac, v22")
        a("v_cvt_pk_bf16_f32 v22, v22, v22"); a("v_and_b32 v22, s43, v22")
        a("v_sqrt_f32 v22, v22"); nop(1)
        a("v_cvt_pk_bf16_f32 v22, v22, v22"); a("v_and_b32 v22, s43, v22")
        a("v_rcp_f32 v22, v22"); hook()
        for k in range(8): a(f"v_sub_f32 v{12+k}, v{12+k}, v20")
        for k in range(4): a(f"v_cvt_pk_bf16_f32 v{8+k}, v{12+2*k}, v{13+2*k}")
        for k in range(4):
            a(f"v_lshlrev_b32 v{12+2*k}, 16, v{8+k}"); a(f"v_and_b32 v{13+2*k}, s43, v{8+k}")
        for k in range(8): a(f"v_mul_f32 v{12+k}, v22, v{12+k}")
        for k in range(4): a(f"v_cvt_pk_bf16_f32 v{8+k}, v{12+2*k}, v{13+2*k}")
    def forms(pair, odd, lo, hi):
        if not odd:
            a(f"v_and_b32 v{lo}, 0xffff, v{pair}"); a(f"v_lshlrev_b32 v{hi}, 16, v{pair}")
        else:
            a(f"v_lshrrev_b32 v{lo}, 16, v{pair}"); a(f"v_and_b32 v{hi}, s43, v{pair}")
    def mac8(acc, w, lo, hi):
        for d in range(4):
            a(f"v_dot2c_f32_bf16 v{acc+2*d}, v{w+d}, v{lo}")
            a(f"v_dot2c_f32_bf16 v{acc+2*d+1}, v{w+d}, v{hi}")
    def lds_poll(lbl, addr, off, tgt, vt, sleep):
        lab(lbl)
        a(f"ds_read_b32 v{vt}, v{addr} offset:{off}")
        a("s_waitcnt lgkmcnt(0)")
        a(f"v_readfirstlane_b32 s45, v{vt}")
        a(f"s_cmp_ge_u32 s45, {tgt}")
        a(f"s_cbranch_scc1 {lbl}_ok")
        if sleep: a(f"s_sleep {sleep}")
        a(f"s_branch {lbl}")
        lab(lbl + "_ok")
    def packbits(dst, src, n, t):
        a(f"v_and_b32 v{dst}, 1, v{src}")
        for k in range(1, n):
            a(f"v_and_b32 v{t}, 1, v{src+k}"); a(f"v_lshl_or_b32 v{dst}, v{t}, {k}, v{dst}")
    WREG = 40

    lab("L_notloader")
    a("v_lshrrev_b32 v3, 4, v2")
    a("v_and_b32 v4, 15, v2")
    a("s_mov_b32 s43, 0xffff0000")
    a("s_mov_b32 s42, " + hex(LOG2E))
    a("s_lshl_b32 s39, s37, 10")
    a("s_mov_b32 s30, 1024"); a("s_mov_b32 s31, 0x20000"); a("s_mov_b32 s35, 0x20000")
    a("s_cmp_ge_u32 s3, 5")
    a("s_cbranch_scc1 L_helper")

    a("s_sub_u32 s3, s3, 1")
    a("s_lshl_b32 s38, s3, 20"); a("s_lshl_b32 s46, s36, 8"); a("s_add_u32 s38, s38, s46")
    a("v_lshlrev_b32 v5, 18, v3"); a("v_lshl_add_u32 v5, v4, 4, v5"); a("v_add_u32 v5, s38, v5")
    a("s_mov_b32 s34, 0x400000")
    a("s_lshl_b32 s40, s37, 15")
    a("s_waitcnt lgkmcnt(0)")
    a("s_add_u32 s28, s4, s39"); a("s_addc_u32 s29, s5, 0")
    a("s_mov_b32 s32, s10"); a("s_mov_b32 s33, s11")
    a(f"buffer_load_dwordx4 v[8:11], v1, s[28:31], 0 offen {xpol}")
    wq = {"issued": 0}
    def issue_wq(window=True):
        i = wq["issued"]
        if i >= 32 or noq: return
        if window: a(f"s_waitcnt vmcnt({WQWIN-1})")
        r = WREG + i * 4
        a(f"buffer_load_dwordx4 v[{r}:{r+3}], v5, s[32:35], s40 offen {wpol}")
        a("s_add_u32 s40, s40, 0x2000")
        if i % 4 == 3: a("s_and_b32 s40, s40, 0x3ffff")
        wq["issued"] += 1
    for i in range(WQWIN): issue_wq(False)
    a("s_barrier")
    a(f"s_waitcnt vmcnt({WQWIN if not noq else 0})")
    layernorm(issue_wq)
    a(f"s_mov_b32 s45, {RING+XN}")
    a("v_add_u32 v6, s45, v1")
    a("ds_write_b128 v6, v[8:11]")
    issue_wq()
    a("s_lshl_b32 s46, s3, 8"); a("s_add_u32 s46, s46, s45")
    a("v_lshlrev_b32 v7, 6, v3"); a("v_add_u32 v7, s46, v7")
    a("s_waitcnt lgkmcnt(0)")
    for k in range(8):
        a(f"s_add_u32 s46, s37, {k}"); a("s_and_b32 s46, s46, 7"); a("s_lshl_b32 s46, s46, 3")
        a("v_add_u32 v12, s46, v7")
        a(f"ds_read_b64 v[{16+2*k}:{17+2*k}], v12")
    for k in range(8): a(f"v_mov_b32 v{32+k}, 0")
    a("s_waitcnt lgkmcnt(0)")
    for i in range(32 if not noq else 0):
        forms(16 + i // 2, i & 1, 12, 13)
        if wq["issued"] < 32: issue_wq()
        else: a(f"s_waitcnt vmcnt({31 - i})")
        mac8(32, WREG + i * 4, 12, 13)
    a("v_lshlrev_b32 v7, 5, v4")
    a(f"v_add_u32 v7, {RING}, v7")
    a("v_lshl_add_u32 v6, v3, 2, v7")
    a("s_lshl_b32 s46, s3, 9"); a("v_add_u32 v6, s46, v6")
    for k in range(4): a(f"v_permlane16_swap_b32 v{32+2*k}, v{33+2*k}")
    for k in range(4): a(f"v_add_f32 v{32+2*k}, v{32+2*k}, v{33+2*k}")
    a("v_mov_b32 v39, 1")
    a("v_permlane32_swap_b32 v32, v34"); a("v_permlane32_swap_b32 v36, v38")
    a("v_add_f32 v32, v32, v34"); a("v_add_f32 v36, v36, v38")
    a(f"ds_write_b32 v6, v32 offset:{QP}"); a(f"ds_write_b32 v6, v36 offset:{QP+16}")
    a(f"v_mov_b32 v38, {RING+CT}")
    a("s_waitcnt lgkmcnt(0)")
    a("s_mov_b64 exec, 1")
    a("ds_add_u32 v38, v39 offset:4")
    a("s_mov_b64 exec, -1")
    lds_poll("L_qw", 38, 4, 4, 39, 1)
    for w in range(4):
        a(f"ds_read_b128 v[{40+w*8}:{43+w*8}], v7 offset:{QP+w*512}")
        a(f"ds_read_b128 v[{44+w*8}:{47+w*8}], v7 offset:{QP+w*512+16}")
    a("s_mov_b32 s41, " + hex(SCALE))
    a("v_mov_b32 v16, 0xff800000")
    a("s_lshl_b32 s44, s3, 13"); a("v_add_u32 v36, s44, v1")
    a("s_lshl_b32 s46, s3, 2"); a("v_add_u32 v37, s46, v38")
    a("s_lshl_b32 s47, s3, 1"); a("s_add_u32 s47, s47, 1")
    a("v_mov_b32 v27, 0")
    a("s_lshl_b32 s40, s3, 11"); a(f"s_add_u32 s40, s40, {RING+SC}")
    a("v_lshlrev_b32 v17, 4, v3"); a("v_add_u32 v17, s40, v17")
    a("v_and_b32 v5, 14, v4"); a("v_add_u32 v5, v5, v17")
    a("v_and_b32 v26, 2, v2"); a("v_cmp_ne_u32 vcc, 0, v26")
    a("s_waitcnt lgkmcnt(4)")
    for k in range(8): a(f"v_add_f32 v{40+k}, v{40+k}, v{48+k}")
    a("s_waitcnt lgkmcnt(0)")
    for k in range(8): a(f"v_add_f32 v{56+k}, v{56+k}, v{64+k}")
    for k in range(8): a(f"v_add_f32 v{40+k}, v{40+k}, v{56+k}")
    for k in range(4): a(f"v_cvt_pk_bf16_f32 v{72+k}, v{40+2*k}, v{41+2*k}")
    stamp(1)
    Q = 72; DR = 40
    S = list(range(18, 26))
    def half2(lbl):
        a("s_cmp_gt_u32 s45, s47")
        a(f"s_cbranch_scc1 {lbl}_ok")
        a("s_add_u32 s46, s47, 1")
        lds_poll(lbl, 38, 0, "s46", 39, csl)
        for j in range(4, 8 if not nolds else 4): a(f"ds_read_b128 v[{DR+4*j}:{DR+4*j+3}], v36 offset:{j*1024}")
        a("v_add_u32 v27, 1, v27")
        a("s_add_u32 s44, s44, 0x8000"); a(f"s_sub_u32 s46, s44, {RING}"); a("s_cselect_b32 s44, s44, s46")
        a("v_add_u32 v36, s44, v1")
        a("s_add_u32 s47, s47, 8")
    lab("L_kloop")
    lds_poll("L_pk", 38, 0, "s47", 39, csl1)
    for j in range(4 if not nolds else 0): a(f"ds_read_b128 v[{DR+4*j}:{DR+4*j+3}], v36 offset:{j*1024}")
    for j in range(8): a(f"v_mov_b32 v{S[j]}, 0")
    for j in range(4):
        a(f"s_waitcnt lgkmcnt({3-j})")
        for d in range(4): a(f"v_dot2c_f32_bf16 v{S[j]}, v{DR+4*j+d}, v{Q+d}")
    half2("L_pk2")
    for j in range(4, 8):
        a(f"s_waitcnt lgkmcnt({7-j})")
        if j == 7: a("ds_write_b32 v37, v27 offset:16")
        for d in range(4): a(f"v_dot2c_f32_bf16 v{S[j]}, v{DR+4*j+d}, v{Q+d}")
    for j in range(4): a(f"v_add_f32_dpp v{S[j]}, v{S[j]}, v{S[j]} row_ror:8 row_mask:0xf bank_mask:0x3")
    for j in range(4): a(f"v_add_f32_dpp v{S[j]}, v{S[j+4]}, v{S[j+4]} row_ror:8 row_mask:0xf bank_mask:0xc")
    for j in range(2): a(f"v_add_f32_dpp v{S[j]}, v{S[j]}, v{S[j]} row_ror:12 row_mask:0xf bank_mask:0x5")
    nop(1)
    for j in range(2): a(f"v_add_f32_dpp v{S[j]}, v{S[j+2]}, v{S[j+2]} row_ror:4 row_mask:0xf bank_mask:0xa")
    nop(1)
    for j in range(2): a(f"v_add_f32_dpp v{S[j]}, v{S[j]}, v{S[j]} quad_perm:[2,3,0,1] row_mask:0xf bank_mask:0xf")
    a(f"v_cndmask_b32 v{S[2]}, v{S[0]}, v{S[1]}, vcc")
    nop(2)
    a(f"v_add_f32_dpp v{S[2]}, v{S[2]}, v{S[2]} quad_perm:[1,0,3,2] row_mask:0xf bank_mask:0xf")
    a(f"v_cvt_pk_bf16_f32 v{S[2]}, 0, v{S[2]}")
    a(f"v_mul_f32 v{S[2]}, s41, v{S[2]}")
    a(f"v_cvt_pk_bf16_f32 v{S[2]}, v{S[2]}, v{S[2]}")
    a(f"ds_write_b16 v5, v{S[2]}")
    a(f"v_and_b32 v{S[3]}, s43, v{S[2]}")
    a(f"v_max_f32 v16, v16, v{S[3]}")
    a("v_add_u32 v5, 64, v5")
    a("s_cmp_lt_u32 s47, 256")
    a("s_cbranch_scc1 L_kloop")
    a("v_lshlrev_b32 v5, 1, v1"); a("v_add_u32 v5, s40, v5")
    a("s_waitcnt lgkmcnt(0)")
    a("ds_read_b128 v[40:43], v5"); a("ds_read_b128 v[44:47], v5 offset:16")
    for ro in (8, 4, 2, 1):
        a(f"v_max_f32_dpp v16, v16, v16 row_ror:{ro} row_mask:0xf bank_mask:0xf"); nop(2)
    a("v_mov_b32 v18, v16"); nop(2)
    a("v_permlane16_swap_b32 v16, v18"); a("v_max_f32 v16, v16, v18"); a("v_mov_b32 v18, v16"); nop(2)
    a("v_permlane32_swap_b32 v16, v18"); a("v_max_f32 v16, v16, v18")
    a("v_mul_f32 v18, s42, v16")
    a("s_waitcnt lgkmcnt(0)")
    for k in range(8):
        a(f"v_lshlrev_b32 v{48+2*k}, 16, v{40+k}"); a(f"v_and_b32 v{49+2*k}, s43, v{40+k}")
    for k in range(16): a(f"v_fma_f32 v{48+k}, v{48+k}, s42, -v18")
    for k in range(16): a(f"v_exp_f32 v{48+k}, v{48+k}")
    a("v_add_f32 v19, v48, v49"); a("v_add_f32 v20, v50, v51")
    for k in range(4, 16, 2):
        a(f"v_add_f32 v19, v19, v{48+k}"); a(f"v_add_f32 v20, v20, v{49+k}")
    a("v_add_f32 v19, v19, v20")
    wave_allsum(19, 20)
    a(f"v_subrev_u32 v21, {CT-ML}, v37")
    a("ds_write_b32 v21, v16"); a("ds_write_b32 v21, v19 offset:16")
    a("v_mov_b32 v39, 1")
    a("s_waitcnt lgkmcnt(0)")
    a("s_mov_b64 exec, 1")
    a("ds_add_u32 v38, v39 offset:8")
    a("s_mov_b64 exec, -1")
    lds_poll("L_mw", 38, 8, 4, 39, 1)
    a(f"v_subrev_u32 v21, {CT-ML}, v38")
    a("ds_read_b128 v[8:11], v21"); a("ds_read_b128 v[12:15], v21 offset:16")
    a("s_waitcnt lgkmcnt(1)")
    a("v_max3_f32 v20, v8, v9, v10"); a("v_max_f32 v20, v20, v11")
    for w in range(4): a(f"v_sub_f32 v{8+w}, v{8+w}, v20")
    a("v_sub_f32 v16, v16, v20")
    for w in range(4): a(f"v_mul_f32 v{8+w}, s42, v{8+w}")
    a("v_mul_f32 v16, s42, v16")
    for w in range(4): a(f"v_exp_f32 v{8+w}, v{8+w}")
    a("v_exp_f32 v16, v16")
    a("s_waitcnt lgkmcnt(0)")
    a("v_mul_f32 v20, v8, v12"); a("v_fmac_f32 v20, v9, v13"); a("v_fmac_f32 v20, v10, v14"); a("v_fmac_f32 v20, v11, v15")
    a("v_rcp_f32 v20, v20"); nop(1)
    a("v_mul_f32 v16, v16, v20")
    for k in range(16): a(f"v_mul_f32 v{48+k}, v16, v{48+k}")
    for k in range(8): a(f"v_cvt_pk_bf16_f32 v{40+k}, v{48+2*k}, v{49+2*k}")
    a("ds_write_b128 v5, v[40:43]"); a("ds_write_b128 v5, v[44:47] offset:16")
    for k in range(8): a(f"v_mov_b32 v{8+k}, 0")
    a("s_waitcnt lgkmcnt(0)")
    L.append("; ======== V phase")
    lab("L_vloop")
    a("ds_read_b128 v[28:31], v17")
    a("v_add_u32 v17, 64, v17")
    lds_poll("L_pv", 38, 0, "s47", 39, csl1)
    for j in range(4 if not nolds else 0): a(f"ds_read_b128 v[{DR+4*j}:{DR+4*j+3}], v36 offset:{j*1024}")
    for j in range(8): forms(28 + j // 2, j & 1, 76 + 2 * j, 77 + 2 * j)
    for j in range(4):
        a(f"s_waitcnt lgkmcnt({3-j})")
        mac8(8, DR + 4 * j, 76 + 2 * j, 77 + 2 * j)
    half2("L_pv2")
    for j in range(4, 8):
        a(f"s_waitcnt lgkmcnt({7-j})")
        if j == 7: a("ds_write_b32 v37, v27 offset:16")
        mac8(8, DR + 4 * j, 76 + 2 * j, 77 + 2 * j)
    a("s_cmp_lt_u32 s47, 512")
    a("s_cbranch_scc1 L_vloop")
    nop(2)
    for k in range(4): a(f"v_permlane16_swap_b32 v{8+2*k}, v{9+2*k}")
    for k in range(4): a(f"v_add_f32 v{8+2*k}, v{8+2*k}, v{9+2*k}")
    nop(1)
    a("v_permlane32_swap_b32 v8, v10"); a("v_permlane32_swap_b32 v12, v14")
    a("v_add_f32 v8, v8, v10"); a("v_add_f32 v12, v12, v14")
    a(f"ds_write_b32 v6, v8 offset:{SP}"); a(f"ds_write_b32 v6, v12 offset:{SP+16}")
    a("s_waitcnt lgkmcnt(0)")
    a("s_barrier")
    if diag:
        a("s_cmp_lg_u32 s3, 0"); a("s_cbranch_scc1 L_done")
        a("s_load_dwordx2 s[26:27], s[0:1], 88")
        put_stamp(1, 16, 8)
    a("s_endpgm")

    L.append("; ======== helpers")
    lab("L_helper")
    a("s_sub_u32 s3, s3, 5")
    if pf:
        a("s_cmp_lg_u32 s3, 2"); a("s_cbranch_scc1 L_nopf")
        a("s_getpc_b64 s[46:47]")
        lab("L_pc")
        a(f"s_sub_u32 s46, s46, L_pc-{KN}"); a("s_subb_u32 s47, s47, 0")
        a("s_lshr_b32 s45, s2, 3"); a("s_min_u32 s45, s45, (L_end-" + KN + ")/1024-1"); a("s_lshl_b32 s45, s45, 10")
        a("v_add_u32 v6, s45, v1")
        a(f"global_load_dwordx4 v[8:11], v6, s[46:47] {pfpol}")
        lab("L_nopf")
    a("s_load_dwordx2 s[12:13], s[0:1], 32")
    a("s_load_dwordx8 s[16:23], s[0:1], 48")
    a("s_load_dwordx4 s[24:27], s[0:1], 80")
    a(f"v_mov_b32 v38, {RING+CT}")
    a("s_barrier")
    a("s_waitcnt lgkmcnt(0)")
    a("s_lshl_b32 s38, s37, 16")
    a("s_add_u32 s48, s26, s38"); a("s_addc_u32 s49, s27, 0"); a("s_mov_b32 s50, 0x10000"); a("s_mov_b32 s51, 0x20000")
    a("s_cmp_ge_u32 s3, 4"); a("s_cbranch_scc1 L_notwo")

    a("v_lshlrev_b32 v34, 5, v4"); a("v_lshrrev_b32 v7, 1, v3"); a("v_lshl_add_u32 v34, v7, 4, v34")
    if cont: a("v_lshlrev_b32 v34, 4, v4"); a("v_lshl_add_u32 v34, v7, 8, v34")
    a("s_lshl_b32 s14, s3, 9"); a("s_lshl_b32 s46, s36, 11"); a("s_add_u32 s14, s14, s46")
    a("s_mov_b32 s32, s12"); a("s_mov_b32 s33, s13"); a("s_mov_b32 s34, 0x400000")
    a("s_lshl_b32 s46, s36, 17"); a("s_lshl_b32 s47, s3, 8"); a("s_add_u32 s46, s46, s47")
    a("v_lshlrev_b32 v5, 15, v3"); a("v_lshl_add_u32 v5, v4, 4, v5"); a("v_add_u32 v5, s46, v5")
    a("s_mov_b32 s40, 0"); a("s_mov_b32 s46, 0x05040100"); a("s_mov_b32 s47, 0x07060302")
    if mpf:
        a("s_cmp_eq_u32 s3, 1"); a("s_cselect_b32 s28, s18, s16"); a("s_cselect_b32 s29, s19, s17")
        a("s_cmp_eq_u32 s3, 2"); a("s_cselect_b32 s28, s20, s28"); a("s_cselect_b32 s29, s21, s29")
        a("s_cmp_eq_u32 s3, 3"); a("s_cselect_b32 s30, 0, 0x1c0000")
        a("s_mul_i32 s41, s2, 7168")
        a("s_lshl_b32 s44, s2, 14"); a("s_lshl_b32 s45, s3, 12"); a("s_add_u32 s15, s44, s45")
        if own:
            a("s_lshl_b32 s44, s36, 17"); a("s_lshl_b32 s15, s37, 14"); a("s_add_u32 s15, s15, s44"); a("s_add_u32 s15, s15, s45")
            a("s_lshl_b32 s44, s36, 16"); a("s_lshl_b32 s45, s37, 13"); a("s_add_u32 s44, s44, s45")
            a("s_cmp_eq_u32 s3, 2"); a("s_cselect_b32 s41, s44, s41")
        lds_poll("L_pf0", 38, 0, PF0, 39, 8)
        if own == 2:
            a("v_lshrrev_b32 v6, 5, v2"); a("v_mul_u32_u24 v6, 3584, v6"); a("v_and_b32 v7, 0x1f0, v1"); a("v_add_u32 v6, v6, v7")
            a("s_and_b32 s44, s2, 7"); a("s_lshr_b32 s45, s2, 3"); a("s_mul_i32 s45, s45, 57344"); a("s_lshl_b32 s13, s44, 9"); a("s_add_u32 s45, s45, s13")
            a("s_cmp_eq_u32 s44, 7"); a("s_cselect_b32 s44, 0, s30")
            a("s_cmp_lt_u32 s3, 2"); a("s_cselect_b32 s30, s44, s30"); a("s_cselect_b32 s41, s45, s41")
            a("s_cselect_b64 vcc, -1, 0"); a("s_mov_b32 s13, 1024"); a("s_cselect_b32 s13, 7168, s13")
            a("v_cndmask_b32 v6, v1, v6, vcc")
            for i in range(12):
                if i >= PFW: a(f"s_waitcnt vmcnt({PFW - 1})")
                r = WREG + 4 * i
                if i < 8:
                    a(f"buffer_load_dwordx4 v[{r}:{r+3}], v6, s[28:31], s41 offen"); a("s_add_u32 s41, s41, s13")
                else:
                    a(f"buffer_load_dwordx4 v[{r}:{r+3}], v1, s[32:35], s15 offen offset:{(i - 8) * 1024}")
        else:
            if own:
                a("s_mov_b32 s45, 0x200000"); a("s_cmp_eq_u32 s3, 2"); a("s_cselect_b32 s45, 7168, s45"); a("s_add_u32 s45, s45, s41")
                a(f"buffer_load_dwordx4 v[{WREG+44}:{WREG+47}], v1, s[28:31], s45 offen")
            for i in range(11):
                if i >= PFW: a(f"s_waitcnt vmcnt({PFW - 1})")
                r = WREG + 4 * i
                if i < 7:
                    a(f"buffer_load_dwordx4 v[{r}:{r+3}], v1, s[28:31], s41 offen offset:{(i % 4) * 1024}")
                    if i == 3: a("s_add_u32 s41, s41, 4096")
                else:
                    a(f"buffer_load_dwordx4 v[{r}:{r+3}], v1, s[32:35], s15 offen offset:{(i - 7) * 1024}")
    a(f"s_mul_i32 s44, s3, {WOS}"); a(f"s_add_u32 s44, s44, {WO0}")
    lds_poll("L_wos", 38, 0, "s44", 39, 32)
    a(f"buffer_load_dwordx4 v[8:11], v34, s[48:51], s14 offen {snpol}")
    a("s_waitcnt vmcnt(0)")
    packbits(35, 8, 4, 20)
    a("v_xor_b32 v35, 15, v35")
    def issue_o(i):
        r = WREG + i * 4
        a(f"buffer_load_dwordx4 v[{r}:{r+3}], v5, s[32:35], s40 offen offset:{(i%4)*1024} {wpol}")
        if i % 4 == 3: a(f"s_add_u32 s40, s40, {0 if hitx else 4096}")
    for i in range(WOWIN if not nowo else 0): issue_o(i)
    for i in range(32 if not nowo else 0):
        a(f"s_waitcnt vmcnt({min(WOWIN - 1, 31 - i)})")
        if i + WOWIN < 32: issue_o(i + WOWIN)
        if i & 1:
            A = WREG + 8 * (i // 2); B = A + 4
            for d in range(4):
                a(f"v_perm_b32 v12, v{B+d}, v{A+d}, s46")
                a(f"v_perm_b32 v{B+d}, v{B+d}, v{A+d}, s47")
                a(f"v_mov_b32 v{A+d}, v12")
    a("v_lshrrev_b32 v7, 1, v1"); a(f"v_add_u32 v7, {RING}, v7")
    a("s_lshl_b32 s45, s3, 8"); a(f"s_add_u32 s45, s45, {RING+OB}")
    a("v_lshrrev_b32 v4, 2, v1"); a("v_add_u32 v4, s45, v4")
    a("v_lshlrev_b32 v3, 6, v3"); a("v_add_u32 v3, s45, v3")
    for k in range(4): a(f"v_bfe_u32 v{k if k < 3 else 5}, v35, {k}, 1".replace("v0,", "v0,"))
    TB = [0, 1, 2, 5]
    for k in range(8): a(f"v_mov_b32 v{8+k}, 0")
    stamp(5)
    a("s_barrier")
    for w in range(4): a(f"ds_read_b64 v[{16+2*w}:{17+2*w}], v7 offset:{SP+w*512}")
    a("s_waitcnt lgkmcnt(2)")
    a("v_add_f32 v16, v16, v18"); a("v_add_f32 v17, v17, v19")
    a("s_waitcnt lgkmcnt(0)")
    a("v_add_f32 v20, v20, v22"); a("v_add_f32 v21, v21, v23")
    a("v_add_f32 v16, v16, v20"); a("v_add_f32 v17, v17, v21")
    a("v_cvt_pk_bf16_f32 v25, v16, v17")
    if bc:
        nop(2)
        for k in range(16):
            A = WREG + 8 * k; B = A + 4
            for d in range(4):
                a(f"v_dot2c_f32_bf16_dpp v{8+2*d}, v25, v{A+d} row_newbcast:{k} row_mask:0xf bank_mask:0xf")
                a(f"v_dot2c_f32_bf16_dpp v{9+2*d}, v25, v{B+d} row_newbcast:{k} row_mask:0xf bank_mask:0xf")
    else:
        a("ds_write_b32 v4, v25")
        a("s_waitcnt lgkmcnt(0)")
        for k in range(4): a(f"ds_read_b128 v[{16+4*k}:{19+4*k}], v3 offset:{16*k}")
        for k in range(16):
            if k % 4 == 0: a(f"s_waitcnt lgkmcnt({3-k//4})")
            A = WREG + 8 * k; B = A + 4
            for d in range(4):
                a(f"v_dot2c_f32_bf16 v{8+2*d}, v{A+d}, v{16+k}")
                a(f"v_dot2c_f32_bf16 v{9+2*d}, v{B+d}, v{16+k}")
    nop(3)
    for k in range(4): a(f"v_permlane32_swap_b32 v{8+k}, v{12+k}")
    for k in range(4): a(f"v_add_f32 v{8+k}, v{8+k}, v{12+k}")
    for k in range(4): a(f"v_mov_b32 v{12+k}, v{8+k}")
    for k in range(4): a(f"v_permlane16_swap_b32 v{8+k}, v{12+k}")
    for k in range(4): a(f"v_add_f32 v{8+k}, v{8+k}, v{12+k}")
    for k in range(4): a(f"v_and_or_b32 v{20+k}, v{8+k}, -2, v{TB[k]}")
    a("s_mov_b32 exec_lo, 0xffff"); a("s_mov_b32 exec_hi, 0xffff")
    a(f"buffer_store_dwordx4 v[20:23], v34, s[48:51], s14 offen {spol}")
    if diag:
        a("s_mov_b64 exec, -1")
        a("s_cmp_lg_u32 s3, 3"); a("s_cbranch_scc1 L_done")
        stamp(6); put_stamp(5, 40, 24); put_stamp(6, 48, 24)
    a("s_endpgm")

    lab("L_notwo")
    if ctl:
        a("s_cmp_eq_u32 s3, 5"); a("s_cbranch_scc1 L_ctl")
    a(f"s_add_u32 s52, s48, {YOFF}"); a("s_addc_u32 s53, s49, 0"); a(f"s_mov_b32 s54, {28*2048}"); a("s_mov_b32 s55, 0x20000")
    a("s_add_u32 s28, s4, s39"); a("s_addc_u32 s29, s5, 0")
    a("s_add_u32 s56, s22, s39"); a("s_addc_u32 s57, s23, 0"); a("s_mov_b32 s58, 1024"); a("s_mov_b32 s59, 0x20000")
    a("v_lshrrev_b32 v32, 2, v2"); a("v_lshlrev_b32 v32, 11, v32"); a("v_and_b32 v33, 48, v1"); a("v_add_u32 v32, v32, v33")
    a("v_add_u32 v33, 0x8000, v32")
    a("v_lshlrev_b32 v34, 1, v1")
    a("s_lshl_b32 s14, s36, 11"); a("s_lshl_b32 s15, s36, 6")
    a("v_lshrrev_b32 v31, 1, v1"); a("v_and_b32 v31, 24, v31"); a("s_lshl_b32 s46, s36, 5"); a("v_add_u32 v31, s46, v31")
    def snap_gather():
        if nosnap:
            a("s_lshl_b32 s46, s37, 5"); a("v_mov_b32 v30, s46"); a("v_mov_b32 v29, 1")
            a("s_mov_b64 exec, 1"); a("global_atomic_add v30, v29, s[24:25] sc1"); a("s_mov_b64 exec, -1")
            return
        a(f"buffer_load_dwordx4 v[8:11], v32, s[48:51], s15 offen {snpol}")
        a(f"buffer_load_dwordx4 v[12:15], v33, s[48:51], s15 offen {snpol}")
        a(f"buffer_load_dwordx4 v[16:19], v32, s[52:55], s15 offen {snpol}")
        a(f"buffer_load_dwordx4 v[20:23], v33, s[52:55], s15 offen {snpol}")
        a("s_lshl_b32 s46, s37, 5"); a("v_mov_b32 v30, s46"); a("v_mov_b32 v29, 1")
        a("v_cmp_le_u32 vcc, 48, v2")
        a("s_waitcnt vmcnt(0)")
        a("s_mov_b64 exec, 1")
        a("global_atomic_add v30, v29, s[24:25] sc1")
        a("s_mov_b64 exec, -1")
        packbits(36, 8, 8, 24)
        packbits(37, 16, 8, 24)
        a("v_mov_b32 v24, 0xf0"); a("v_cndmask_b32 v24, 0, v24, vcc"); a("v_or_b32 v37, v37, v24")
    def snap_own():
        a(f"buffer_load_dwordx4 v[8:11], v34, s[52:55], s14 offen {snpol}")
        a(f"buffer_load_dwordx4 v[12:15], v34, s[52:55], s14 offen offset:16 {snpol}")
        a(f"buffer_load_dwordx2 v[26:27], v31, s[28:31], 0 offen {xpol}")
        if sno:
            a(f"buffer_load_dwordx4 v[16:19], v1, s[48:51], s14 offen {snpol}")
            a(f"buffer_load_dwordx4 v[20:23], v1, s[48:51], s14 offen offset:1024 {snpol}")
        a("s_waitcnt vmcnt(0)")
        packbits(35, 8, 8, 24)
        a("v_xor_b32 v35, 0xff, v35")
    if sno:
        snap_own()
        lds_poll("L_hq", 38, 4, 4, 39, 8)
        if SNAP: lds_poll("L_sw", 38, 0, SNAP, 39, 8)
        snap_gather()
    else:
        if SNAP: lds_poll("L_sw", 38, 0, SNAP, 39, 8)
        snap_gather()
        lds_poll("L_hq", 38, 4, 4, 39, 8)
        snap_own()
    a("s_cmp_ge_u32 s36, 28"); a("s_cbranch_scc1 L_noffn")
    if FF0: lds_poll("L_ff0", 38, 0, FF0, 39, 16)
    FA = 40; FREG = 56
    if not noffn:
        a("s_mov_b32 s28, s16"); a("s_mov_b32 s29, s17"); a("s_mov_b32 s30, 0x1c0000")
        a("s_mov_b32 s32, s18"); a("s_mov_b32 s33, s19"); a("s_mov_b32 s34, 0x1c0000")
        a("v_lshrrev_b32 v6, 3, v2"); a("v_and_b32 v7, 7, v2")
        a("s_mov_b32 s46, 229376"); a("v_mul_lo_u32 v8, v6, s46")
        a("v_lshl_add_u32 v8, v7, 4, v8"); a("s_lshl_b32 s46, s36, 7"); a("v_add_u32 v8, s46, v8")
        if wide:
            a("s_mov_b32 s46, 229376"); a("v_mul_lo_u32 v8, v3, s46"); a("v_lshl_add_u32 v8, v4, 4, v8")
            a("s_lshr_b32 s46, s36, 1"); a("s_lshl_b32 s46, s46, 8"); a("v_add_u32 v8, s46, v8")
            a("s_and_b32 s46, s36, 1"); a("s_mul_i32 s46, s46, 917504"); a("v_add_u32 v8, s46, v8")
        a("v_lshlrev_b32 v9, 7, v6"); a(f"v_add_u32 v9, {RING+XN}, v9")
        a("s_mov_b32 s40, 0")
        def issue_f(n):
            r = FREG + (n % 4) * 4; srd = 28 if n % 2 == 0 else 32
            so = "s40" if n < 4 else "s41"
            a(f"buffer_load_dwordx4 v[{r}:{r+3}], v8, s[{srd}:{srd+3}], {so} offen offset:{3584*((n%4)//2)} {wpol}")
        for n in range(FW): issue_f(n)
        a(f"s_mov_b32 s41, {0 if hitx else 7168}")
        a("ds_read_b32 v10, v9")
        for k in range(16): a(f"v_mov_b32 v{FA+k}, 0")
        a("s_mov_b32 s44, 31")
        def fbody(last):
            a("s_waitcnt lgkmcnt(0)")
            forms(10, 0, 12, 13); forms(10, 1, 14, 15)
            if not last:
                a("v_add_u32 v9, 4, v9"); a("ds_read_b32 v10, v9")
            for n in range(4):
                a(f"s_waitcnt vmcnt({FW-1 if not last else min(FW-1, 3-n)})")
                mac8(FA + 8 * (n % 2), FREG + n * 4, 12 + 2 * (n // 2), 13 + 2 * (n // 2))
                if not last or n + FW < 4: issue_f(n + FW)
            if not last:
                a("s_mov_b32 s40, s41"); a(f"s_add_u32 s41, s41, {0 if hitx else 7168}")
        lab("L_floop")
        fbody(False)
        a("s_sub_u32 s44, s44, 1"); a("s_cmp_lg_u32 s44, 0"); a("s_cbranch_scc1 L_floop")
        fbody(True)
        a("s_mov_b32 s28, s20"); a("s_mov_b32 s29, s21")
        a("s_lshl_b32 s40, s36, 16")
        a(f"s_add_u32 s41, s40, {0 if hitx else 4096}")
        def issue_d(n):
            r = FREG + (n % 4) * 4
            so = "s40" if n < 4 else "s41"
            a(f"buffer_load_dwordx4 v[{r}:{r+3}], v1, s[28:31], {so} offen offset:{(n%4)*1024} {wpol}")
        for n in range(FW): issue_d(n)
        a("v_and_b32 v14, 8, v2"); a("v_cmp_ne_u32 vcc, 0, v14")
        for acc in (FA, FA + 8):
            for k in range(4): a(f"v_permlane32_swap_b32 v{acc+k}, v{acc+4+k}")
            for k in range(4): a(f"v_add_f32 v{acc+k}, v{acc+k}, v{acc+4+k}")
            nop(1)
            a(f"v_permlane16_swap_b32 v{acc}, v{acc+2}"); a(f"v_permlane16_swap_b32 v{acc+1}, v{acc+3}")
            a(f"v_add_f32 v{acc}, v{acc}, v{acc+2}"); a(f"v_add_f32 v{acc+1}, v{acc+1}, v{acc+3}")
            nop(2)
            a(f"v_add_f32_dpp v{acc}, v{acc}, v{acc} row_ror:8 row_mask:0xf bank_mask:0xf")
            a(f"v_add_f32_dpp v{acc+1}, v{acc+1}, v{acc+1} row_ror:8 row_mask:0xf bank_mask:0xf")
            a(f"v_cndmask_b32 v{acc}, v{acc}, v{acc+1}, vcc")
        a(f"v_cvt_pk_bf16_f32 v14, v{FA}, v{FA+8}")
        a("v_lshlrev_b32 v15, 16, v14"); a("v_and_b32 v16, s43, v14")
        a("v_mul_f32 v17, v15, v15"); a("v_mul_f32 v17, v17, v15")
        a("v_mov_b32 v18, 0x3d372713"); a("v_fma_f32 v17, v17, v18, v15")
        a("v_mul_f32 v17, 0xc0135761, v17")
        a("v_exp_f32 v17, v17"); nop(1)
        a("v_add_f32 v17, 1.0, v17"); a("v_rcp_f32 v17, v17"); nop(1)
        a("v_mul_f32 v17, v15, v17")
        a("v_cvt_pk_bf16_f32 v17, v17, v17"); a("v_and_b32 v17, s43, v17")
        a("v_mul_f32 v17, v17, v16")
        a("v_cvt_pk_bf16_f32 v17, v17, v17")
        a("v_lshlrev_b32 v14, 4, v7")
        a("v_lshrrev_b32 v15, 5, v2"); a("v_lshl_add_u32 v14, v15, 3, v14")
        a("v_bfe_u32 v15, v2, 4, 1"); a("v_lshl_add_u32 v14, v15, 2, v14")
        a("v_bfe_u32 v15, v2, 3, 1"); a("v_lshl_add_u32 v14, v15, 1, v14")
        a(f"v_mov_b32 v9, {RING+HB}"); a("v_add_u32 v14, v9, v14")
        a("ds_write_b16 v14, v17")
        a("s_waitcnt lgkmcnt(0)")
        a("ds_read_b64 v[10:11], v9")
        for k in range(8): a(f"v_mov_b32 v{FA+k}, 0")
        a("s_mov_b32 s44, 15")
        def dbody(last):
            a("s_waitcnt lgkmcnt(0)")
            forms(10, 0, 12, 13); forms(10, 1, 14, 15); forms(11, 0, 16, 17); forms(11, 1, 18, 19)
            if not last:
                a("v_add_u32 v9, 8, v9"); a("ds_read_b64 v[10:11], v9")
            for n in range(4):
                a(f"s_waitcnt vmcnt({FW-1 if not last else min(FW-1, 3-n)})")
                mac8(FA, FREG + n * 4, 12 + 2 * n, 13 + 2 * n)
                if not last or n + FW < 4: issue_d(n + FW)
            if not last:
                a("s_mov_b32 s40, s41"); a(f"s_add_u32 s41, s41, {0 if hitx else 4096}")
        lab("L_dloop")
        dbody(False)
        a("s_sub_u32 s44, s44, 1"); a("s_cmp_lg_u32 s44, 0"); a("s_cbranch_scc1 L_dloop")
        dbody(True)
    for k in range(8): a(f"v_bfe_u32 v{8+k}, v35, {k}, 1")
    for k in range(8): a(f"v_and_or_b32 v{FA+k}, v{FA+k}, -2, v{8+k}")
    lab("L_noffn")
    if diag:
        stamp(4); put_stamp(4, 56, 12)
    lds_poll("L_mid", 38, 0, MID, 39, 32)
    a("s_mov_b32 s47, 0x20000")
    a("s_mov_b64 exec, 1")
    lab("L_rdy")
    a(f"global_load_dword v13, v30, s[24:25] sc1")
    a("s_waitcnt vmcnt(0)")
    a("v_readfirstlane_b32 s46, v13")
    a("s_sub_u32 s47, s47, 1"); a("s_cmp_eq_u32 s47, 0"); a("s_cbranch_scc1 L_rdy_ok")
    a("s_cmp_ge_u32 s46, 32"); a("s_cbranch_scc1 L_rdy_ok")
    a("s_sleep 16"); a("s_branch L_rdy")
    lab("L_rdy_ok")
    a("s_mov_b64 exec, -1")
    a("v_lshlrev_b32 v24, 16, v26"); a("v_and_b32 v25, s43, v26"); a("v_lshlrev_b32 v26, 16, v27"); a("v_and_b32 v27, s43, v27")
    lds_poll("L_yp", 38, 0, YP, 39, 2)
    a(f"buffer_store_dwordx4 v[{FA}:{FA+3}], v34, s[52:55], s14 offen {spol}")
    a(f"buffer_store_dwordx4 v[{FA+4}:{FA+7}], v34, s[52:55], s14 offen offset:16 {spol}")
    if YG:
        lds_poll("L_yg", 38, 0, YG, 39, 4)
        a("s_mov_b32 s12, 0")
    else:
        a("s_barrier")
    def gather(srd, lbl, snap, load=True, early=False):
      if load:
        a("s_mov_b32 s47, 0x40000")
        lab(lbl)
        a(f"buffer_load_dwordx4 v[8:11], v32, s[{srd}:{srd+3}], s15 offen {gpol}")
        a(f"buffer_load_dwordx4 v[12:15], v33, s[{srd}:{srd+3}], s15 offen {gpol}")
        a("s_waitcnt vmcnt(0)")
        packbits(16, 8, 8, 17)
        a(f"v_xor_b32 v16, v16, v{snap}")
        a("v_cmp_ne_u32 vcc, 0xff, v16")
        a("s_sub_u32 s47, s47, 1"); a("s_cmp_eq_u32 s47, 0"); a(f"s_cbranch_scc1 {lbl}_ok")
        a("s_cmp_eq_u64 vcc, 0")
        if nosnap: a(f"s_branch {lbl}_ok")
        if early:
            a(f"s_cbranch_scc1 {lbl}_ok")
            a("s_cmp_lg_u32 s12, 0"); a(f"s_cbranch_scc1 {lbl}")
            a("s_mov_b32 s12, 1"); a("s_barrier"); a(f"s_branch {lbl}")
        elif gsl:
            a(f"s_cbranch_scc1 {lbl}_ok"); a(f"s_sleep {gsl}"); a(f"s_branch {lbl}")
        else:
            a(f"s_cbranch_scc0 {lbl}")
        lab(lbl + "_ok")
        for k in range(8): a(f"v_and_b32 v{8+k}, -2, v{8+k}")
      for k in range(4): a(f"v_add_f32 v{8+k}, v{8+k}, v{12+k}")
      for ro in (4, 8):
          if ro == 4: nop(1)
          for k in range(4): a(f"v_add_f32_dpp v{8+k}, v{8+k}, v{8+k} row_ror:{ro} row_mask:0xf bank_mask:0xf")
      for k in range(4): a(f"v_mov_b32 v{12+k}, v{8+k}")
      for k in range(4): a(f"v_permlane16_swap_b32 v{8+k}, v{12+k}")
      for k in range(4): a(f"v_add_f32 v{8+k}, v{8+k}, v{12+k}")
      for k in range(4): a(f"v_mov_b32 v{12+k}, v{8+k}")
      for k in range(4): a(f"v_permlane32_swap_b32 v{8+k}, v{12+k}")
      for k in range(4): a(f"v_add_f32 v{8+k}, v{8+k}, v{12+k}")
      a("v_cvt_pk_bf16_f32 v12, v8, v9"); a("v_cvt_pk_bf16_f32 v13, v10, v11")
      a("v_lshlrev_b32 v8, 16, v12"); a("v_and_b32 v9, s43, v12"); a("v_lshlrev_b32 v10, 16, v13"); a("v_and_b32 v11, s43, v13")
    gather(52, "L_gy", 37, early=bool(YG))
    for k in range(4): a(f"v_mul_f32 v{12+k}, 0xbfb8aa3b, v{8+k}")
    for k in range(4): a(f"v_exp_f32 v{12+k}, v{12+k}")
    for k in range(4): a(f"v_add_f32 v{12+k}, 1.0, v{12+k}")
    for k in range(4): a(f"v_rcp_f32 v{12+k}, v{12+k}")
    for k in range(4): a(f"v_mul_f32 v{8+k}, v{8+k}, v{12+k}")
    a("v_cvt_pk_bf16_f32 v12, v8, v9"); a("v_cvt_pk_bf16_f32 v13, v10, v11")
    a("v_lshlrev_b32 v20, 16, v12"); a("v_and_b32 v21, s43, v12"); a("v_lshlrev_b32 v22, 16, v13"); a("v_and_b32 v23, s43, v13")
    if ft:
        a("v_cmp_gt_u32 vcc, 32, v2"); a("v_and_b32 v12, 16, v2"); a("v_cmp_eq_u32 s[12:13], 0, v12")
        nop(1)
        a("v_cndmask_b32 v20, v22, v20, vcc"); a("v_cndmask_b32 v21, v23, v21, vcc")
        a("v_cndmask_b32 v24, v26, v24, vcc"); a("v_cndmask_b32 v25, v27, v25, vcc")
        a("v_cndmask_b32 v20, v21, v20, s[12:13]"); a("v_cndmask_b32 v24, v25, v24, s[12:13]")
        a("v_lshrrev_b32 v12, 5, v2"); a("v_lshl_add_u32 v31, v12, 2, v31"); a("v_bfe_u32 v12, v2, 4, 1"); a("v_lshl_add_u32 v31, v12, 1, v31")
        for k in range(8): a(f"v_bfe_u32 v{40+k}, v36, {k}, 1")
        stamp(3)
        a("s_mov_b32 s47, 0x40000")
        lab("L_gs")
        a(f"buffer_load_dwordx4 v[8:11], v32, s[48:51], s15 offen {gpol}")
        a(f"buffer_load_dwordx4 v[12:15], v33, s[48:51], s15 offen {gpol}")
        a("s_sub_u32 s47, s47, 1"); a("s_cmp_eq_u32 s47, 0"); a("s_cbranch_scc1 L_gs_to")
        a("s_waitcnt vmcnt(1)")
        a("v_xor_b32 v16, v8, v40")
        for k in range(1, 4): a(f"v_bitop3_b32 v16, v16, v{8+k}, v{40+k} bitop3:0x60")
        a("s_waitcnt vmcnt(0)")
        for k in range(4, 8): a(f"v_bitop3_b32 v16, v16, v{8+k}, v{40+k} bitop3:0x60")
        a("v_and_b32 v16, 1, v16")
        a("v_cmp_eq_u32 vcc, 0, v16")
        for k in range(8): a(f"v_and_b32 v{8+k}, -2, v{8+k}")
        if not nosnap: a("s_cbranch_vccnz L_gs")
        lab("L_gs_to")
        a("s_waitcnt vmcnt(0)")
        for k in range(4): a(f"v_add_f32 v{8+k}, v{8+k}, v{12+k}")
        nop(1)
        a("v_permlane32_swap_b32 v8, v10"); a("v_permlane32_swap_b32 v9, v11")
        a("v_add_f32 v8, v8, v10"); a("v_add_f32 v9, v9, v11")
        nop(2)
        a("v_permlane16_swap_b32 v8, v9")
        a("v_add_f32 v8, v8, v9")
        nop(2)
        a("v_add_f32_dpp v8, v8, v8 row_ror:4 row_mask:0xf bank_mask:0xf")
        nop(2)
        a("v_add_f32_dpp v8, v8, v8 row_ror:8 row_mask:0xf bank_mask:0xf")
        a("v_cvt_pk_bf16_f32 v8, 0, v8")
        a("v_mul_f32 v8, v8, v20")
        a("v_cvt_pk_bf16_f32 v8, 0, v8")
        a("v_add_f32 v8, v8, v24")
        a("v_cvt_pk_bf16_f32 v8, v8, v8")
        a("s_mov_b32 exec_lo, 0x000f000f"); a("s_mov_b32 exec_hi, 0x000f000f")
        a("buffer_store_short v8, v31, s[56:59], 0 offen")
    else:
        stamp(3)
        if YG:
            a("s_cmp_lg_u32 s12, 0"); a("s_cbranch_scc1 L_nb"); a("s_barrier"); lab("L_nb")
        if pp:
            PB = [40, 48, 56]
            def pissue(b):
                a(f"buffer_load_dwordx4 v[{b}:{b+3}], v32, s[48:51], s15 offen {gpol}")
                a(f"buffer_load_dwordx4 v[{b+4}:{b+7}], v33, s[48:51], s15 offen {gpol}")
            pissue(PB[0]); a(f"s_sleep {pp}"); pissue(PB[1]); a(f"s_sleep {pp}")
            a("s_mov_b32 s47, 0x20000")
            lab("L_pp")
            for i in range(3):
                pissue(PB[(i + 2) % 3])
                a("s_waitcnt vmcnt(4)")
                packbits(16, PB[i], 8, 17)
                a("v_xor_b32 v16, v16, v36")
                a("v_cmp_ne_u32 vcc, 0xff, v16")
                nop(1)
                a("s_cmp_eq_u64 vcc, 0")
                a(f"s_cbranch_scc1 L_pp{i}")
            a("s_sub_u32 s47, s47, 1"); a("s_cmp_lg_u32 s47, 0"); a("s_cbranch_scc1 L_pp")
            for i in (2, 1, 0):
                lab(f"L_pp{i}")
                for k in range(8): a(f"v_and_b32 v{8+k}, -2, v{PB[i]+k}")
                if i: a("s_branch L_ppd")
            lab("L_ppd")
            gather(48, "L_gs", 36, load=False)
        else:
            gather(48, "L_gs", 36)
        for k in range(4): a(f"v_mul_f32 v{8+k}, v{8+k}, v{20+k}")
        a("v_cvt_pk_bf16_f32 v12, v8, v9"); a("v_cvt_pk_bf16_f32 v13, v10, v11")
        a("v_lshlrev_b32 v8, 16, v12"); a("v_and_b32 v9, s43, v12"); a("v_lshlrev_b32 v10, 16, v13"); a("v_and_b32 v11, s43, v13")
        for k in range(4): a(f"v_add_f32 v{8+k}, v{8+k}, v{24+k}")
        a("v_cvt_pk_bf16_f32 v12, v8, v9"); a("v_cvt_pk_bf16_f32 v13, v10, v11")
        a("s_mov_b64 exec, 15")
        a("buffer_store_dwordx2 v[12:13], v31, s[56:59], 0 offen")
    if diag:
        stamp(7)
        a("s_mov_b64 exec, -1")
        put_stamp(7, 8, 20); put_stamp(3, 32, 20)
    lab("L_done")
    a("s_endpgm")
    if ctl:
        NCK = 62 // CKI
        lab("L_ctl")
        a("s_and_b32 s12, s2, 7"); a("s_lshr_b32 s13, s2, 3")
        a("s_lshl_b32 s46, s12, 12"); a(f"s_add_u32 s46, s46, {TOFF}")
        a("s_add_u32 s28, s26, s46"); a("s_addc_u32 s29, s27, 0"); a("s_mov_b32 s30, 4096")
        a(f"s_add_u32 s32, s26, {TOFF + 0x8000}"); a("s_addc_u32 s33, s27, 0"); a("s_mov_b32 s34, 4096")
        a("s_lshl_b32 s46, s13, 2"); a("v_mov_b32 v7, s46")
        a("s_lshl_b32 s46, s12, 2"); a("v_mov_b32 v6, s46")
        a(f"s_mov_b32 s44, {CKI * 8}")
        a("s_mov_b32 s40, 0")
        a("s_mov_b32 s50, 0"); a("s_mov_b32 s51, 0"); a("s_mov_b32 s56, 0"); a("v_mov_b32 v20, 0")
        a("s_mov_b64 exec, 1")
        lab("L_cl")
        lds_poll("L_cp", 38, 0, "s44", 39, 2)
        a("s_memrealtime s[48:49]")
        a("s_waitcnt lgkmcnt(0)")
        a("v_mov_b32 v8, s48")
        a("buffer_store_dword v8, v7, s[28:31], s40 offen")
        a("s_cmp_eq_u32 s40, 0"); a("s_cbranch_scc1 L_cnext")
        a("s_sub_u32 s41, s40, 128")
        a("s_load_dwordx16 s[64:79], s[28:29], s41")
        a("s_add_u32 s46, s41, 64")
        a("s_load_dwordx16 s[80:95], s[28:29], s46")
        a("s_cmp_eq_u32 s41, 0"); a("s_cbranch_scc1 L_cn2")
        a("s_sub_u32 s46, s41, 128")
        a("s_load_dwordx8 s[4:11], s[32:33], s46")
        lab("L_cn2")
        a("s_mov_b32 s52, 0"); a("s_mov_b32 s53, 0"); a("s_sub_u32 s54, s50, 2000")
        a("s_waitcnt lgkmcnt(0)")
        for t in range(32):
            a(f"s_sub_u32 s55, s{64+t}, s54"); a("s_cmp_lt_u32 s55, 4000")
            a("s_cselect_b32 s55, s55, 2000"); a("s_addc_u32 s53, s53, 0"); a("s_add_u32 s52, s52, s55")
        a("s_sub_u32 s52, s52, 64000"); a("s_max_u32 s53, s53, 1")
        a("v_cvt_f32_i32 v11, s52"); a("v_cvt_f32_u32 v12, s53")
        a("v_rcp_f32 v12, v12")
        a("s_mov_b32 s52, 0"); a("s_mov_b32 s53, 0"); a("s_sub_u32 s54, s56, 2000")
        for t in range(8):
            a(f"s_sub_u32 s55, s{4+t}, s54"); a("s_cmp_lt_u32 s55, 4000")
            a("s_cselect_b32 s55, s55, 2000"); a("s_addc_u32 s53, s53, 0"); a("s_add_u32 s52, s52, s55")
        a("s_sub_u32 s52, s52, 16000"); a("s_max_u32 s53, s53, 1")
        a("v_mul_f32 v11, v11, v12")
        a("v_cvt_f32_i32 v13, s52"); a("v_cvt_f32_u32 v14, s53"); a("v_rcp_f32 v14, v14")
        a("v_cvt_i32_f32 v12, v11"); a("v_add_u32 v12, s50, v12")
        a("v_mul_f32 v13, v13, v14")
        a("v_readfirstlane_b32 s57, v12")
        a("s_cmp_lg_u32 s13, 0"); a("s_cbranch_scc1 L_cnl")
        a("buffer_store_dword v12, v6, s[32:35], s41 offen sc1")
        lab("L_cnl")
        a("s_sub_u32 s46, s48, s50"); a("s_sub_u32 s47, s57, s56"); a("s_cmp_eq_u32 s41, 0"); a("s_cselect_b32 s46, s46, s47")
        a("v_cvt_f32_i32 v14, s46"); a("v_rcp_f32 v14, v14")
        a("s_mov_b32 s56, s57")
        a(f"v_mul_f32 v11, {f2u(-G / 100.0)}, v11"); a(f"v_mul_f32 v13, {f2u(-G2 / 100.0)}, v13"); a("v_add_f32 v11, v11, v13")
        if LT: a(f"v_mul_f32 v15, {f2u(32.0 * CKI * LT * 16.0)}, v14")
        else: a(f"v_mov_b32 v15, {f2u(D * 16.0)}")
        a("v_mul_f32 v11, v11, v14")
        if KI:
            a(f"v_mul_f32 v13, {f2u(KI / 100.0)}, v11"); a("v_add_f32 v20, v20, v13")
            a("v_add_f32 v11, v11, v20")
        a("v_fma_f32 v15, v15, v11, v15")
        a(f"v_max_f32 v15, {f2u(DMIN * 16.0)}, v15"); a(f"v_min_f32 v15, {f2u(DMAX * 16.0)}, v15")
        a("v_cvt_u32_f32 v15, v15")
        a("ds_write_b32 v38, v15 offset:12")
        lab("L_cnext")
        a("s_mov_b32 s50, s48")
        a(f"s_add_u32 s44, s44, {CKI * 8}")
        a("s_add_u32 s40, s40, 128")
        a(f"s_cmp_lt_u32 s40, {NCK * 128}")
        a("s_cbranch_scc1 L_cl")
        a("s_endpgm")
    L.append(".p2align 10")
    lab("L_end")
    L.append('.section .rodata,"a"'); L.append(".p2align 6"); L.append(f".amdhsa_kernel {KN}")
    a(".amdhsa_next_free_vgpr 168"); a(".amdhsa_next_free_sgpr 96"); a(".amdhsa_accum_offset 168")
    a(".amdhsa_group_segment_fixed_size 0"); a(".amdhsa_kernarg_size 96"); a(".amdhsa_user_sgpr_count 2")
    a(".amdhsa_user_sgpr_kernarg_segment_ptr 1"); a(".amdhsa_system_sgpr_workgroup_id_x 1")
    a(".amdhsa_float_denorm_mode_32 3")
    L.append(".end_amdhsa_kernel")
    return "\n".join(L) + "\n"

if __name__ == "__main__":
    for spec in sys.argv[1:]:
        out, _, kvs = spec.partition(":")
        kw = {}
        if kvs:
            for kv in kvs.split(","):
                k, v = kv.split("=")
                kw[k] = int(v) if v.lstrip("-").isdigit() else v.replace("+", " ")
        open(out, "w").write(gen(**kw))
```

```python
import sys, struct
KN = "recurrent_scan__mha_block_cached__geglu_ffn__decode_kernel"
HEADER = open("recurrent_scan__mha_block_cached__geglu_ffn__decode.s.ref").read().split("; Override launch")[0]

XN, QP, SP, ML, CT, OB, HB, SC = 0, 1024, 1024, 3072, 3136, 3328, 4352, 4608
MISC = 4608 + 8192
YOFF = 0x80000
TOFF = 0x100000
STOFF = 0x30000000
LOG2E = 0x3fb8aa3b
SCALE = 0x3db504f3
f2u = lambda x: hex(struct.unpack("<I", struct.pack("<f", x))[0])

DOC = '''; ---------------------------------------------------------------------------------------------------------
; ---------------------------------------------------------------------------------------------------------'''

def gen(D=20, D1=0, FW=3, WOS=90, WO0=80, WQWIN=8, WOWIN=2, wpol="", diag=0, kvpol="nt", noffn=0, nowo=0, noq=0,
        MID=440, YP=506, prog=0, NSLOT=18, xpol="", gpol="sc1", spol="sc1", snpol="sc1", pfpol="", SNAP=0,
        ctl=1, DMIN=13, DMAX=28, CKI=4, LT=0, G=50, G2=50, pf=1, lprio=3, gsl=0, vpol=None, hitx=0, wide=0, mpf=1, PF0=0, PFW=4, FF0=70, pp=0, YG=0, csl=1, sno=0, KI=0, DE=28, NE=1, nosnap=0, fast=1, csl1=1, bc=1, ft=1, cont=0, own=2, nolds=0, opol='', D16=312, TH2=48, CK2=2, LAST=62):
    L = []
    RING = NSLOT * 8192
    LDS_BYTES = RING + MISC
    assert LDS_BYTES <= 163840
    def a(s): L.append("  " + s)
    def lab(s): L.append(s + ":")
    def nop(n): a(f"s_nop {n-1}")
    def stamp(i):
        if diag: a(f"s_memrealtime s[{60+2*i}:{61+2*i}]")
    def put_stamp(i, off, vt):
        a("s_waitcnt lgkmcnt(0)")
        a("s_lshl_b32 s45, s2, 6"); a(f"s_add_u32 s45, s45, {STOFF}"); a(f"v_mov_b32 v{vt+2}, s45")
        a(f"v_mov_b32 v{vt}, s{60+2*i}"); a(f"v_mov_b32 v{vt+1}, s{61+2*i}")
        a("s_mov_b64 exec, 1")
        a(f"global_store_dwordx2 v{vt+2}, v[{vt}:{vt+1}], s[26:27] offset:{off}")
        a("s_mov_b64 exec, -1")
        nop(2)
    L.append(HEADER.rstrip("\n"))
    L.append(f"; @launch grid=(256,1,1) block=({704 if ctl else 640},1,1) lds={LDS_BYTES}")
    L.append(DOC)
    L.append('.amdgcn_target "amdgcn-amd-amdhsa--gfx950"')
    L.append(".text"); L.append(f".globl {KN}"); L.append(".p2align 8"); L.append(f".type {KN},@function"); lab(KN)
    a("s_cmp_ge_u32 s2, 256")
    a("s_cbranch_scc1 L_done")
    a("s_load_dwordx8 s[4:11], s[0:1], 0")
    stamp(0)
    a("v_lshrrev_b32 v1, 6, v0")
    a("v_and_b32 v2, 63, v0")
    a("v_readfirstlane_b32 s3, v1")
    a("v_lshlrev_b32 v1, 4, v2")
    a("s_and_b32 s36, s2, 7")
    a("s_lshl_b32 s36, s36, 2")
    a("s_bfe_u32 s37, s2, 0x20003")
    a("s_add_u32 s36, s36, s37")
    a("s_lshr_b32 s37, s2, 5")
    a("s_cmp_lg_u32 s3, 0")
    a("s_cbranch_scc1 L_notloader")

    L.append("; ======== loader")
    if lprio: a(f"s_setprio {lprio}")
    a("s_lshl_b32 s38, s37, 5"); a("s_add_u32 s38, s38, s36"); a("s_lshl_b32 s38, s38, 20")
    a("s_mov_b32 s30, 0x100000"); a("s_mov_b32 s31, 0x20000")
    a("s_mov_b32 s40, 0"); a("s_mov_b32 s41, 0")
    def lds_init():
        a(f"v_mov_b32 v3, {RING+CT}")
        a("v_lshl_add_u32 v4, v2, 2, v3"); a("v_mov_b32 v5, 0")
        a("s_mov_b64 exec, 0xff")
        a("ds_write_b32 v4, v5")
        a("s_mov_b64 exec, -1")
        a(f"v_mov_b32 v8, {D16 or D * 16}"); a("ds_write_b32 v3, v8 offset:12")
    if not fast: lds_init()
    a("s_mov_b32 m0, 0")
    a("s_waitcnt lgkmcnt(0)")
    a("s_add_u32 s28, s6, s38"); a("s_addc_u32 s29, s7, 0"); a("s_add_u32 s32, s8, s38"); a("s_addc_u32 s33, s9, 0")
    def publish(k):
        a(f"v_add_u32 v5, {k}, v7"); a("ds_write_b32 v3, v5")
    def ld_step(m, Dw, first=False, kvpol=kvpol):
        j = m & 7
        if j == 0 and not (first and m == 0): a("s_mov_b32 m0, s41")
        if j == 4: a("s_add_u32 m0, s41, 4096")
        waited = not (first and m < Dw)
        if waited: a(f"s_waitcnt vmcnt({Dw-1})")
        elif j in (0, 4) and m: nop(1)
        a(f"buffer_load_dwordx4 v1, s[28:31], s40 offen offset:{(j&3)*1024} {kvpol} lds")
        if waited and (m - Dw + 1) % 4 == 0: publish((m - Dw + 1) // 4)
        if j == 3: a("s_add_u32 s40, s40, 4096")
        if j == 7:
            a("s_add_u32 s40, s40, 4096"); a("s_add_u32 s41, s41, 8192")
            a(f"s_cmp_eq_u32 s41, {RING}"); a("s_cselect_b32 s41, 0, s41")
    Dfirst = D1 if D1 else D
    a("v_mov_b32 v7, 0")
    if prog: a("v_mov_b32 v10, 0"); a("v_mov_b32 v11, 0")
    for m in range(32):
        ld_step(m, Dfirst, first=True)
        if m == (Dfirst - 1 if fast else 7):
            if fast:
                lds_init(); a("s_waitcnt lgkmcnt(0)")
            a("s_barrier")
    def fw(w): return (w - NSLOT) % 4
    def fo(w): return (w - NSLOT) // 4 + 1
    a("s_mov_b32 s44, 0")
    a("s_mov_b32 s47, 8")
    a(f"ds_read_b32 v6, v3 offset:{16 + 4 * fw(0)}")
    a("ds_read_b32 v8, v3 offset:12")
    Ds = list(range(DMIN, DMAX + 1)) if ctl else [D]
    def slow(lbl, w, back):
        lab(lbl)
        a("s_sleep 1")
        a(f"ds_read_b32 v6, v3 offset:{16 + 4 * fw(w)}")
        a("s_waitcnt lgkmcnt(0)")
        a("v_readfirstlane_b32 s45, v6")
        a(f"s_sub_i32 s45, s45, {fo(w)}")
        a("s_cmp_ge_i32 s45, s44")
        a(f"s_cbranch_scc0 {lbl}")
        a(f"s_branch {back}")
    lab("L_disp")
    a("v_add_u32 v7, 8, v7")
    a("s_add_u32 s44, s44, 1")
    a("s_cmp_eq_u32 s44, 64")
    a("s_cbranch_scc1 L_drain")
    a("s_cmp_eq_u32 s44, 32")
    a("s_cselect_b32 s28, s32, s28"); a("s_cselect_b32 s29, s33, s29"); a("s_cselect_b32 s40, 0, s40")
    if prog: a("s_memrealtime s[76:77]")
    a("s_waitcnt lgkmcnt(0)")
    a("v_readfirstlane_b32 s45, v6")
    a("v_readfirstlane_b32 s46, v8")
    if prog:
        a("s_mov_b32 m0, s44"); nop(4); a("v_writelane_b32 v10, s76, m0"); a("v_writelane_b32 v11, s46, m0")
    a(f"s_sub_i32 s45, s45, {fo(0)}")
    a("s_cmp_ge_i32 s45, s44")
    a("s_cbranch_scc0 L_lslow_0")
    lab("L_lfree_0")
    if ctl:
        a("s_add_u32 s47, s47, s46"); a("s_lshr_b32 s46, s47, 4"); a("s_and_b32 s47, s47, 15")
        def casc(lst):
            if len(lst) == 1:
                a(f"s_branch L_c{lst[0]}"); return
            mid = len(lst) // 2
            a(f"s_cmp_ge_u32 s46, {lst[mid]}")
            if len(lst) - mid == 1:
                a(f"s_cbranch_scc1 L_c{lst[mid]}")
                casc(lst[:mid])
            else:
                l2 = f"L_k{lst[mid]}_{len(lst)}"
                a(f"s_cbranch_scc1 {l2}")
                casc(lst[:mid]); lab(l2); casc(lst[mid:])
        if vpol is not None:
            a("s_cmp_ge_u32 s44, 32"); a("s_cbranch_scc1 L_vc")
        if DE:
            a(f"s_cmp_ge_u32 s44, {64 - NE}"); a(f"s_cbranch_scc1 L_c{DE}")
        casc(Ds)
        if DE and DE not in Ds: Ds = Ds + [DE]
    if vpol is not None:
        lab("L_vc")
        for w in range(4):
            if w:
                a("s_waitcnt lgkmcnt(0)")
                a("v_readfirstlane_b32 s45, v6")
                a(f"s_sub_i32 s45, s45, {fo(w)}")
                a("s_cmp_ge_i32 s45, s44")
                a(f"s_cbranch_scc0 L_vslow_{w}")
                lab(f"L_vfree_{w}")
            for j in range(8):
                ld_step(8 * w + j, D, kvpol=vpol)
                if j == 4:
                    a(f"ds_read_b32 v6, v3 offset:{16 + 4 * fw((w + 1) & 3)}")
                    if w == 3: a("ds_read_b32 v8, v3 offset:12")
        a("s_branch L_disp")
        for w in range(1, 4): slow(f"L_vslow_{w}", w, f"L_vfree_{w}")
    for Dw in Ds:
        npub = sum(1 for j in range(5, 8) if (j - Dw + 1) % 4 == 0)
        lab(f"L_c{Dw}")
        for w in range(4):
            if w:
                a(f"s_waitcnt lgkmcnt({npub})")
                a("v_readfirstlane_b32 s45, v6")
                a(f"s_sub_i32 s45, s45, {fo(w)}")
                a("s_cmp_ge_i32 s45, s44")
                a(f"s_cbranch_scc0 L_lslow{Dw}_{w}")
                lab(f"L_lfree{Dw}_{w}")
            for j in range(8):
                ld_step(8 * w + j, Dw)
                if j == 4:
                    a(f"ds_read_b32 v6, v3 offset:{16 + 4 * fw((w + 1) & 3)}")
                    if w == 3: a("ds_read_b32 v8, v3 offset:12")
        a("s_branch L_disp")
    slow("L_lslow_0", 0, "L_lfree_0")
    for Dw in Ds:
        for w in range(1, 4): slow(f"L_lslow{Dw}_{w}", w, f"L_lfree{Dw}_{w}")
    lab("L_drain")
    for r in range((max(Ds) - 1) // 4 * 4, -1, -4):
        a(f"s_waitcnt vmcnt({r})"); publish(-(r // 4))
    if diag:
        stamp(2)
        a("s_load_dwordx2 s[26:27], s[0:1], 88")
        if prog:
            a("s_waitcnt lgkmcnt(0)")
            a("v_writelane_b32 v10, s64, 0")
            a("s_lshl_b32 s45, s2, 8"); a(f"s_add_u32 s45, s45, {STOFF + 0x4000}"); a("v_lshrrev_b32 v9, 2, v1"); a("v_add_u32 v9, s45, v9")
            a("global_store_dword v9, v10, s[26:27]")
            a("v_add_u32 v9, 0x10000, v9")
            a("global_store_dword v9, v11, s[26:27]")
        put_stamp(0, 0, 12); put_stamp(2, 24, 12)
    a("s_endpgm")

    def wave_allsum(r, t):
        for ro in (8, 4, 2, 1):
            nop(2)
            a(f"v_add_f32_dpp v{r}, v{r}, v{r} row_ror:{ro} row_mask:0xf bank_mask:0xf")
        a(f"v_mov_b32 v{t}, v{r}"); nop(2)
        a(f"v_permlane16_swap_b32 v{r}, v{t}"); a(f"v_add_f32 v{r}, v{r}, v{t}"); a(f"v_mov_b32 v{t}, v{r}"); nop(2)
        a(f"v_permlane32_swap_b32 v{r}, v{t}"); a(f"v_add_f32 v{r}, v{r}, v{t}")
    def layernorm(hook):
        for k in range(4):
            a(f"v_lshlrev_b32 v{12+2*k}, 16, v{8+k}"); a(f"v_and_b32 v{13+2*k}, s43, v{8+k}")
        a("v_add_f32 v20, v12, v13"); a("v_add_f32 v21, v14, v15"); a("v_add_f32 v22, v16, v17"); a("v_add_f32 v23, v18, v19")
        a("v_add_f32 v20, v20, v21"); a("v_add_f32 v22, v22, v23"); a("v_add_f32 v20, v20, v22")
        wave_allsum(20, 21); hook()
        a("v_mul_f32 v20, 0x3b000000, v20")
        a("v_mov_b32 v22, 0")
        for k in range(8):
            a(f"v_sub_f32 v21, v{12+k}, v20"); a("v_fmac_f32 v22, v21, v21")
        hook(); wave_allsum(22, 21); hook()
        a("v_mul_f32 v22, 0x3b000000, v22")
        a("v_cvt_pk_bf16_f32 v20, v20, v22")
        a("v_and_b32 v22, s43, v20"); a("v_lshlrev_b32 v20, 16, v20")
        a("v_add_f32 v22, 0x3727c5ac, v22")
        a("v_cvt_pk_bf16_f32 v22, v22, v22"); a("v_and_b32 v22, s43, v22")
        a("v_sqrt_f32 v22, v22"); nop(1)
        a("v_cvt_pk_bf16_f32 v22, v22, v22"); a("v_and_b32 v22, s43, v22")
        a("v_rcp_f32 v22, v22"); hook()
        for k in range(8): a(f"v_sub_f32 v{12+k}, v{12+k}, v20")
        for k in range(4): a(f"v_cvt_pk_bf16_f32 v{8+k}, v{12+2*k}, v{13+2*k}")
        for k in range(4):
            a(f"v_lshlrev_b32 v{12+2*k}, 16, v{8+k}"); a(f"v_and_b32 v{13+2*k}, s43, v{8+k}")
        for k in range(8): a(f"v_mul_f32 v{12+k}, v22, v{12+k}")
        for k in range(4): a(f"v_cvt_pk_bf16_f32 v{8+k}, v{12+2*k}, v{13+2*k}")
    def forms(pair, odd, lo, hi):
        if not odd:
            a(f"v_and_b32 v{lo}, 0xffff, v{pair}"); a(f"v_lshlrev_b32 v{hi}, 16, v{pair}")
        else:
            a(f"v_lshrrev_b32 v{lo}, 16, v{pair}"); a(f"v_and_b32 v{hi}, s43, v{pair}")
    def mac8(acc, w, lo, hi):
        for d in range(4):
            a(f"v_dot2c_f32_bf16 v{acc+2*d}, v{w+d}, v{lo}")
            a(f"v_dot2c_f32_bf16 v{acc+2*d+1}, v{w+d}, v{hi}")
    def lds_poll(lbl, addr, off, tgt, vt, sleep):
        lab(lbl)
        a(f"ds_read_b32 v{vt}, v{addr} offset:{off}")
        a("s_waitcnt lgkmcnt(0)")
        a(f"v_readfirstlane_b32 s45, v{vt}")
        a(f"s_cmp_ge_u32 s45, {tgt}")
        a(f"s_cbranch_scc1 {lbl}_ok")
        if sleep: a(f"s_sleep {sleep}")
        a(f"s_branch {lbl}")
        lab(lbl + "_ok")
    def packbits(dst, src, n, t):
        a(f"v_and_b32 v{dst}, 1, v{src}")
        for k in range(1, n):
            a(f"v_and_b32 v{t}, 1, v{src+k}"); a(f"v_lshl_or_b32 v{dst}, v{t}, {k}, v{dst}")
    WREG = 40

    lab("L_notloader")
    a("v_lshrrev_b32 v3, 4, v2")
    a("v_and_b32 v4, 15, v2")
    a("s_mov_b32 s43, 0xffff0000")
    a("s_mov_b32 s42, " + hex(LOG2E))
    a("s_lshl_b32 s39, s37, 10")
    a("s_mov_b32 s30, 1024"); a("s_mov_b32 s31, 0x20000"); a("s_mov_b32 s35, 0x20000")
    a("s_cmp_ge_u32 s3, 5")
    a("s_cbranch_scc1 L_helper")

    a("s_sub_u32 s3, s3, 1")
    a("s_lshl_b32 s38, s3, 20"); a("s_lshl_b32 s46, s36, 8"); a("s_add_u32 s38, s38, s46")
    a("v_lshlrev_b32 v5, 18, v3"); a("v_lshl_add_u32 v5, v4, 4, v5"); a("v_add_u32 v5, s38, v5")
    a("s_mov_b32 s34, 0x400000")
    a("s_lshl_b32 s40, s37, 15")
    a("s_waitcnt lgkmcnt(0)")
    a("s_add_u32 s28, s4, s39"); a("s_addc_u32 s29, s5, 0")
    a("s_mov_b32 s32, s10"); a("s_mov_b32 s33, s11")
    a(f"buffer_load_dwordx4 v[8:11], v1, s[28:31], 0 offen {xpol}")
    wq = {"issued": 0}
    def issue_wq(window=True):
        i = wq["issued"]
        if i >= 32 or noq: return
        if window: a(f"s_waitcnt vmcnt({WQWIN-1})")
        r = WREG + i * 4
        a(f"buffer_load_dwordx4 v[{r}:{r+3}], v5, s[32:35], s40 offen {wpol}")
        a("s_add_u32 s40, s40, 0x2000")
        if i % 4 == 3: a("s_and_b32 s40, s40, 0x3ffff")
        wq["issued"] += 1
    for i in range(WQWIN): issue_wq(False)
    a("s_barrier")
    a(f"s_waitcnt vmcnt({WQWIN if not noq else 0})")
    layernorm(issue_wq)
    a(f"s_mov_b32 s45, {RING+XN}")
    a("v_add_u32 v6, s45, v1")
    a("ds_write_b128 v6, v[8:11]")
    issue_wq()
    a("s_lshl_b32 s46, s3, 8"); a("s_add_u32 s46, s46, s45")
    a("v_lshlrev_b32 v7, 6, v3"); a("v_add_u32 v7, s46, v7")
    a("s_waitcnt lgkmcnt(0)")
    for k in range(8):
        a(f"s_add_u32 s46, s37, {k}"); a("s_and_b32 s46, s46, 7"); a("s_lshl_b32 s46, s46, 3")
        a("v_add_u32 v12, s46, v7")
        a(f"ds_read_b64 v[{16+2*k}:{17+2*k}], v12")
    for k in range(8): a(f"v_mov_b32 v{32+k}, 0")
    a("s_waitcnt lgkmcnt(0)")
    for i in range(32 if not noq else 0):
        forms(16 + i // 2, i & 1, 12, 13)
        if wq["issued"] < 32: issue_wq()
        else: a(f"s_waitcnt vmcnt({31 - i})")
        mac8(32, WREG + i * 4, 12, 13)
    a("v_lshlrev_b32 v7, 5, v4")
    a(f"v_add_u32 v7, {RING}, v7")
    a("v_lshl_add_u32 v6, v3, 2, v7")
    a("s_lshl_b32 s46, s3, 9"); a("v_add_u32 v6, s46, v6")
    for k in range(4): a(f"v_permlane16_swap_b32 v{32+2*k}, v{33+2*k}")
    for k in range(4): a(f"v_add_f32 v{32+2*k}, v{32+2*k}, v{33+2*k}")
    a("v_mov_b32 v39, 1")
    a("v_permlane32_swap_b32 v32, v34"); a("v_permlane32_swap_b32 v36, v38")
    a("v_add_f32 v32, v32, v34"); a("v_add_f32 v36, v36, v38")
    a(f"ds_write_b32 v6, v32 offset:{QP}"); a(f"ds_write_b32 v6, v36 offset:{QP+16}")
    a(f"v_mov_b32 v38, {RING+CT}")
    a("s_waitcnt lgkmcnt(0)")
    a("s_mov_b64 exec, 1")
    a("ds_add_u32 v38, v39 offset:4")
    a("s_mov_b64 exec, -1")
    lds_poll("L_qw", 38, 4, 4, 39, 1)
    for w in range(4):
        a(f"ds_read_b128 v[{40+w*8}:{43+w*8}], v7 offset:{QP+w*512}")
        a(f"ds_read_b128 v[{44+w*8}:{47+w*8}], v7 offset:{QP+w*512+16}")
    a("s_mov_b32 s41, " + hex(SCALE))
    a("v_mov_b32 v16, 0xff800000")
    a("s_lshl_b32 s44, s3, 13"); a("v_add_u32 v36, s44, v1")
    a("s_lshl_b32 s46, s3, 2"); a("v_add_u32 v37, s46, v38")
    a("s_lshl_b32 s47, s3, 1"); a("s_add_u32 s47, s47, 1")
    a("v_mov_b32 v27, 0")
    a("s_lshl_b32 s40, s3, 11"); a(f"s_add_u32 s40, s40, {RING+SC}")
    a("v_lshlrev_b32 v17, 4, v3"); a("v_add_u32 v17, s40, v17")
    a("v_and_b32 v5, 14, v4"); a("v_add_u32 v5, v5, v17")
    a("v_and_b32 v26, 2, v2"); a("v_cmp_ne_u32 vcc, 0, v26")
    a("s_waitcnt lgkmcnt(4)")
    for k in range(8): a(f"v_add_f32 v{40+k}, v{40+k}, v{48+k}")
    a("s_waitcnt lgkmcnt(0)")
    for k in range(8): a(f"v_add_f32 v{56+k}, v{56+k}, v{64+k}")
    for k in range(8): a(f"v_add_f32 v{40+k}, v{40+k}, v{56+k}")
    for k in range(4): a(f"v_cvt_pk_bf16_f32 v{72+k}, v{40+2*k}, v{41+2*k}")
    stamp(1)
    Q = 72; DR = 40
    S = list(range(18, 26))
    def half2(lbl):
        a("s_cmp_gt_u32 s45, s47")
        a(f"s_cbranch_scc1 {lbl}_ok")
        a("s_add_u32 s46, s47, 1")
        lds_poll(lbl, 38, 0, "s46", 39, csl)
        for j in range(4, 8 if not nolds else 4): a(f"ds_read_b128 v[{DR+4*j}:{DR+4*j+3}], v36 offset:{j*1024}")
        a("v_add_u32 v27, 1, v27")
        a("s_add_u32 s44, s44, 0x8000"); a(f"s_sub_u32 s46, s44, {RING}"); a("s_cselect_b32 s44, s44, s46")
        a("v_add_u32 v36, s44, v1")
        a("s_add_u32 s47, s47, 8")
    lab("L_kloop")
    lds_poll("L_pk", 38, 0, "s47", 39, csl1)
    for j in range(4 if not nolds else 0): a(f"ds_read_b128 v[{DR+4*j}:{DR+4*j+3}], v36 offset:{j*1024}")
    for j in range(8): a(f"v_mov_b32 v{S[j]}, 0")
    for j in range(4):
        a(f"s_waitcnt lgkmcnt({3-j})")
        for d in range(4): a(f"v_dot2c_f32_bf16 v{S[j]}, v{DR+4*j+d}, v{Q+d}")
    half2("L_pk2")
    for j in range(4, 8):
        a(f"s_waitcnt lgkmcnt({7-j})")
        if j == 7: a("ds_write_b32 v37, v27 offset:16")
        for d in range(4): a(f"v_dot2c_f32_bf16 v{S[j]}, v{DR+4*j+d}, v{Q+d}")
    for j in range(4): a(f"v_add_f32_dpp v{S[j]}, v{S[j]}, v{S[j]} row_ror:8 row_mask:0xf bank_mask:0x3")
    for j in range(4): a(f"v_add_f32_dpp v{S[j]}, v{S[j+4]}, v{S[j+4]} row_ror:8 row_mask:0xf bank_mask:0xc")
    for j in range(2): a(f"v_add_f32_dpp v{S[j]}, v{S[j]}, v{S[j]} row_ror:12 row_mask:0xf bank_mask:0x5")
    nop(1)
    for j in range(2): a(f"v_add_f32_dpp v{S[j]}, v{S[j+2]}, v{S[j+2]} row_ror:4 row_mask:0xf bank_mask:0xa")
    nop(1)
    for j in range(2): a(f"v_add_f32_dpp v{S[j]}, v{S[j]}, v{S[j]} quad_perm:[2,3,0,1] row_mask:0xf bank_mask:0xf")
    a(f"v_cndmask_b32 v{S[2]}, v{S[0]}, v{S[1]}, vcc")
    nop(2)
    a(f"v_add_f32_dpp v{S[2]}, v{S[2]}, v{S[2]} quad_perm:[1,0,3,2] row_mask:0xf bank_mask:0xf")
    a(f"v_cvt_pk_bf16_f32 v{S[2]}, 0, v{S[2]}")
    a(f"v_mul_f32 v{S[2]}, s41, v{S[2]}")
    a(f"v_cvt_pk_bf16_f32 v{S[2]}, v{S[2]}, v{S[2]}")
    a(f"ds_write_b16 v5, v{S[2]}")
    a(f"v_and_b32 v{S[3]}, s43, v{S[2]}")
    a(f"v_max_f32 v16, v16, v{S[3]}")
    a("v_add_u32 v5, 64, v5")
    a("s_cmp_lt_u32 s47, 256")
    a("s_cbranch_scc1 L_kloop")
    a("v_lshlrev_b32 v5, 1, v1"); a("v_add_u32 v5, s40, v5")
    a("s_waitcnt lgkmcnt(0)")
    a("ds_read_b128 v[40:43], v5"); a("ds_read_b128 v[44:47], v5 offset:16")
    for ro in (8, 4, 2, 1):
        a(f"v_max_f32_dpp v16, v16, v16 row_ror:{ro} row_mask:0xf bank_mask:0xf"); nop(2)
    a("v_mov_b32 v18, v16"); nop(2)
    a("v_permlane16_swap_b32 v16, v18"); a("v_max_f32 v16, v16, v18"); a("v_mov_b32 v18, v16"); nop(2)
    a("v_permlane32_swap_b32 v16, v18"); a("v_max_f32 v16, v16, v18")
    a("v_mul_f32 v18, s42, v16")
    a("s_waitcnt lgkmcnt(0)")
    for k in range(8):
        a(f"v_lshlrev_b32 v{48+2*k}, 16, v{40+k}"); a(f"v_and_b32 v{49+2*k}, s43, v{40+k}")
    for k in range(16): a(f"v_fma_f32 v{48+k}, v{48+k}, s42, -v18")
    for k in range(16): a(f"v_exp_f32 v{48+k}, v{48+k}")
    a("v_add_f32 v19, v48, v49"); a("v_add_f32 v20, v50, v51")
    for k in range(4, 16, 2):
        a(f"v_add_f32 v19, v19, v{48+k}"); a(f"v_add_f32 v20, v20, v{49+k}")
    a("v_add_f32 v19, v19, v20")
    wave_allsum(19, 20)
    a(f"v_subrev_u32 v21, {CT-ML}, v37")
    a("ds_write_b32 v21, v16"); a("ds_write_b32 v21, v19 offset:16")
    a("v_mov_b32 v39, 1")
    a("s_waitcnt lgkmcnt(0)")
    a("s_mov_b64 exec, 1")
    a("ds_add_u32 v38, v39 offset:8")
    a("s_mov_b64 exec, -1")
    lds_poll("L_mw", 38, 8, 4, 39, 1)
    a(f"v_subrev_u32 v21, {CT-ML}, v38")
    a("ds_read_b128 v[8:11], v21"); a("ds_read_b128 v[12:15], v21 offset:16")
    a("s_waitcnt lgkmcnt(1)")
    a("v_max3_f32 v20, v8, v9, v10"); a("v_max_f32 v20, v20, v11")
    for w in range(4): a(f"v_sub_f32 v{8+w}, v{8+w}, v20")
    a("v_sub_f32 v16, v16, v20")
    for w in range(4): a(f"v_mul_f32 v{8+w}, s42, v{8+w}")
    a("v_mul_f32 v16, s42, v16")
    for w in range(4): a(f"v_exp_f32 v{8+w}, v{8+w}")
    a("v_exp_f32 v16, v16")
    a("s_waitcnt lgkmcnt(0)")
    a("v_mul_f32 v20, v8, v12"); a("v_fmac_f32 v20, v9, v13"); a("v_fmac_f32 v20, v10, v14"); a("v_fmac_f32 v20, v11, v15")
    a("v_rcp_f32 v20, v20"); nop(1)
    a("v_mul_f32 v16, v16, v20")
    for k in range(16): a(f"v_mul_f32 v{48+k}, v16, v{48+k}")
    for k in range(8): a(f"v_cvt_pk_bf16_f32 v{40+k}, v{48+2*k}, v{49+2*k}")
    a("ds_write_b128 v5, v[40:43]"); a("ds_write_b128 v5, v[44:47] offset:16")
    for k in range(8): a(f"v_mov_b32 v{8+k}, 0")
    a("s_waitcnt lgkmcnt(0)")
    L.append("; ======== V phase")
    lab("L_vloop")
    a("ds_read_b128 v[28:31], v17")
    a("v_add_u32 v17, 64, v17")
    lds_poll("L_pv", 38, 0, "s47", 39, csl1)
    for j in range(4 if not nolds else 0): a(f"ds_read_b128 v[{DR+4*j}:{DR+4*j+3}], v36 offset:{j*1024}")
    for j in range(8): forms(28 + j // 2, j & 1, 76 + 2 * j, 77 + 2 * j)
    for j in range(4):
        a(f"s_waitcnt lgkmcnt({3-j})")
        mac8(8, DR + 4 * j, 76 + 2 * j, 77 + 2 * j)
    half2("L_pv2")
    for j in range(4, 8):
        a(f"s_waitcnt lgkmcnt({7-j})")
        if j == 7: a("ds_write_b32 v37, v27 offset:16")
        mac8(8, DR + 4 * j, 76 + 2 * j, 77 + 2 * j)
    a("s_cmp_lt_u32 s47, 512")
    a("s_cbranch_scc1 L_vloop")
    nop(2)
    for k in range(4): a(f"v_permlane16_swap_b32 v{8+2*k}, v{9+2*k}")
    for k in range(4): a(f"v_add_f32 v{8+2*k}, v{8+2*k}, v{9+2*k}")
    nop(1)
    a("v_permlane32_swap_b32 v8, v10"); a("v_permlane32_swap_b32 v12, v14")
    a("v_add_f32 v8, v8, v10"); a("v_add_f32 v12, v12, v14")
    a(f"ds_write_b32 v6, v8 offset:{SP}"); a(f"ds_write_b32 v6, v12 offset:{SP+16}")
    a("s_waitcnt lgkmcnt(0)")
    a("s_barrier")
    if diag:
        a("s_cmp_lg_u32 s3, 0"); a("s_cbranch_scc1 L_done")
        a("s_load_dwordx2 s[26:27], s[0:1], 88")
        put_stamp(1, 16, 8)
    a("s_endpgm")

    L.append("; ======== helpers")
    lab("L_helper")
    a("s_sub_u32 s3, s3, 5")
    if pf:
        a("s_cmp_lg_u32 s3, 2"); a("s_cbranch_scc1 L_nopf")
        a("s_getpc_b64 s[46:47]")
        lab("L_pc")
        a(f"s_sub_u32 s46, s46, L_pc-{KN}"); a("s_subb_u32 s47, s47, 0")
        a("s_lshr_b32 s45, s2, 3"); a("s_min_u32 s45, s45, (L_end-" + KN + ")/1024-1"); a("s_lshl_b32 s45, s45, 10")
        a("v_add_u32 v6, s45, v1")
        a(f"global_load_dwordx4 v[8:11], v6, s[46:47] {pfpol}")
        lab("L_nopf")
    a("s_load_dwordx2 s[12:13], s[0:1], 32")
    a("s_load_dwordx8 s[16:23], s[0:1], 48")
    a("s_load_dwordx4 s[24:27], s[0:1], 80")
    a(f"v_mov_b32 v38, {RING+CT}")
    a("s_barrier")
    a("s_waitcnt lgkmcnt(0)")
    a("s_lshl_b32 s38, s37, 16")
    a("s_add_u32 s48, s26, s38"); a("s_addc_u32 s49, s27, 0"); a("s_mov_b32 s50, 0x10000"); a("s_mov_b32 s51, 0x20000")
    a("s_cmp_ge_u32 s3, 4"); a("s_cbranch_scc1 L_notwo")

    a("v_lshlrev_b32 v34, 5, v4"); a("v_lshrrev_b32 v7, 1, v3"); a("v_lshl_add_u32 v34, v7, 4, v34")
    if cont: a("v_lshlrev_b32 v34, 4, v4"); a("v_lshl_add_u32 v34, v7, 8, v34")
    a("s_lshl_b32 s14, s3, 9"); a("s_lshl_b32 s46, s36, 11"); a("s_add_u32 s14, s14, s46")
    a("s_mov_b32 s32, s12"); a("s_mov_b32 s33, s13"); a("s_mov_b32 s34, 0x400000")
    a("s_lshl_b32 s46, s36, 17"); a("s_lshl_b32 s47, s3, 8"); a("s_add_u32 s46, s46, s47")
    a("v_lshlrev_b32 v5, 15, v3"); a("v_lshl_add_u32 v5, v4, 4, v5"); a("v_add_u32 v5, s46, v5")
    a("s_mov_b32 s40, 0"); a("s_mov_b32 s46, 0x05040100"); a("s_mov_b32 s47, 0x07060302")
    if mpf:
        a("s_cmp_eq_u32 s3, 1"); a("s_cselect_b32 s28, s18, s16"); a("s_cselect_b32 s29, s19, s17")
        a("s_cmp_eq_u32 s3, 2"); a("s_cselect_b32 s28, s20, s28"); a("s_cselect_b32 s29, s21, s29")
        a("s_cmp_eq_u32 s3, 3"); a("s_cselect_b32 s30, 0, 0x1c0000")
        a("s_mul_i32 s41, s2, 7168")
        a("s_lshl_b32 s44, s2, 14"); a("s_lshl_b32 s45, s3, 12"); a("s_add_u32 s15, s44, s45")
        if own:
            a("s_lshl_b32 s44, s36, 17"); a("s_lshl_b32 s15, s37, 14"); a("s_add_u32 s15, s15, s44"); a("s_add_u32 s15, s15, s45")
            a("s_lshl_b32 s44, s36, 16"); a("s_lshl_b32 s45, s37, 13"); a("s_add_u32 s44, s44, s45")
            a("s_cmp_eq_u32 s3, 2"); a("s_cselect_b32 s41, s44, s41")
        lds_poll("L_pf0", 38, 0, PF0, 39, 8)
        if own == 2:
            a("v_lshrrev_b32 v6, 5, v2"); a("v_mul_u32_u24 v6, 3584, v6"); a("v_and_b32 v7, 0x1f0, v1"); a("v_add_u32 v6, v6, v7")
            a("s_and_b32 s44, s2, 7"); a("s_lshr_b32 s45, s2, 3"); a("s_mul_i32 s45, s45, 57344"); a("s_lshl_b32 s13, s44, 9"); a("s_add_u32 s45, s45, s13")
            a("s_cmp_eq_u32 s44, 7"); a("s_cselect_b32 s44, 0, s30")
            a("s_cmp_lt_u32 s3, 2"); a("s_cselect_b32 s30, s44, s30"); a("s_cselect_b32 s41, s45, s41")
            a("s_cselect_b64 vcc, -1, 0"); a("s_mov_b32 s13, 1024"); a("s_cselect_b32 s13, 7168, s13")
            a("v_cndmask_b32 v6, v1, v6, vcc")
            for i in range(12):
                if i >= PFW: a(f"s_waitcnt vmcnt({PFW - 1})")
                r = WREG + 4 * i
                if i < 8:
                    a(f"buffer_load_dwordx4 v[{r}:{r+3}], v6, s[28:31], s41 offen"); a("s_add_u32 s41, s41, s13")
                else:
                    a(f"buffer_load_dwordx4 v[{r}:{r+3}], v1, s[32:35], s15 offen offset:{(i - 8) * 1024}")
        else:
            if own:
                a("s_mov_b32 s45, 0x200000"); a("s_cmp_eq_u32 s3, 2"); a("s_cselect_b32 s45, 7168, s45"); a("s_add_u32 s45, s45, s41")
                a(f"buffer_load_dwordx4 v[{WREG+44}:{WREG+47}], v1, s[28:31], s45 offen")
            for i in range(11):
                if i >= PFW: a(f"s_waitcnt vmcnt({PFW - 1})")
                r = WREG + 4 * i
                if i < 7:
                    a(f"buffer_load_dwordx4 v[{r}:{r+3}], v1, s[28:31], s41 offen offset:{(i % 4) * 1024}")
                    if i == 3: a("s_add_u32 s41, s41, 4096")
                else:
                    a(f"buffer_load_dwordx4 v[{r}:{r+3}], v1, s[32:35], s15 offen offset:{(i - 7) * 1024}")
    a(f"s_mul_i32 s44, s3, {WOS}"); a(f"s_add_u32 s44, s44, {WO0}")
    lds_poll("L_wos", 38, 0, "s44", 39, 32)
    a(f"buffer_load_dwordx4 v[8:11], v34, s[48:51], s14 offen {snpol}")
    a("s_waitcnt vmcnt(0)")
    packbits(35, 8, 4, 20)
    a("v_xor_b32 v35, 15, v35")
    def issue_o(i):
        r = WREG + i * 4
        a(f"buffer_load_dwordx4 v[{r}:{r+3}], v5, s[32:35], s40 offen offset:{(i%4)*1024} {wpol}")
        if i % 4 == 3: a(f"s_add_u32 s40, s40, {0 if hitx else 4096}")
    for i in range(WOWIN if not nowo else 0): issue_o(i)
    for i in range(32 if not nowo else 0):
        a(f"s_waitcnt vmcnt({min(WOWIN - 1, 31 - i)})")
        if i + WOWIN < 32: issue_o(i + WOWIN)
        if i & 1:
            A = WREG + 8 * (i // 2); B = A + 4
            for d in range(4):
                a(f"v_perm_b32 v12, v{B+d}, v{A+d}, s46")
                a(f"v_perm_b32 v{B+d}, v{B+d}, v{A+d}, s47")
                a(f"v_mov_b32 v{A+d}, v12")
    a("v_lshrrev_b32 v7, 1, v1"); a(f"v_add_u32 v7, {RING}, v7")
    a("s_lshl_b32 s45, s3, 8"); a(f"s_add_u32 s45, s45, {RING+OB}")
    a("v_lshrrev_b32 v4, 2, v1"); a("v_add_u32 v4, s45, v4")
    a("v_lshlrev_b32 v3, 6, v3"); a("v_add_u32 v3, s45, v3")
    for k in range(4): a(f"v_bfe_u32 v{k if k < 3 else 5}, v35, {k}, 1".replace("v0,", "v0,"))
    TB = [0, 1, 2, 5]
    for k in range(8): a(f"v_mov_b32 v{8+k}, 0")
    stamp(5)
    a("s_barrier")
    for w in range(4): a(f"ds_read_b64 v[{16+2*w}:{17+2*w}], v7 offset:{SP+w*512}")
    a("s_waitcnt lgkmcnt(2)")
    a("v_add_f32 v16, v16, v18"); a("v_add_f32 v17, v17, v19")
    a("s_waitcnt lgkmcnt(0)")
    a("v_add_f32 v20, v20, v22"); a("v_add_f32 v21, v21, v23")
    a("v_add_f32 v16, v16, v20"); a("v_add_f32 v17, v17, v21")
    a("v_cvt_pk_bf16_f32 v25, v16, v17")
    if bc:
        nop(2)
        for k in range(16):
            A = WREG + 8 * k; B = A + 4
            for d in range(4):
                a(f"v_dot2c_f32_bf16_dpp v{8+2*d}, v25, v{A+d} row_newbcast:{k} row_mask:0xf bank_mask:0xf")
                a(f"v_dot2c_f32_bf16_dpp v{9+2*d}, v25, v{B+d} row_newbcast:{k} row_mask:0xf bank_mask:0xf")
    else:
        a("ds_write_b32 v4, v25")
        a("s_waitcnt lgkmcnt(0)")
        for k in range(4): a(f"ds_read_b128 v[{16+4*k}:{19+4*k}], v3 offset:{16*k}")
        for k in range(16):
            if k % 4 == 0: a(f"s_waitcnt lgkmcnt({3-k//4})")
            A = WREG + 8 * k; B = A + 4
            for d in range(4):
                a(f"v_dot2c_f32_bf16 v{8+2*d}, v{A+d}, v{16+k}")
                a(f"v_dot2c_f32_bf16 v{9+2*d}, v{B+d}, v{16+k}")
    nop(3)
    for k in range(4): a(f"v_permlane32_swap_b32 v{8+k}, v{12+k}")
    for k in range(4): a(f"v_add_f32 v{8+k}, v{8+k}, v{12+k}")
    for k in range(4): a(f"v_mov_b32 v{12+k}, v{8+k}")
    for k in range(4): a(f"v_permlane16_swap_b32 v{8+k}, v{12+k}")
    for k in range(4): a(f"v_add_f32 v{8+k}, v{8+k}, v{12+k}")
    for k in range(4): a(f"v_and_or_b32 v{20+k}, v{8+k}, -2, v{TB[k]}")
    a("s_mov_b32 exec_lo, 0xffff"); a("s_mov_b32 exec_hi, 0xffff")
    a(f"buffer_store_dwordx4 v[20:23], v34, s[48:51], s14 offen {spol}")
    if diag:
        a("s_mov_b64 exec, -1")
        a("s_cmp_lg_u32 s3, 3"); a("s_cbranch_scc1 L_done")
        stamp(6); put_stamp(5, 40, 24); put_stamp(6, 48, 24)
    a("s_endpgm")

    lab("L_notwo")
    if ctl:
        a("s_cmp_eq_u32 s3, 5"); a("s_cbranch_scc1 L_ctl")
    a(f"s_add_u32 s52, s48, {YOFF}"); a("s_addc_u32 s53, s49, 0"); a(f"s_mov_b32 s54, {28*2048}"); a("s_mov_b32 s55, 0x20000")
    a("s_add_u32 s28, s4, s39"); a("s_addc_u32 s29, s5, 0")
    a("s_add_u32 s56, s22, s39"); a("s_addc_u32 s57, s23, 0"); a("s_mov_b32 s58, 1024"); a("s_mov_b32 s59, 0x20000")
    a("v_lshrrev_b32 v32, 2, v2"); a("v_lshlrev_b32 v32, 11, v32"); a("v_and_b32 v33, 48, v1"); a("v_add_u32 v32, v32, v33")
    a("v_add_u32 v33, 0x8000, v32")
    a("v_lshlrev_b32 v34, 1, v1")
    a("s_lshl_b32 s14, s36, 11"); a("s_lshl_b32 s15, s36, 6")
    a("v_lshrrev_b32 v31, 1, v1"); a("v_and_b32 v31, 24, v31"); a("s_lshl_b32 s46, s36, 5"); a("v_add_u32 v31, s46, v31")
    def snap_gather():
        if nosnap:
            a("s_lshl_b32 s46, s37, 5"); a("v_mov_b32 v30, s46"); a("v_mov_b32 v29, 1")
            a("s_mov_b64 exec, 1"); a("global_atomic_add v30, v29, s[24:25] sc1"); a("s_mov_b64 exec, -1")
            return
        a(f"buffer_load_dwordx4 v[8:11], v32, s[48:51], s15 offen {snpol}")
        a(f"buffer_load_dwordx4 v[12:15], v33, s[48:51], s15 offen {snpol}")
        a(f"buffer_load_dwordx4 v[16:19], v32, s[52:55], s15 offen {snpol}")
        a(f"buffer_load_dwordx4 v[20:23], v33, s[52:55], s15 offen {snpol}")
        a("s_lshl_b32 s46, s37, 5"); a("v_mov_b32 v30, s46"); a("v_mov_b32 v29, 1")
        a("v_cmp_le_u32 vcc, 48, v2")
        a("s_waitcnt vmcnt(0)")
        a("s_mov_b64 exec, 1")
        a("global_atomic_add v30, v29, s[24:25] sc1")
        a("s_mov_b64 exec, -1")
        packbits(36, 8, 8, 24)
        packbits(37, 16, 8, 24)
        a("v_mov_b32 v24, 0xf0"); a("v_cndmask_b32 v24, 0, v24, vcc"); a("v_or_b32 v37, v37, v24")
    def snap_own():
        a(f"buffer_load_dwordx4 v[8:11], v34, s[52:55], s14 offen {snpol}")
        a(f"buffer_load_dwordx4 v[12:15], v34, s[52:55], s14 offen offset:16 {snpol}")
        a(f"buffer_load_dwordx2 v[26:27], v31, s[28:31], 0 offen {xpol}")
        if sno:
            a(f"buffer_load_dwordx4 v[16:19], v1, s[48:51], s14 offen {snpol}")
            a(f"buffer_load_dwordx4 v[20:23], v1, s[48:51], s14 offen offset:1024 {snpol}")
        a("s_waitcnt vmcnt(0)")
        packbits(35, 8, 8, 24)
        a("v_xor_b32 v35, 0xff, v35")
    if sno:
        snap_own()
        lds_poll("L_hq", 38, 4, 4, 39, 8)
        if SNAP: lds_poll("L_sw", 38, 0, SNAP, 39, 8)
        snap_gather()
    else:
        if SNAP: lds_poll("L_sw", 38, 0, SNAP, 39, 8)
        snap_gather()
        lds_poll("L_hq", 38, 4, 4, 39, 8)
        snap_own()
    a("s_cmp_ge_u32 s36, 28"); a("s_cbranch_scc1 L_noffn")
    if FF0: lds_poll("L_ff0", 38, 0, FF0, 39, 16)
    FA = 40; FREG = 56
    if not noffn:
        a("s_mov_b32 s28, s16"); a("s_mov_b32 s29, s17"); a("s_mov_b32 s30, 0x1c0000")
        a("s_mov_b32 s32, s18"); a("s_mov_b32 s33, s19"); a("s_mov_b32 s34, 0x1c0000")
        a("v_lshrrev_b32 v6, 3, v2"); a("v_and_b32 v7, 7, v2")
        a("s_mov_b32 s46, 229376"); a("v_mul_lo_u32 v8, v6, s46")
        a("v_lshl_add_u32 v8, v7, 4, v8"); a("s_lshl_b32 s46, s36, 7"); a("v_add_u32 v8, s46, v8")
        if wide:
            a("s_mov_b32 s46, 229376"); a("v_mul_lo_u32 v8, v3, s46"); a("v_lshl_add_u32 v8, v4, 4, v8")
            a("s_lshr_b32 s46, s36, 1"); a("s_lshl_b32 s46, s46, 8"); a("v_add_u32 v8, s46, v8")
            a("s_and_b32 s46, s36, 1"); a("s_mul_i32 s46, s46, 917504"); a("v_add_u32 v8, s46, v8")
        a("v_lshlrev_b32 v9, 7, v6"); a(f"v_add_u32 v9, {RING+XN}, v9")
        a("s_mov_b32 s40, 0")
        def issue_f(n):
            r = FREG + (n % 4) * 4; srd = 28 if n % 2 == 0 else 32
            so = "s40" if n < 4 else "s41"
            a(f"buffer_load_dwordx4 v[{r}:{r+3}], v8, s[{srd}:{srd+3}], {so} offen offset:{3584*((n%4)//2)} {wpol}")
        for n in range(FW): issue_f(n)
        a(f"s_mov_b32 s41, {0 if hitx else 7168}")
        a("ds_read_b32 v10, v9")
        for k in range(16): a(f"v_mov_b32 v{FA+k}, 0")
        a("s_mov_b32 s44, 31")
        def fbody(last):
            a("s_waitcnt lgkmcnt(0)")
            forms(10, 0, 12, 13); forms(10, 1, 14, 15)
            if not last:
                a("v_add_u32 v9, 4, v9"); a("ds_read_b32 v10, v9")
            for n in range(4):
                a(f"s_waitcnt vmcnt({FW-1 if not last else min(FW-1, 3-n)})")
                mac8(FA + 8 * (n % 2), FREG + n * 4, 12 + 2 * (n // 2), 13 + 2 * (n // 2))
                if not last or n + FW < 4: issue_f(n + FW)
            if not last:
                a("s_mov_b32 s40, s41"); a(f"s_add_u32 s41, s41, {0 if hitx else 7168}")
        lab("L_floop")
        fbody(False)
        a("s_sub_u32 s44, s44, 1"); a("s_cmp_lg_u32 s44, 0"); a("s_cbranch_scc1 L_floop")
        fbody(True)
        a("s_mov_b32 s28, s20"); a("s_mov_b32 s29, s21")
        a("s_lshl_b32 s40, s36, 16")
        a(f"s_add_u32 s41, s40, {0 if hitx else 4096}")
        def issue_d(n):
            r = FREG + (n % 4) * 4
            so = "s40" if n < 4 else "s41"
            a(f"buffer_load_dwordx4 v[{r}:{r+3}], v1, s[28:31], {so} offen offset:{(n%4)*1024} {wpol}")
        for n in range(FW): issue_d(n)
        a("v_and_b32 v14, 8, v2"); a("v_cmp_ne_u32 vcc, 0, v14")
        for acc in (FA, FA + 8):
            for k in range(4): a(f"v_permlane32_swap_b32 v{acc+k}, v{acc+4+k}")
            for k in range(4): a(f"v_add_f32 v{acc+k}, v{acc+k}, v{acc+4+k}")
            nop(1)
            a(f"v_permlane16_swap_b32 v{acc}, v{acc+2}"); a(f"v_permlane16_swap_b32 v{acc+1}, v{acc+3}")
            a(f"v_add_f32 v{acc}, v{acc}, v{acc+2}"); a(f"v_add_f32 v{acc+1}, v{acc+1}, v{acc+3}")
            nop(2)
            a(f"v_add_f32_dpp v{acc}, v{acc}, v{acc} row_ror:8 row_mask:0xf bank_mask:0xf")
            a(f"v_add_f32_dpp v{acc+1}, v{acc+1}, v{acc+1} row_ror:8 row_mask:0xf bank_mask:0xf")
            a(f"v_cndmask_b32 v{acc}, v{acc}, v{acc+1}, vcc")
        a(f"v_cvt_pk_bf16_f32 v14, v{FA}, v{FA+8}")
        a("v_lshlrev_b32 v15, 16, v14"); a("v_and_b32 v16, s43, v14")
        a("v_mul_f32 v17, v15, v15"); a("v_mul_f32 v17, v17, v15")
        a("v_mov_b32 v18, 0x3d372713"); a("v_fma_f32 v17, v17, v18, v15")
        a("v_mul_f32 v17, 0xc0135761, v17")
        a("v_exp_f32 v17, v17"); nop(1)
        a("v_add_f32 v17, 1.0, v17"); a("v_rcp_f32 v17, v17"); nop(1)
        a("v_mul_f32 v17, v15, v17")
        a("v_cvt_pk_bf16_f32 v17, v17, v17"); a("v_and_b32 v17, s43, v17")
        a("v_mul_f32 v17, v17, v16")
        a("v_cvt_pk_bf16_f32 v17, v17, v17")
        a("v_lshlrev_b32 v14, 4, v7")
        a("v_lshrrev_b32 v15, 5, v2"); a("v_lshl_add_u32 v14, v15, 3, v14")
        a("v_bfe_u32 v15, v2, 4, 1"); a("v_lshl_add_u32 v14, v15, 2, v14")
        a("v_bfe_u32 v15, v2, 3, 1"); a("v_lshl_add_u32 v14, v15, 1, v14")
        a(f"v_mov_b32 v9, {RING+HB}"); a("v_add_u32 v14, v9, v14")
        a("ds_write_b16 v14, v17")
        a("s_waitcnt lgkmcnt(0)")
        a("ds_read_b64 v[10:11], v9")
        for k in range(8): a(f"v_mov_b32 v{FA+k}, 0")
        a("s_mov_b32 s44, 15")
        def dbody(last):
            a("s_waitcnt lgkmcnt(0)")
            forms(10, 0, 12, 13); forms(10, 1, 14, 15); forms(11, 0, 16, 17); forms(11, 1, 18, 19)
            if not last:
                a("v_add_u32 v9, 8, v9"); a("ds_read_b64 v[10:11], v9")
            for n in range(4):
                a(f"s_waitcnt vmcnt({FW-1 if not last else min(FW-1, 3-n)})")
                mac8(FA, FREG + n * 4, 12 + 2 * n, 13 + 2 * n)
                if not last or n + FW < 4: issue_d(n + FW)
            if not last:
                a("s_mov_b32 s40, s41"); a(f"s_add_u32 s41, s41, {0 if hitx else 4096}")
        lab("L_dloop")
        dbody(False)
        a("s_sub_u32 s44, s44, 1"); a("s_cmp_lg_u32 s44, 0"); a("s_cbranch_scc1 L_dloop")
        dbody(True)
    for k in range(8): a(f"v_bfe_u32 v{8+k}, v35, {k}, 1")
    for k in range(8): a(f"v_and_or_b32 v{FA+k}, v{FA+k}, -2, v{8+k}")
    lab("L_noffn")
    if diag:
        stamp(4); put_stamp(4, 56, 12)
    lds_poll("L_mid", 38, 0, MID, 39, 32)
    a("s_mov_b32 s47, 0x20000")
    a("s_mov_b64 exec, 1")
    lab("L_rdy")
    a(f"global_load_dword v13, v30, s[24:25] sc1")
    a("s_waitcnt vmcnt(0)")
    a("v_readfirstlane_b32 s46, v13")
    a("s_sub_u32 s47, s47, 1"); a("s_cmp_eq_u32 s47, 0"); a("s_cbranch_scc1 L_rdy_ok")
    a("s_cmp_ge_u32 s46, 32"); a("s_cbranch_scc1 L_rdy_ok")
    a("s_sleep 16"); a("s_branch L_rdy")
    lab("L_rdy_ok")
    a("s_mov_b64 exec, -1")
    a("v_lshlrev_b32 v24, 16, v26"); a("v_and_b32 v25, s43, v26"); a("v_lshlrev_b32 v26, 16, v27"); a("v_and_b32 v27, s43, v27")
    lds_poll("L_yp", 38, 0, YP, 39, 2)
    a(f"buffer_store_dwordx4 v[{FA}:{FA+3}], v34, s[52:55], s14 offen {spol}")
    a(f"buffer_store_dwordx4 v[{FA+4}:{FA+7}], v34, s[52:55], s14 offen offset:16 {spol}")
    if YG:
        lds_poll("L_yg", 38, 0, YG, 39, 4)
        a("s_mov_b32 s12, 0")
    else:
        a("s_barrier")
    def gather(srd, lbl, snap, load=True, early=False):
      if load:
        a("s_mov_b32 s47, 0x40000")
        lab(lbl)
        a(f"buffer_load_dwordx4 v[8:11], v32, s[{srd}:{srd+3}], s15 offen {gpol}")
        a(f"buffer_load_dwordx4 v[12:15], v33, s[{srd}:{srd+3}], s15 offen {gpol}")
        a("s_waitcnt vmcnt(0)")
        packbits(16, 8, 8, 17)
        a(f"v_xor_b32 v16, v16, v{snap}")
        a("v_cmp_ne_u32 vcc, 0xff, v16")
        a("s_sub_u32 s47, s47, 1"); a("s_cmp_eq_u32 s47, 0"); a(f"s_cbranch_scc1 {lbl}_ok")
        a("s_cmp_eq_u64 vcc, 0")
        if nosnap: a(f"s_branch {lbl}_ok")
        if early:
            a(f"s_cbranch_scc1 {lbl}_ok")
            a("s_cmp_lg_u32 s12, 0"); a(f"s_cbranch_scc1 {lbl}")
            a("s_mov_b32 s12, 1"); a("s_barrier"); a(f"s_branch {lbl}")
        elif gsl:
            a(f"s_cbranch_scc1 {lbl}_ok"); a(f"s_sleep {gsl}"); a(f"s_branch {lbl}")
        else:
            a(f"s_cbranch_scc0 {lbl}")
        lab(lbl + "_ok")
        for k in range(8): a(f"v_and_b32 v{8+k}, -2, v{8+k}")
      for k in range(4): a(f"v_add_f32 v{8+k}, v{8+k}, v{12+k}")
      for ro in (4, 8):
          if ro == 4: nop(1)
          for k in range(4): a(f"v_add_f32_dpp v{8+k}, v{8+k}, v{8+k} row_ror:{ro} row_mask:0xf bank_mask:0xf")
      for k in range(4): a(f"v_mov_b32 v{12+k}, v{8+k}")
      for k in range(4): a(f"v_permlane16_swap_b32 v{8+k}, v{12+k}")
      for k in range(4): a(f"v_add_f32 v{8+k}, v{8+k}, v{12+k}")
      for k in range(4): a(f"v_mov_b32 v{12+k}, v{8+k}")
      for k in range(4): a(f"v_permlane32_swap_b32 v{8+k}, v{12+k}")
      for k in range(4): a(f"v_add_f32 v{8+k}, v{8+k}, v{12+k}")
      a("v_cvt_pk_bf16_f32 v12, v8, v9"); a("v_cvt_pk_bf16_f32 v13, v10, v11")
      a("v_lshlrev_b32 v8, 16, v12"); a("v_and_b32 v9, s43, v12"); a("v_lshlrev_b32 v10, 16, v13"); a("v_and_b32 v11, s43, v13")
    gather(52, "L_gy", 37, early=bool(YG))
    for k in range(4): a(f"v_mul_f32 v{12+k}, 0xbfb8aa3b, v{8+k}")
    for k in range(4): a(f"v_exp_f32 v{12+k}, v{12+k}")
    for k in range(4): a(f"v_add_f32 v{12+k}, 1.0, v{12+k}")
    for k in range(4): a(f"v_rcp_f32 v{12+k}, v{12+k}")
    for k in range(4): a(f"v_mul_f32 v{8+k}, v{8+k}, v{12+k}")
    a("v_cvt_pk_bf16_f32 v12, v8, v9"); a("v_cvt_pk_bf16_f32 v13, v10, v11")
    a("v_lshlrev_b32 v20, 16, v12"); a("v_and_b32 v21, s43, v12"); a("v_lshlrev_b32 v22, 16, v13"); a("v_and_b32 v23, s43, v13")
    if ft:
        a("v_cmp_gt_u32 vcc, 32, v2"); a("v_and_b32 v12, 16, v2"); a("v_cmp_eq_u32 s[12:13], 0, v12")
        nop(1)
        a("v_cndmask_b32 v20, v22, v20, vcc"); a("v_cndmask_b32 v21, v23, v21, vcc")
        a("v_cndmask_b32 v24, v26, v24, vcc"); a("v_cndmask_b32 v25, v27, v25, vcc")
        a("v_cndmask_b32 v20, v21, v20, s[12:13]"); a("v_cndmask_b32 v24, v25, v24, s[12:13]")
        a("v_lshrrev_b32 v12, 5, v2"); a("v_lshl_add_u32 v31, v12, 2, v31"); a("v_bfe_u32 v12, v2, 4, 1"); a("v_lshl_add_u32 v31, v12, 1, v31")
        for k in range(8): a(f"v_bfe_u32 v{40+k}, v36, {k}, 1")
        stamp(3)
        a("s_mov_b32 s47, 0x40000")
        lab("L_gs")
        a(f"buffer_load_dwordx4 v[8:11], v32, s[48:51], s15 offen {gpol}")
        a(f"buffer_load_dwordx4 v[12:15], v33, s[48:51], s15 offen {gpol}")
        a("s_sub_u32 s47, s47, 1"); a("s_cmp_eq_u32 s47, 0"); a("s_cbranch_scc1 L_gs_to")
        a("s_waitcnt vmcnt(1)")
        a("v_xor_b32 v16, v8, v40")
        for k in range(1, 4): a(f"v_bitop3_b32 v16, v16, v{8+k}, v{40+k} bitop3:0x60")
        a("s_waitcnt vmcnt(0)")
        for k in range(4, 8): a(f"v_bitop3_b32 v16, v16, v{8+k}, v{40+k} bitop3:0x60")
        a("v_and_b32 v16, 1, v16")
        a("v_cmp_eq_u32 vcc, 0, v16")
        for k in range(8): a(f"v_and_b32 v{8+k}, -2, v{8+k}")
        if not nosnap: a("s_cbranch_vccnz L_gs")
        lab("L_gs_to")
        a("s_waitcnt vmcnt(0)")
        for k in range(4): a(f"v_add_f32 v{8+k}, v{8+k}, v{12+k}")
        nop(1)
        a("v_permlane32_swap_b32 v8, v10"); a("v_permlane32_swap_b32 v9, v11")
        a("v_add_f32 v8, v8, v10"); a("v_add_f32 v9, v9, v11")
        nop(2)
        a("v_permlane16_swap_b32 v8, v9")
        a("v_add_f32 v8, v8, v9")
        nop(2)
        a("v_add_f32_dpp v8, v8, v8 row_ror:4 row_mask:0xf bank_mask:0xf")
        nop(2)
        a("v_add_f32_dpp v8, v8, v8 row_ror:8 row_mask:0xf bank_mask:0xf")
        a("v_cvt_pk_bf16_f32 v8, 0, v8")
        a("v_mul_f32 v8, v8, v20")
        a("v_cvt_pk_bf16_f32 v8, 0, v8")
        a("v_add_f32 v8, v8, v24")
        a("v_cvt_pk_bf16_f32 v8, v8, v8")
        a("s_mov_b32 exec_lo, 0x000f000f"); a("s_mov_b32 exec_hi, 0x000f000f")
        a(f"buffer_store_short v8, v31, s[56:59], 0 offen {opol}")
    else:
        stamp(3)
        if YG:
            a("s_cmp_lg_u32 s12, 0"); a("s_cbranch_scc1 L_nb"); a("s_barrier"); lab("L_nb")
        if pp:
            PB = [40, 48, 56]
            def pissue(b):
                a(f"buffer_load_dwordx4 v[{b}:{b+3}], v32, s[48:51], s15 offen {gpol}")
                a(f"buffer_load_dwordx4 v[{b+4}:{b+7}], v33, s[48:51], s15 offen {gpol}")
            pissue(PB[0]); a(f"s_sleep {pp}"); pissue(PB[1]); a(f"s_sleep {pp}")
            a("s_mov_b32 s47, 0x20000")
            lab("L_pp")
            for i in range(3):
                pissue(PB[(i + 2) % 3])
                a("s_waitcnt vmcnt(4)")
                packbits(16, PB[i], 8, 17)
                a("v_xor_b32 v16, v16, v36")
                a("v_cmp_ne_u32 vcc, 0xff, v16")
                nop(1)
                a("s_cmp_eq_u64 vcc, 0")
                a(f"s_cbranch_scc1 L_pp{i}")
            a("s_sub_u32 s47, s47, 1"); a("s_cmp_lg_u32 s47, 0"); a("s_cbranch_scc1 L_pp")
            for i in (2, 1, 0):
                lab(f"L_pp{i}")
                for k in range(8): a(f"v_and_b32 v{8+k}, -2, v{PB[i]+k}")
                if i: a("s_branch L_ppd")
            lab("L_ppd")
            gather(48, "L_gs", 36, load=False)
        else:
            gather(48, "L_gs", 36)
        for k in range(4): a(f"v_mul_f32 v{8+k}, v{8+k}, v{20+k}")
        a("v_cvt_pk_bf16_f32 v12, v8, v9"); a("v_cvt_pk_bf16_f32 v13, v10, v11")
        a("v_lshlrev_b32 v8, 16, v12"); a("v_and_b32 v9, s43, v12"); a("v_lshlrev_b32 v10, 16, v13"); a("v_and_b32 v11, s43, v13")
        for k in range(4): a(f"v_add_f32 v{8+k}, v{8+k}, v{24+k}")
        a("v_cvt_pk_bf16_f32 v12, v8, v9"); a("v_cvt_pk_bf16_f32 v13, v10, v11")
        a("s_mov_b64 exec, 15")
        a("buffer_store_dwordx2 v[12:13], v31, s[56:59], 0 offen")
    if diag:
        stamp(7)
        a("s_mov_b64 exec, -1")
        put_stamp(7, 8, 20); put_stamp(3, 32, 20)
    lab("L_done")
    a("s_endpgm")
    if ctl:
        NCK = 62 // CKI
        lab("L_ctl")
        a("s_and_b32 s12, s2, 7"); a("s_lshr_b32 s13, s2, 3")
        a("s_lshl_b32 s46, s12, 12"); a(f"s_add_u32 s46, s46, {TOFF}")
        a("s_add_u32 s28, s26, s46"); a("s_addc_u32 s29, s27, 0"); a("s_mov_b32 s30, 4096")
        a(f"s_add_u32 s32, s26, {TOFF + 0x8000}"); a("s_addc_u32 s33, s27, 0"); a("s_mov_b32 s34, 4096")
        a("s_lshl_b32 s46, s13, 2"); a("v_mov_b32 v7, s46")
        a("s_lshl_b32 s46, s12, 2"); a("v_mov_b32 v6, s46")
        a(f"s_mov_b32 s44, {CKI * 8}")
        a("s_mov_b32 s40, 0")
        a("s_mov_b32 s50, 0"); a("s_mov_b32 s51, 0"); a("s_mov_b32 s56, 0"); a("v_mov_b32 v20, 0")
        a("s_mov_b64 exec, 1")
        lab("L_cl")
        lds_poll("L_cp", 38, 0, "s44", 39, 2)
        a("s_memrealtime s[48:49]")
        a("s_waitcnt lgkmcnt(0)")
        a("v_mov_b32 v8, s48")
        a("buffer_store_dword v8, v7, s[28:31], s40 offen")
        a("s_cmp_eq_u32 s40, 0"); a("s_cbranch_scc1 L_cnext")
        a("s_sub_u32 s41, s40, 128")
        a("s_load_dwordx16 s[64:79], s[28:29], s41")
        a("s_add_u32 s46, s41, 64")
        a("s_load_dwordx16 s[80:95], s[28:29], s46")
        a("s_cmp_eq_u32 s41, 0"); a("s_cbranch_scc1 L_cn2")
        a("s_sub_u32 s46, s41, 128")
        a("s_load_dwordx8 s[4:11], s[32:33], s46")
        lab("L_cn2")
        a("s_mov_b32 s52, 0"); a("s_mov_b32 s53, 0"); a("s_sub_u32 s54, s50, 2000")
        a("s_waitcnt lgkmcnt(0)")
        for t in range(32):
            a(f"s_sub_u32 s55, s{64+t}, s54"); a("s_cmp_lt_u32 s55, 4000")
            a("s_cselect_b32 s55, s55, 2000"); a("s_addc_u32 s53, s53, 0"); a("s_add_u32 s52, s52, s55")
        a("s_sub_u32 s52, s52, 64000"); a("s_max_u32 s53, s53, 1")
        a("v_cvt_f32_i32 v11, s52"); a("v_cvt_f32_u32 v12, s53")
        a("v_rcp_f32 v12, v12")
        a("s_mov_b32 s52, 0"); a("s_mov_b32 s53, 0"); a("s_sub_u32 s54, s56, 2000")
        for t in range(8):
            a(f"s_sub_u32 s55, s{4+t}, s54"); a("s_cmp_lt_u32 s55, 4000")
            a("s_cselect_b32 s55, s55, 2000"); a("s_addc_u32 s53, s53, 0"); a("s_add_u32 s52, s52, s55")
        a("s_sub_u32 s52, s52, 16000"); a("s_max_u32 s53, s53, 1")
        a("v_mul_f32 v11, v11, v12")
        a("v_cvt_f32_i32 v13, s52"); a("v_cvt_f32_u32 v14, s53"); a("v_rcp_f32 v14, v14")
        a("v_cvt_i32_f32 v12, v11"); a("v_add_u32 v12, s50, v12")
        a("v_mul_f32 v13, v13, v14")
        a("v_readfirstlane_b32 s57, v12")
        a("s_cmp_lg_u32 s13, 0"); a("s_cbranch_scc1 L_cnl")
        a("buffer_store_dword v12, v6, s[32:35], s41 offen sc1")
        lab("L_cnl")
        a("s_sub_u32 s46, s48, s50"); a("s_sub_u32 s47, s57, s56"); a("s_cmp_eq_u32 s41, 0"); a("s_cselect_b32 s46, s46, s47")
        a("v_cvt_f32_i32 v14, s46"); a("v_rcp_f32 v14, v14")
        a("s_mov_b32 s56, s57")
        a(f"v_mul_f32 v11, {f2u(-G / 100.0)}, v11"); a(f"v_mul_f32 v13, {f2u(-G2 / 100.0)}, v13"); a("v_add_f32 v11, v11, v13")
        if LT: a(f"v_mul_f32 v15, {f2u(32.0 * CKI * LT * 16.0)}, v14")
        else: a(f"v_mov_b32 v15, {f2u(float(D16 or D * 16))}")
        a("v_mul_f32 v11, v11, v14")
        if KI:
            a(f"v_mul_f32 v13, {f2u(KI / 100.0)}, v11"); a("v_add_f32 v20, v20, v13")
            a("v_add_f32 v11, v11, v20")
        a("v_fma_f32 v15, v15, v11, v15")
        a(f"v_max_f32 v15, {f2u(DMIN * 16.0)}, v15"); a(f"v_min_f32 v15, {f2u(DMAX * 16.0)}, v15")
        a("v_cvt_u32_f32 v15, v15")
        a("ds_write_b32 v38, v15 offset:12")
        lab("L_cnext")
        a("s_mov_b32 s50, s48")
        if TH2:
            a(f"s_cmp_ge_u32 s44, {TH2 * 8}"); a(f"s_cselect_b32 s46, {CK2 * 8}, {CKI * 8}"); a("s_add_u32 s44, s44, s46")
        else:
            a(f"s_add_u32 s44, s44, {CKI * 8}")
        a("s_add_u32 s40, s40, 128")
        a(f"s_cmp_le_u32 s44, {LAST * 8}")
        a("s_cbranch_scc1 L_cl")
        a("s_endpgm")
    L.append(".p2align 10")
    lab("L_end")
    L.append('.section .rodata,"a"'); L.append(".p2align 6"); L.append(f".amdhsa_kernel {KN}")
    a(".amdhsa_next_free_vgpr 168"); a(".amdhsa_next_free_sgpr 96"); a(".amdhsa_accum_offset 168")
    a(".amdhsa_group_segment_fixed_size 0"); a(".amdhsa_kernarg_size 96"); a(".amdhsa_user_sgpr_count 2")
    a(".amdhsa_user_sgpr_kernarg_segment_ptr 1"); a(".amdhsa_system_sgpr_workgroup_id_x 1")
    a(".amdhsa_float_denorm_mode_32 3")
    L.append(".end_amdhsa_kernel")
    return "\n".join(L) + "\n"

if __name__ == "__main__":
    for spec in sys.argv[1:]:
        out, _, kvs = spec.partition(":")
        kw = {}
        if kvs:
            for kv in kvs.split(","):
                k, v = kv.split("=")
                kw[k] = int(v) if v.lstrip("-").isdigit() else v.replace("+", " ")
        open(out, "w").write(gen(**kw))
```

```python
import sys, struct
KN = "recurrent_scan__mha_block_cached__geglu_ffn__decode_kernel"
HEADER = open("recurrent_scan__mha_block_cached__geglu_ffn__decode.s.ref").read().split("; Override launch")[0]

XN, QP, SP, ML, CT, OB, HB, SC = 0, 1024, 1024, 3072, 3136, 3328, 4352, 4608
MISC = 4608 + 8192
YOFF = 0x80000
TOFF = 0x100000
STOFF = 0x30000000
LOG2E = 0x3fb8aa3b
SCALE = 0x3db504f3
f2u = lambda x: hex(struct.unpack("<I", struct.pack("<f", x))[0])

DOC = '''; ---------------------------------------------------------------------------------------------------------
; ---------------------------------------------------------------------------------------------------------'''

def gen(D=20, D1=0, FW=3, WOS=90, WO0=80, WQWIN=8, WOWIN=2, wpol="", diag=0, kvpol="nt", noffn=0, nowo=0, noq=0,
        MID=440, YP=506, prog=0, NSLOT=18, xpol="", gpol="sc1", spol="sc1", snpol="sc1", pfpol="", SNAP=0,
        ctl=1, DMIN=13, DMAX=28, CKI=4, LT=0, G=50, G2=50, pf=1, lprio=3, gsl=0, vpol=None, hitx=0, wide=0, mpf=1, PF0=0, PFW=4, FF0=70, pp=0, YG=0, csl=1, sno=0, KI=0, DE=28, NE=1, nosnap=0, fast=1, csl1=1, bc=1, ft=1, cont=0, own=2, nolds=0, opol='', D16=312, TH2=48, CK2=2, LAST=62, DS=3, msk=1, DI=0, N1=0, wqhit=0, wqbg=0, miss=0, GB=0, GB2=0, cab=0, rl=1, tprio=0, dr=1, SE=1, YW=0):
    L = []
    RING = NSLOT * 8192
    LDS_BYTES = RING + MISC
    assert LDS_BYTES <= 163840
    def a(s): L.append("  " + s)
    def lab(s): L.append(s + ":")
    def nop(n): a(f"s_nop {n-1}")
    def stamp(i):
        if diag: a(f"s_memrealtime s[{60+2*i}:{61+2*i}]")
    def put_stamp(i, off, vt):
        a("s_waitcnt lgkmcnt(0)")
        a("s_lshl_b32 s45, s2, 6"); a(f"s_add_u32 s45, s45, {STOFF}"); a(f"v_mov_b32 v{vt+2}, s45")
        a(f"v_mov_b32 v{vt}, s{60+2*i}"); a(f"v_mov_b32 v{vt+1}, s{61+2*i}")
        a("s_mov_b64 exec, 1")
        a(f"global_store_dwordx2 v{vt+2}, v[{vt}:{vt+1}], s[26:27] offset:{off}")
        a("s_mov_b64 exec, -1")
        nop(2)
    L.append(HEADER.rstrip("\n"))
    L.append(f"; @launch grid=(256,1,1) block=({704 if ctl else 640},1,1) lds={LDS_BYTES}")
    L.append(DOC)
    L.append('.amdgcn_target "amdgcn-amd-amdhsa--gfx950"')
    L.append(".text"); L.append(f".globl {KN}"); L.append(".p2align 8"); L.append(f".type {KN},@function"); lab(KN)
    a("s_cmp_ge_u32 s2, 256")
    a("s_cbranch_scc1 L_done")
    a("s_load_dwordx8 s[4:11], s[0:1], 0")
    stamp(0)
    a("v_lshrrev_b32 v1, 6, v0")
    a("v_and_b32 v2, 63, v0")
    a("v_readfirstlane_b32 s3, v1")
    a("v_lshlrev_b32 v1, 4, v2")
    a("s_and_b32 s36, s2, 7")
    a("s_lshl_b32 s36, s36, 2")
    a("s_bfe_u32 s37, s2, 0x20003")
    a("s_add_u32 s36, s36, s37")
    a("s_lshr_b32 s37, s2, 5")
    a("s_cmp_lg_u32 s3, 0")
    a("s_cbranch_scc1 L_notloader")

    L.append("; ======== loader")
    if lprio: a(f"s_setprio {lprio}")
    a("s_lshl_b32 s38, s37, 5"); a("s_add_u32 s38, s38, s36"); a("s_lshl_b32 s38, s38, 20")
    a("s_mov_b32 s30, 0x100000"); a("s_mov_b32 s31, 0x20000")
    a("s_mov_b32 s40, 0"); a("s_mov_b32 s41, 0")
    def lds_init():
        a(f"v_mov_b32 v3, {RING+CT}")
        a("v_lshl_add_u32 v4, v2, 2, v3"); a("v_mov_b32 v5, 0")
        a("s_mov_b64 exec, 0xff")
        a("ds_write_b32 v4, v5")
        a("s_mov_b64 exec, -1")
        a(f"v_mov_b32 v8, {D16 or D * 16}"); a("ds_write_b32 v3, v8 offset:12")
    if not fast: lds_init()
    a("s_mov_b32 m0, 0")
    a("s_waitcnt lgkmcnt(0)")
    a("s_add_u32 s28, s6, s38"); a("s_addc_u32 s29, s7, 0"); a("s_add_u32 s32, s8, s38"); a("s_addc_u32 s33, s9, 0")
    def publish(k):
        a(f"v_add_u32 v5, {k}, v7"); a("ds_write_b32 v3, v5")
    def ld_step(m, Dw, first=False, kvpol=kvpol):
        j = m & 7
        if j == 0 and not (first and m == 0): a("s_mov_b32 m0, s41")
        if j == 4: a("s_add_u32 m0, s41, 4096")
        waited = not (first and m < Dw)
        if waited: a(f"s_waitcnt vmcnt({Dw-1})")
        elif j in (0, 4) and m: nop(1)
        a(f"buffer_load_dwordx4 v1, s[28:31], s40 offen offset:{(j&3)*1024} {kvpol} lds")
        if waited and (m - Dw + 1) % 4 == 0: publish((m - Dw + 1) // 4)
        if j == 3: a("s_add_u32 s40, s40, 4096")
        if j == 7:
            a("s_add_u32 s40, s40, 4096"); a("s_add_u32 s41, s41, 8192")
            a(f"s_cmp_eq_u32 s41, {RING}"); a("s_cselect_b32 s41, 0, s41")
    Dfirst = D1 if D1 else D
    a("v_mov_b32 v7, 0")
    if prog: a("v_mov_b32 v10, 0"); a("v_mov_b32 v11, 0")
    for m in range(32):
        ld_step(m, Dfirst, first=True)
        if m == (Dfirst - 1 if fast else 7):
            if fast:
                lds_init(); a("s_waitcnt lgkmcnt(0)")
            a("s_barrier")
    def fw(w): return (w - NSLOT) % 4
    def fo(w): return (w - NSLOT) // 4 + 1
    a("s_mov_b32 s44, 0")
    a(f"s_mov_b32 s47, {8 * DS}")
    a(f"ds_read_b32 v6, v3 offset:{16 + 4 * fw(0)}")
    a("ds_read_b32 v8, v3 offset:12")
    Ds = list(range(DMIN, DMAX + 1, DS)) if ctl else [D]
    DMAX = max(Ds)
    def slow(lbl, w, back):
        lab(lbl)
        a("s_sleep 1")
        a(f"ds_read_b32 v6, v3 offset:{16 + 4 * fw(w)}")
        a("s_waitcnt lgkmcnt(0)")
        a("v_readfirstlane_b32 s45, v6")
        a(f"s_sub_i32 s45, s45, {fo(w)}")
        a("s_cmp_ge_i32 s45, s44")
        a(f"s_cbranch_scc0 {lbl}")
        a(f"s_branch {back}")
    lab("L_disp")
    a("v_add_u32 v7, 8, v7")
    a("s_add_u32 s44, s44, 1")
    a("s_cmp_eq_u32 s44, 64")
    a("s_cbranch_scc1 L_drain")
    a("s_cmp_eq_u32 s44, 32")
    a("s_cselect_b32 s28, s32, s28"); a("s_cselect_b32 s29, s33, s29"); a("s_cselect_b32 s40, 0, s40")
    if prog: a("s_memrealtime s[76:77]")
    a("s_waitcnt lgkmcnt(0)")
    a("v_readfirstlane_b32 s45, v6")
    a("v_readfirstlane_b32 s46, v8")
    if prog:
        a("s_mov_b32 m0, s44"); nop(4); a("v_writelane_b32 v10, s76, m0"); a("v_writelane_b32 v11, s46, m0")
    a(f"s_sub_i32 s45, s45, {fo(0)}")
    a("s_cmp_ge_i32 s45, s44")
    a("s_cbranch_scc0 L_lslow_0")
    lab("L_lfree_0")
    if ctl:
        if N1:
            a(f"s_cmp_lt_u32 s44, {N1}"); a(f"s_cselect_b32 s46, {DI * 16}, s46")
        a("s_add_i32 s47, s47, s46")
        def casc(lst):
            if len(lst) == 1:
                a(f"s_branch L_c{lst[0]}"); return
            mid = len(lst) // 2
            a(f"s_cmp_ge_i32 s47, {lst[mid] * 16}")
            if len(lst) - mid == 1:
                a(f"s_cbranch_scc1 L_c{lst[mid]}")
                casc(lst[:mid])
            else:
                l2 = f"L_k{lst[mid]}_{len(lst)}"
                a(f"s_cbranch_scc1 {l2}")
                casc(lst[:mid]); lab(l2); casc(lst[mid:])
        if vpol is not None:
            a("s_cmp_ge_u32 s44, 32"); a("s_cbranch_scc1 L_vc")
        if DE:
            a(f"s_cmp_ge_u32 s44, {64 - NE}"); a(f"s_cbranch_scc1 L_c{DE}")
        casc(Ds)
        if DE and DE not in Ds: Ds = Ds + [DE]
    if vpol is not None:
        lab("L_vc")
        for w in range(4):
            if w:
                a("s_waitcnt lgkmcnt(0)")
                a("v_readfirstlane_b32 s45, v6")
                a(f"s_sub_i32 s45, s45, {fo(w)}")
                a("s_cmp_ge_i32 s45, s44")
                a(f"s_cbranch_scc0 L_vslow_{w}")
                lab(f"L_vfree_{w}")
            for j in range(8):
                ld_step(8 * w + j, D, kvpol=vpol)
                if j == 4:
                    a(f"ds_read_b32 v6, v3 offset:{16 + 4 * fw((w + 1) & 3)}")
                    if w == 3: a("ds_read_b32 v8, v3 offset:12")
        a("s_branch L_disp")
        for w in range(1, 4): slow(f"L_vslow_{w}", w, f"L_vfree_{w}")
    for Dw in Ds:
        npub = sum(1 for j in range(5, 8) if (j - Dw + 1) % 4 == 0)
        lab(f"L_c{Dw}")
        if ctl: a(f"s_sub_i32 s47, s47, {Dw * 16}")
        for w in range(4):
            if w:
                a(f"s_waitcnt lgkmcnt({npub})")
                a("v_readfirstlane_b32 s45, v6")
                a(f"s_sub_i32 s45, s45, {fo(w)}")
                a("s_cmp_ge_i32 s45, s44")
                a(f"s_cbranch_scc0 L_lslow{Dw}_{w}")
                lab(f"L_lfree{Dw}_{w}")
            for j in range(8):
                ld_step(8 * w + j, Dw)
                if j == 4:
                    a(f"ds_read_b32 v6, v3 offset:{16 + 4 * fw((w + 1) & 3)}")
                    if w == 3: a("ds_read_b32 v8, v3 offset:12")
        a("s_branch L_disp")
    slow("L_lslow_0", 0, "L_lfree_0")
    for Dw in Ds:
        for w in range(1, 4): slow(f"L_lslow{Dw}_{w}", w, f"L_lfree{Dw}_{w}")
    lab("L_drain")
    for r in range((max(Ds) - 1) // 4 * 4, -1, -4):
        if dr:
            a(f"v_add_u32 v5, {-(r // 4)}, v7"); a(f"s_waitcnt vmcnt({r})"); a("ds_write_b32 v3, v5")
        else:
            a(f"s_waitcnt vmcnt({r})"); publish(-(r // 4))
    if diag:
        stamp(2)
        a("s_load_dwordx2 s[26:27], s[0:1], 88")
        if prog:
            a("s_waitcnt lgkmcnt(0)")
            a("v_writelane_b32 v10, s64, 0")
            a("s_lshl_b32 s45, s2, 8"); a(f"s_add_u32 s45, s45, {STOFF + 0x4000}"); a("v_lshrrev_b32 v9, 2, v1"); a("v_add_u32 v9, s45, v9")
            a("global_store_dword v9, v10, s[26:27]")
            a("v_add_u32 v9, 0x10000, v9")
            a("global_store_dword v9, v11, s[26:27]")
        put_stamp(0, 0, 12); put_stamp(2, 24, 12)
    a("s_endpgm")

    def wave_allsum(r, t):
        for ro in (8, 4, 2, 1):
            nop(2)
            a(f"v_add_f32_dpp v{r}, v{r}, v{r} row_ror:{ro} row_mask:0xf bank_mask:0xf")
        a(f"v_mov_b32 v{t}, v{r}"); nop(2)
        a(f"v_permlane16_swap_b32 v{r}, v{t}"); a(f"v_add_f32 v{r}, v{r}, v{t}"); a(f"v_mov_b32 v{t}, v{r}"); nop(2)
        a(f"v_permlane32_swap_b32 v{r}, v{t}"); a(f"v_add_f32 v{r}, v{r}, v{t}")
    def layernorm(hook):
        for k in range(4):
            a(f"v_lshlrev_b32 v{12+2*k}, 16, v{8+k}"); a(f"v_and_b32 v{13+2*k}, s43, v{8+k}")
        a("v_add_f32 v20, v12, v13"); a("v_add_f32 v21, v14, v15"); a("v_add_f32 v22, v16, v17"); a("v_add_f32 v23, v18, v19")
        a("v_add_f32 v20, v20, v21"); a("v_add_f32 v22, v22, v23"); a("v_add_f32 v20, v20, v22")
        wave_allsum(20, 21); hook()
        a("v_mul_f32 v20, 0x3b000000, v20")
        a("v_mov_b32 v22, 0")
        for k in range(8):
            a(f"v_sub_f32 v21, v{12+k}, v20"); a("v_fmac_f32 v22, v21, v21")
        hook(); wave_allsum(22, 21); hook()
        a("v_mul_f32 v22, 0x3b000000, v22")
        a("v_cvt_pk_bf16_f32 v20, v20, v22")
        a("v_and_b32 v22, s43, v20"); a("v_lshlrev_b32 v20, 16, v20")
        a("v_add_f32 v22, 0x3727c5ac, v22")
        a("v_cvt_pk_bf16_f32 v22, v22, v22"); a("v_and_b32 v22, s43, v22")
        a("v_sqrt_f32 v22, v22"); nop(1)
        a("v_cvt_pk_bf16_f32 v22, v22, v22"); a("v_and_b32 v22, s43, v22")
        a("v_rcp_f32 v22, v22"); hook()
        for k in range(8): a(f"v_sub_f32 v{12+k}, v{12+k}, v20")
        for k in range(4): a(f"v_cvt_pk_bf16_f32 v{8+k}, v{12+2*k}, v{13+2*k}")
        for k in range(4):
            a(f"v_lshlrev_b32 v{12+2*k}, 16, v{8+k}"); a(f"v_and_b32 v{13+2*k}, s43, v{8+k}")
        for k in range(8): a(f"v_mul_f32 v{12+k}, v22, v{12+k}")
        for k in range(4): a(f"v_cvt_pk_bf16_f32 v{8+k}, v{12+2*k}, v{13+2*k}")
    def forms(pair, odd, lo, hi):
        if not odd:
            a(f"v_and_b32 v{lo}, 0xffff, v{pair}"); a(f"v_lshlrev_b32 v{hi}, 16, v{pair}")
        else:
            a(f"v_lshrrev_b32 v{lo}, 16, v{pair}"); a(f"v_and_b32 v{hi}, s43, v{pair}")
    def mac8(acc, w, lo, hi):
        for d in range(4):
            a(f"v_dot2c_f32_bf16 v{acc+2*d}, v{w+d}, v{lo}")
            a(f"v_dot2c_f32_bf16 v{acc+2*d+1}, v{w+d}, v{hi}")
    def lds_poll(lbl, addr, off, tgt, vt, sleep):
        lab(lbl)
        a(f"ds_read_b32 v{vt}, v{addr} offset:{off}")
        a("s_waitcnt lgkmcnt(0)")
        a(f"v_readfirstlane_b32 s45, v{vt}")
        a(f"s_cmp_ge_u32 s45, {tgt}")
        a(f"s_cbranch_scc1 {lbl}_ok")
        if sleep: a(f"s_sleep {sleep}")
        a(f"s_branch {lbl}")
        lab(lbl + "_ok")
    def packbits(dst, src, n, t):
        a(f"v_and_b32 v{dst}, 1, v{src}")
        for k in range(1, n):
            a(f"v_and_b32 v{t}, 1, v{src+k}"); a(f"v_lshl_or_b32 v{dst}, v{t}, {k}, v{dst}")
    WREG = 40

    lab("L_notloader")
    a("v_lshrrev_b32 v3, 4, v2")
    a("v_and_b32 v4, 15, v2")
    a("s_mov_b32 s43, 0xffff0000")
    a("s_mov_b32 s42, " + hex(LOG2E))
    a("s_lshl_b32 s39, s37, 10")
    a("s_mov_b32 s30, 1024"); a("s_mov_b32 s31, 0x20000"); a("s_mov_b32 s35, 0x20000")
    a("s_cmp_ge_u32 s3, 5")
    a("s_cbranch_scc1 L_helper")

    a("s_sub_u32 s3, s3, 1")
    a("s_lshl_b32 s38, s3, 20"); a("s_lshl_b32 s46, s36, 8"); a("s_add_u32 s38, s38, s46")
    a("v_lshlrev_b32 v5, 18, v3"); a("v_lshl_add_u32 v5, v4, 4, v5"); a("v_add_u32 v5, s38, v5")
    a("s_mov_b32 s34, 0x400000")
    a("s_lshl_b32 s40, s37, 15")
    a("s_waitcnt lgkmcnt(0)")
    a("s_add_u32 s28, s4, s39"); a("s_addc_u32 s29, s5, 0")
    a("s_mov_b32 s32, s10"); a("s_mov_b32 s33, s11")
    a(f"buffer_load_dwordx4 v[8:11], v1, s[28:31], 0 offen {xpol}")
    wq = {"issued": 0}
    def issue_wq(window=True):
        i = wq["issued"]
        if i >= 32 or noq: return
        if window: a(f"s_waitcnt vmcnt({WQWIN-1})")
        r = WREG + i * 4
        a(f"buffer_load_dwordx4 v[{r}:{r+3}], v5, s[32:35], s40 offen {wpol}")
        a(f"s_add_u32 s40, s40, {0 if wqhit == 1 else 0x2000}")
        if i % 4 == 3: a(f"s_and_b32 s40, s40, {0x3ffff if wqhit != 2 else 0}")
        wq["issued"] += 1
    for i in range(WQWIN): issue_wq(False)
    a("s_barrier")
    a(f"s_waitcnt vmcnt({WQWIN if not noq else 0})")
    layernorm(issue_wq)
    a(f"s_mov_b32 s45, {RING+XN}")
    a("v_add_u32 v6, s45, v1")
    a("ds_write_b128 v6, v[8:11]")
    issue_wq()
    a("s_lshl_b32 s46, s3, 8"); a("s_add_u32 s46, s46, s45")
    a("v_lshlrev_b32 v7, 6, v3"); a("v_add_u32 v7, s46, v7")
    a("s_waitcnt lgkmcnt(0)")
    for k in range(8):
        a(f"s_add_u32 s46, s37, {k}"); a("s_and_b32 s46, s46, 7"); a("s_lshl_b32 s46, s46, 3")
        a("v_add_u32 v12, s46, v7")
        a(f"ds_read_b64 v[{16+2*k}:{17+2*k}], v12")
    for k in range(8): a(f"v_mov_b32 v{32+k}, 0")
    a("s_waitcnt lgkmcnt(0)")
    for i in range(32 if not noq else 0):
        forms(16 + i // 2, i & 1, 12, 13)
        if wq["issued"] < 32: issue_wq()
        else: a(f"s_waitcnt vmcnt({31 - i})")
        mac8(32, WREG + i * 4, 12, 13)
    a("v_lshlrev_b32 v7, 5, v4")
    a(f"v_add_u32 v7, {RING}, v7")
    a("v_lshl_add_u32 v6, v3, 2, v7")
    a("s_lshl_b32 s46, s3, 9"); a("v_add_u32 v6, s46, v6")
    for k in range(4): a(f"v_permlane16_swap_b32 v{32+2*k}, v{33+2*k}")
    for k in range(4): a(f"v_add_f32 v{32+2*k}, v{32+2*k}, v{33+2*k}")
    a("v_mov_b32 v39, 1")
    a("v_permlane32_swap_b32 v32, v34"); a("v_permlane32_swap_b32 v36, v38")
    a("v_add_f32 v32, v32, v34"); a("v_add_f32 v36, v36, v38")
    a(f"ds_write_b32 v6, v32 offset:{QP}"); a(f"ds_write_b32 v6, v36 offset:{QP+16}")
    a(f"v_mov_b32 v38, {RING+CT}")
    a("s_waitcnt lgkmcnt(0)")
    a("s_mov_b64 exec, 1")
    a("ds_add_u32 v38, v39 offset:4")
    a("s_mov_b64 exec, -1")
    lds_poll("L_qw", 38, 4, 4, 39, 1)
    for w in range(4):
        a(f"ds_read_b128 v[{40+w*8}:{43+w*8}], v7 offset:{QP+w*512}")
        a(f"ds_read_b128 v[{44+w*8}:{47+w*8}], v7 offset:{QP+w*512+16}")
    a("s_mov_b32 s41, " + hex(SCALE))
    a("v_mov_b32 v16, 0xff800000")
    a("s_lshl_b32 s44, s3, 13"); a("v_add_u32 v36, s44, v1")
    a("s_lshl_b32 s46, s3, 2"); a("v_add_u32 v37, s46, v38")
    a("s_lshl_b32 s47, s3, 1"); a("s_add_u32 s47, s47, 1")
    a("v_mov_b32 v27, 0")
    a("s_lshl_b32 s40, s3, 11"); a(f"s_add_u32 s40, s40, {RING+SC}")
    a("v_lshlrev_b32 v17, 4, v3"); a("v_add_u32 v17, s40, v17")
    a("v_and_b32 v5, 14, v4"); a("v_add_u32 v5, v5, v17")
    a("v_and_b32 v26, 2, v2"); a("v_cmp_ne_u32 vcc, 0, v26")
    a("s_waitcnt lgkmcnt(4)")
    for k in range(8): a(f"v_add_f32 v{40+k}, v{40+k}, v{48+k}")
    a("s_waitcnt lgkmcnt(0)")
    for k in range(8): a(f"v_add_f32 v{56+k}, v{56+k}, v{64+k}")
    for k in range(8): a(f"v_add_f32 v{40+k}, v{40+k}, v{56+k}")
    for k in range(4): a(f"v_cvt_pk_bf16_f32 v{72+k}, v{40+2*k}, v{41+2*k}")
    stamp(1)
    Q = 72; DR = 40
    S = list(range(18, 26))
    def half2(lbl):
        a("s_cmp_gt_u32 s45, s47")
        a(f"s_cbranch_scc1 {lbl}_ok")
        a("s_add_u32 s46, s47, 1")
        lds_poll(lbl, 38, 0, "s46", 39, csl)
        for j in range(4, 8 if not nolds else 4): a(f"ds_read_b128 v[{DR+4*j}:{DR+4*j+3}], v36 offset:{j*1024}")
        a("v_add_u32 v27, 1, v27")
        a("s_add_u32 s44, s44, 0x8000"); a(f"s_sub_u32 s46, s44, {RING}"); a("s_cselect_b32 s44, s44, s46")
        a("v_add_u32 v36, s44, v1")
        a("s_add_u32 s47, s47, 8")
    lab("L_kloop")
    lds_poll("L_pk", 38, 0, "s47", 39, csl1)
    for j in range(4 if not nolds else 0): a(f"ds_read_b128 v[{DR+4*j}:{DR+4*j+3}], v36 offset:{j*1024}")
    for j in range(8): a(f"v_mov_b32 v{S[j]}, 0")
    for j in range(4):
        a(f"s_waitcnt lgkmcnt({3-j})")
        for d in range(4): a(f"v_dot2c_f32_bf16 v{S[j]}, v{DR+4*j+d}, v{Q+d}")
    half2("L_pk2")
    for j in range(4, 8):
        a(f"s_waitcnt lgkmcnt({7-j})")
        if j == 7: a("ds_write_b32 v37, v27 offset:16")
        for d in range(4): a(f"v_dot2c_f32_bf16 v{S[j]}, v{DR+4*j+d}, v{Q+d}")
    for j in range(4): a(f"v_add_f32_dpp v{S[j]}, v{S[j]}, v{S[j]} row_ror:8 row_mask:0xf bank_mask:0x3")
    for j in range(4): a(f"v_add_f32_dpp v{S[j]}, v{S[j+4]}, v{S[j+4]} row_ror:8 row_mask:0xf bank_mask:0xc")
    for j in range(2): a(f"v_add_f32_dpp v{S[j]}, v{S[j]}, v{S[j]} row_ror:12 row_mask:0xf bank_mask:0x5")
    nop(1)
    for j in range(2): a(f"v_add_f32_dpp v{S[j]}, v{S[j+2]}, v{S[j+2]} row_ror:4 row_mask:0xf bank_mask:0xa")
    nop(1)
    for j in range(2): a(f"v_add_f32_dpp v{S[j]}, v{S[j]}, v{S[j]} quad_perm:[2,3,0,1] row_mask:0xf bank_mask:0xf")
    a(f"v_cndmask_b32 v{S[2]}, v{S[0]}, v{S[1]}, vcc")
    nop(2)
    a(f"v_add_f32_dpp v{S[2]}, v{S[2]}, v{S[2]} quad_perm:[1,0,3,2] row_mask:0xf bank_mask:0xf")
    a(f"v_cvt_pk_bf16_f32 v{S[2]}, 0, v{S[2]}")
    a(f"v_mul_f32 v{S[2]}, s41, v{S[2]}")
    a(f"v_cvt_pk_bf16_f32 v{S[2]}, v{S[2]}, v{S[2]}")
    a(f"ds_write_b16 v5, v{S[2]}")
    a(f"v_and_b32 v{S[3]}, s43, v{S[2]}")
    a(f"v_max_f32 v16, v16, v{S[3]}")
    a("v_add_u32 v5, 64, v5")
    a("s_cmp_lt_u32 s47, 256")
    a("s_cbranch_scc1 L_kloop")
    a("v_lshlrev_b32 v5, 1, v1"); a("v_add_u32 v5, s40, v5")
    a("s_waitcnt lgkmcnt(0)")
    a("ds_read_b128 v[40:43], v5"); a("ds_read_b128 v[44:47], v5 offset:16")
    for ro in (8, 4, 2, 1):
        a(f"v_max_f32_dpp v16, v16, v16 row_ror:{ro} row_mask:0xf bank_mask:0xf"); nop(2)
    a("v_mov_b32 v18, v16"); nop(2)
    a("v_permlane16_swap_b32 v16, v18"); a("v_max_f32 v16, v16, v18"); a("v_mov_b32 v18, v16"); nop(2)
    a("v_permlane32_swap_b32 v16, v18"); a("v_max_f32 v16, v16, v18")
    a("v_mul_f32 v18, s42, v16")
    a("s_waitcnt lgkmcnt(0)")
    for k in range(8):
        a(f"v_lshlrev_b32 v{48+2*k}, 16, v{40+k}"); a(f"v_and_b32 v{49+2*k}, s43, v{40+k}")
    for k in range(16): a(f"v_fma_f32 v{48+k}, v{48+k}, s42, -v18")
    for k in range(16): a(f"v_exp_f32 v{48+k}, v{48+k}")
    a("v_add_f32 v19, v48, v49"); a("v_add_f32 v20, v50, v51")
    for k in range(4, 16, 2):
        a(f"v_add_f32 v19, v19, v{48+k}"); a(f"v_add_f32 v20, v20, v{49+k}")
    a("v_add_f32 v19, v19, v20")
    wave_allsum(19, 20)
    a(f"v_subrev_u32 v21, {CT-ML}, v37")
    a("ds_write_b32 v21, v16"); a("ds_write_b32 v21, v19 offset:16")
    a("v_mov_b32 v39, 1")
    a("s_waitcnt lgkmcnt(0)")
    a("s_mov_b64 exec, 1")
    a("ds_add_u32 v38, v39 offset:8")
    a("s_mov_b64 exec, -1")
    lds_poll("L_mw", 38, 8, 4, 39, 1)
    a(f"v_subrev_u32 v21, {CT-ML}, v38")
    a("ds_read_b128 v[8:11], v21"); a("ds_read_b128 v[12:15], v21 offset:16")
    a("s_waitcnt lgkmcnt(1)")
    a("v_max3_f32 v20, v8, v9, v10"); a("v_max_f32 v20, v20, v11")
    for w in range(4): a(f"v_sub_f32 v{8+w}, v{8+w}, v20")
    a("v_sub_f32 v16, v16, v20")
    for w in range(4): a(f"v_mul_f32 v{8+w}, s42, v{8+w}")
    a("v_mul_f32 v16, s42, v16")
    for w in range(4): a(f"v_exp_f32 v{8+w}, v{8+w}")
    a("v_exp_f32 v16, v16")
    a("s_waitcnt lgkmcnt(0)")
    a("v_mul_f32 v20, v8, v12"); a("v_fmac_f32 v20, v9, v13"); a("v_fmac_f32 v20, v10, v14"); a("v_fmac_f32 v20, v11, v15")
    a("v_rcp_f32 v20, v20"); nop(1)
    a("v_mul_f32 v16, v16, v20")
    for k in range(16): a(f"v_mul_f32 v{48+k}, v16, v{48+k}")
    for k in range(8): a(f"v_cvt_pk_bf16_f32 v{40+k}, v{48+2*k}, v{49+2*k}")
    a("ds_write_b128 v5, v[40:43]"); a("ds_write_b128 v5, v[44:47] offset:16")
    for k in range(8): a(f"v_mov_b32 v{8+k}, 0")
    a("s_waitcnt lgkmcnt(0)")
    if tprio: a(f"s_setprio {tprio}")
    L.append("; ======== V phase")
    lab("L_vloop")
    a("ds_read_b128 v[28:31], v17")
    a("v_add_u32 v17, 64, v17")
    lds_poll("L_pv", 38, 0, "s47", 39, csl1)
    for j in range(4 if not nolds else 0): a(f"ds_read_b128 v[{DR+4*j}:{DR+4*j+3}], v36 offset:{j*1024}")
    for j in range(8): forms(28 + j // 2, j & 1, 76 + 2 * j, 77 + 2 * j)
    for j in range(4):
        a(f"s_waitcnt lgkmcnt({3-j})")
        mac8(8, DR + 4 * j, 76 + 2 * j, 77 + 2 * j)
    half2("L_pv2")
    for j in range(4, 8):
        a(f"s_waitcnt lgkmcnt({7-j})")
        if j == 7: a("ds_write_b32 v37, v27 offset:16")
        mac8(8, DR + 4 * j, 76 + 2 * j, 77 + 2 * j)
    a("s_cmp_lt_u32 s47, 512")
    a("s_cbranch_scc1 L_vloop")
    nop(2)
    for k in range(4): a(f"v_permlane16_swap_b32 v{8+2*k}, v{9+2*k}")
    for k in range(4): a(f"v_add_f32 v{8+2*k}, v{8+2*k}, v{9+2*k}")
    nop(1)
    a("v_permlane32_swap_b32 v8, v10"); a("v_permlane32_swap_b32 v12, v14")
    a("v_add_f32 v8, v8, v10"); a("v_add_f32 v12, v12, v14")
    a(f"ds_write_b32 v6, v8 offset:{SP}"); a(f"ds_write_b32 v6, v12 offset:{SP+16}")
    a("s_waitcnt lgkmcnt(0)")
    a("s_barrier")
    if diag:
        a("s_cmp_lg_u32 s3, 0"); a("s_cbranch_scc1 L_done")
        a("s_load_dwordx2 s[26:27], s[0:1], 88")
        put_stamp(1, 16, 8)
    a("s_endpgm")

    L.append("; ======== helpers")
    lab("L_helper")
    a("s_sub_u32 s3, s3, 5")
    if pf:
        a("s_cmp_lg_u32 s3, 2"); a("s_cbranch_scc1 L_nopf")
        a("s_getpc_b64 s[46:47]")
        lab("L_pc")
        a(f"s_sub_u32 s46, s46, L_pc-{KN}"); a("s_subb_u32 s47, s47, 0")
        a("s_lshr_b32 s45, s2, 3"); a("s_min_u32 s45, s45, (L_end-" + KN + ")/1024-1"); a("s_lshl_b32 s45, s45, 10")
        a("v_add_u32 v6, s45, v1")
        a(f"global_load_dwordx4 v[8:11], v6, s[46:47] {pfpol}")
        lab("L_nopf")
    a("s_load_dwordx2 s[12:13], s[0:1], 32")
    a("s_load_dwordx8 s[16:23], s[0:1], 48")
    a("s_load_dwordx4 s[24:27], s[0:1], 80")
    a(f"v_mov_b32 v38, {RING+CT}")
    a("s_barrier")
    a("s_waitcnt lgkmcnt(0)")
    a("s_lshl_b32 s38, s37, 16")
    a("s_add_u32 s48, s26, s38"); a("s_addc_u32 s49, s27, 0"); a("s_mov_b32 s50, 0x10000"); a("s_mov_b32 s51, 0x20000")
    a("s_cmp_ge_u32 s3, 4"); a("s_cbranch_scc1 L_notwo")

    a("v_lshlrev_b32 v34, 5, v4"); a("v_lshrrev_b32 v7, 1, v3"); a("v_lshl_add_u32 v34, v7, 4, v34")
    if cont: a("v_lshlrev_b32 v34, 4, v4"); a("v_lshl_add_u32 v34, v7, 8, v34")
    a("s_lshl_b32 s14, s3, 9"); a("s_lshl_b32 s46, s36, 11"); a("s_add_u32 s14, s14, s46")
    a("s_mov_b32 s32, s12"); a("s_mov_b32 s33, s13"); a("s_mov_b32 s34, 0x400000")
    a("s_lshl_b32 s46, s36, 17"); a("s_lshl_b32 s47, s3, 8"); a("s_add_u32 s46, s46, s47")
    a("v_lshlrev_b32 v5, 15, v3"); a("v_lshl_add_u32 v5, v4, 4, v5"); a("v_add_u32 v5, s46, v5")
    a("s_mov_b32 s40, 0"); a("s_mov_b32 s46, 0x05040100"); a("s_mov_b32 s47, 0x07060302")
    if mpf:
        a("s_cmp_eq_u32 s3, 1"); a("s_cselect_b32 s28, s18, s16"); a("s_cselect_b32 s29, s19, s17")
        a("s_cmp_eq_u32 s3, 2"); a("s_cselect_b32 s28, s20, s28"); a("s_cselect_b32 s29, s21, s29")
        a("s_cmp_eq_u32 s3, 3"); a("s_cselect_b32 s30, 0, 0x1c0000")
        a("s_mul_i32 s41, s2, 7168")
        a("s_lshl_b32 s44, s2, 14"); a("s_lshl_b32 s45, s3, 12"); a("s_add_u32 s15, s44, s45")
        if own:
            a("s_lshl_b32 s44, s36, 17"); a("s_lshl_b32 s15, s37, 14"); a("s_add_u32 s15, s15, s44"); a("s_add_u32 s15, s15, s45")
            a("s_lshl_b32 s44, s36, 16"); a("s_lshl_b32 s45, s37, 13"); a("s_add_u32 s44, s44, s45")
            a("s_cmp_eq_u32 s3, 2"); a("s_cselect_b32 s41, s44, s41")
        lds_poll("L_pf0", 38, 0, PF0, 39, 8)
        if own == 2:
            a("v_lshrrev_b32 v6, 5, v2"); a("v_mul_u32_u24 v6, 3584, v6"); a("v_and_b32 v7, 0x1f0, v1"); a("v_add_u32 v6, v6, v7")
            a("s_and_b32 s44, s2, 7"); a("s_lshr_b32 s45, s2, 3"); a("s_mul_i32 s45, s45, 57344"); a("s_lshl_b32 s13, s44, 9"); a("s_add_u32 s45, s45, s13")
            a("s_cmp_eq_u32 s44, 7"); a("s_cselect_b32 s44, 0, s30")
            a("s_cmp_lt_u32 s3, 2"); a("s_cselect_b32 s30, s44, s30"); a("s_cselect_b32 s41, s45, s41")
            a("s_cselect_b64 vcc, -1, 0"); a("s_mov_b32 s13, 1024"); a("s_cselect_b32 s13, 7168, s13")
            a("v_cndmask_b32 v6, v1, v6, vcc")
            for i in range(12):
                if i >= PFW: a(f"s_waitcnt vmcnt({PFW - 1})")
                r = WREG + 4 * i
                if i < 8:
                    a(f"buffer_load_dwordx4 v[{r}:{r+3}], v6, s[28:31], s41 offen"); a("s_add_u32 s41, s41, s13")
                else:
                    a(f"buffer_load_dwordx4 v[{r}:{r+3}], v1, s[32:35], s15 offen offset:{(i - 8) * 1024}")
        else:
            if own:
                a("s_mov_b32 s45, 0x200000"); a("s_cmp_eq_u32 s3, 2"); a("s_cselect_b32 s45, 7168, s45"); a("s_add_u32 s45, s45, s41")
                a(f"buffer_load_dwordx4 v[{WREG+44}:{WREG+47}], v1, s[28:31], s45 offen")
            for i in range(11):
                if i >= PFW: a(f"s_waitcnt vmcnt({PFW - 1})")
                r = WREG + 4 * i
                if i < 7:
                    a(f"buffer_load_dwordx4 v[{r}:{r+3}], v1, s[28:31], s41 offen offset:{(i % 4) * 1024}")
                    if i == 3: a("s_add_u32 s41, s41, 4096")
                else:
                    a(f"buffer_load_dwordx4 v[{r}:{r+3}], v1, s[32:35], s15 offen offset:{(i - 7) * 1024}")
    if wqbg:
        a("s_mov_b32 s28, s10"); a("s_mov_b32 s29, s11"); a("s_mov_b32 s30, 0x400000")
        a("s_lshl_b32 s44, s3, 20"); a("s_lshl_b32 s45, s36, 8"); a("s_add_u32 s44, s44, s45")
        a("v_lshlrev_b32 v6, 18, v3"); a("v_lshl_add_u32 v6, v4, 4, v6"); a("v_add_u32 v6, s44, v6")
        a("s_lshl_b32 s41, s37, 15")
        for i in range(32):
            a(f"s_waitcnt vmcnt({wqbg - 1})")
            a(f"buffer_load_dwordx4 v[{WREG+4*i}:{WREG+4*i+3}], v6, s[28:31], s41 offen")
            a("s_add_u32 s41, s41, 0x2000"); a("s_and_b32 s41, s41, 0x3ffff")
    a(f"s_mul_i32 s44, s3, {WOS}"); a(f"s_add_u32 s44, s44, {WO0}")
    lds_poll("L_wos", 38, 0, "s44", 39, 32)
    a(f"buffer_load_dwordx4 v[8:11], v34, s[48:51], s14 offen {snpol}")
    a("s_waitcnt vmcnt(0)")
    packbits(35, 8, 4, 20)
    a("v_xor_b32 v35, 15, v35")
    def issue_o(i):
        r = WREG + i * 4
        a(f"buffer_load_dwordx4 v[{r}:{r+3}], v5, s[32:35], s40 offen offset:{(i%4)*1024} {wpol}")
        if i % 4 == 3: a(f"s_add_u32 s40, s40, {0 if hitx else 4096}")
    for i in range(WOWIN if not nowo else 0): issue_o(i)
    for i in range(32 if not nowo else 0):
        a(f"s_waitcnt vmcnt({min(WOWIN - 1, 31 - i)})")
        if i + WOWIN < 32: issue_o(i + WOWIN)
        if i & 1:
            A = WREG + 8 * (i // 2); B = A + 4
            for d in range(4):
                a(f"v_perm_b32 v12, v{B+d}, v{A+d}, s46")
                a(f"v_perm_b32 v{B+d}, v{B+d}, v{A+d}, s47")
                a(f"v_mov_b32 v{A+d}, v12")
    a("v_lshrrev_b32 v7, 1, v1"); a(f"v_add_u32 v7, {RING}, v7")
    a("s_lshl_b32 s45, s3, 8"); a(f"s_add_u32 s45, s45, {RING+OB}")
    a("v_lshrrev_b32 v4, 2, v1"); a("v_add_u32 v4, s45, v4")
    a("v_lshlrev_b32 v3, 6, v3"); a("v_add_u32 v3, s45, v3")
    for k in range(4): a(f"v_bfe_u32 v{k if k < 3 else 5}, v35, {k}, 1".replace("v0,", "v0,"))
    TB = [0, 1, 2, 5]
    for k in range(8): a(f"v_mov_b32 v{8+k}, 0")
    stamp(5)
    if tprio: a(f"s_setprio {tprio}")
    a("s_barrier")
    for w in range(4): a(f"ds_read_b64 v[{16+2*w}:{17+2*w}], v7 offset:{SP+w*512}")
    a("s_waitcnt lgkmcnt(2)")
    a("v_add_f32 v16, v16, v18"); a("v_add_f32 v17, v17, v19")
    a("s_waitcnt lgkmcnt(0)")
    a("v_add_f32 v20, v20, v22"); a("v_add_f32 v21, v21, v23")
    a("v_add_f32 v16, v16, v20"); a("v_add_f32 v17, v17, v21")
    a("v_cvt_pk_bf16_f32 v25, v16, v17")
    if bc:
        nop(2)
        for k in range(16):
            A = WREG + 8 * k; B = A + 4
            for d in range(4):
                a(f"v_dot2c_f32_bf16_dpp v{8+2*d}, v25, v{A+d} row_newbcast:{k} row_mask:0xf bank_mask:0xf")
                a(f"v_dot2c_f32_bf16_dpp v{9+2*d}, v25, v{B+d} row_newbcast:{k} row_mask:0xf bank_mask:0xf")
    else:
        a("ds_write_b32 v4, v25")
        a("s_waitcnt lgkmcnt(0)")
        for k in range(4): a(f"ds_read_b128 v[{16+4*k}:{19+4*k}], v3 offset:{16*k}")
        for k in range(16):
            if k % 4 == 0: a(f"s_waitcnt lgkmcnt({3-k//4})")
            A = WREG + 8 * k; B = A + 4
            for d in range(4):
                a(f"v_dot2c_f32_bf16 v{8+2*d}, v{A+d}, v{16+k}")
                a(f"v_dot2c_f32_bf16 v{9+2*d}, v{B+d}, v{16+k}")
    nop(3)
    for k in range(4): a(f"v_permlane32_swap_b32 v{8+k}, v{12+k}")
    for k in range(4): a(f"v_add_f32 v{8+k}, v{8+k}, v{12+k}")
    for k in range(4): a(f"v_mov_b32 v{12+k}, v{8+k}")
    for k in range(4): a(f"v_permlane16_swap_b32 v{8+k}, v{12+k}")
    for k in range(4): a(f"v_add_f32 v{8+k}, v{8+k}, v{12+k}")
    for k in range(4): a(f"v_and_or_b32 v{20+k}, v{8+k}, -2, v{TB[k]}")
    a("s_mov_b32 exec_lo, 0xffff"); a("s_mov_b32 exec_hi, 0xffff")
    a(f"buffer_store_dwordx4 v[20:23], v34, s[48:51], s14 offen {spol}")
    if diag:
        a("s_mov_b64 exec, -1")
        a("s_cmp_lg_u32 s3, 3"); a("s_cbranch_scc1 L_done")
        stamp(6); put_stamp(5, 40, 24); put_stamp(6, 48, 24)
    a("s_endpgm")

    lab("L_notwo")
    if ctl:
        a("s_cmp_eq_u32 s3, 5"); a("s_cbranch_scc1 L_ctl")
    a(f"s_add_u32 s52, s48, {YOFF}"); a("s_addc_u32 s53, s49, 0"); a(f"s_mov_b32 s54, {28*2048}"); a("s_mov_b32 s55, 0x20000")
    a("s_add_u32 s28, s4, s39"); a("s_addc_u32 s29, s5, 0")
    a("s_add_u32 s56, s22, s39"); a("s_addc_u32 s57, s23, 0"); a("s_mov_b32 s58, 1024"); a("s_mov_b32 s59, 0x20000")
    a("v_lshrrev_b32 v32, 2, v2"); a("v_lshlrev_b32 v32, 11, v32"); a("v_and_b32 v33, 48, v1"); a("v_add_u32 v32, v32, v33")
    a("v_add_u32 v33, 0x8000, v32")
    a("v_lshlrev_b32 v34, 1, v1")
    a("s_lshl_b32 s14, s36, 11"); a("s_lshl_b32 s15, s36, 6")
    a("v_lshrrev_b32 v31, 1, v1"); a("v_and_b32 v31, 24, v31"); a("s_lshl_b32 s46, s36, 5"); a("v_add_u32 v31, s46, v31")
    def snap_gather():
        if nosnap:
            a("s_lshl_b32 s46, s37, 5"); a("v_mov_b32 v30, s46"); a("v_mov_b32 v29, 1")
            a("s_mov_b64 exec, 1"); a("global_atomic_add v30, v29, s[24:25] sc1"); a("s_mov_b64 exec, -1")
            return
        a(f"buffer_load_dwordx4 v[8:11], v32, s[48:51], s15 offen {snpol}")
        a(f"buffer_load_dwordx4 v[12:15], v33, s[48:51], s15 offen {snpol}")
        a(f"buffer_load_dwordx4 v[16:19], v32, s[52:55], s15 offen {snpol}")
        a(f"buffer_load_dwordx4 v[20:23], v33, s[52:55], s15 offen {snpol}")
        a("s_lshl_b32 s46, s37, 5"); a("v_mov_b32 v30, s46"); a("v_mov_b32 v29, 1")
        a("v_cmp_le_u32 vcc, 48, v2")
        a("s_waitcnt vmcnt(0)")
        a("s_mov_b64 exec, 1")
        a("global_atomic_add v30, v29, s[24:25] sc1")
        a("s_mov_b64 exec, -1")
        packbits(36, 8, 8, 24)
        packbits(37, 16, 8, 24)
        a("v_mov_b32 v24, 0xf0"); a("v_cndmask_b32 v24, 0, v24, vcc"); a("v_or_b32 v37, v37, v24")
    def snap_own():
        a(f"buffer_load_dwordx4 v[8:11], v34, s[52:55], s14 offen {snpol}")
        a(f"buffer_load_dwordx4 v[12:15], v34, s[52:55], s14 offen offset:16 {snpol}")
        a(f"buffer_load_dwordx2 v[26:27], v31, s[28:31], 0 offen {xpol}")
        if sno:
            a(f"buffer_load_dwordx4 v[16:19], v1, s[48:51], s14 offen {snpol}")
            a(f"buffer_load_dwordx4 v[20:23], v1, s[48:51], s14 offen offset:1024 {snpol}")
        a("s_waitcnt vmcnt(0)")
        packbits(35, 8, 8, 24)
        a("v_xor_b32 v35, 0xff, v35")
    if sno:
        snap_own()
        lds_poll("L_hq", 38, 4, 4, 39, 8)
        if SNAP: lds_poll("L_sw", 38, 0, SNAP, 39, 8)
        snap_gather()
    else:
        if SNAP: lds_poll("L_sw", 38, 0, SNAP, 39, 8)
        snap_gather()
        lds_poll("L_hq", 38, 4, 4, 39, 8)
        snap_own()
    a("s_cmp_ge_u32 s36, 28"); a("s_cbranch_scc1 L_noffn")
    if FF0: lds_poll("L_ff0", 38, 0, FF0, 39, 16)
    FA = 40; FREG = 56
    if not noffn:
        a("s_mov_b32 s28, s16"); a("s_mov_b32 s29, s17"); a("s_mov_b32 s30, 0x1c0000")
        a("s_mov_b32 s32, s18"); a("s_mov_b32 s33, s19"); a("s_mov_b32 s34, 0x1c0000")
        a("v_lshrrev_b32 v6, 3, v2"); a("v_and_b32 v7, 7, v2")
        a("s_mov_b32 s46, 229376"); a("v_mul_lo_u32 v8, v6, s46")
        a("v_lshl_add_u32 v8, v7, 4, v8"); a("s_lshl_b32 s46, s36, 7"); a("v_add_u32 v8, s46, v8")
        if wide:
            a("s_mov_b32 s46, 229376"); a("v_mul_lo_u32 v8, v3, s46"); a("v_lshl_add_u32 v8, v4, 4, v8")
            a("s_lshr_b32 s46, s36, 1"); a("s_lshl_b32 s46, s46, 8"); a("v_add_u32 v8, s46, v8")
            a("s_and_b32 s46, s36, 1"); a("s_mul_i32 s46, s46, 917504"); a("v_add_u32 v8, s46, v8")
        a("v_lshlrev_b32 v9, 7, v6"); a(f"v_add_u32 v9, {RING+XN}, v9")
        a("s_mov_b32 s40, 0")
        def issue_f(n):
            r = FREG + (n % 4) * 4; srd = 28 if n % 2 == 0 else 32
            so = "s40" if n < 4 else "s41"
            a(f"buffer_load_dwordx4 v[{r}:{r+3}], v8, s[{srd}:{srd+3}], {so} offen offset:{3584*((n%4)//2)} {wpol}")
        for n in range(FW): issue_f(n)
        a(f"s_mov_b32 s41, {0 if hitx else 7168}")
        a("ds_read_b32 v10, v9")
        for k in range(16): a(f"v_mov_b32 v{FA+k}, 0")
        a("s_mov_b32 s44, 31")
        def fbody(last):
            a("s_waitcnt lgkmcnt(0)")
            forms(10, 0, 12, 13); forms(10, 1, 14, 15)
            if not last:
                a("v_add_u32 v9, 4, v9"); a("ds_read_b32 v10, v9")
            for n in range(4):
                a(f"s_waitcnt vmcnt({FW-1 if not last else min(FW-1, 3-n)})")
                mac8(FA + 8 * (n % 2), FREG + n * 4, 12 + 2 * (n // 2), 13 + 2 * (n // 2))
                if not last or n + FW < 4: issue_f(n + FW)
            if not last:
                a("s_mov_b32 s40, s41"); a(f"s_add_u32 s41, s41, {0 if hitx else 7168}")
        lab("L_floop")
        fbody(False)
        a("s_sub_u32 s44, s44, 1"); a("s_cmp_lg_u32 s44, 0"); a("s_cbranch_scc1 L_floop")
        fbody(True)
        a("s_mov_b32 s28, s20"); a("s_mov_b32 s29, s21")
        a("s_lshl_b32 s40, s36, 16")
        a(f"s_add_u32 s41, s40, {0 if hitx else 4096}")
        def issue_d(n):
            r = FREG + (n % 4) * 4
            so = "s40" if n < 4 else "s41"
            a(f"buffer_load_dwordx4 v[{r}:{r+3}], v1, s[28:31], {so} offen offset:{(n%4)*1024} {wpol}")
        for n in range(FW): issue_d(n)
        a("v_and_b32 v14, 8, v2"); a("v_cmp_ne_u32 vcc, 0, v14")
        for acc in (FA, FA + 8):
            for k in range(4): a(f"v_permlane32_swap_b32 v{acc+k}, v{acc+4+k}")
            for k in range(4): a(f"v_add_f32 v{acc+k}, v{acc+k}, v{acc+4+k}")
            nop(1)
            a(f"v_permlane16_swap_b32 v{acc}, v{acc+2}"); a(f"v_permlane16_swap_b32 v{acc+1}, v{acc+3}")
            a(f"v_add_f32 v{acc}, v{acc}, v{acc+2}"); a(f"v_add_f32 v{acc+1}, v{acc+1}, v{acc+3}")
            nop(2)
            a(f"v_add_f32_dpp v{acc}, v{acc}, v{acc} row_ror:8 row_mask:0xf bank_mask:0xf")
            a(f"v_add_f32_dpp v{acc+1}, v{acc+1}, v{acc+1} row_ror:8 row_mask:0xf bank_mask:0xf")
            a(f"v_cndmask_b32 v{acc}, v{acc}, v{acc+1}, vcc")
        a(f"v_cvt_pk_bf16_f32 v14, v{FA}, v{FA+8}")
        a("v_lshlrev_b32 v15, 16, v14"); a("v_and_b32 v16, s43, v14")
        a("v_mul_f32 v17, v15, v15"); a("v_mul_f32 v17, v17, v15")
        a("v_mov_b32 v18, 0x3d372713"); a("v_fma_f32 v17, v17, v18, v15")
        a("v_mul_f32 v17, 0xc0135761, v17")
        a("v_exp_f32 v17, v17"); nop(1)
        a("v_add_f32 v17, 1.0, v17"); a("v_rcp_f32 v17, v17"); nop(1)
        a("v_mul_f32 v17, v15, v17")
        a("v_cvt_pk_bf16_f32 v17, v17, v17"); a("v_and_b32 v17, s43, v17")
        a("v_mul_f32 v17, v17, v16")
        a("v_cvt_pk_bf16_f32 v17, v17, v17")
        a("v_lshlrev_b32 v14, 4, v7")
        a("v_lshrrev_b32 v15, 5, v2"); a("v_lshl_add_u32 v14, v15, 3, v14")
        a("v_bfe_u32 v15, v2, 4, 1"); a("v_lshl_add_u32 v14, v15, 2, v14")
        a("v_bfe_u32 v15, v2, 3, 1"); a("v_lshl_add_u32 v14, v15, 1, v14")
        a(f"v_mov_b32 v9, {RING+HB}"); a("v_add_u32 v14, v9, v14")
        a("ds_write_b16 v14, v17")
        a("s_waitcnt lgkmcnt(0)")
        a("ds_read_b64 v[10:11], v9")
        for k in range(8): a(f"v_mov_b32 v{FA+k}, 0")
        a("s_mov_b32 s44, 15")
        def dbody(last):
            a("s_waitcnt lgkmcnt(0)")
            forms(10, 0, 12, 13); forms(10, 1, 14, 15); forms(11, 0, 16, 17); forms(11, 1, 18, 19)
            if not last:
                a("v_add_u32 v9, 8, v9"); a("ds_read_b64 v[10:11], v9")
            for n in range(4):
                a(f"s_waitcnt vmcnt({FW-1 if not last else min(FW-1, 3-n)})")
                mac8(FA, FREG + n * 4, 12 + 2 * n, 13 + 2 * n)
                if not last or n + FW < 4: issue_d(n + FW)
            if not last:
                a("s_mov_b32 s40, s41"); a(f"s_add_u32 s41, s41, {0 if hitx else 4096}")
        lab("L_dloop")
        dbody(False)
        a("s_sub_u32 s44, s44, 1"); a("s_cmp_lg_u32 s44, 0"); a("s_cbranch_scc1 L_dloop")
        dbody(True)
    for k in range(8): a(f"v_bfe_u32 v{8+k}, v35, {k}, 1")
    for k in range(8): a(f"v_and_or_b32 v{FA+k}, v{FA+k}, -2, v{8+k}")
    lab("L_noffn")
    if diag:
        stamp(4); put_stamp(4, 56, 12)
    lds_poll("L_mid", 38, 0, MID, 39, 32)
    a("s_mov_b32 s47, 0x20000")
    a("s_mov_b64 exec, 1")
    lab("L_rdy")
    a(f"global_load_dword v13, v30, s[24:25] sc1")
    a("s_waitcnt vmcnt(0)")
    a("v_readfirstlane_b32 s46, v13")
    a("s_sub_u32 s47, s47, 1"); a("s_cmp_eq_u32 s47, 0"); a("s_cbranch_scc1 L_rdy_ok")
    a("s_cmp_ge_u32 s46, 32"); a("s_cbranch_scc1 L_rdy_ok")
    a("s_sleep 16"); a("s_branch L_rdy")
    lab("L_rdy_ok")
    a("s_mov_b64 exec, -1")
    a("v_lshlrev_b32 v24, 16, v26"); a("v_and_b32 v25, s43, v26"); a("v_lshlrev_b32 v26, 16, v27"); a("v_and_b32 v27, s43, v27")
    a("v_cmp_gt_u32 vcc, 32, v2"); a("v_and_b32 v12, 16, v2"); a("v_cmp_eq_u32 s[12:13], 0, v12")
    nop(1)
    a("v_cndmask_b32 v24, v26, v24, vcc"); a("v_cndmask_b32 v25, v27, v25, vcc")
    a("v_cndmask_b32 v24, v25, v24, s[12:13]")
    a("v_lshrrev_b32 v12, 5, v2"); a("v_lshl_add_u32 v31, v12, 2, v31"); a("v_bfe_u32 v12, v2, 4, 1"); a("v_lshl_add_u32 v31, v12, 1, v31")
    for k in range(8): a(f"v_bfe_u32 v{48+k}, v36, {k}, 1")
    for k in range(8): a(f"v_bfe_u32 v{56+k}, v37, {k}, 1")
    a("s_mov_b32 s47, 0x40000")
    lds_poll("L_yp", 38, 0, YP, 39, 2)
    a(f"buffer_store_dwordx4 v[{FA}:{FA+3}], v34, s[52:55], s14 offen {spol}")
    a(f"buffer_store_dwordx4 v[{FA+4}:{FA+7}], v34, s[52:55], s14 offen offset:16 {spol}")
    if YW: lds_poll("L_yw", 38, 0, 512, 39, 1)
    else: a("s_barrier")
    def pissue(b, srd):
        a(f"buffer_load_dwordx4 v[{b}:{b+3}], v32, s[{srd}:{srd+3}], s15 offen {gpol}")
        a(f"buffer_load_dwordx4 v[{b+4}:{b+7}], v33, s[{srd}:{srd+3}], s15 offen {gpol}")
    def pcheck(b, sn):
        a(f"v_xor_b32 v16, v{b}, v{sn}")
        for k in range(1, 8): a(f"v_bitop3_b32 v16, v16, v{b+k}, v{sn+k} bitop3:0x60")
        a("v_and_b32 v16, 1, v16")
        a("v_cmp_eq_u32 vcc, 0, v16")
    def reduce16(b):
        for k in range(8): a(f"v_and_b32 v{8+k}, -2, v{b+k}")
        for k in range(4): a(f"v_add_f32 v{8+k}, v{8+k}, v{12+k}")
        nop(1)
        a("v_permlane32_swap_b32 v8, v10"); a("v_permlane32_swap_b32 v9, v11")
        a("v_add_f32 v8, v8, v10"); a("v_add_f32 v9, v9, v11")
        nop(2)
        a("v_permlane16_swap_b32 v8, v9")
        a("v_add_f32 v8, v8, v9")
        nop(2)
        a("v_add_f32_dpp v8, v8, v8 row_ror:4 row_mask:0xf bank_mask:0xf")
        nop(2)
        a("v_add_f32_dpp v8, v8, v8 row_ror:8 row_mask:0xf bank_mask:0xf")
        a("v_cvt_pk_bf16_f32 v8, 0, v8")
    if YW:
        pissue(64, 52)
        a("s_barrier")
        a("s_branch L_gy1")
    lab("L_gy")
    pissue(64, 52)
    lab("L_gy1")
    a("s_waitcnt vmcnt(0)")
    pcheck(64, 56)
    a("s_sub_u32 s47, s47, 1"); a("s_cmp_eq_u32 s47, 0"); a("s_cbranch_scc1 L_gy_ok")
    a("s_and_b64 exec, exec, vcc")
    a("s_cbranch_scc1 L_gy")
    lab("L_gy_ok")
    a("s_mov_b64 exec, -1")
    if SE: pissue(72, 48)
    reduce16(64)
    a("v_mul_f32 v9, 0xbfb8aa3b, v8"); a("v_exp_f32 v9, v9"); nop(1)
    a("v_add_f32 v9, 1.0, v9"); a("v_rcp_f32 v9, v9"); nop(1)
    a("v_mul_f32 v8, v8, v9")
    a("v_cvt_pk_bf16_f32 v20, 0, v8")
    stamp(3)
    a("s_mov_b32 s47, 0x40000")
    if SE: a("s_branch L_gs1")
    lab("L_gs")
    pissue(72, 48)
    lab("L_gs1")
    a("s_waitcnt vmcnt(0)")
    pcheck(72, 48)
    a("s_sub_u32 s47, s47, 1"); a("s_cmp_eq_u32 s47, 0"); a("s_cbranch_scc1 L_gs_ok")
    a("s_and_b64 exec, exec, vcc")
    a("s_cbranch_scc1 L_gs")
    lab("L_gs_ok")
    a("s_mov_b64 exec, -1")
    reduce16(72)
    a("v_mul_f32 v8, v8, v20")
    a("v_cvt_pk_bf16_f32 v8, 0, v8")
    a("v_add_f32 v8, v8, v24")
    a("v_cvt_pk_bf16_f32 v8, v8, v8")
    a("s_mov_b32 exec_lo, 0x000f000f"); a("s_mov_b32 exec_hi, 0x000f000f")
    a("buffer_store_short v8, v31, s[56:59], 0 offen")
    if diag:
        stamp(7)
        a("s_mov_b64 exec, -1")
        put_stamp(7, 8, 20); put_stamp(3, 32, 20)
    lab("L_done")
    a("s_endpgm")
    if ctl:
        NCK = 62 // CKI
        lab("L_ctl")
        a("s_and_b32 s12, s2, 7"); a("s_lshr_b32 s13, s2, 3")
        a("s_lshl_b32 s46, s12, 12"); a(f"s_add_u32 s46, s46, {TOFF}")
        a("s_add_u32 s28, s26, s46"); a("s_addc_u32 s29, s27, 0"); a("s_mov_b32 s30, 4096")
        a(f"s_add_u32 s32, s26, {TOFF + 0x8000}"); a("s_addc_u32 s33, s27, 0"); a("s_mov_b32 s34, 4096")
        a("s_lshl_b32 s46, s13, 2"); a("v_mov_b32 v7, s46")
        a("s_lshl_b32 s46, s12, 2"); a("v_mov_b32 v6, s46")
        a(f"s_mov_b32 s44, {CKI * 8}")
        a("s_mov_b32 s40, 0")
        a("s_mov_b32 s50, 0"); a("s_mov_b32 s51, 0"); a("s_mov_b32 s56, 0"); a("v_mov_b32 v20, 0")
        a("s_mov_b64 exec, 1")
        lab("L_cl")
        lds_poll("L_cp", 38, 0, "s44", 39, 2)
        a("s_memrealtime s[48:49]")
        a("s_waitcnt lgkmcnt(0)")
        a("v_mov_b32 v8, s48")
        if not cab & 1: a("buffer_store_dword v8, v7, s[28:31], s40 offen")
        a("s_cmp_eq_u32 s40, 0"); a("s_cbranch_scc1 L_cnext")
        a("s_sub_u32 s41, s40, 128")
        if not cab & 2:
            a("s_load_dwordx16 s[64:79], s[28:29], s41")
            a("s_add_u32 s46, s41, 64")
            a("s_load_dwordx16 s[80:95], s[28:29], s46")
        a("s_cmp_eq_u32 s41, 0"); a("s_cbranch_scc1 L_cn2")
        a("s_sub_u32 s46, s41, 128")
        if not cab & 4: a("s_load_dwordx8 s[4:11], s[32:33], s46")
        lab("L_cn2")
        a("s_mov_b32 s52, 0"); a("s_mov_b32 s53, 0"); a("s_sub_u32 s54, s50, 2000")
        a("s_waitcnt lgkmcnt(0)")
        for t in range(32):
            a(f"s_sub_u32 s55, s{64+t}, s54"); a("s_cmp_lt_u32 s55, 4000")
            a("s_cselect_b32 s55, s55, 2000"); a("s_addc_u32 s53, s53, 0"); a("s_add_u32 s52, s52, s55")
        a("s_sub_u32 s52, s52, 64000")
        if miss:
            a("s_sub_u32 s55, s48, s50"); a("s_sub_u32 s58, 32, s53"); a("s_mul_i32 s55, s55, s58")
            a("s_cmp_ge_u32 s53, 12"); a("s_cselect_b32 s55, s55, 0"); a("s_cselect_b32 s53, 32, s53"); a("s_add_u32 s52, s52, s55")
        a("s_max_u32 s53, s53, 1")
        a("v_cvt_f32_i32 v11, s52"); a("v_cvt_f32_u32 v12, s53")
        a("v_rcp_f32 v12, v12")
        a("s_mov_b32 s52, 0"); a("s_mov_b32 s53, 0"); a("s_sub_u32 s54, s56, 2000")
        for t in range(8):
            a(f"s_sub_u32 s55, s{4+t}, s54"); a("s_cmp_lt_u32 s55, 4000")
            a("s_cselect_b32 s55, s55, 2000"); a("s_addc_u32 s53, s53, 0"); a("s_add_u32 s52, s52, s55")
        a("s_sub_u32 s52, s52, 16000"); a("s_max_u32 s53, s53, 1")
        a("v_mul_f32 v11, v11, v12")
        a("v_cvt_f32_i32 v13, s52"); a("v_cvt_f32_u32 v14, s53"); a("v_rcp_f32 v14, v14")
        a("v_cvt_i32_f32 v12, v11"); a("v_add_u32 v12, s50, v12")
        a("v_mul_f32 v13, v13, v14")
        a("v_readfirstlane_b32 s57, v12")
        if rl:
            a("s_lshr_b32 s46, s40, 7"); a("s_cmp_lg_u32 s13, s46")
        else:
            a("s_cmp_lg_u32 s13, 0")
        a("s_cbranch_scc1 L_cnl")
        if not cab & 8: a("buffer_store_dword v12, v6, s[32:35], s41 offen sc1")
        lab("L_cnl")
        a("s_sub_u32 s46, s48, s50"); a("s_sub_u32 s47, s57, s56"); a("s_cmp_eq_u32 s41, 0"); a("s_cselect_b32 s46, s46, s47")
        a("v_cvt_f32_i32 v14, s46"); a("v_rcp_f32 v14, v14")
        a("s_mov_b32 s56, s57")
        if GB:
            a(f"s_mov_b32 s58, {f2u(-G / 100.0)}"); a(f"s_mov_b32 s59, {f2u(-G2 / 100.0)}")
            a(f"s_cmp_gt_u32 s44, {TH2 * 8}"); a(f"s_cselect_b32 s58, {f2u(-GB / 100.0)}, s58"); a(f"s_cselect_b32 s59, {f2u(-GB2 / 100.0)}, s59")
            a("v_mul_f32 v11, s58, v11"); a("v_mul_f32 v13, s59, v13"); a("v_add_f32 v11, v11, v13")
        else:
            a(f"v_mul_f32 v11, {f2u(-G / 100.0)}, v11"); a(f"v_mul_f32 v13, {f2u(-G2 / 100.0)}, v13"); a("v_add_f32 v11, v11, v13")
        if LT: a(f"v_mul_f32 v15, {f2u(32.0 * CKI * LT * 16.0)}, v14")
        else: a(f"v_mov_b32 v15, {f2u(float(D16 or D * 16))}")
        a("v_mul_f32 v11, v11, v14")
        if KI:
            a(f"v_mul_f32 v13, {f2u(KI / 100.0)}, v11"); a("v_add_f32 v20, v20, v13")
            a("v_add_f32 v11, v11, v20")
        a("v_fma_f32 v15, v15, v11, v15")
        a(f"v_max_f32 v15, {f2u(DMIN * 16.0)}, v15"); a(f"v_min_f32 v15, {f2u(DMAX * 16.0)}, v15")
        a("v_cvt_u32_f32 v15, v15")
        a("ds_write_b32 v38, v15 offset:12")
        lab("L_cnext")
        a("s_mov_b32 s50, s48")
        if TH2:
            a(f"s_cmp_ge_u32 s44, {TH2 * 8}"); a(f"s_cselect_b32 s46, {CK2 * 8}, {CKI * 8}"); a("s_add_u32 s44, s44, s46")
        else:
            a(f"s_add_u32 s44, s44, {CKI * 8}")
        a("s_add_u32 s40, s40, 128")
        a(f"s_cmp_le_u32 s44, {LAST * 8}")
        a("s_cbranch_scc1 L_cl")
        a("s_endpgm")
    L.append(".p2align 10")
    lab("L_end")
    L.append('.section .rodata,"a"'); L.append(".p2align 6"); L.append(f".amdhsa_kernel {KN}")
    a(".amdhsa_next_free_vgpr 168"); a(".amdhsa_next_free_sgpr 96"); a(".amdhsa_accum_offset 168")
    a(".amdhsa_group_segment_fixed_size 0"); a(".amdhsa_kernarg_size 96"); a(".amdhsa_user_sgpr_count 2")
    a(".amdhsa_user_sgpr_kernarg_segment_ptr 1"); a(".amdhsa_system_sgpr_workgroup_id_x 1")
    a(".amdhsa_float_denorm_mode_32 3")
    L.append(".end_amdhsa_kernel")
    return "\n".join(L) + "\n"

if __name__ == "__main__":
    for spec in sys.argv[1:]:
        out, _, kvs = spec.partition(":")
        kw = {}
        if kvs:
            for kv in kvs.split(","):
                k, v = kv.split("=")
                kw[k] = int(v) if v.lstrip("-").isdigit() else v.replace("+", " ")
        open(out, "w").write(gen(**kw))
```

```python
import sys, struct
KN = "recurrent_scan__mha_block_cached__geglu_ffn__decode_kernel"
HEADER = open("recurrent_scan__mha_block_cached__geglu_ffn__decode.s.ref").read().split("; Override launch")[0]

XN, QP, SP, ML, CT, OB, HB, SC = 0, 1024, 1024, 3072, 3136, 3328, 4352, 4608
MISC = 4608 + 8192
YOFF = 0x80000
TOFF = 0x100000
STOFF = 0x30000000
LOG2E = 0x3fb8aa3b
SCALE = 0x3db504f3
f2u = lambda x: hex(struct.unpack("<I", struct.pack("<f", x))[0])

DOC = '''; ---------------------------------------------------------------------------------------------------------
; ---------------------------------------------------------------------------------------------------------'''

def gen(D=20, D1=0, FW=3, WOS=90, WO0=80, WQWIN=6, WOWIN=2, wpol="", diag=0, kvpol="nt", noffn=0, nowo=0, noq=0,
        MID=440, YP=506, prog=0, NSLOT=18, xpol="", gpol="sc1", spol="sc1", snpol="sc1", pfpol="", SNAP=0,
        ctl=1, DMIN=13, DMAX=28, CKI=4, LT=0, G=50, G2=50, pf=1, lprio=3, gsl=0, vpol=None, hitx=0, wide=0, mpf=1, PF0=0, PFW=4, FF0=70, pp=0, YG=0, csl=1, sno=0, KI=0, DE=28, NE=1, nosnap=0, fast=1, csl1=1, bc=1, ft=1, cont=0, own=2, nolds=0, opol='', D16=316, TH2=48, CK2=2, LAST=62, DS=3, msk=1, DI=0, N1=0, wqhit=0, wqbg=0, miss=0, GB=0, GB2=0, cab=0, rl=1, tprio=0, dr=1, SE=1, YW=0, st0=0, cb=0, lb=-1, WQ0=12, noy=0, AS=65):
    L = []
    RING = NSLOT * 8192
    LDS_BYTES = RING + MISC
    assert LDS_BYTES <= 163840
    def a(s): L.append("  " + s)
    def lab(s): L.append(s + ":")
    def nop(n): a(f"s_nop {n-1}")
    def stamp(i):
        if diag: a(f"s_memrealtime s[{60+2*i}:{61+2*i}]")
    def put_stamp(i, off, vt):
        a("s_waitcnt lgkmcnt(0)")
        a("s_lshl_b32 s45, s2, 6"); a(f"s_add_u32 s45, s45, {STOFF}"); a(f"v_mov_b32 v{vt+2}, s45")
        a(f"v_mov_b32 v{vt}, s{60+2*i}"); a(f"v_mov_b32 v{vt+1}, s{61+2*i}")
        a("s_mov_b64 exec, 1")
        a(f"global_store_dwordx2 v{vt+2}, v[{vt}:{vt+1}], s[26:27] offset:{off}")
        a("s_mov_b64 exec, -1")
        nop(2)
    L.append(HEADER.rstrip("\n"))
    L.append(f"; @launch grid=(256,1,1) block=({704 if ctl else 640},1,1) lds={LDS_BYTES}")
    L.append(DOC)
    L.append('.amdgcn_target "amdgcn-amd-amdhsa--gfx950"')
    L.append(".text"); L.append(f".globl {KN}"); L.append(".p2align 8"); L.append(f".type {KN},@function"); lab(KN)
    a("s_cmp_ge_u32 s2, 256")
    a("s_cbranch_scc1 L_done")
    a("s_load_dwordx8 s[4:11], s[0:1], 0")
    stamp(0)
    a("v_lshrrev_b32 v1, 6, v0")
    a("v_and_b32 v2, 63, v0")
    a("v_readfirstlane_b32 s3, v1")
    a("v_lshlrev_b32 v1, 4, v2")
    a("s_and_b32 s36, s2, 7")
    a("s_lshl_b32 s36, s36, 2")
    a("s_bfe_u32 s37, s2, 0x20003")
    a("s_add_u32 s36, s36, s37")
    a("s_lshr_b32 s37, s2, 5")
    a("s_cmp_lg_u32 s3, 0")
    a("s_cbranch_scc1 L_notloader")

    L.append("; ======== loader")
    if lprio: a(f"s_setprio {lprio}")
    a("s_lshl_b32 s38, s37, 5"); a("s_add_u32 s38, s38, s36"); a("s_lshl_b32 s38, s38, 20")
    a("s_mov_b32 s30, 0x100000"); a("s_mov_b32 s31, 0x20000")
    a("s_mov_b32 s40, 0"); a("s_mov_b32 s41, 0")
    def lds_init():
        a(f"v_mov_b32 v3, {RING+CT}")
        a("v_lshl_add_u32 v4, v2, 2, v3"); a("v_mov_b32 v5, 0")
        a("s_mov_b64 exec, 0xff")
        a("ds_write_b32 v4, v5")
        a("s_mov_b64 exec, -1")
        a(f"v_mov_b32 v8, {D16 or D * 16}"); a("ds_write_b32 v3, v8 offset:12")
    if not fast: lds_init()
    a("s_mov_b32 m0, 0")
    a("s_waitcnt lgkmcnt(0)")
    if st0: a("s_memrealtime s[66:67]")
    a("s_add_u32 s28, s6, s38"); a("s_addc_u32 s29, s7, 0"); a("s_add_u32 s32, s8, s38"); a("s_addc_u32 s33, s9, 0")
    def publish(k):
        a(f"v_add_u32 v5, {k}, v7"); a("ds_write_b32 v3, v5")
    def ld_step(m, Dw, first=False, kvpol=kvpol):
        j = m & 7
        if j == 0 and not (first and m == 0): a("s_mov_b32 m0, s41")
        if j == 4: a("s_add_u32 m0, s41, 4096")
        waited = not (first and m < Dw)
        if waited: a(f"s_waitcnt vmcnt({Dw-1})")
        elif j in (0, 4) and m: nop(1)
        a(f"buffer_load_dwordx4 v1, s[28:31], s40 offen offset:{(j&3)*1024} {kvpol} lds")
        if waited and (m - Dw + 1) % 4 == 0: publish((m - Dw + 1) // 4)
        if j == 3: a("s_add_u32 s40, s40, 4096")
        if j == 7:
            a("s_add_u32 s40, s40, 4096"); a("s_add_u32 s41, s41, 8192")
            a(f"s_cmp_eq_u32 s41, {RING}"); a("s_cselect_b32 s41, 0, s41")
    Dfirst = D1 if D1 else D
    a("v_mov_b32 v7, 0")
    if prog: a("v_mov_b32 v10, 0"); a("v_mov_b32 v11, 0")
    for m in range(32):
        ld_step(m, Dfirst, first=True)
        if st0 and m == Dfirst - 1: a("s_memrealtime s[68:69]")
        if st0 and m == Dfirst: a("s_memrealtime s[70:71]")
        if m == (lb if lb >= 0 else Dfirst - 1 if fast else 7):
            if fast:
                lds_init(); a("s_waitcnt lgkmcnt(0)")
            a("s_barrier")
    def fw(w): return (w - NSLOT) % 4
    def fo(w): return (w - NSLOT) // 4 + 1
    a("s_mov_b32 s44, 0")
    a(f"s_mov_b32 s47, {8 * DS}")
    a(f"ds_read_b32 v6, v3 offset:{16 + 4 * fw(0)}")
    a("ds_read_b32 v8, v3 offset:12")
    Ds = list(range(DMIN, DMAX + 1, DS)) if ctl else [D]
    DMAX = max(Ds)
    def slow(lbl, w, back):
        lab(lbl)
        a("s_sleep 1")
        a(f"ds_read_b32 v6, v3 offset:{16 + 4 * fw(w)}")
        a("s_waitcnt lgkmcnt(0)")
        a("v_readfirstlane_b32 s45, v6")
        a(f"s_sub_i32 s45, s45, {fo(w)}")
        a("s_cmp_ge_i32 s45, s44")
        a(f"s_cbranch_scc0 {lbl}")
        a(f"s_branch {back}")
    lab("L_disp")
    a("v_add_u32 v7, 8, v7")
    a("s_add_u32 s44, s44, 1")
    a("s_cmp_eq_u32 s44, 64")
    a("s_cbranch_scc1 L_drain")
    a("s_cmp_eq_u32 s44, 32")
    a("s_cselect_b32 s28, s32, s28"); a("s_cselect_b32 s29, s33, s29"); a("s_cselect_b32 s40, 0, s40")
    if prog: a("s_memrealtime s[76:77]")
    a("s_waitcnt lgkmcnt(0)")
    a("v_readfirstlane_b32 s45, v6")
    a("v_readfirstlane_b32 s46, v8")
    if prog:
        a("s_mov_b32 m0, s44"); nop(4); a("v_writelane_b32 v10, s76, m0"); a("v_writelane_b32 v11, s46, m0")
    a(f"s_sub_i32 s45, s45, {fo(0)}")
    a("s_cmp_ge_i32 s45, s44")
    a("s_cbranch_scc0 L_lslow_0")
    lab("L_lfree_0")
    if ctl:
        if N1:
            a(f"s_cmp_lt_u32 s44, {N1}"); a(f"s_cselect_b32 s46, {DI * 16}, s46")
        a("s_add_i32 s47, s47, s46")
        def casc(lst):
            if len(lst) == 1:
                a(f"s_branch L_c{lst[0]}"); return
            mid = len(lst) // 2
            a(f"s_cmp_ge_i32 s47, {lst[mid] * 16}")
            if len(lst) - mid == 1:
                a(f"s_cbranch_scc1 L_c{lst[mid]}")
                casc(lst[:mid])
            else:
                l2 = f"L_k{lst[mid]}_{len(lst)}"
                a(f"s_cbranch_scc1 {l2}")
                casc(lst[:mid]); lab(l2); casc(lst[mid:])
        if vpol is not None:
            a("s_cmp_ge_u32 s44, 32"); a("s_cbranch_scc1 L_vc")
        if DE:
            a(f"s_cmp_ge_u32 s44, {64 - NE}"); a(f"s_cbranch_scc1 L_c{DE}")
        casc(Ds)
        if DE and DE not in Ds: Ds = Ds + [DE]
    if vpol is not None:
        lab("L_vc")
        for w in range(4):
            if w:
                a("s_waitcnt lgkmcnt(0)")
                a("v_readfirstlane_b32 s45, v6")
                a(f"s_sub_i32 s45, s45, {fo(w)}")
                a("s_cmp_ge_i32 s45, s44")
                a(f"s_cbranch_scc0 L_vslow_{w}")
                lab(f"L_vfree_{w}")
            for j in range(8):
                ld_step(8 * w + j, D, kvpol=vpol)
                if j == 4:
                    a(f"ds_read_b32 v6, v3 offset:{16 + 4 * fw((w + 1) & 3)}")
                    if w == 3: a("ds_read_b32 v8, v3 offset:12")
        a("s_branch L_disp")
        for w in range(1, 4): slow(f"L_vslow_{w}", w, f"L_vfree_{w}")
    for Dw in Ds:
        npub = sum(1 for j in range(5, 8) if (j - Dw + 1) % 4 == 0)
        lab(f"L_c{Dw}")
        if ctl: a(f"s_sub_i32 s47, s47, {Dw * 16}")
        for w in range(4):
            if w:
                a(f"s_waitcnt lgkmcnt({npub})")
                a("v_readfirstlane_b32 s45, v6")
                a(f"s_sub_i32 s45, s45, {fo(w)}")
                a("s_cmp_ge_i32 s45, s44")
                a(f"s_cbranch_scc0 L_lslow{Dw}_{w}")
                lab(f"L_lfree{Dw}_{w}")
            for j in range(8):
                ld_step(8 * w + j, Dw)
                if j == 4:
                    a(f"ds_read_b32 v6, v3 offset:{16 + 4 * fw((w + 1) & 3)}")
                    if w == 3: a("ds_read_b32 v8, v3 offset:12")
        a("s_branch L_disp")
    slow("L_lslow_0", 0, "L_lfree_0")
    for Dw in Ds:
        for w in range(1, 4): slow(f"L_lslow{Dw}_{w}", w, f"L_lfree{Dw}_{w}")
    lab("L_drain")
    for r in range((max(Ds) - 1) // 4 * 4, -1, -4):
        if dr:
            a(f"v_add_u32 v5, {-(r // 4)}, v7"); a(f"s_waitcnt vmcnt({r})"); a("ds_write_b32 v3, v5")
        else:
            a(f"s_waitcnt vmcnt({r})"); publish(-(r // 4))
    if diag:
        stamp(2)
        a("s_load_dwordx2 s[26:27], s[0:1], 88")
        if prog:
            a("s_waitcnt lgkmcnt(0)")
            a("v_writelane_b32 v10, s64, 0")
            a("s_lshl_b32 s45, s2, 8"); a(f"s_add_u32 s45, s45, {STOFF + 0x4000}"); a("v_lshrrev_b32 v9, 2, v1"); a("v_add_u32 v9, s45, v9")
            a("global_store_dword v9, v10, s[26:27]")
            a("v_add_u32 v9, 0x10000, v9")
            a("global_store_dword v9, v11, s[26:27]")
        put_stamp(0, 0, 12); put_stamp(2, 24, 12)
        if st0:
            put_stamp(3, 16, 12); put_stamp(4, 32, 12); put_stamp(5, 40, 12)
    a("s_endpgm")

    def wave_allsum(r, t):
        for ro in (8, 4, 2, 1):
            nop(2)
            a(f"v_add_f32_dpp v{r}, v{r}, v{r} row_ror:{ro} row_mask:0xf bank_mask:0xf")
        a(f"v_mov_b32 v{t}, v{r}"); nop(2)
        a(f"v_permlane16_swap_b32 v{r}, v{t}"); a(f"v_add_f32 v{r}, v{r}, v{t}"); a(f"v_mov_b32 v{t}, v{r}"); nop(2)
        a(f"v_permlane32_swap_b32 v{r}, v{t}"); a(f"v_add_f32 v{r}, v{r}, v{t}")
    def layernorm(hook):
        for k in range(4):
            a(f"v_lshlrev_b32 v{12+2*k}, 16, v{8+k}"); a(f"v_and_b32 v{13+2*k}, s43, v{8+k}")
        a("v_add_f32 v20, v12, v13"); a("v_add_f32 v21, v14, v15"); a("v_add_f32 v22, v16, v17"); a("v_add_f32 v23, v18, v19")
        a("v_add_f32 v20, v20, v21"); a("v_add_f32 v22, v22, v23"); a("v_add_f32 v20, v20, v22")
        wave_allsum(20, 21); hook()
        a("v_mul_f32 v20, 0x3b000000, v20")
        a("v_mov_b32 v22, 0")
        for k in range(8):
            a(f"v_sub_f32 v21, v{12+k}, v20"); a("v_fmac_f32 v22, v21, v21")
        hook(); wave_allsum(22, 21); hook()
        a("v_mul_f32 v22, 0x3b000000, v22")
        a("v_cvt_pk_bf16_f32 v20, v20, v22")
        a("v_and_b32 v22, s43, v20"); a("v_lshlrev_b32 v20, 16, v20")
        a("v_add_f32 v22, 0x3727c5ac, v22")
        a("v_cvt_pk_bf16_f32 v22, v22, v22"); a("v_and_b32 v22, s43, v22")
        a("v_sqrt_f32 v22, v22"); nop(1)
        a("v_cvt_pk_bf16_f32 v22, v22, v22"); a("v_and_b32 v22, s43, v22")
        a("v_rcp_f32 v22, v22"); hook()
        for k in range(8): a(f"v_sub_f32 v{12+k}, v{12+k}, v20")
        for k in range(4): a(f"v_cvt_pk_bf16_f32 v{8+k}, v{12+2*k}, v{13+2*k}")
        for k in range(4):
            a(f"v_lshlrev_b32 v{12+2*k}, 16, v{8+k}"); a(f"v_and_b32 v{13+2*k}, s43, v{8+k}")
        for k in range(8): a(f"v_mul_f32 v{12+k}, v22, v{12+k}")
        for k in range(4): a(f"v_cvt_pk_bf16_f32 v{8+k}, v{12+2*k}, v{13+2*k}")
    def forms(pair, odd, lo, hi):
        if not odd:
            a(f"v_and_b32 v{lo}, 0xffff, v{pair}"); a(f"v_lshlrev_b32 v{hi}, 16, v{pair}")
        else:
            a(f"v_lshrrev_b32 v{lo}, 16, v{pair}"); a(f"v_and_b32 v{hi}, s43, v{pair}")
    def mac8(acc, w, lo, hi):
        for d in range(4):
            a(f"v_dot2c_f32_bf16 v{acc+2*d}, v{w+d}, v{lo}")
            a(f"v_dot2c_f32_bf16 v{acc+2*d+1}, v{w+d}, v{hi}")
    def lds_poll(lbl, addr, off, tgt, vt, sleep):
        lab(lbl)
        a(f"ds_read_b32 v{vt}, v{addr} offset:{off}")
        a("s_waitcnt lgkmcnt(0)")
        a(f"v_readfirstlane_b32 s45, v{vt}")
        a(f"s_cmp_ge_u32 s45, {tgt}")
        a(f"s_cbranch_scc1 {lbl}_ok")
        if sleep: a(f"s_sleep {sleep}")
        a(f"s_branch {lbl}")
        lab(lbl + "_ok")
    def packbits(dst, src, n, t):
        a(f"v_and_b32 v{dst}, 1, v{src}")
        for k in range(1, n):
            a(f"v_and_b32 v{t}, 1, v{src+k}"); a(f"v_lshl_or_b32 v{dst}, v{t}, {k}, v{dst}")
    WREG = 40

    lab("L_notloader")
    a("v_lshrrev_b32 v3, 4, v2")
    a("v_and_b32 v4, 15, v2")
    a("s_mov_b32 s43, 0xffff0000")
    a("s_mov_b32 s42, " + hex(LOG2E))
    a("s_lshl_b32 s39, s37, 10")
    a("s_mov_b32 s30, 1024"); a("s_mov_b32 s31, 0x20000"); a("s_mov_b32 s35, 0x20000")
    a("s_cmp_ge_u32 s3, 5")
    a("s_cbranch_scc1 L_helper")

    a("s_sub_u32 s3, s3, 1")
    a("s_lshl_b32 s38, s3, 20"); a("s_lshl_b32 s46, s36, 8"); a("s_add_u32 s38, s38, s46")
    a("v_lshlrev_b32 v5, 18, v3"); a("v_lshl_add_u32 v5, v4, 4, v5"); a("v_add_u32 v5, s38, v5")
    a("s_mov_b32 s34, 0x400000")
    a("s_lshl_b32 s40, s37, 15")
    a("s_waitcnt lgkmcnt(0)")
    a("s_add_u32 s28, s4, s39"); a("s_addc_u32 s29, s5, 0")
    a("s_mov_b32 s32, s10"); a("s_mov_b32 s33, s11")
    a(f"buffer_load_dwordx4 v[8:11], v1, s[28:31], 0 offen {xpol}")
    wq = {"issued": 0}
    def issue_wq(window=True):
        i = wq["issued"]
        if i >= 32 or noq: return
        if window: a(f"s_waitcnt vmcnt({WQWIN-1})")
        r = WREG + i * 4
        a(f"buffer_load_dwordx4 v[{r}:{r+3}], v5, s[32:35], s40 offen {wpol}")
        a(f"s_add_u32 s40, s40, {0 if wqhit == 1 else 0x2000}")
        if i % 4 == 3: a(f"s_and_b32 s40, s40, {0x3ffff if wqhit != 2 else 0}")
        wq["issued"] += 1
    if cb: a("s_barrier")
    for i in range(WQ0 or WQWIN): issue_wq(False)
    if not cb: a("s_barrier")
    a(f"s_waitcnt vmcnt({(WQ0 or WQWIN) if not noq else 0})")
    layernorm(issue_wq)
    a(f"s_mov_b32 s45, {RING+XN}")
    a("v_add_u32 v6, s45, v1")
    a("ds_write_b128 v6, v[8:11]")
    issue_wq()
    a("s_lshl_b32 s46, s3, 8"); a("s_add_u32 s46, s46, s45")
    a("v_lshlrev_b32 v7, 6, v3"); a("v_add_u32 v7, s46, v7")
    a("s_waitcnt lgkmcnt(0)")
    for k in range(8):
        a(f"s_add_u32 s46, s37, {k}"); a("s_and_b32 s46, s46, 7"); a("s_lshl_b32 s46, s46, 3")
        a("v_add_u32 v12, s46, v7")
        a(f"ds_read_b64 v[{16+2*k}:{17+2*k}], v12")
    for k in range(8): a(f"v_mov_b32 v{32+k}, 0")
    a("s_waitcnt lgkmcnt(0)")
    for i in range(32 if not noq else 0):
        forms(16 + i // 2, i & 1, 12, 13)
        if wq["issued"] < 32: issue_wq()
        else: a(f"s_waitcnt vmcnt({31 - i})")
        mac8(32, WREG + i * 4, 12, 13)
    a("v_lshlrev_b32 v7, 5, v4")
    a(f"v_add_u32 v7, {RING}, v7")
    a("v_lshl_add_u32 v6, v3, 2, v7")
    a("s_lshl_b32 s46, s3, 9"); a("v_add_u32 v6, s46, v6")
    for k in range(4): a(f"v_permlane16_swap_b32 v{32+2*k}, v{33+2*k}")
    for k in range(4): a(f"v_add_f32 v{32+2*k}, v{32+2*k}, v{33+2*k}")
    a("v_mov_b32 v39, 1")
    a("v_permlane32_swap_b32 v32, v34"); a("v_permlane32_swap_b32 v36, v38")
    a("v_add_f32 v32, v32, v34"); a("v_add_f32 v36, v36, v38")
    a(f"ds_write_b32 v6, v32 offset:{QP}"); a(f"ds_write_b32 v6, v36 offset:{QP+16}")
    a(f"v_mov_b32 v38, {RING+CT}")
    a("s_waitcnt lgkmcnt(0)")
    a("s_mov_b64 exec, 1")
    a("ds_add_u32 v38, v39 offset:4")
    a("s_mov_b64 exec, -1")
    lds_poll("L_qw", 38, 4, 4, 39, 1)
    for w in range(4):
        a(f"ds_read_b128 v[{40+w*8}:{43+w*8}], v7 offset:{QP+w*512}")
        a(f"ds_read_b128 v[{44+w*8}:{47+w*8}], v7 offset:{QP+w*512+16}")
    a("s_mov_b32 s41, " + hex(SCALE))
    a("v_mov_b32 v16, 0xff800000")
    a("s_lshl_b32 s44, s3, 13"); a("v_add_u32 v36, s44, v1")
    a("s_lshl_b32 s46, s3, 2"); a("v_add_u32 v37, s46, v38")
    a("s_lshl_b32 s47, s3, 1"); a("s_add_u32 s47, s47, 1")
    a("v_mov_b32 v27, 0")
    a("s_lshl_b32 s40, s3, 11"); a(f"s_add_u32 s40, s40, {RING+SC}")
    a("v_lshlrev_b32 v17, 4, v3"); a("v_add_u32 v17, s40, v17")
    a("v_and_b32 v5, 14, v4"); a("v_add_u32 v5, v5, v17")
    a("v_and_b32 v26, 2, v2"); a("v_cmp_ne_u32 vcc, 0, v26")
    a("s_waitcnt lgkmcnt(4)")
    for k in range(8): a(f"v_add_f32 v{40+k}, v{40+k}, v{48+k}")
    a("s_waitcnt lgkmcnt(0)")
    for k in range(8): a(f"v_add_f32 v{56+k}, v{56+k}, v{64+k}")
    for k in range(8): a(f"v_add_f32 v{40+k}, v{40+k}, v{56+k}")
    for k in range(4): a(f"v_cvt_pk_bf16_f32 v{72+k}, v{40+2*k}, v{41+2*k}")
    stamp(1)
    Q = 72; DR = 40
    S = list(range(18, 26))
    def half2(lbl):
        a("s_cmp_gt_u32 s45, s47")
        a(f"s_cbranch_scc1 {lbl}_ok")
        a("s_add_u32 s46, s47, 1")
        lds_poll(lbl, 38, 0, "s46", 39, csl)
        for j in range(4, 8 if not nolds else 4): a(f"ds_read_b128 v[{DR+4*j}:{DR+4*j+3}], v36 offset:{j*1024}")
        a("v_add_u32 v27, 1, v27")
        a("s_add_u32 s44, s44, 0x8000"); a(f"s_sub_u32 s46, s44, {RING}"); a("s_cselect_b32 s44, s44, s46")
        a("v_add_u32 v36, s44, v1")
        a("s_add_u32 s47, s47, 8")
    lab("L_kloop")
    lds_poll("L_pk", 38, 0, "s47", 39, csl1)
    for j in range(4 if not nolds else 0): a(f"ds_read_b128 v[{DR+4*j}:{DR+4*j+3}], v36 offset:{j*1024}")
    for j in range(8): a(f"v_mov_b32 v{S[j]}, 0")
    for j in range(4):
        a(f"s_waitcnt lgkmcnt({3-j})")
        for d in range(4): a(f"v_dot2c_f32_bf16 v{S[j]}, v{DR+4*j+d}, v{Q+d}")
    half2("L_pk2")
    for j in range(4, 8):
        a(f"s_waitcnt lgkmcnt({7-j})")
        if j == 7: a("ds_write_b32 v37, v27 offset:16")
        for d in range(4): a(f"v_dot2c_f32_bf16 v{S[j]}, v{DR+4*j+d}, v{Q+d}")
    for j in range(4): a(f"v_add_f32_dpp v{S[j]}, v{S[j]}, v{S[j]} row_ror:8 row_mask:0xf bank_mask:0x3")
    for j in range(4): a(f"v_add_f32_dpp v{S[j]}, v{S[j+4]}, v{S[j+4]} row_ror:8 row_mask:0xf bank_mask:0xc")
    for j in range(2): a(f"v_add_f32_dpp v{S[j]}, v{S[j]}, v{S[j]} row_ror:12 row_mask:0xf bank_mask:0x5")
    nop(1)
    for j in range(2): a(f"v_add_f32_dpp v{S[j]}, v{S[j+2]}, v{S[j+2]} row_ror:4 row_mask:0xf bank_mask:0xa")
    nop(1)
    for j in range(2): a(f"v_add_f32_dpp v{S[j]}, v{S[j]}, v{S[j]} quad_perm:[2,3,0,1] row_mask:0xf bank_mask:0xf")
    a(f"v_cndmask_b32 v{S[2]}, v{S[0]}, v{S[1]}, vcc")
    nop(2)
    a(f"v_add_f32_dpp v{S[2]}, v{S[2]}, v{S[2]} quad_perm:[1,0,3,2] row_mask:0xf bank_mask:0xf")
    a(f"v_cvt_pk_bf16_f32 v{S[2]}, 0, v{S[2]}")
    a(f"v_mul_f32 v{S[2]}, s41, v{S[2]}")
    a(f"v_cvt_pk_bf16_f32 v{S[2]}, v{S[2]}, v{S[2]}")
    a(f"ds_write_b16 v5, v{S[2]}")
    a(f"v_and_b32 v{S[3]}, s43, v{S[2]}")
    a(f"v_max_f32 v16, v16, v{S[3]}")
    a("v_add_u32 v5, 64, v5")
    a("s_cmp_lt_u32 s47, 256")
    a("s_cbranch_scc1 L_kloop")
    a("v_lshlrev_b32 v5, 1, v1"); a("v_add_u32 v5, s40, v5")
    a("s_waitcnt lgkmcnt(0)")
    a("ds_read_b128 v[40:43], v5"); a("ds_read_b128 v[44:47], v5 offset:16")
    for ro in (8, 4, 2, 1):
        a(f"v_max_f32_dpp v16, v16, v16 row_ror:{ro} row_mask:0xf bank_mask:0xf"); nop(2)
    a("v_mov_b32 v18, v16"); nop(2)
    a("v_permlane16_swap_b32 v16, v18"); a("v_max_f32 v16, v16, v18"); a("v_mov_b32 v18, v16"); nop(2)
    a("v_permlane32_swap_b32 v16, v18"); a("v_max_f32 v16, v16, v18")
    a("v_mul_f32 v18, s42, v16")
    a("s_waitcnt lgkmcnt(0)")
    for k in range(8):
        a(f"v_lshlrev_b32 v{48+2*k}, 16, v{40+k}"); a(f"v_and_b32 v{49+2*k}, s43, v{40+k}")
    for k in range(16): a(f"v_fma_f32 v{48+k}, v{48+k}, s42, -v18")
    for k in range(16): a(f"v_exp_f32 v{48+k}, v{48+k}")
    a("v_add_f32 v19, v48, v49"); a("v_add_f32 v20, v50, v51")
    for k in range(4, 16, 2):
        a(f"v_add_f32 v19, v19, v{48+k}"); a(f"v_add_f32 v20, v20, v{49+k}")
    a("v_add_f32 v19, v19, v20")
    wave_allsum(19, 20)
    a(f"v_subrev_u32 v21, {CT-ML}, v37")
    a("ds_write_b32 v21, v16"); a("ds_write_b32 v21, v19 offset:16")
    a("v_mov_b32 v39, 1")
    a("s_waitcnt lgkmcnt(0)")
    a("s_mov_b64 exec, 1")
    a("ds_add_u32 v38, v39 offset:8")
    a("s_mov_b64 exec, -1")
    lds_poll("L_mw", 38, 8, 4, 39, 1)
    a(f"v_subrev_u32 v21, {CT-ML}, v38")
    a("ds_read_b128 v[8:11], v21"); a("ds_read_b128 v[12:15], v21 offset:16")
    a("s_waitcnt lgkmcnt(1)")
    a("v_max3_f32 v20, v8, v9, v10"); a("v_max_f32 v20, v20, v11")
    for w in range(4): a(f"v_sub_f32 v{8+w}, v{8+w}, v20")
    a("v_sub_f32 v16, v16, v20")
    for w in range(4): a(f"v_mul_f32 v{8+w}, s42, v{8+w}")
    a("v_mul_f32 v16, s42, v16")
    for w in range(4): a(f"v_exp_f32 v{8+w}, v{8+w}")
    a("v_exp_f32 v16, v16")
    a("s_waitcnt lgkmcnt(0)")
    a("v_mul_f32 v20, v8, v12"); a("v_fmac_f32 v20, v9, v13"); a("v_fmac_f32 v20, v10, v14"); a("v_fmac_f32 v20, v11, v15")
    a("v_rcp_f32 v20, v20"); nop(1)
    a("v_mul_f32 v16, v16, v20")
    for k in range(16): a(f"v_mul_f32 v{48+k}, v16, v{48+k}")
    for k in range(8): a(f"v_cvt_pk_bf16_f32 v{40+k}, v{48+2*k}, v{49+2*k}")
    a("ds_write_b128 v5, v[40:43]"); a("ds_write_b128 v5, v[44:47] offset:16")
    for k in range(8): a(f"v_mov_b32 v{8+k}, 0")
    a("s_waitcnt lgkmcnt(0)")
    if tprio: a(f"s_setprio {tprio}")
    L.append("; ======== V phase")
    lab("L_vloop")
    a("ds_read_b128 v[28:31], v17")
    a("v_add_u32 v17, 64, v17")
    lds_poll("L_pv", 38, 0, "s47", 39, csl1)
    for j in range(4 if not nolds else 0): a(f"ds_read_b128 v[{DR+4*j}:{DR+4*j+3}], v36 offset:{j*1024}")
    for j in range(8): forms(28 + j // 2, j & 1, 76 + 2 * j, 77 + 2 * j)
    for j in range(4):
        a(f"s_waitcnt lgkmcnt({3-j})")
        mac8(8, DR + 4 * j, 76 + 2 * j, 77 + 2 * j)
    half2("L_pv2")
    for j in range(4, 8):
        a(f"s_waitcnt lgkmcnt({7-j})")
        if j == 7: a("ds_write_b32 v37, v27 offset:16")
        mac8(8, DR + 4 * j, 76 + 2 * j, 77 + 2 * j)
    a("s_cmp_lt_u32 s47, 512")
    a("s_cbranch_scc1 L_vloop")
    nop(2)
    for k in range(4): a(f"v_permlane16_swap_b32 v{8+2*k}, v{9+2*k}")
    for k in range(4): a(f"v_add_f32 v{8+2*k}, v{8+2*k}, v{9+2*k}")
    nop(1)
    a("v_permlane32_swap_b32 v8, v10"); a("v_permlane32_swap_b32 v12, v14")
    a("v_add_f32 v8, v8, v10"); a("v_add_f32 v12, v12, v14")
    a(f"ds_write_b32 v6, v8 offset:{SP}"); a(f"ds_write_b32 v6, v12 offset:{SP+16}")
    a("s_waitcnt lgkmcnt(0)")
    a("s_barrier")
    if diag:
        a("s_cmp_lg_u32 s3, 0"); a("s_cbranch_scc1 L_done")
        a("s_load_dwordx2 s[26:27], s[0:1], 88")
        if not st0: put_stamp(1, 16, 8)
    a("s_endpgm")

    L.append("; ======== helpers")
    lab("L_helper")
    a("s_sub_u32 s3, s3, 5")
    if pf:
        a("s_cmp_lg_u32 s3, 2"); a("s_cbranch_scc1 L_nopf")
        a("s_getpc_b64 s[46:47]")
        lab("L_pc")
        a(f"s_sub_u32 s46, s46, L_pc-{KN}"); a("s_subb_u32 s47, s47, 0")
        a("s_lshr_b32 s45, s2, 3"); a("s_min_u32 s45, s45, (L_end-" + KN + ")/1024-1"); a("s_lshl_b32 s45, s45, 10")
        a("v_add_u32 v6, s45, v1")
        a(f"global_load_dwordx4 v[8:11], v6, s[46:47] {pfpol}")
        lab("L_nopf")
    a("s_load_dwordx2 s[12:13], s[0:1], 32")
    a("s_load_dwordx8 s[16:23], s[0:1], 48")
    a("s_load_dwordx4 s[24:27], s[0:1], 80")
    a(f"v_mov_b32 v38, {RING+CT}")
    a("s_barrier")
    a("s_waitcnt lgkmcnt(0)")
    a("s_lshl_b32 s38, s37, 16")
    a("s_add_u32 s48, s26, s38"); a("s_addc_u32 s49, s27, 0"); a("s_mov_b32 s50, 0x10000"); a("s_mov_b32 s51, 0x20000")
    a("s_cmp_ge_u32 s3, 4"); a("s_cbranch_scc1 L_notwo")

    a("v_lshlrev_b32 v34, 5, v4"); a("v_lshrrev_b32 v7, 1, v3"); a("v_lshl_add_u32 v34, v7, 4, v34")
    if cont: a("v_lshlrev_b32 v34, 4, v4"); a("v_lshl_add_u32 v34, v7, 8, v34")
    a("s_lshl_b32 s14, s3, 9"); a("s_lshl_b32 s46, s36, 11"); a("s_add_u32 s14, s14, s46")
    a("s_mov_b32 s32, s12"); a("s_mov_b32 s33, s13"); a("s_mov_b32 s34, 0x400000")
    a("s_lshl_b32 s46, s36, 17"); a("s_lshl_b32 s47, s3, 8"); a("s_add_u32 s46, s46, s47")
    a("v_lshlrev_b32 v5, 15, v3"); a("v_lshl_add_u32 v5, v4, 4, v5"); a("v_add_u32 v5, s46, v5")
    a("s_mov_b32 s40, 0"); a("s_mov_b32 s46, 0x05040100"); a("s_mov_b32 s47, 0x07060302")
    if mpf:
        a("s_cmp_eq_u32 s3, 1"); a("s_cselect_b32 s28, s18, s16"); a("s_cselect_b32 s29, s19, s17")
        a("s_cmp_eq_u32 s3, 2"); a("s_cselect_b32 s28, s20, s28"); a("s_cselect_b32 s29, s21, s29")
        a("s_cmp_eq_u32 s3, 3"); a("s_cselect_b32 s30, 0, 0x1c0000")
        a("s_mul_i32 s41, s2, 7168")
        a("s_lshl_b32 s44, s2, 14"); a("s_lshl_b32 s45, s3, 12"); a("s_add_u32 s15, s44, s45")
        if own:
            a("s_lshl_b32 s44, s36, 17"); a("s_lshl_b32 s15, s37, 14"); a("s_add_u32 s15, s15, s44"); a("s_add_u32 s15, s15, s45")
            a("s_lshl_b32 s44, s36, 16"); a("s_lshl_b32 s45, s37, 13"); a("s_add_u32 s44, s44, s45")
            a("s_cmp_eq_u32 s3, 2"); a("s_cselect_b32 s41, s44, s41")
        lds_poll("L_pf0", 38, 0, PF0, 39, 8)
        if own == 2:
            a("v_lshrrev_b32 v6, 5, v2"); a("v_mul_u32_u24 v6, 3584, v6"); a("v_and_b32 v7, 0x1f0, v1"); a("v_add_u32 v6, v6, v7")
            a("s_and_b32 s44, s2, 7"); a("s_lshr_b32 s45, s2, 3"); a("s_mul_i32 s45, s45, 57344"); a("s_lshl_b32 s13, s44, 9"); a("s_add_u32 s45, s45, s13")
            a("s_cmp_eq_u32 s44, 7"); a("s_cselect_b32 s44, 0, s30")
            a("s_cmp_lt_u32 s3, 2"); a("s_cselect_b32 s30, s44, s30"); a("s_cselect_b32 s41, s45, s41")
            a("s_cselect_b64 vcc, -1, 0"); a("s_mov_b32 s13, 1024"); a("s_cselect_b32 s13, 7168, s13")
            a("v_cndmask_b32 v6, v1, v6, vcc")
            for i in range(12):
                if i >= PFW: a(f"s_waitcnt vmcnt({PFW - 1})")
                r = WREG + 4 * i
                if i < 8:
                    a(f"buffer_load_dwordx4 v[{r}:{r+3}], v6, s[28:31], s41 offen"); a("s_add_u32 s41, s41, s13")
                else:
                    a(f"buffer_load_dwordx4 v[{r}:{r+3}], v1, s[32:35], s15 offen offset:{(i - 8) * 1024}")
        else:
            if own:
                a("s_mov_b32 s45, 0x200000"); a("s_cmp_eq_u32 s3, 2"); a("s_cselect_b32 s45, 7168, s45"); a("s_add_u32 s45, s45, s41")
                a(f"buffer_load_dwordx4 v[{WREG+44}:{WREG+47}], v1, s[28:31], s45 offen")
            for i in range(11):
                if i >= PFW: a(f"s_waitcnt vmcnt({PFW - 1})")
                r = WREG + 4 * i
                if i < 7:
                    a(f"buffer_load_dwordx4 v[{r}:{r+3}], v1, s[28:31], s41 offen offset:{(i % 4) * 1024}")
                    if i == 3: a("s_add_u32 s41, s41, 4096")
                else:
                    a(f"buffer_load_dwordx4 v[{r}:{r+3}], v1, s[32:35], s15 offen offset:{(i - 7) * 1024}")
    if wqbg:
        a("s_mov_b32 s28, s10"); a("s_mov_b32 s29, s11"); a("s_mov_b32 s30, 0x400000")
        a("s_lshl_b32 s44, s3, 20"); a("s_lshl_b32 s45, s36, 8"); a("s_add_u32 s44, s44, s45")
        a("v_lshlrev_b32 v6, 18, v3"); a("v_lshl_add_u32 v6, v4, 4, v6"); a("v_add_u32 v6, s44, v6")
        a("s_lshl_b32 s41, s37, 15")
        for i in range(32):
            a(f"s_waitcnt vmcnt({wqbg - 1})")
            a(f"buffer_load_dwordx4 v[{WREG+4*i}:{WREG+4*i+3}], v6, s[28:31], s41 offen")
            a("s_add_u32 s41, s41, 0x2000"); a("s_and_b32 s41, s41, 0x3ffff")
    a(f"s_mul_i32 s44, s3, {WOS}"); a(f"s_add_u32 s44, s44, {WO0}")
    lds_poll("L_wos", 38, 0, "s44", 39, 32)
    a(f"buffer_load_dwordx4 v[8:11], v34, s[48:51], s14 offen {snpol}")
    a("s_waitcnt vmcnt(0)")
    packbits(35, 8, 4, 20)
    a("v_xor_b32 v35, 15, v35")
    def issue_o(i):
        r = WREG + i * 4
        a(f"buffer_load_dwordx4 v[{r}:{r+3}], v5, s[32:35], s40 offen offset:{(i%4)*1024} {wpol}")
        if i % 4 == 3: a(f"s_add_u32 s40, s40, {0 if hitx else 4096}")
    for i in range(WOWIN if not nowo else 0): issue_o(i)
    for i in range(32 if not nowo else 0):
        a(f"s_waitcnt vmcnt({min(WOWIN - 1, 31 - i)})")
        if i + WOWIN < 32: issue_o(i + WOWIN)
        if i & 1:
            A = WREG + 8 * (i // 2); B = A + 4
            for d in range(4):
                a(f"v_perm_b32 v12, v{B+d}, v{A+d}, s46")
                a(f"v_perm_b32 v{B+d}, v{B+d}, v{A+d}, s47")
                a(f"v_mov_b32 v{A+d}, v12")
    a("v_lshrrev_b32 v7, 1, v1"); a(f"v_add_u32 v7, {RING}, v7")
    a("s_lshl_b32 s45, s3, 8"); a(f"s_add_u32 s45, s45, {RING+OB}")
    a("v_lshrrev_b32 v4, 2, v1"); a("v_add_u32 v4, s45, v4")
    a("v_lshlrev_b32 v3, 6, v3"); a("v_add_u32 v3, s45, v3")
    for k in range(4): a(f"v_bfe_u32 v{k if k < 3 else 5}, v35, {k}, 1".replace("v0,", "v0,"))
    TB = [0, 1, 2, 5]
    for k in range(8): a(f"v_mov_b32 v{8+k}, 0")
    stamp(5)
    if tprio: a(f"s_setprio {tprio}")
    a("s_barrier")
    for w in range(4): a(f"ds_read_b64 v[{16+2*w}:{17+2*w}], v7 offset:{SP+w*512}")
    a("s_waitcnt lgkmcnt(2)")
    a("v_add_f32 v16, v16, v18"); a("v_add_f32 v17, v17, v19")
    a("s_waitcnt lgkmcnt(0)")
    a("v_add_f32 v20, v20, v22"); a("v_add_f32 v21, v21, v23")
    a("v_add_f32 v16, v16, v20"); a("v_add_f32 v17, v17, v21")
    a("v_cvt_pk_bf16_f32 v25, v16, v17")
    if bc:
        nop(2)
        for k in range(16):
            A = WREG + 8 * k; B = A + 4
            for d in range(4):
                a(f"v_dot2c_f32_bf16_dpp v{8+2*d}, v25, v{A+d} row_newbcast:{k} row_mask:0xf bank_mask:0xf")
                a(f"v_dot2c_f32_bf16_dpp v{9+2*d}, v25, v{B+d} row_newbcast:{k} row_mask:0xf bank_mask:0xf")
    else:
        a("ds_write_b32 v4, v25")
        a("s_waitcnt lgkmcnt(0)")
        for k in range(4): a(f"ds_read_b128 v[{16+4*k}:{19+4*k}], v3 offset:{16*k}")
        for k in range(16):
            if k % 4 == 0: a(f"s_waitcnt lgkmcnt({3-k//4})")
            A = WREG + 8 * k; B = A + 4
            for d in range(4):
                a(f"v_dot2c_f32_bf16 v{8+2*d}, v{A+d}, v{16+k}")
                a(f"v_dot2c_f32_bf16 v{9+2*d}, v{B+d}, v{16+k}")
    nop(3)
    for k in range(4): a(f"v_permlane32_swap_b32 v{8+k}, v{12+k}")
    for k in range(4): a(f"v_add_f32 v{8+k}, v{8+k}, v{12+k}")
    for k in range(4): a(f"v_mov_b32 v{12+k}, v{8+k}")
    for k in range(4): a(f"v_permlane16_swap_b32 v{8+k}, v{12+k}")
    for k in range(4): a(f"v_add_f32 v{8+k}, v{8+k}, v{12+k}")
    for k in range(4): a(f"v_and_or_b32 v{20+k}, v{8+k}, -2, v{TB[k]}")
    a("s_mov_b32 exec_lo, 0xffff"); a("s_mov_b32 exec_hi, 0xffff")
    a(f"buffer_store_dwordx4 v[20:23], v34, s[48:51], s14 offen {spol}")
    if diag:
        a("s_mov_b64 exec, -1")
        a("s_cmp_lg_u32 s3, 3"); a("s_cbranch_scc1 L_done")
        stamp(6); put_stamp(6, 48, 24)
        if not st0: put_stamp(5, 40, 24)
    a("s_endpgm")

    lab("L_notwo")
    if ctl:
        a("s_cmp_eq_u32 s3, 5"); a("s_cbranch_scc1 L_ctl")
    a(f"s_add_u32 s52, s48, {YOFF}"); a("s_addc_u32 s53, s49, 0"); a(f"s_mov_b32 s54, {28*2048}"); a("s_mov_b32 s55, 0x20000")
    a("s_add_u32 s28, s4, s39"); a("s_addc_u32 s29, s5, 0")
    a("s_add_u32 s56, s22, s39"); a("s_addc_u32 s57, s23, 0"); a("s_mov_b32 s58, 1024"); a("s_mov_b32 s59, 0x20000")
    a("v_lshrrev_b32 v32, 2, v2"); a("v_lshlrev_b32 v32, 11, v32"); a("v_and_b32 v33, 48, v1"); a("v_add_u32 v32, v32, v33")
    a("v_add_u32 v33, 0x8000, v32")
    a("v_lshlrev_b32 v34, 1, v1")
    a("s_lshl_b32 s14, s36, 11"); a("s_lshl_b32 s15, s36, 6")
    a("v_lshrrev_b32 v31, 1, v1"); a("v_and_b32 v31, 24, v31"); a("s_lshl_b32 s46, s36, 5"); a("v_add_u32 v31, s46, v31")
    def snap_gather():
        if nosnap:
            a("s_lshl_b32 s46, s37, 5"); a("v_mov_b32 v30, s46"); a("v_mov_b32 v29, 1")
            a("s_mov_b64 exec, 1"); a("global_atomic_add v30, v29, s[24:25] sc1"); a("s_mov_b64 exec, -1")
            return
        a(f"buffer_load_dwordx4 v[8:11], v32, s[48:51], s15 offen {snpol}")
        a(f"buffer_load_dwordx4 v[12:15], v33, s[48:51], s15 offen {snpol}")
        a(f"buffer_load_dwordx4 v[16:19], v32, s[52:55], s15 offen {snpol}")
        a(f"buffer_load_dwordx4 v[20:23], v33, s[52:55], s15 offen {snpol}")
        a("s_lshl_b32 s46, s37, 5"); a("v_mov_b32 v30, s46"); a("v_mov_b32 v29, 1")
        a("v_cmp_le_u32 vcc, 48, v2")
        a("s_waitcnt vmcnt(0)")
        a("s_mov_b64 exec, 1")
        a("global_atomic_add v30, v29, s[24:25] sc1")
        a("s_mov_b64 exec, -1")
        packbits(36, 8, 8, 24)
        packbits(37, 16, 8, 24)
        a("v_mov_b32 v24, 0xf0"); a("v_cndmask_b32 v24, 0, v24, vcc"); a("v_or_b32 v37, v37, v24")
    def snap_own():
        a(f"buffer_load_dwordx4 v[8:11], v34, s[52:55], s14 offen {snpol}")
        a(f"buffer_load_dwordx4 v[12:15], v34, s[52:55], s14 offen offset:16 {snpol}")
        a(f"buffer_load_dwordx2 v[26:27], v31, s[28:31], 0 offen {xpol}")
        if sno:
            a(f"buffer_load_dwordx4 v[16:19], v1, s[48:51], s14 offen {snpol}")
            a(f"buffer_load_dwordx4 v[20:23], v1, s[48:51], s14 offen offset:1024 {snpol}")
        a("s_waitcnt vmcnt(0)")
        packbits(35, 8, 8, 24)
        a("v_xor_b32 v35, 0xff, v35")
    if sno:
        snap_own()
        lds_poll("L_hq", 38, 4, 4, 39, 8)
        if SNAP: lds_poll("L_sw", 38, 0, SNAP, 39, 8)
        snap_gather()
    else:
        if SNAP: lds_poll("L_sw", 38, 0, SNAP, 39, 8)
        snap_gather()
        lds_poll("L_hq", 38, 4, 4, 39, 8)
        snap_own()
    a("s_cmp_ge_u32 s36, 28"); a("s_cbranch_scc1 L_noffn")
    if FF0: lds_poll("L_ff0", 38, 0, FF0, 39, 16)
    FA = 40; FREG = 56
    if not noffn:
        a("s_mov_b32 s28, s16"); a("s_mov_b32 s29, s17"); a("s_mov_b32 s30, 0x1c0000")
        a("s_mov_b32 s32, s18"); a("s_mov_b32 s33, s19"); a("s_mov_b32 s34, 0x1c0000")
        a("v_lshrrev_b32 v6, 3, v2"); a("v_and_b32 v7, 7, v2")
        a("s_mov_b32 s46, 229376"); a("v_mul_lo_u32 v8, v6, s46")
        a("v_lshl_add_u32 v8, v7, 4, v8"); a("s_lshl_b32 s46, s36, 7"); a("v_add_u32 v8, s46, v8")
        if wide:
            a("s_mov_b32 s46, 229376"); a("v_mul_lo_u32 v8, v3, s46"); a("v_lshl_add_u32 v8, v4, 4, v8")
            a("s_lshr_b32 s46, s36, 1"); a("s_lshl_b32 s46, s46, 8"); a("v_add_u32 v8, s46, v8")
            a("s_and_b32 s46, s36, 1"); a("s_mul_i32 s46, s46, 917504"); a("v_add_u32 v8, s46, v8")
        a("v_lshlrev_b32 v9, 7, v6"); a(f"v_add_u32 v9, {RING+XN}, v9")
        a("s_mov_b32 s40, 0")
        def issue_f(n):
            r = FREG + (n % 4) * 4; srd = 28 if n % 2 == 0 else 32
            so = "s40" if n < 4 else "s41"
            a(f"buffer_load_dwordx4 v[{r}:{r+3}], v8, s[{srd}:{srd+3}], {so} offen offset:{3584*((n%4)//2)} {wpol}")
        for n in range(FW): issue_f(n)
        a(f"s_mov_b32 s41, {0 if hitx else 7168}")
        a("ds_read_b32 v10, v9")
        for k in range(16): a(f"v_mov_b32 v{FA+k}, 0")
        a("s_mov_b32 s44, 31")
        def fbody(last):
            a("s_waitcnt lgkmcnt(0)")
            forms(10, 0, 12, 13); forms(10, 1, 14, 15)
            if not last:
                a("v_add_u32 v9, 4, v9"); a("ds_read_b32 v10, v9")
            for n in range(4):
                a(f"s_waitcnt vmcnt({FW-1 if not last else min(FW-1, 3-n)})")
                mac8(FA + 8 * (n % 2), FREG + n * 4, 12 + 2 * (n // 2), 13 + 2 * (n // 2))
                if not last or n + FW < 4: issue_f(n + FW)
            if not last:
                a("s_mov_b32 s40, s41"); a(f"s_add_u32 s41, s41, {0 if hitx else 7168}")
        lab("L_floop")
        fbody(False)
        a("s_sub_u32 s44, s44, 1"); a("s_cmp_lg_u32 s44, 0"); a("s_cbranch_scc1 L_floop")
        fbody(True)
        a("s_mov_b32 s28, s20"); a("s_mov_b32 s29, s21")
        a("s_lshl_b32 s40, s36, 16")
        a(f"s_add_u32 s41, s40, {0 if hitx else 4096}")
        def issue_d(n):
            r = FREG + (n % 4) * 4
            so = "s40" if n < 4 else "s41"
            a(f"buffer_load_dwordx4 v[{r}:{r+3}], v1, s[28:31], {so} offen offset:{(n%4)*1024} {wpol}")
        for n in range(FW): issue_d(n)
        a("v_and_b32 v14, 8, v2"); a("v_cmp_ne_u32 vcc, 0, v14")
        for acc in (FA, FA + 8):
            for k in range(4): a(f"v_permlane32_swap_b32 v{acc+k}, v{acc+4+k}")
            for k in range(4): a(f"v_add_f32 v{acc+k}, v{acc+k}, v{acc+4+k}")
            nop(1)
            a(f"v_permlane16_swap_b32 v{acc}, v{acc+2}"); a(f"v_permlane16_swap_b32 v{acc+1}, v{acc+3}")
            a(f"v_add_f32 v{acc}, v{acc}, v{acc+2}"); a(f"v_add_f32 v{acc+1}, v{acc+1}, v{acc+3}")
            nop(2)
            a(f"v_add_f32_dpp v{acc}, v{acc}, v{acc} row_ror:8 row_mask:0xf bank_mask:0xf")
            a(f"v_add_f32_dpp v{acc+1}, v{acc+1}, v{acc+1} row_ror:8 row_mask:0xf bank_mask:0xf")
            a(f"v_cndmask_b32 v{acc}, v{acc}, v{acc+1}, vcc")
        a(f"v_cvt_pk_bf16_f32 v14, v{FA}, v{FA+8}")
        a("v_lshlrev_b32 v15, 16, v14"); a("v_and_b32 v16, s43, v14")
        a("v_mul_f32 v17, v15, v15"); a("v_mul_f32 v17, v17, v15")
        a("v_mov_b32 v18, 0x3d372713"); a("v_fma_f32 v17, v17, v18, v15")
        a("v_mul_f32 v17, 0xc0135761, v17")
        a("v_exp_f32 v17, v17"); nop(1)
        a("v_add_f32 v17, 1.0, v17"); a("v_rcp_f32 v17, v17"); nop(1)
        a("v_mul_f32 v17, v15, v17")
        a("v_cvt_pk_bf16_f32 v17, v17, v17"); a("v_and_b32 v17, s43, v17")
        a("v_mul_f32 v17, v17, v16")
        a("v_cvt_pk_bf16_f32 v17, v17, v17")
        a("v_lshlrev_b32 v14, 4, v7")
        a("v_lshrrev_b32 v15, 5, v2"); a("v_lshl_add_u32 v14, v15, 3, v14")
        a("v_bfe_u32 v15, v2, 4, 1"); a("v_lshl_add_u32 v14, v15, 2, v14")
        a("v_bfe_u32 v15, v2, 3, 1"); a("v_lshl_add_u32 v14, v15, 1, v14")
        a(f"v_mov_b32 v9, {RING+HB}"); a("v_add_u32 v14, v9, v14")
        a("ds_write_b16 v14, v17")
        a("s_waitcnt lgkmcnt(0)")
        a("ds_read_b64 v[10:11], v9")
        for k in range(8): a(f"v_mov_b32 v{FA+k}, 0")
        a("s_mov_b32 s44, 15")
        def dbody(last):
            a("s_waitcnt lgkmcnt(0)")
            forms(10, 0, 12, 13); forms(10, 1, 14, 15); forms(11, 0, 16, 17); forms(11, 1, 18, 19)
            if not last:
                a("v_add_u32 v9, 8, v9"); a("ds_read_b64 v[10:11], v9")
            for n in range(4):
                a(f"s_waitcnt vmcnt({FW-1 if not last else min(FW-1, 3-n)})")
                mac8(FA, FREG + n * 4, 12 + 2 * n, 13 + 2 * n)
                if not last or n + FW < 4: issue_d(n + FW)
            if not last:
                a("s_mov_b32 s40, s41"); a(f"s_add_u32 s41, s41, {0 if hitx else 4096}")
        lab("L_dloop")
        dbody(False)
        a("s_sub_u32 s44, s44, 1"); a("s_cmp_lg_u32 s44, 0"); a("s_cbranch_scc1 L_dloop")
        dbody(True)
    for k in range(8): a(f"v_bfe_u32 v{8+k}, v35, {k}, 1")
    for k in range(8): a(f"v_and_or_b32 v{FA+k}, v{FA+k}, -2, v{8+k}")
    lab("L_noffn")
    if diag:
        stamp(4); put_stamp(4, 56, 12)
    lds_poll("L_mid", 38, 0, MID, 39, 32)
    a("s_mov_b32 s47, 0x20000")
    a("s_mov_b64 exec, 1")
    lab("L_rdy")
    a(f"global_load_dword v13, v30, s[24:25] sc1")
    a("s_waitcnt vmcnt(0)")
    a("v_readfirstlane_b32 s46, v13")
    a("s_sub_u32 s47, s47, 1"); a("s_cmp_eq_u32 s47, 0"); a("s_cbranch_scc1 L_rdy_ok")
    a("s_cmp_ge_u32 s46, 32"); a("s_cbranch_scc1 L_rdy_ok")
    a("s_sleep 16"); a("s_branch L_rdy")
    lab("L_rdy_ok")
    a("s_mov_b64 exec, -1")
    a("v_lshlrev_b32 v24, 16, v26"); a("v_and_b32 v25, s43, v26"); a("v_lshlrev_b32 v26, 16, v27"); a("v_and_b32 v27, s43, v27")
    a("v_cmp_gt_u32 vcc, 32, v2"); a("v_and_b32 v12, 16, v2"); a("v_cmp_eq_u32 s[12:13], 0, v12")
    nop(1)
    a("v_cndmask_b32 v24, v26, v24, vcc"); a("v_cndmask_b32 v25, v27, v25, vcc")
    a("v_cndmask_b32 v24, v25, v24, s[12:13]")
    a("v_lshrrev_b32 v12, 5, v2"); a("v_lshl_add_u32 v31, v12, 2, v31"); a("v_bfe_u32 v12, v2, 4, 1"); a("v_lshl_add_u32 v31, v12, 1, v31")
    for k in range(8): a(f"v_bfe_u32 v{48+k}, v36, {k}, 1")
    for k in range(8): a(f"v_bfe_u32 v{56+k}, v37, {k}, 1")
    a("s_mov_b32 s47, 0x40000")
    lds_poll("L_yp", 38, 0, YP, 39, 2)
    if not noy & 1:
        a(f"buffer_store_dwordx4 v[{FA}:{FA+3}], v34, s[52:55], s14 offen {spol}")
        a(f"buffer_store_dwordx4 v[{FA+4}:{FA+7}], v34, s[52:55], s14 offen offset:16 {spol}")
    if YW: lds_poll("L_yw", 38, 0, 512, 39, 1)
    else: a("s_barrier")
    def pissue(b, srd):
        a(f"buffer_load_dwordx4 v[{b}:{b+3}], v32, s[{srd}:{srd+3}], s15 offen {gpol}")
        a(f"buffer_load_dwordx4 v[{b+4}:{b+7}], v33, s[{srd}:{srd+3}], s15 offen {gpol}")
    def pcheck(b, sn):
        a(f"v_xor_b32 v16, v{b}, v{sn}")
        for k in range(1, 8): a(f"v_bitop3_b32 v16, v16, v{b+k}, v{sn+k} bitop3:0x60")
        a("v_and_b32 v16, 1, v16")
        a("v_cmp_eq_u32 vcc, 0, v16")
    def reduce16(b):
        for k in range(8): a(f"v_and_b32 v{8+k}, -2, v{b+k}")
        for k in range(4): a(f"v_add_f32 v{8+k}, v{8+k}, v{12+k}")
        nop(1)
        a("v_permlane32_swap_b32 v8, v10"); a("v_permlane32_swap_b32 v9, v11")
        a("v_add_f32 v8, v8, v10"); a("v_add_f32 v9, v9, v11")
        nop(2)
        a("v_permlane16_swap_b32 v8, v9")
        a("v_add_f32 v8, v8, v9")
        nop(2)
        a("v_add_f32_dpp v8, v8, v8 row_ror:4 row_mask:0xf bank_mask:0xf")
        nop(2)
        a("v_add_f32_dpp v8, v8, v8 row_ror:8 row_mask:0xf bank_mask:0xf")
        a("v_cvt_pk_bf16_f32 v8, 0, v8")
    if YW:
        pissue(64, 52)
        a("s_barrier")
        a("s_branch L_gy1")
    if noy: a("s_branch L_gy_ok")
    lab("L_gy")
    pissue(64, 52)
    lab("L_gy1")
    a("s_waitcnt vmcnt(0)")
    pcheck(64, 56)
    a("s_sub_u32 s47, s47, 1"); a("s_cmp_eq_u32 s47, 0"); a("s_cbranch_scc1 L_gy_ok")
    a("s_and_b64 exec, exec, vcc")
    a("s_cbranch_scc1 L_gy")
    lab("L_gy_ok")
    a("s_mov_b64 exec, -1")
    if SE: pissue(72, 48)
    reduce16(64)
    a("v_mul_f32 v9, 0xbfb8aa3b, v8"); a("v_exp_f32 v9, v9"); nop(1)
    a("v_add_f32 v9, 1.0, v9"); a("v_rcp_f32 v9, v9"); nop(1)
    a("v_mul_f32 v8, v8, v9")
    a("v_cvt_pk_bf16_f32 v20, 0, v8")
    stamp(3)
    a("s_mov_b32 s47, 0x40000")
    if SE: a("s_branch L_gs1")
    lab("L_gs")
    pissue(72, 48)
    lab("L_gs1")
    a("s_waitcnt vmcnt(0)")
    pcheck(72, 48)
    a("s_sub_u32 s47, s47, 1"); a("s_cmp_eq_u32 s47, 0"); a("s_cbranch_scc1 L_gs_ok")
    a("s_and_b64 exec, exec, vcc")
    a("s_cbranch_scc1 L_gs")
    lab("L_gs_ok")
    a("s_mov_b64 exec, -1")
    reduce16(72)
    a("v_mul_f32 v8, v8, v20")
    a("v_cvt_pk_bf16_f32 v8, 0, v8")
    a("v_add_f32 v8, v8, v24")
    a("v_cvt_pk_bf16_f32 v8, v8, v8")
    a("s_mov_b32 exec_lo, 0x000f000f"); a("s_mov_b32 exec_hi, 0x000f000f")
    a("buffer_store_short v8, v31, s[56:59], 0 offen")
    if diag:
        stamp(7)
        a("s_mov_b64 exec, -1")
        put_stamp(7, 8, 20)
        if not st0: put_stamp(3, 32, 20)
    lab("L_done")
    a("s_endpgm")
    if ctl:
        NCK = 62 // CKI
        lab("L_ctl")
        a("s_and_b32 s12, s2, 7"); a("s_lshr_b32 s13, s2, 3")
        a("s_lshl_b32 s46, s12, 12"); a(f"s_add_u32 s46, s46, {TOFF}")
        a("s_add_u32 s28, s26, s46"); a("s_addc_u32 s29, s27, 0"); a("s_mov_b32 s30, 4096")
        a(f"s_add_u32 s32, s26, {TOFF + 0x8000}"); a("s_addc_u32 s33, s27, 0"); a("s_mov_b32 s34, 4096")
        a("s_lshl_b32 s46, s13, 2"); a("v_mov_b32 v7, s46")
        a("s_lshl_b32 s46, s12, 2"); a("v_mov_b32 v6, s46")
        a(f"s_mov_b32 s44, {CKI * 8}")
        a("s_mov_b32 s40, 0")
        a("s_mov_b32 s50, 0"); a("s_mov_b32 s51, 0"); a("s_mov_b32 s56, 0"); a("v_mov_b32 v20, 0")
        a("s_mov_b64 exec, 1")
        lab("L_cl")
        lds_poll("L_cp", 38, 0, "s44", 39, 2)
        a("s_memrealtime s[48:49]")
        a("s_waitcnt lgkmcnt(0)")
        a("v_mov_b32 v8, s48")
        if not cab & 1: a("buffer_store_dword v8, v7, s[28:31], s40 offen")
        a("s_cmp_eq_u32 s40, 0"); a("s_cbranch_scc1 L_cnext")
        a("s_sub_u32 s41, s40, 128")
        if not cab & 2:
            a("s_load_dwordx16 s[64:79], s[28:29], s41")
            a("s_add_u32 s46, s41, 64")
            a("s_load_dwordx16 s[80:95], s[28:29], s46")
        a("s_cmp_eq_u32 s41, 0"); a("s_cbranch_scc1 L_cn2")
        a("s_sub_u32 s46, s41, 128")
        if not cab & 4: a("s_load_dwordx8 s[4:11], s[32:33], s46")
        lab("L_cn2")
        a("s_mov_b32 s52, 0"); a("s_mov_b32 s53, 0"); a("s_sub_u32 s54, s50, 2000")
        a("s_waitcnt lgkmcnt(0)")
        for t in range(32):
            a(f"s_sub_u32 s55, s{64+t}, s54"); a("s_cmp_lt_u32 s55, 4000")
            a("s_cselect_b32 s55, s55, 2000"); a("s_addc_u32 s53, s53, 0"); a("s_add_u32 s52, s52, s55")
        a("s_sub_u32 s52, s52, 64000")
        if miss:
            a("s_sub_u32 s55, s48, s50"); a("s_sub_u32 s58, 32, s53"); a("s_mul_i32 s55, s55, s58")
            a("s_cmp_ge_u32 s53, 12"); a("s_cselect_b32 s55, s55, 0"); a("s_cselect_b32 s53, 32, s53"); a("s_add_u32 s52, s52, s55")
        a("s_max_u32 s53, s53, 1")
        a("v_cvt_f32_i32 v11, s52"); a("v_cvt_f32_u32 v12, s53")
        a("v_rcp_f32 v12, v12")
        a("s_mov_b32 s52, 0"); a("s_mov_b32 s53, 0"); a("s_sub_u32 s54, s56, 2000")
        for t in range(8):
            a(f"s_sub_u32 s55, s{4+t}, s54"); a("s_cmp_lt_u32 s55, 4000")
            a("s_cselect_b32 s55, s55, 2000"); a("s_addc_u32 s53, s53, 0"); a("s_add_u32 s52, s52, s55")
        a("s_sub_u32 s52, s52, 16000"); a("s_max_u32 s53, s53, 1")
        a("v_mul_f32 v11, v11, v12")
        a("v_cvt_f32_i32 v13, s52"); a("v_cvt_f32_u32 v14, s53"); a("v_rcp_f32 v14, v14")
        a("v_cvt_i32_f32 v12, v11"); a("v_add_u32 v12, s50, v12")
        a("v_mul_f32 v13, v13, v14")
        a("v_readfirstlane_b32 s57, v12")
        if rl:
            a("s_lshr_b32 s46, s40, 7"); a("s_cmp_lg_u32 s13, s46")
        else:
            a("s_cmp_lg_u32 s13, 0")
        a("s_cbranch_scc1 L_cnl")
        if not cab & 8: a("buffer_store_dword v12, v6, s[32:35], s41 offen sc1")
        lab("L_cnl")
        a("s_sub_u32 s46, s48, s50"); a("s_sub_u32 s47, s57, s56"); a("s_cmp_eq_u32 s41, 0"); a("s_cselect_b32 s46, s46, s47")
        a("v_cvt_f32_i32 v14, s46"); a("v_rcp_f32 v14, v14")
        a("s_mov_b32 s56, s57")
        if GB:
            a(f"s_mov_b32 s58, {f2u(-G / 100.0)}"); a(f"s_mov_b32 s59, {f2u(-G2 / 100.0)}")
            a(f"s_cmp_gt_u32 s44, {TH2 * 8}"); a(f"s_cselect_b32 s58, {f2u(-GB / 100.0)}, s58"); a(f"s_cselect_b32 s59, {f2u(-GB2 / 100.0)}, s59")
            a("v_mul_f32 v11, s58, v11"); a("v_mul_f32 v13, s59, v13"); a("v_add_f32 v11, v11, v13")
        else:
            a(f"v_mul_f32 v11, {f2u(-G / 100.0)}, v11"); a(f"v_mul_f32 v13, {f2u(-G2 / 100.0)}, v13"); a("v_add_f32 v11, v11, v13")
        if LT: a(f"v_mul_f32 v15, {f2u(32.0 * CKI * LT * 16.0)}, v14")
        else: a(f"v_mov_b32 v15, {f2u(float(D16 or D * 16))}")
        a("v_mul_f32 v11, v11, v14")
        if AS != 100:
            a(f"v_mul_f32 v13, {f2u(AS / 100.0)}, v11"); a("v_max_f32 v11, v11, v13" if AS > 100 else "v_min_f32 v11, v11, v13")
        if KI:
            a(f"v_mul_f32 v13, {f2u(KI / 100.0)}, v11"); a("v_add_f32 v20, v20, v13")
            a("v_add_f32 v11, v11, v20")
        a("v_fma_f32 v15, v15, v11, v15")
        a(f"v_max_f32 v15, {f2u(DMIN * 16.0)}, v15"); a(f"v_min_f32 v15, {f2u(DMAX * 16.0)}, v15")
        a("v_cvt_u32_f32 v15, v15")
        a("ds_write_b32 v38, v15 offset:12")
        lab("L_cnext")
        a("s_mov_b32 s50, s48")
        if TH2:
            a(f"s_cmp_ge_u32 s44, {TH2 * 8}"); a(f"s_cselect_b32 s46, {CK2 * 8}, {CKI * 8}"); a("s_add_u32 s44, s44, s46")
        else:
            a(f"s_add_u32 s44, s44, {CKI * 8}")
        a("s_add_u32 s40, s40, 128")
        a(f"s_cmp_le_u32 s44, {LAST * 8}")
        a("s_cbranch_scc1 L_cl")
        a("s_endpgm")
    L.append(".p2align 10")
    lab("L_end")
    L.append('.section .rodata,"a"'); L.append(".p2align 6"); L.append(f".amdhsa_kernel {KN}")
    a(".amdhsa_next_free_vgpr 168"); a(".amdhsa_next_free_sgpr 96"); a(".amdhsa_accum_offset 168")
    a(".amdhsa_group_segment_fixed_size 0"); a(".amdhsa_kernarg_size 96"); a(".amdhsa_user_sgpr_count 2")
    a(".amdhsa_user_sgpr_kernarg_segment_ptr 1"); a(".amdhsa_system_sgpr_workgroup_id_x 1")
    a(".amdhsa_float_denorm_mode_32 3")
    L.append(".end_amdhsa_kernel")
    return "\n".join(L) + "\n"

if __name__ == "__main__":
    for spec in sys.argv[1:]:
        out, _, kvs = spec.partition(":")
        kw = {}
        if kvs:
            for kv in kvs.split(","):
                k, v = kv.split("=")
                kw[k] = int(v) if v.lstrip("-").isdigit() else v.replace("+", " ")
        open(out, "w").write(gen(**kw))
```

```python
import sys, struct
KN = "recurrent_scan__mha_block_cached__geglu_ffn__decode_kernel"
HEADER = open("recurrent_scan__mha_block_cached__geglu_ffn__decode.s.ref").read().split("; Override launch")[0]

XN, QP, SP, ML, CT, OB, HB, SC = 0, 1024, 1024, 3072, 3136, 3328, 4352, 4608
MISC = 4608 + 8192
YOFF = 0x80000
TOFF = 0x100000
STOFF = 0x30000000
LOG2E = 0x3fb8aa3b
SCALE = 0x3db504f3
f2u = lambda x: hex(struct.unpack("<I", struct.pack("<f", x))[0])

DOC = '''; ---------------------------------------------------------------------------------------------------------
; ---------------------------------------------------------------------------------------------------------'''

def gen(D=20, D1=0, FW=3, WOS=90, WO0=80, WQWIN=6, WOWIN=2, wpol="", diag=0, kvpol="nt", noffn=0, nowo=0, noq=0,
        MID=440, YP=506, prog=0, NSLOT=18, xpol="", gpol="sc1", spol="sc1", snpol="sc1", pfpol="", SNAP=0,
        ctl=1, DMIN=13, DMAX=28, CKI=4, LT=0, G=50, G2=50, pf=1, lprio=3, gsl=0, vpol=None, hitx=0, wide=0, mpf=1, PF0=0, PFW=4, FF0=70, pp=0, YG=0, csl=1, sno=0, KI=0, DE=28, NE=1, nosnap=0, fast=1, csl1=1, bc=1, ft=1, cont=0, own=2, nolds=0, opol='', D16=316, TH2=48, CK2=2, LAST=62, DS=3, msk=1, DI=0, N1=0, wqhit=0, wqbg=0, miss=0, GB=0, GB2=0, cab=0, rl=1, tprio=0, dr=1, SE=1, YW=0, st0=0, cb=0, lb=-1, WQ0=12, noy=0, AS=65, probe=0):
    L = []
    RING = NSLOT * 8192
    LDS_BYTES = RING + MISC
    assert LDS_BYTES <= 163840
    def a(s): L.append("  " + s)
    def lab(s): L.append(s + ":")
    def nop(n): a(f"s_nop {n-1}")
    def stamp(i):
        if diag: a(f"s_memrealtime s[{60+2*i}:{61+2*i}]")
    def put_stamp(i, off, vt):
        a("s_waitcnt lgkmcnt(0)")
        a("s_lshl_b32 s45, s2, 6"); a(f"s_add_u32 s45, s45, {STOFF}"); a(f"v_mov_b32 v{vt+2}, s45")
        a(f"v_mov_b32 v{vt}, s{60+2*i}"); a(f"v_mov_b32 v{vt+1}, s{61+2*i}")
        a("s_mov_b64 exec, 1")
        a(f"global_store_dwordx2 v{vt+2}, v[{vt}:{vt+1}], s[26:27] offset:{off}")
        a("s_mov_b64 exec, -1")
        nop(2)
    L.append(HEADER.rstrip("\n"))
    L.append(f"; @launch grid=(256,1,1) block=({704 if ctl else 640},1,1) lds={LDS_BYTES}")
    L.append(DOC)
    L.append('.amdgcn_target "amdgcn-amd-amdhsa--gfx950"')
    L.append(".text"); L.append(f".globl {KN}"); L.append(".p2align 8"); L.append(f".type {KN},@function"); lab(KN)
    a("s_cmp_ge_u32 s2, 256")
    a("s_cbranch_scc1 L_done")
    a("s_load_dwordx8 s[4:11], s[0:1], 0")
    stamp(0)
    if probe: a("s_memrealtime s[60:61]")
    a("v_lshrrev_b32 v1, 6, v0")
    a("v_and_b32 v2, 63, v0")
    a("v_readfirstlane_b32 s3, v1")
    a("v_lshlrev_b32 v1, 4, v2")
    a("s_and_b32 s36, s2, 7")
    a("s_lshl_b32 s36, s36, 2")
    a("s_bfe_u32 s37, s2, 0x20003")
    a("s_add_u32 s36, s36, s37")
    a("s_lshr_b32 s37, s2, 5")
    a("s_cmp_lg_u32 s3, 0")
    a("s_cbranch_scc1 L_notloader")

    L.append("; ======== loader")
    if lprio: a(f"s_setprio {lprio}")
    a("s_lshl_b32 s38, s37, 5"); a("s_add_u32 s38, s38, s36"); a("s_lshl_b32 s38, s38, 20")
    a("s_mov_b32 s30, 0x100000"); a("s_mov_b32 s31, 0x20000")
    a("s_mov_b32 s40, 0"); a("s_mov_b32 s41, 0")
    def lds_init():
        a(f"v_mov_b32 v3, {RING+CT}")
        a("v_lshl_add_u32 v4, v2, 2, v3"); a("v_mov_b32 v5, 0")
        a("s_mov_b64 exec, 0xff")
        a("ds_write_b32 v4, v5")
        a("s_mov_b64 exec, -1")
        a(f"v_mov_b32 v8, {D16 or D * 16}"); a("ds_write_b32 v3, v8 offset:12")
    if not fast: lds_init()
    a("s_mov_b32 m0, 0")
    a("s_waitcnt lgkmcnt(0)")
    if st0: a("s_memrealtime s[66:67]")
    a("s_add_u32 s28, s6, s38"); a("s_addc_u32 s29, s7, 0"); a("s_add_u32 s32, s8, s38"); a("s_addc_u32 s33, s9, 0")
    def publish(k):
        a(f"v_add_u32 v5, {k}, v7"); a("ds_write_b32 v3, v5")
    def ld_step(m, Dw, first=False, kvpol=kvpol):
        j = m & 7
        if j == 0 and not (first and m == 0): a("s_mov_b32 m0, s41")
        if j == 4: a("s_add_u32 m0, s41, 4096")
        waited = not (first and m < Dw)
        if waited: a(f"s_waitcnt vmcnt({Dw-1})")
        elif j in (0, 4) and m: nop(1)
        a(f"buffer_load_dwordx4 v1, s[28:31], s40 offen offset:{(j&3)*1024} {kvpol} lds")
        if waited and (m - Dw + 1) % 4 == 0: publish((m - Dw + 1) // 4)
        if j == 3: a("s_add_u32 s40, s40, 4096")
        if j == 7:
            a("s_add_u32 s40, s40, 4096"); a("s_add_u32 s41, s41, 8192")
            a(f"s_cmp_eq_u32 s41, {RING}"); a("s_cselect_b32 s41, 0, s41")
    Dfirst = D1 if D1 else D
    a("v_mov_b32 v7, 0")
    if prog: a("v_mov_b32 v10, 0"); a("v_mov_b32 v11, 0")
    for m in range(32):
        ld_step(m, Dfirst, first=True)
        if st0 and m == Dfirst - 1: a("s_memrealtime s[68:69]")
        if st0 and m == Dfirst: a("s_memrealtime s[70:71]")
        if m == (lb if lb >= 0 else Dfirst - 1 if fast else 7):
            if fast:
                lds_init(); a("s_waitcnt lgkmcnt(0)")
            a("s_barrier")
    def fw(w): return (w - NSLOT) % 4
    def fo(w): return (w - NSLOT) // 4 + 1
    a("s_mov_b32 s44, 0")
    a(f"s_mov_b32 s47, {8 * DS}")
    a(f"ds_read_b32 v6, v3 offset:{16 + 4 * fw(0)}")
    a("ds_read_b32 v8, v3 offset:12")
    Ds = list(range(DMIN, DMAX + 1, DS)) if ctl else [D]
    DMAX = max(Ds)
    def slow(lbl, w, back):
        lab(lbl)
        a("s_sleep 1")
        a(f"ds_read_b32 v6, v3 offset:{16 + 4 * fw(w)}")
        a("s_waitcnt lgkmcnt(0)")
        a("v_readfirstlane_b32 s45, v6")
        a(f"s_sub_i32 s45, s45, {fo(w)}")
        a("s_cmp_ge_i32 s45, s44")
        a(f"s_cbranch_scc0 {lbl}")
        a(f"s_branch {back}")
    lab("L_disp")
    a("v_add_u32 v7, 8, v7")
    a("s_add_u32 s44, s44, 1")
    a("s_cmp_eq_u32 s44, 64")
    a("s_cbranch_scc1 L_drain")
    a("s_cmp_eq_u32 s44, 32")
    a("s_cselect_b32 s28, s32, s28"); a("s_cselect_b32 s29, s33, s29"); a("s_cselect_b32 s40, 0, s40")
    if prog: a("s_memrealtime s[76:77]")
    a("s_waitcnt lgkmcnt(0)")
    a("v_readfirstlane_b32 s45, v6")
    a("v_readfirstlane_b32 s46, v8")
    if prog:
        a("s_mov_b32 m0, s44"); nop(4); a("v_writelane_b32 v10, s76, m0"); a("v_writelane_b32 v11, s46, m0")
    a(f"s_sub_i32 s45, s45, {fo(0)}")
    a("s_cmp_ge_i32 s45, s44")
    a("s_cbranch_scc0 L_lslow_0")
    lab("L_lfree_0")
    if ctl:
        if N1:
            a(f"s_cmp_lt_u32 s44, {N1}"); a(f"s_cselect_b32 s46, {DI * 16}, s46")
        a("s_add_i32 s47, s47, s46")
        def casc(lst):
            if len(lst) == 1:
                a(f"s_branch L_c{lst[0]}"); return
            mid = len(lst) // 2
            a(f"s_cmp_ge_i32 s47, {lst[mid] * 16}")
            if len(lst) - mid == 1:
                a(f"s_cbranch_scc1 L_c{lst[mid]}")
                casc(lst[:mid])
            else:
                l2 = f"L_k{lst[mid]}_{len(lst)}"
                a(f"s_cbranch_scc1 {l2}")
                casc(lst[:mid]); lab(l2); casc(lst[mid:])
        if vpol is not None:
            a("s_cmp_ge_u32 s44, 32"); a("s_cbranch_scc1 L_vc")
        if DE:
            a(f"s_cmp_ge_u32 s44, {64 - NE}"); a(f"s_cbranch_scc1 L_c{DE}")
        casc(Ds)
        if DE and DE not in Ds: Ds = Ds + [DE]
    if vpol is not None:
        lab("L_vc")
        for w in range(4):
            if w:
                a("s_waitcnt lgkmcnt(0)")
                a("v_readfirstlane_b32 s45, v6")
                a(f"s_sub_i32 s45, s45, {fo(w)}")
                a("s_cmp_ge_i32 s45, s44")
                a(f"s_cbranch_scc0 L_vslow_{w}")
                lab(f"L_vfree_{w}")
            for j in range(8):
                ld_step(8 * w + j, D, kvpol=vpol)
                if j == 4:
                    a(f"ds_read_b32 v6, v3 offset:{16 + 4 * fw((w + 1) & 3)}")
                    if w == 3: a("ds_read_b32 v8, v3 offset:12")
        a("s_branch L_disp")
        for w in range(1, 4): slow(f"L_vslow_{w}", w, f"L_vfree_{w}")
    for Dw in Ds:
        npub = sum(1 for j in range(5, 8) if (j - Dw + 1) % 4 == 0)
        lab(f"L_c{Dw}")
        if ctl: a(f"s_sub_i32 s47, s47, {Dw * 16}")
        for w in range(4):
            if w:
                a(f"s_waitcnt lgkmcnt({npub})")
                a("v_readfirstlane_b32 s45, v6")
                a(f"s_sub_i32 s45, s45, {fo(w)}")
                a("s_cmp_ge_i32 s45, s44")
                a(f"s_cbranch_scc0 L_lslow{Dw}_{w}")
                lab(f"L_lfree{Dw}_{w}")
            for j in range(8):
                ld_step(8 * w + j, Dw)
                if j == 4:
                    a(f"ds_read_b32 v6, v3 offset:{16 + 4 * fw((w + 1) & 3)}")
                    if w == 3: a("ds_read_b32 v8, v3 offset:12")
        a("s_branch L_disp")
    slow("L_lslow_0", 0, "L_lfree_0")
    for Dw in Ds:
        for w in range(1, 4): slow(f"L_lslow{Dw}_{w}", w, f"L_lfree{Dw}_{w}")
    lab("L_drain")
    for r in range((max(Ds) - 1) // 4 * 4, -1, -4):
        if dr:
            a(f"v_add_u32 v5, {-(r // 4)}, v7"); a(f"s_waitcnt vmcnt({r})"); a("ds_write_b32 v3, v5")
        else:
            a(f"s_waitcnt vmcnt({r})"); publish(-(r // 4))
    if diag:
        stamp(2)
        a("s_load_dwordx2 s[26:27], s[0:1], 88")
        if prog:
            a("s_waitcnt lgkmcnt(0)")
            a("v_writelane_b32 v10, s64, 0")
            a("s_lshl_b32 s45, s2, 8"); a(f"s_add_u32 s45, s45, {STOFF + 0x4000}"); a("v_lshrrev_b32 v9, 2, v1"); a("v_add_u32 v9, s45, v9")
            a("global_store_dword v9, v10, s[26:27]")
            a("v_add_u32 v9, 0x10000, v9")
            a("global_store_dword v9, v11, s[26:27]")
        put_stamp(0, 0, 12); put_stamp(2, 24, 12)
        if st0:
            put_stamp(3, 16, 12); put_stamp(4, 32, 12); put_stamp(5, 40, 12)
    a("s_endpgm")

    def wave_allsum(r, t):
        for ro in (8, 4, 2, 1):
            nop(2)
            a(f"v_add_f32_dpp v{r}, v{r}, v{r} row_ror:{ro} row_mask:0xf bank_mask:0xf")
        a(f"v_mov_b32 v{t}, v{r}"); nop(2)
        a(f"v_permlane16_swap_b32 v{r}, v{t}"); a(f"v_add_f32 v{r}, v{r}, v{t}"); a(f"v_mov_b32 v{t}, v{r}"); nop(2)
        a(f"v_permlane32_swap_b32 v{r}, v{t}"); a(f"v_add_f32 v{r}, v{r}, v{t}")
    def layernorm(hook):
        for k in range(4):
            a(f"v_lshlrev_b32 v{12+2*k}, 16, v{8+k}"); a(f"v_and_b32 v{13+2*k}, s43, v{8+k}")
        a("v_add_f32 v20, v12, v13"); a("v_add_f32 v21, v14, v15"); a("v_add_f32 v22, v16, v17"); a("v_add_f32 v23, v18, v19")
        a("v_add_f32 v20, v20, v21"); a("v_add_f32 v22, v22, v23"); a("v_add_f32 v20, v20, v22")
        wave_allsum(20, 21); hook()
        a("v_mul_f32 v20, 0x3b000000, v20")
        a("v_mov_b32 v22, 0")
        for k in range(8):
            a(f"v_sub_f32 v21, v{12+k}, v20"); a("v_fmac_f32 v22, v21, v21")
        hook(); wave_allsum(22, 21); hook()
        a("v_mul_f32 v22, 0x3b000000, v22")
        a("v_cvt_pk_bf16_f32 v20, v20, v22")
        a("v_and_b32 v22, s43, v20"); a("v_lshlrev_b32 v20, 16, v20")
        a("v_add_f32 v22, 0x3727c5ac, v22")
        a("v_cvt_pk_bf16_f32 v22, v22, v22"); a("v_and_b32 v22, s43, v22")
        a("v_sqrt_f32 v22, v22"); nop(1)
        a("v_cvt_pk_bf16_f32 v22, v22, v22"); a("v_and_b32 v22, s43, v22")
        a("v_rcp_f32 v22, v22"); hook()
        for k in range(8): a(f"v_sub_f32 v{12+k}, v{12+k}, v20")
        for k in range(4): a(f"v_cvt_pk_bf16_f32 v{8+k}, v{12+2*k}, v{13+2*k}")
        for k in range(4):
            a(f"v_lshlrev_b32 v{12+2*k}, 16, v{8+k}"); a(f"v_and_b32 v{13+2*k}, s43, v{8+k}")
        for k in range(8): a(f"v_mul_f32 v{12+k}, v22, v{12+k}")
        for k in range(4): a(f"v_cvt_pk_bf16_f32 v{8+k}, v{12+2*k}, v{13+2*k}")
    def forms(pair, odd, lo, hi):
        if not odd:
            a(f"v_and_b32 v{lo}, 0xffff, v{pair}"); a(f"v_lshlrev_b32 v{hi}, 16, v{pair}")
        else:
            a(f"v_lshrrev_b32 v{lo}, 16, v{pair}"); a(f"v_and_b32 v{hi}, s43, v{pair}")
    def mac8(acc, w, lo, hi):
        for d in range(4):
            a(f"v_dot2c_f32_bf16 v{acc+2*d}, v{w+d}, v{lo}")
            a(f"v_dot2c_f32_bf16 v{acc+2*d+1}, v{w+d}, v{hi}")
    def lds_poll(lbl, addr, off, tgt, vt, sleep):
        lab(lbl)
        a(f"ds_read_b32 v{vt}, v{addr} offset:{off}")
        a("s_waitcnt lgkmcnt(0)")
        a(f"v_readfirstlane_b32 s45, v{vt}")
        a(f"s_cmp_ge_u32 s45, {tgt}")
        a(f"s_cbranch_scc1 {lbl}_ok")
        if sleep: a(f"s_sleep {sleep}")
        a(f"s_branch {lbl}")
        lab(lbl + "_ok")
    def packbits(dst, src, n, t):
        a(f"v_and_b32 v{dst}, 1, v{src}")
        for k in range(1, n):
            a(f"v_and_b32 v{t}, 1, v{src+k}"); a(f"v_lshl_or_b32 v{dst}, v{t}, {k}, v{dst}")
    WREG = 40

    lab("L_notloader")
    a("v_lshrrev_b32 v3, 4, v2")
    a("v_and_b32 v4, 15, v2")
    a("s_mov_b32 s43, 0xffff0000")
    a("s_mov_b32 s42, " + hex(LOG2E))
    a("s_lshl_b32 s39, s37, 10")
    a("s_mov_b32 s30, 1024"); a("s_mov_b32 s31, 0x20000"); a("s_mov_b32 s35, 0x20000")
    a("s_cmp_ge_u32 s3, 5")
    a("s_cbranch_scc1 L_helper")

    a("s_sub_u32 s3, s3, 1")
    a("s_lshl_b32 s38, s3, 20"); a("s_lshl_b32 s46, s36, 8"); a("s_add_u32 s38, s38, s46")
    a("v_lshlrev_b32 v5, 18, v3"); a("v_lshl_add_u32 v5, v4, 4, v5"); a("v_add_u32 v5, s38, v5")
    a("s_mov_b32 s34, 0x400000")
    a("s_lshl_b32 s40, s37, 15")
    a("s_waitcnt lgkmcnt(0)")
    a("s_add_u32 s28, s4, s39"); a("s_addc_u32 s29, s5, 0")
    a("s_mov_b32 s32, s10"); a("s_mov_b32 s33, s11")
    a(f"buffer_load_dwordx4 v[8:11], v1, s[28:31], 0 offen {xpol}")
    wq = {"issued": 0}
    def issue_wq(window=True):
        i = wq["issued"]
        if i >= 32 or noq: return
        if window: a(f"s_waitcnt vmcnt({WQWIN-1})")
        r = WREG + i * 4
        a(f"buffer_load_dwordx4 v[{r}:{r+3}], v5, s[32:35], s40 offen {wpol}")
        a(f"s_add_u32 s40, s40, {0 if wqhit == 1 else 0x2000}")
        if i % 4 == 3: a(f"s_and_b32 s40, s40, {0x3ffff if wqhit != 2 else 0}")
        wq["issued"] += 1
    if cb: a("s_barrier")
    for i in range(WQ0 or WQWIN): issue_wq(False)
    if not cb: a("s_barrier")
    a(f"s_waitcnt vmcnt({(WQ0 or WQWIN) if not noq else 0})")
    layernorm(issue_wq)
    a(f"s_mov_b32 s45, {RING+XN}")
    a("v_add_u32 v6, s45, v1")
    a("ds_write_b128 v6, v[8:11]")
    issue_wq()
    a("s_lshl_b32 s46, s3, 8"); a("s_add_u32 s46, s46, s45")
    a("v_lshlrev_b32 v7, 6, v3"); a("v_add_u32 v7, s46, v7")
    a("s_waitcnt lgkmcnt(0)")
    for k in range(8):
        a(f"s_add_u32 s46, s37, {k}"); a("s_and_b32 s46, s46, 7"); a("s_lshl_b32 s46, s46, 3")
        a("v_add_u32 v12, s46, v7")
        a(f"ds_read_b64 v[{16+2*k}:{17+2*k}], v12")
    for k in range(8): a(f"v_mov_b32 v{32+k}, 0")
    a("s_waitcnt lgkmcnt(0)")
    for i in range(32 if not noq else 0):
        forms(16 + i // 2, i & 1, 12, 13)
        if wq["issued"] < 32: issue_wq()
        else: a(f"s_waitcnt vmcnt({31 - i})")
        mac8(32, WREG + i * 4, 12, 13)
    a("v_lshlrev_b32 v7, 5, v4")
    a(f"v_add_u32 v7, {RING}, v7")
    a("v_lshl_add_u32 v6, v3, 2, v7")
    a("s_lshl_b32 s46, s3, 9"); a("v_add_u32 v6, s46, v6")
    for k in range(4): a(f"v_permlane16_swap_b32 v{32+2*k}, v{33+2*k}")
    for k in range(4): a(f"v_add_f32 v{32+2*k}, v{32+2*k}, v{33+2*k}")
    a("v_mov_b32 v39, 1")
    a("v_permlane32_swap_b32 v32, v34"); a("v_permlane32_swap_b32 v36, v38")
    a("v_add_f32 v32, v32, v34"); a("v_add_f32 v36, v36, v38")
    a(f"ds_write_b32 v6, v32 offset:{QP}"); a(f"ds_write_b32 v6, v36 offset:{QP+16}")
    a(f"v_mov_b32 v38, {RING+CT}")
    a("s_waitcnt lgkmcnt(0)")
    a("s_mov_b64 exec, 1")
    a("ds_add_u32 v38, v39 offset:4")
    a("s_mov_b64 exec, -1")
    lds_poll("L_qw", 38, 4, 4, 39, 1)
    for w in range(4):
        a(f"ds_read_b128 v[{40+w*8}:{43+w*8}], v7 offset:{QP+w*512}")
        a(f"ds_read_b128 v[{44+w*8}:{47+w*8}], v7 offset:{QP+w*512+16}")
    a("s_mov_b32 s41, " + hex(SCALE))
    a("v_mov_b32 v16, 0xff800000")
    a("s_lshl_b32 s44, s3, 13"); a("v_add_u32 v36, s44, v1")
    a("s_lshl_b32 s46, s3, 2"); a("v_add_u32 v37, s46, v38")
    a("s_lshl_b32 s47, s3, 1"); a("s_add_u32 s47, s47, 1")
    a("v_mov_b32 v27, 0")
    a("s_lshl_b32 s40, s3, 11"); a(f"s_add_u32 s40, s40, {RING+SC}")
    a("v_lshlrev_b32 v17, 4, v3"); a("v_add_u32 v17, s40, v17")
    a("v_and_b32 v5, 14, v4"); a("v_add_u32 v5, v5, v17")
    a("v_and_b32 v26, 2, v2"); a("v_cmp_ne_u32 vcc, 0, v26")
    a("s_waitcnt lgkmcnt(4)")
    for k in range(8): a(f"v_add_f32 v{40+k}, v{40+k}, v{48+k}")
    a("s_waitcnt lgkmcnt(0)")
    for k in range(8): a(f"v_add_f32 v{56+k}, v{56+k}, v{64+k}")
    for k in range(8): a(f"v_add_f32 v{40+k}, v{40+k}, v{56+k}")
    for k in range(4): a(f"v_cvt_pk_bf16_f32 v{72+k}, v{40+2*k}, v{41+2*k}")
    stamp(1)
    Q = 72; DR = 40
    S = list(range(18, 26))
    def half2(lbl):
        a("s_cmp_gt_u32 s45, s47")
        a(f"s_cbranch_scc1 {lbl}_ok")
        a("s_add_u32 s46, s47, 1")
        lds_poll(lbl, 38, 0, "s46", 39, csl)
        for j in range(4, 8 if not nolds else 4): a(f"ds_read_b128 v[{DR+4*j}:{DR+4*j+3}], v36 offset:{j*1024}")
        a("v_add_u32 v27, 1, v27")
        a("s_add_u32 s44, s44, 0x8000"); a(f"s_sub_u32 s46, s44, {RING}"); a("s_cselect_b32 s44, s44, s46")
        a("v_add_u32 v36, s44, v1")
        a("s_add_u32 s47, s47, 8")
    lab("L_kloop")
    lds_poll("L_pk", 38, 0, "s47", 39, csl1)
    for j in range(4 if not nolds else 0): a(f"ds_read_b128 v[{DR+4*j}:{DR+4*j+3}], v36 offset:{j*1024}")
    for j in range(8): a(f"v_mov_b32 v{S[j]}, 0")
    for j in range(4):
        a(f"s_waitcnt lgkmcnt({3-j})")
        for d in range(4): a(f"v_dot2c_f32_bf16 v{S[j]}, v{DR+4*j+d}, v{Q+d}")
    half2("L_pk2")
    for j in range(4, 8):
        a(f"s_waitcnt lgkmcnt({7-j})")
        if j == 7: a("ds_write_b32 v37, v27 offset:16")
        for d in range(4): a(f"v_dot2c_f32_bf16 v{S[j]}, v{DR+4*j+d}, v{Q+d}")
    for j in range(4): a(f"v_add_f32_dpp v{S[j]}, v{S[j]}, v{S[j]} row_ror:8 row_mask:0xf bank_mask:0x3")
    for j in range(4): a(f"v_add_f32_dpp v{S[j]}, v{S[j+4]}, v{S[j+4]} row_ror:8 row_mask:0xf bank_mask:0xc")
    for j in range(2): a(f"v_add_f32_dpp v{S[j]}, v{S[j]}, v{S[j]} row_ror:12 row_mask:0xf bank_mask:0x5")
    nop(1)
    for j in range(2): a(f"v_add_f32_dpp v{S[j]}, v{S[j+2]}, v{S[j+2]} row_ror:4 row_mask:0xf bank_mask:0xa")
    nop(1)
    for j in range(2): a(f"v_add_f32_dpp v{S[j]}, v{S[j]}, v{S[j]} quad_perm:[2,3,0,1] row_mask:0xf bank_mask:0xf")
    a(f"v_cndmask_b32 v{S[2]}, v{S[0]}, v{S[1]}, vcc")
    nop(2)
    a(f"v_add_f32_dpp v{S[2]}, v{S[2]}, v{S[2]} quad_perm:[1,0,3,2] row_mask:0xf bank_mask:0xf")
    a(f"v_cvt_pk_bf16_f32 v{S[2]}, 0, v{S[2]}")
    a(f"v_mul_f32 v{S[2]}, s41, v{S[2]}")
    a(f"v_cvt_pk_bf16_f32 v{S[2]}, v{S[2]}, v{S[2]}")
    a(f"ds_write_b16 v5, v{S[2]}")
    a(f"v_and_b32 v{S[3]}, s43, v{S[2]}")
    a(f"v_max_f32 v16, v16, v{S[3]}")
    a("v_add_u32 v5, 64, v5")
    a("s_cmp_lt_u32 s47, 256")
    a("s_cbranch_scc1 L_kloop")
    a("v_lshlrev_b32 v5, 1, v1"); a("v_add_u32 v5, s40, v5")
    a("s_waitcnt lgkmcnt(0)")
    a("ds_read_b128 v[40:43], v5"); a("ds_read_b128 v[44:47], v5 offset:16")
    for ro in (8, 4, 2, 1):
        a(f"v_max_f32_dpp v16, v16, v16 row_ror:{ro} row_mask:0xf bank_mask:0xf"); nop(2)
    a("v_mov_b32 v18, v16"); nop(2)
    a("v_permlane16_swap_b32 v16, v18"); a("v_max_f32 v16, v16, v18"); a("v_mov_b32 v18, v16"); nop(2)
    a("v_permlane32_swap_b32 v16, v18"); a("v_max_f32 v16, v16, v18")
    a("v_mul_f32 v18, s42, v16")
    a("s_waitcnt lgkmcnt(0)")
    for k in range(8):
        a(f"v_lshlrev_b32 v{48+2*k}, 16, v{40+k}"); a(f"v_and_b32 v{49+2*k}, s43, v{40+k}")
    for k in range(16): a(f"v_fma_f32 v{48+k}, v{48+k}, s42, -v18")
    for k in range(16): a(f"v_exp_f32 v{48+k}, v{48+k}")
    a("v_add_f32 v19, v48, v49"); a("v_add_f32 v20, v50, v51")
    for k in range(4, 16, 2):
        a(f"v_add_f32 v19, v19, v{48+k}"); a(f"v_add_f32 v20, v20, v{49+k}")
    a("v_add_f32 v19, v19, v20")
    wave_allsum(19, 20)
    a(f"v_subrev_u32 v21, {CT-ML}, v37")
    a("ds_write_b32 v21, v16"); a("ds_write_b32 v21, v19 offset:16")
    a("v_mov_b32 v39, 1")
    a("s_waitcnt lgkmcnt(0)")
    a("s_mov_b64 exec, 1")
    a("ds_add_u32 v38, v39 offset:8")
    a("s_mov_b64 exec, -1")
    lds_poll("L_mw", 38, 8, 4, 39, 1)
    a(f"v_subrev_u32 v21, {CT-ML}, v38")
    a("ds_read_b128 v[8:11], v21"); a("ds_read_b128 v[12:15], v21 offset:16")
    a("s_waitcnt lgkmcnt(1)")
    a("v_max3_f32 v20, v8, v9, v10"); a("v_max_f32 v20, v20, v11")
    for w in range(4): a(f"v_sub_f32 v{8+w}, v{8+w}, v20")
    a("v_sub_f32 v16, v16, v20")
    for w in range(4): a(f"v_mul_f32 v{8+w}, s42, v{8+w}")
    a("v_mul_f32 v16, s42, v16")
    for w in range(4): a(f"v_exp_f32 v{8+w}, v{8+w}")
    a("v_exp_f32 v16, v16")
    a("s_waitcnt lgkmcnt(0)")
    a("v_mul_f32 v20, v8, v12"); a("v_fmac_f32 v20, v9, v13"); a("v_fmac_f32 v20, v10, v14"); a("v_fmac_f32 v20, v11, v15")
    a("v_rcp_f32 v20, v20"); nop(1)
    a("v_mul_f32 v16, v16, v20")
    for k in range(16): a(f"v_mul_f32 v{48+k}, v16, v{48+k}")
    for k in range(8): a(f"v_cvt_pk_bf16_f32 v{40+k}, v{48+2*k}, v{49+2*k}")
    a("ds_write_b128 v5, v[40:43]"); a("ds_write_b128 v5, v[44:47] offset:16")
    for k in range(8): a(f"v_mov_b32 v{8+k}, 0")
    a("s_waitcnt lgkmcnt(0)")
    if tprio: a(f"s_setprio {tprio}")
    L.append("; ======== V phase")
    lab("L_vloop")
    a("ds_read_b128 v[28:31], v17")
    a("v_add_u32 v17, 64, v17")
    lds_poll("L_pv", 38, 0, "s47", 39, csl1)
    for j in range(4 if not nolds else 0): a(f"ds_read_b128 v[{DR+4*j}:{DR+4*j+3}], v36 offset:{j*1024}")
    for j in range(8): forms(28 + j // 2, j & 1, 76 + 2 * j, 77 + 2 * j)
    for j in range(4):
        a(f"s_waitcnt lgkmcnt({3-j})")
        mac8(8, DR + 4 * j, 76 + 2 * j, 77 + 2 * j)
    half2("L_pv2")
    for j in range(4, 8):
        a(f"s_waitcnt lgkmcnt({7-j})")
        if j == 7: a("ds_write_b32 v37, v27 offset:16")
        mac8(8, DR + 4 * j, 76 + 2 * j, 77 + 2 * j)
    a("s_cmp_lt_u32 s47, 512")
    a("s_cbranch_scc1 L_vloop")
    nop(2)
    for k in range(4): a(f"v_permlane16_swap_b32 v{8+2*k}, v{9+2*k}")
    for k in range(4): a(f"v_add_f32 v{8+2*k}, v{8+2*k}, v{9+2*k}")
    nop(1)
    a("v_permlane32_swap_b32 v8, v10"); a("v_permlane32_swap_b32 v12, v14")
    a("v_add_f32 v8, v8, v10"); a("v_add_f32 v12, v12, v14")
    a(f"ds_write_b32 v6, v8 offset:{SP}"); a(f"ds_write_b32 v6, v12 offset:{SP+16}")
    a("s_waitcnt lgkmcnt(0)")
    a("s_barrier")
    if diag:
        a("s_cmp_lg_u32 s3, 0"); a("s_cbranch_scc1 L_done")
        a("s_load_dwordx2 s[26:27], s[0:1], 88")
        if not st0: put_stamp(1, 16, 8)
    a("s_endpgm")

    L.append("; ======== helpers")
    lab("L_helper")
    a("s_sub_u32 s3, s3, 5")
    if pf:
        a("s_cmp_lg_u32 s3, 2"); a("s_cbranch_scc1 L_nopf")
        a("s_getpc_b64 s[46:47]")
        lab("L_pc")
        a(f"s_sub_u32 s46, s46, L_pc-{KN}"); a("s_subb_u32 s47, s47, 0")
        a("s_lshr_b32 s45, s2, 3"); a("s_min_u32 s45, s45, (L_end-" + KN + ")/1024-1"); a("s_lshl_b32 s45, s45, 10")
        a("v_add_u32 v6, s45, v1")
        a(f"global_load_dwordx4 v[8:11], v6, s[46:47] {pfpol}")
        lab("L_nopf")
    a("s_load_dwordx2 s[12:13], s[0:1], 32")
    a("s_load_dwordx8 s[16:23], s[0:1], 48")
    a("s_load_dwordx4 s[24:27], s[0:1], 80")
    a(f"v_mov_b32 v38, {RING+CT}")
    a("s_barrier")
    a("s_waitcnt lgkmcnt(0)")
    a("s_lshl_b32 s38, s37, 16")
    a("s_add_u32 s48, s26, s38"); a("s_addc_u32 s49, s27, 0"); a("s_mov_b32 s50, 0x10000"); a("s_mov_b32 s51, 0x20000")
    a("s_cmp_ge_u32 s3, 4"); a("s_cbranch_scc1 L_notwo")

    a("v_lshlrev_b32 v34, 5, v4"); a("v_lshrrev_b32 v7, 1, v3"); a("v_lshl_add_u32 v34, v7, 4, v34")
    if cont: a("v_lshlrev_b32 v34, 4, v4"); a("v_lshl_add_u32 v34, v7, 8, v34")
    a("s_lshl_b32 s14, s3, 9"); a("s_lshl_b32 s46, s36, 11"); a("s_add_u32 s14, s14, s46")
    a("s_mov_b32 s32, s12"); a("s_mov_b32 s33, s13"); a("s_mov_b32 s34, 0x400000")
    a("s_lshl_b32 s46, s36, 17"); a("s_lshl_b32 s47, s3, 8"); a("s_add_u32 s46, s46, s47")
    a("v_lshlrev_b32 v5, 15, v3"); a("v_lshl_add_u32 v5, v4, 4, v5"); a("v_add_u32 v5, s46, v5")
    a("s_mov_b32 s40, 0"); a("s_mov_b32 s46, 0x05040100"); a("s_mov_b32 s47, 0x07060302")
    if mpf:
        a("s_cmp_eq_u32 s3, 1"); a("s_cselect_b32 s28, s18, s16"); a("s_cselect_b32 s29, s19, s17")
        a("s_cmp_eq_u32 s3, 2"); a("s_cselect_b32 s28, s20, s28"); a("s_cselect_b32 s29, s21, s29")
        a("s_cmp_eq_u32 s3, 3"); a("s_cselect_b32 s30, 0, 0x1c0000")
        a("s_mul_i32 s41, s2, 7168")
        a("s_lshl_b32 s44, s2, 14"); a("s_lshl_b32 s45, s3, 12"); a("s_add_u32 s15, s44, s45")
        if own:
            a("s_lshl_b32 s44, s36, 17"); a("s_lshl_b32 s15, s37, 14"); a("s_add_u32 s15, s15, s44"); a("s_add_u32 s15, s15, s45")
            a("s_lshl_b32 s44, s36, 16"); a("s_lshl_b32 s45, s37, 13"); a("s_add_u32 s44, s44, s45")
            a("s_cmp_eq_u32 s3, 2"); a("s_cselect_b32 s41, s44, s41")
        lds_poll("L_pf0", 38, 0, PF0, 39, 8)
        if own == 2:
            a("v_lshrrev_b32 v6, 5, v2"); a("v_mul_u32_u24 v6, 3584, v6"); a("v_and_b32 v7, 0x1f0, v1"); a("v_add_u32 v6, v6, v7")
            a("s_and_b32 s44, s2, 7"); a("s_lshr_b32 s45, s2, 3"); a("s_mul_i32 s45, s45, 57344"); a("s_lshl_b32 s13, s44, 9"); a("s_add_u32 s45, s45, s13")
            a("s_cmp_eq_u32 s44, 7"); a("s_cselect_b32 s44, 0, s30")
            a("s_cmp_lt_u32 s3, 2"); a("s_cselect_b32 s30, s44, s30"); a("s_cselect_b32 s41, s45, s41")
            a("s_cselect_b64 vcc, -1, 0"); a("s_mov_b32 s13, 1024"); a("s_cselect_b32 s13, 7168, s13")
            a("v_cndmask_b32 v6, v1, v6, vcc")
            for i in range(12):
                if i >= PFW: a(f"s_waitcnt vmcnt({PFW - 1})")
                r = WREG + 4 * i
                if i < 8:
                    a(f"buffer_load_dwordx4 v[{r}:{r+3}], v6, s[28:31], s41 offen"); a("s_add_u32 s41, s41, s13")
                else:
                    a(f"buffer_load_dwordx4 v[{r}:{r+3}], v1, s[32:35], s15 offen offset:{(i - 8) * 1024}")
        else:
            if own:
                a("s_mov_b32 s45, 0x200000"); a("s_cmp_eq_u32 s3, 2"); a("s_cselect_b32 s45, 7168, s45"); a("s_add_u32 s45, s45, s41")
                a(f"buffer_load_dwordx4 v[{WREG+44}:{WREG+47}], v1, s[28:31], s45 offen")
            for i in range(11):
                if i >= PFW: a(f"s_waitcnt vmcnt({PFW - 1})")
                r = WREG + 4 * i
                if i < 7:
                    a(f"buffer_load_dwordx4 v[{r}:{r+3}], v1, s[28:31], s41 offen offset:{(i % 4) * 1024}")
                    if i == 3: a("s_add_u32 s41, s41, 4096")
                else:
                    a(f"buffer_load_dwordx4 v[{r}:{r+3}], v1, s[32:35], s15 offen offset:{(i - 7) * 1024}")
    if wqbg:
        a("s_mov_b32 s28, s10"); a("s_mov_b32 s29, s11"); a("s_mov_b32 s30, 0x400000")
        a("s_lshl_b32 s44, s3, 20"); a("s_lshl_b32 s45, s36, 8"); a("s_add_u32 s44, s44, s45")
        a("v_lshlrev_b32 v6, 18, v3"); a("v_lshl_add_u32 v6, v4, 4, v6"); a("v_add_u32 v6, s44, v6")
        a("s_lshl_b32 s41, s37, 15")
        for i in range(32):
            a(f"s_waitcnt vmcnt({wqbg - 1})")
            a(f"buffer_load_dwordx4 v[{WREG+4*i}:{WREG+4*i+3}], v6, s[28:31], s41 offen")
            a("s_add_u32 s41, s41, 0x2000"); a("s_and_b32 s41, s41, 0x3ffff")
    a(f"s_mul_i32 s44, s3, {WOS}"); a(f"s_add_u32 s44, s44, {WO0}")
    lds_poll("L_wos", 38, 0, "s44", 39, 32)
    a(f"buffer_load_dwordx4 v[8:11], v34, s[48:51], s14 offen {snpol}")
    a("s_waitcnt vmcnt(0)")
    packbits(35, 8, 4, 20)
    a("v_xor_b32 v35, 15, v35")
    def issue_o(i):
        r = WREG + i * 4
        a(f"buffer_load_dwordx4 v[{r}:{r+3}], v5, s[32:35], s40 offen offset:{(i%4)*1024} {wpol}")
        if i % 4 == 3: a(f"s_add_u32 s40, s40, {0 if hitx else 4096}")
    for i in range(WOWIN if not nowo else 0): issue_o(i)
    for i in range(32 if not nowo else 0):
        a(f"s_waitcnt vmcnt({min(WOWIN - 1, 31 - i)})")
        if i + WOWIN < 32: issue_o(i + WOWIN)
        if i & 1:
            A = WREG + 8 * (i // 2); B = A + 4
            for d in range(4):
                a(f"v_perm_b32 v12, v{B+d}, v{A+d}, s46")
                a(f"v_perm_b32 v{B+d}, v{B+d}, v{A+d}, s47")
                a(f"v_mov_b32 v{A+d}, v12")
    a("v_lshrrev_b32 v7, 1, v1"); a(f"v_add_u32 v7, {RING}, v7")
    a("s_lshl_b32 s45, s3, 8"); a(f"s_add_u32 s45, s45, {RING+OB}")
    a("v_lshrrev_b32 v4, 2, v1"); a("v_add_u32 v4, s45, v4")
    a("v_lshlrev_b32 v3, 6, v3"); a("v_add_u32 v3, s45, v3")
    for k in range(4): a(f"v_bfe_u32 v{k if k < 3 else 5}, v35, {k}, 1".replace("v0,", "v0,"))
    TB = [0, 1, 2, 5]
    for k in range(8): a(f"v_mov_b32 v{8+k}, 0")
    stamp(5)
    if tprio: a(f"s_setprio {tprio}")
    a("s_barrier")
    for w in range(4): a(f"ds_read_b64 v[{16+2*w}:{17+2*w}], v7 offset:{SP+w*512}")
    a("s_waitcnt lgkmcnt(2)")
    a("v_add_f32 v16, v16, v18"); a("v_add_f32 v17, v17, v19")
    a("s_waitcnt lgkmcnt(0)")
    a("v_add_f32 v20, v20, v22"); a("v_add_f32 v21, v21, v23")
    a("v_add_f32 v16, v16, v20"); a("v_add_f32 v17, v17, v21")
    a("v_cvt_pk_bf16_f32 v25, v16, v17")
    if bc:
        nop(2)
        for k in range(16):
            A = WREG + 8 * k; B = A + 4
            for d in range(4):
                a(f"v_dot2c_f32_bf16_dpp v{8+2*d}, v25, v{A+d} row_newbcast:{k} row_mask:0xf bank_mask:0xf")
                a(f"v_dot2c_f32_bf16_dpp v{9+2*d}, v25, v{B+d} row_newbcast:{k} row_mask:0xf bank_mask:0xf")
    else:
        a("ds_write_b32 v4, v25")
        a("s_waitcnt lgkmcnt(0)")
        for k in range(4): a(f"ds_read_b128 v[{16+4*k}:{19+4*k}], v3 offset:{16*k}")
        for k in range(16):
            if k % 4 == 0: a(f"s_waitcnt lgkmcnt({3-k//4})")
            A = WREG + 8 * k; B = A + 4
            for d in range(4):
                a(f"v_dot2c_f32_bf16 v{8+2*d}, v{A+d}, v{16+k}")
                a(f"v_dot2c_f32_bf16 v{9+2*d}, v{B+d}, v{16+k}")
    nop(3)
    for k in range(4): a(f"v_permlane32_swap_b32 v{8+k}, v{12+k}")
    for k in range(4): a(f"v_add_f32 v{8+k}, v{8+k}, v{12+k}")
    for k in range(4): a(f"v_mov_b32 v{12+k}, v{8+k}")
    for k in range(4): a(f"v_permlane16_swap_b32 v{8+k}, v{12+k}")
    for k in range(4): a(f"v_add_f32 v{8+k}, v{8+k}, v{12+k}")
    for k in range(4): a(f"v_and_or_b32 v{20+k}, v{8+k}, -2, v{TB[k]}")
    a("s_mov_b32 exec_lo, 0xffff"); a("s_mov_b32 exec_hi, 0xffff")
    a(f"buffer_store_dwordx4 v[20:23], v34, s[48:51], s14 offen {spol}")
    if diag:
        a("s_mov_b64 exec, -1")
        a("s_cmp_lg_u32 s3, 3"); a("s_cbranch_scc1 L_done")
        stamp(6); put_stamp(6, 48, 24)
        if not st0: put_stamp(5, 40, 24)
    a("s_endpgm")

    lab("L_notwo")
    if ctl:
        a("s_cmp_eq_u32 s3, 5"); a("s_cbranch_scc1 L_ctl")
    a(f"s_add_u32 s52, s48, {YOFF}"); a("s_addc_u32 s53, s49, 0"); a(f"s_mov_b32 s54, {28*2048}"); a("s_mov_b32 s55, 0x20000")
    a("s_add_u32 s28, s4, s39"); a("s_addc_u32 s29, s5, 0")
    a("s_add_u32 s56, s22, s39"); a("s_addc_u32 s57, s23, 0"); a("s_mov_b32 s58, 1024"); a("s_mov_b32 s59, 0x20000")
    a("v_lshrrev_b32 v32, 2, v2"); a("v_lshlrev_b32 v32, 11, v32"); a("v_and_b32 v33, 48, v1"); a("v_add_u32 v32, v32, v33")
    a("v_add_u32 v33, 0x8000, v32")
    a("v_lshlrev_b32 v34, 1, v1")
    a("s_lshl_b32 s14, s36, 11"); a("s_lshl_b32 s15, s36, 6")
    a("v_lshrrev_b32 v31, 1, v1"); a("v_and_b32 v31, 24, v31"); a("s_lshl_b32 s46, s36, 5"); a("v_add_u32 v31, s46, v31")
    def snap_gather():
        if nosnap:
            a("s_lshl_b32 s46, s37, 5"); a("v_mov_b32 v30, s46"); a("v_mov_b32 v29, 1")
            a("s_mov_b64 exec, 1"); a("global_atomic_add v30, v29, s[24:25] sc1"); a("s_mov_b64 exec, -1")
            return
        a(f"buffer_load_dwordx4 v[8:11], v32, s[48:51], s15 offen {snpol}")
        a(f"buffer_load_dwordx4 v[12:15], v33, s[48:51], s15 offen {snpol}")
        a(f"buffer_load_dwordx4 v[16:19], v32, s[52:55], s15 offen {snpol}")
        a(f"buffer_load_dwordx4 v[20:23], v33, s[52:55], s15 offen {snpol}")
        a("s_lshl_b32 s46, s37, 5"); a("v_mov_b32 v30, s46"); a("v_mov_b32 v29, 1")
        a("v_cmp_le_u32 vcc, 48, v2")
        a("s_waitcnt vmcnt(0)")
        a("s_mov_b64 exec, 1")
        a("global_atomic_add v30, v29, s[24:25] sc1")
        a("s_mov_b64 exec, -1")
        packbits(36, 8, 8, 24)
        packbits(37, 16, 8, 24)
        a("v_mov_b32 v24, 0xf0"); a("v_cndmask_b32 v24, 0, v24, vcc"); a("v_or_b32 v37, v37, v24")
    def snap_own():
        a(f"buffer_load_dwordx4 v[8:11], v34, s[52:55], s14 offen {snpol}")
        a(f"buffer_load_dwordx4 v[12:15], v34, s[52:55], s14 offen offset:16 {snpol}")
        a(f"buffer_load_dwordx2 v[26:27], v31, s[28:31], 0 offen {xpol}")
        if sno:
            a(f"buffer_load_dwordx4 v[16:19], v1, s[48:51], s14 offen {snpol}")
            a(f"buffer_load_dwordx4 v[20:23], v1, s[48:51], s14 offen offset:1024 {snpol}")
        a("s_waitcnt vmcnt(0)")
        packbits(35, 8, 8, 24)
        a("v_xor_b32 v35, 0xff, v35")
    if sno:
        snap_own()
        lds_poll("L_hq", 38, 4, 4, 39, 8)
        if SNAP: lds_poll("L_sw", 38, 0, SNAP, 39, 8)
        snap_gather()
    else:
        if SNAP: lds_poll("L_sw", 38, 0, SNAP, 39, 8)
        snap_gather()
        lds_poll("L_hq", 38, 4, 4, 39, 8)
        snap_own()
    a("s_cmp_ge_u32 s36, 28"); a("s_cbranch_scc1 L_noffn")
    if FF0: lds_poll("L_ff0", 38, 0, FF0, 39, 16)
    FA = 40; FREG = 56
    if not noffn:
        a("s_mov_b32 s28, s16"); a("s_mov_b32 s29, s17"); a("s_mov_b32 s30, 0x1c0000")
        a("s_mov_b32 s32, s18"); a("s_mov_b32 s33, s19"); a("s_mov_b32 s34, 0x1c0000")
        a("v_lshrrev_b32 v6, 3, v2"); a("v_and_b32 v7, 7, v2")
        a("s_mov_b32 s46, 229376"); a("v_mul_lo_u32 v8, v6, s46")
        a("v_lshl_add_u32 v8, v7, 4, v8"); a("s_lshl_b32 s46, s36, 7"); a("v_add_u32 v8, s46, v8")
        if wide:
            a("s_mov_b32 s46, 229376"); a("v_mul_lo_u32 v8, v3, s46"); a("v_lshl_add_u32 v8, v4, 4, v8")
            a("s_lshr_b32 s46, s36, 1"); a("s_lshl_b32 s46, s46, 8"); a("v_add_u32 v8, s46, v8")
            a("s_and_b32 s46, s36, 1"); a("s_mul_i32 s46, s46, 917504"); a("v_add_u32 v8, s46, v8")
        a("v_lshlrev_b32 v9, 7, v6"); a(f"v_add_u32 v9, {RING+XN}, v9")
        a("s_mov_b32 s40, 0")
        def issue_f(n):
            r = FREG + (n % 4) * 4; srd = 28 if n % 2 == 0 else 32
            so = "s40" if n < 4 else "s41"
            a(f"buffer_load_dwordx4 v[{r}:{r+3}], v8, s[{srd}:{srd+3}], {so} offen offset:{3584*((n%4)//2)} {wpol}")
        for n in range(FW): issue_f(n)
        a(f"s_mov_b32 s41, {0 if hitx else 7168}")
        a("ds_read_b32 v10, v9")
        for k in range(16): a(f"v_mov_b32 v{FA+k}, 0")
        a("s_mov_b32 s44, 31")
        def fbody(last):
            a("s_waitcnt lgkmcnt(0)")
            forms(10, 0, 12, 13); forms(10, 1, 14, 15)
            if not last:
                a("v_add_u32 v9, 4, v9"); a("ds_read_b32 v10, v9")
            for n in range(4):
                a(f"s_waitcnt vmcnt({FW-1 if not last else min(FW-1, 3-n)})")
                mac8(FA + 8 * (n % 2), FREG + n * 4, 12 + 2 * (n // 2), 13 + 2 * (n // 2))
                if not last or n + FW < 4: issue_f(n + FW)
            if not last:
                a("s_mov_b32 s40, s41"); a(f"s_add_u32 s41, s41, {0 if hitx else 7168}")
        lab("L_floop")
        fbody(False)
        a("s_sub_u32 s44, s44, 1"); a("s_cmp_lg_u32 s44, 0"); a("s_cbranch_scc1 L_floop")
        fbody(True)
        a("s_mov_b32 s28, s20"); a("s_mov_b32 s29, s21")
        a("s_lshl_b32 s40, s36, 16")
        a(f"s_add_u32 s41, s40, {0 if hitx else 4096}")
        def issue_d(n):
            r = FREG + (n % 4) * 4
            so = "s40" if n < 4 else "s41"
            a(f"buffer_load_dwordx4 v[{r}:{r+3}], v1, s[28:31], {so} offen offset:{(n%4)*1024} {wpol}")
        for n in range(FW): issue_d(n)
        a("v_and_b32 v14, 8, v2"); a("v_cmp_ne_u32 vcc, 0, v14")
        for acc in (FA, FA + 8):
            for k in range(4): a(f"v_permlane32_swap_b32 v{acc+k}, v{acc+4+k}")
            for k in range(4): a(f"v_add_f32 v{acc+k}, v{acc+k}, v{acc+4+k}")
            nop(1)
            a(f"v_permlane16_swap_b32 v{acc}, v{acc+2}"); a(f"v_permlane16_swap_b32 v{acc+1}, v{acc+3}")
            a(f"v_add_f32 v{acc}, v{acc}, v{acc+2}"); a(f"v_add_f32 v{acc+1}, v{acc+1}, v{acc+3}")
            nop(2)
            a(f"v_add_f32_dpp v{acc}, v{acc}, v{acc} row_ror:8 row_mask:0xf bank_mask:0xf")
            a(f"v_add_f32_dpp v{acc+1}, v{acc+1}, v{acc+1} row_ror:8 row_mask:0xf bank_mask:0xf")
            a(f"v_cndmask_b32 v{acc}, v{acc}, v{acc+1}, vcc")
        a(f"v_cvt_pk_bf16_f32 v14, v{FA}, v{FA+8}")
        a("v_lshlrev_b32 v15, 16, v14"); a("v_and_b32 v16, s43, v14")
        a("v_mul_f32 v17, v15, v15"); a("v_mul_f32 v17, v17, v15")
        a("v_mov_b32 v18, 0x3d372713"); a("v_fma_f32 v17, v17, v18, v15")
        a("v_mul_f32 v17, 0xc0135761, v17")
        a("v_exp_f32 v17, v17"); nop(1)
        a("v_add_f32 v17, 1.0, v17"); a("v_rcp_f32 v17, v17"); nop(1)
        a("v_mul_f32 v17, v15, v17")
        a("v_cvt_pk_bf16_f32 v17, v17, v17"); a("v_and_b32 v17, s43, v17")
        a("v_mul_f32 v17, v17, v16")
        a("v_cvt_pk_bf16_f32 v17, v17, v17")
        a("v_lshlrev_b32 v14, 4, v7")
        a("v_lshrrev_b32 v15, 5, v2"); a("v_lshl_add_u32 v14, v15, 3, v14")
        a("v_bfe_u32 v15, v2, 4, 1"); a("v_lshl_add_u32 v14, v15, 2, v14")
        a("v_bfe_u32 v15, v2, 3, 1"); a("v_lshl_add_u32 v14, v15, 1, v14")
        a(f"v_mov_b32 v9, {RING+HB}"); a("v_add_u32 v14, v9, v14")
        a("ds_write_b16 v14, v17")
        a("s_waitcnt lgkmcnt(0)")
        a("ds_read_b64 v[10:11], v9")
        for k in range(8): a(f"v_mov_b32 v{FA+k}, 0")
        a("s_mov_b32 s44, 15")
        def dbody(last):
            a("s_waitcnt lgkmcnt(0)")
            forms(10, 0, 12, 13); forms(10, 1, 14, 15); forms(11, 0, 16, 17); forms(11, 1, 18, 19)
            if not last:
                a("v_add_u32 v9, 8, v9"); a("ds_read_b64 v[10:11], v9")
            for n in range(4):
                a(f"s_waitcnt vmcnt({FW-1 if not last else min(FW-1, 3-n)})")
                mac8(FA, FREG + n * 4, 12 + 2 * n, 13 + 2 * n)
                if not last or n + FW < 4: issue_d(n + FW)
            if not last:
                a("s_mov_b32 s40, s41"); a(f"s_add_u32 s41, s41, {0 if hitx else 4096}")
        lab("L_dloop")
        dbody(False)
        a("s_sub_u32 s44, s44, 1"); a("s_cmp_lg_u32 s44, 0"); a("s_cbranch_scc1 L_dloop")
        dbody(True)
    for k in range(8): a(f"v_bfe_u32 v{8+k}, v35, {k}, 1")
    for k in range(8): a(f"v_and_or_b32 v{FA+k}, v{FA+k}, -2, v{8+k}")
    lab("L_noffn")
    if diag:
        stamp(4); put_stamp(4, 56, 12)
    lds_poll("L_mid", 38, 0, MID, 39, 32)
    a("s_mov_b32 s47, 0x20000")
    a("s_mov_b64 exec, 1")
    lab("L_rdy")
    a(f"global_load_dword v13, v30, s[24:25] sc1")
    a("s_waitcnt vmcnt(0)")
    a("v_readfirstlane_b32 s46, v13")
    a("s_sub_u32 s47, s47, 1"); a("s_cmp_eq_u32 s47, 0"); a("s_cbranch_scc1 L_rdy_ok")
    a("s_cmp_ge_u32 s46, 32"); a("s_cbranch_scc1 L_rdy_ok")
    a("s_sleep 16"); a("s_branch L_rdy")
    lab("L_rdy_ok")
    a("s_mov_b64 exec, -1")
    a("v_lshlrev_b32 v24, 16, v26"); a("v_and_b32 v25, s43, v26"); a("v_lshlrev_b32 v26, 16, v27"); a("v_and_b32 v27, s43, v27")
    a("v_cmp_gt_u32 vcc, 32, v2"); a("v_and_b32 v12, 16, v2"); a("v_cmp_eq_u32 s[12:13], 0, v12")
    nop(1)
    a("v_cndmask_b32 v24, v26, v24, vcc"); a("v_cndmask_b32 v25, v27, v25, vcc")
    a("v_cndmask_b32 v24, v25, v24, s[12:13]")
    a("v_lshrrev_b32 v12, 5, v2"); a("v_lshl_add_u32 v31, v12, 2, v31"); a("v_bfe_u32 v12, v2, 4, 1"); a("v_lshl_add_u32 v31, v12, 1, v31")
    for k in range(8): a(f"v_bfe_u32 v{48+k}, v36, {k}, 1")
    for k in range(8): a(f"v_bfe_u32 v{56+k}, v37, {k}, 1")
    a("s_mov_b32 s47, 0x40000")
    lds_poll("L_yp", 38, 0, YP, 39, 2)
    if not noy & 1:
        a(f"buffer_store_dwordx4 v[{FA}:{FA+3}], v34, s[52:55], s14 offen {spol}")
        a(f"buffer_store_dwordx4 v[{FA+4}:{FA+7}], v34, s[52:55], s14 offen offset:16 {spol}")
    if YW: lds_poll("L_yw", 38, 0, 512, 39, 1)
    else: a("s_barrier")
    def pissue(b, srd):
        a(f"buffer_load_dwordx4 v[{b}:{b+3}], v32, s[{srd}:{srd+3}], s15 offen {gpol}")
        a(f"buffer_load_dwordx4 v[{b+4}:{b+7}], v33, s[{srd}:{srd+3}], s15 offen {gpol}")
    def pcheck(b, sn):
        a(f"v_xor_b32 v16, v{b}, v{sn}")
        for k in range(1, 8): a(f"v_bitop3_b32 v16, v16, v{b+k}, v{sn+k} bitop3:0x60")
        a("v_and_b32 v16, 1, v16")
        a("v_cmp_eq_u32 vcc, 0, v16")
    def reduce16(b):
        for k in range(8): a(f"v_and_b32 v{8+k}, -2, v{b+k}")
        for k in range(4): a(f"v_add_f32 v{8+k}, v{8+k}, v{12+k}")
        nop(1)
        a("v_permlane32_swap_b32 v8, v10"); a("v_permlane32_swap_b32 v9, v11")
        a("v_add_f32 v8, v8, v10"); a("v_add_f32 v9, v9, v11")
        nop(2)
        a("v_permlane16_swap_b32 v8, v9")
        a("v_add_f32 v8, v8, v9")
        nop(2)
        a("v_add_f32_dpp v8, v8, v8 row_ror:4 row_mask:0xf bank_mask:0xf")
        nop(2)
        a("v_add_f32_dpp v8, v8, v8 row_ror:8 row_mask:0xf bank_mask:0xf")
        a("v_cvt_pk_bf16_f32 v8, 0, v8")
    if YW:
        pissue(64, 52)
        a("s_barrier")
        a("s_branch L_gy1")
    if noy: a("s_branch L_gy_ok")
    lab("L_gy")
    pissue(64, 52)
    lab("L_gy1")
    a("s_waitcnt vmcnt(0)")
    pcheck(64, 56)
    a("s_sub_u32 s47, s47, 1"); a("s_cmp_eq_u32 s47, 0"); a("s_cbranch_scc1 L_gy_ok")
    a("s_and_b64 exec, exec, vcc")
    a("s_cbranch_scc1 L_gy")
    lab("L_gy_ok")
    a("s_mov_b64 exec, -1")
    if SE: pissue(72, 48)
    reduce16(64)
    a("v_mul_f32 v9, 0xbfb8aa3b, v8"); a("v_exp_f32 v9, v9"); nop(1)
    a("v_add_f32 v9, 1.0, v9"); a("v_rcp_f32 v9, v9"); nop(1)
    a("v_mul_f32 v8, v8, v9")
    a("v_cvt_pk_bf16_f32 v20, 0, v8")
    stamp(3)
    a("s_mov_b32 s47, 0x40000")
    if SE: a("s_branch L_gs1")
    lab("L_gs")
    pissue(72, 48)
    lab("L_gs1")
    a("s_waitcnt vmcnt(0)")
    pcheck(72, 48)
    a("s_sub_u32 s47, s47, 1"); a("s_cmp_eq_u32 s47, 0"); a("s_cbranch_scc1 L_gs_ok")
    a("s_and_b64 exec, exec, vcc")
    a("s_cbranch_scc1 L_gs")
    lab("L_gs_ok")
    a("s_mov_b64 exec, -1")
    reduce16(72)
    a("v_mul_f32 v8, v8, v20")
    a("v_cvt_pk_bf16_f32 v8, 0, v8")
    a("v_add_f32 v8, v8, v24")
    a("v_cvt_pk_bf16_f32 v8, v8, v8")
    a("s_mov_b32 exec_lo, 0x000f000f"); a("s_mov_b32 exec_hi, 0x000f000f")
    a("buffer_store_short v8, v31, s[56:59], 0 offen")
    if probe:
        a("s_waitcnt lgkmcnt(0)")
        a(f"s_add_u32 s60, s60, {probe * 100}")
        lab("L_probe"); a("s_memrealtime s[62:63]"); a("s_waitcnt lgkmcnt(0)"); a("s_sub_u32 s46, s62, s60"); a("s_cmp_lt_i32 s46, 0"); a("s_cbranch_scc1 L_probe")
    if diag:
        stamp(7)
        a("s_mov_b64 exec, -1")
        put_stamp(7, 8, 20)
        if not st0: put_stamp(3, 32, 20)
    lab("L_done")
    a("s_endpgm")
    if ctl:
        NCK = 62 // CKI
        lab("L_ctl")
        a("s_and_b32 s12, s2, 7"); a("s_lshr_b32 s13, s2, 3")
        a("s_lshl_b32 s46, s12, 12"); a(f"s_add_u32 s46, s46, {TOFF}")
        a("s_add_u32 s28, s26, s46"); a("s_addc_u32 s29, s27, 0"); a("s_mov_b32 s30, 4096")
        a(f"s_add_u32 s32, s26, {TOFF + 0x8000}"); a("s_addc_u32 s33, s27, 0"); a("s_mov_b32 s34, 4096")
        a("s_lshl_b32 s46, s13, 2"); a("v_mov_b32 v7, s46")
        a("s_lshl_b32 s46, s12, 2"); a("v_mov_b32 v6, s46")
        a(f"s_mov_b32 s44, {CKI * 8}")
        a("s_mov_b32 s40, 0")
        a("s_mov_b32 s50, 0"); a("s_mov_b32 s51, 0"); a("s_mov_b32 s56, 0"); a("v_mov_b32 v20, 0")
        a("s_mov_b64 exec, 1")
        lab("L_cl")
        lds_poll("L_cp", 38, 0, "s44", 39, 2)
        a("s_memrealtime s[48:49]")
        a("s_waitcnt lgkmcnt(0)")
        a("v_mov_b32 v8, s48")
        if not cab & 1: a("buffer_store_dword v8, v7, s[28:31], s40 offen")
        a("s_cmp_eq_u32 s40, 0"); a("s_cbranch_scc1 L_cnext")
        a("s_sub_u32 s41, s40, 128")
        if not cab & 2:
            a("s_load_dwordx16 s[64:79], s[28:29], s41")
            a("s_add_u32 s46, s41, 64")
            a("s_load_dwordx16 s[80:95], s[28:29], s46")
        a("s_cmp_eq_u32 s41, 0"); a("s_cbranch_scc1 L_cn2")
        a("s_sub_u32 s46, s41, 128")
        if not cab & 4: a("s_load_dwordx8 s[4:11], s[32:33], s46")
        lab("L_cn2")
        a("s_mov_b32 s52, 0"); a("s_mov_b32 s53, 0"); a("s_sub_u32 s54, s50, 2000")
        a("s_waitcnt lgkmcnt(0)")
        for t in range(32):
            a(f"s_sub_u32 s55, s{64+t}, s54"); a("s_cmp_lt_u32 s55, 4000")
            a("s_cselect_b32 s55, s55, 2000"); a("s_addc_u32 s53, s53, 0"); a("s_add_u32 s52, s52, s55")
        a("s_sub_u32 s52, s52, 64000")
        if miss:
            a("s_sub_u32 s55, s48, s50"); a("s_sub_u32 s58, 32, s53"); a("s_mul_i32 s55, s55, s58")
            a("s_cmp_ge_u32 s53, 12"); a("s_cselect_b32 s55, s55, 0"); a("s_cselect_b32 s53, 32, s53"); a("s_add_u32 s52, s52, s55")
        a("s_max_u32 s53, s53, 1")
        a("v_cvt_f32_i32 v11, s52"); a("v_cvt_f32_u32 v12, s53")
        a("v_rcp_f32 v12, v12")
        a("s_mov_b32 s52, 0"); a("s_mov_b32 s53, 0"); a("s_sub_u32 s54, s56, 2000")
        for t in range(8):
            a(f"s_sub_u32 s55, s{4+t}, s54"); a("s_cmp_lt_u32 s55, 4000")
            a("s_cselect_b32 s55, s55, 2000"); a("s_addc_u32 s53, s53, 0"); a("s_add_u32 s52, s52, s55")
        a("s_sub_u32 s52, s52, 16000"); a("s_max_u32 s53, s53, 1")
        a("v_mul_f32 v11, v11, v12")
        a("v_cvt_f32_i32 v13, s52"); a("v_cvt_f32_u32 v14, s53"); a("v_rcp_f32 v14, v14")
        a("v_cvt_i32_f32 v12, v11"); a("v_add_u32 v12, s50, v12")
        a("v_mul_f32 v13, v13, v14")
        a("v_readfirstlane_b32 s57, v12")
        if rl:
            a("s_lshr_b32 s46, s40, 7"); a("s_cmp_lg_u32 s13, s46")
        else:
            a("s_cmp_lg_u32 s13, 0")
        a("s_cbranch_scc1 L_cnl")
        if not cab & 8: a("buffer_store_dword v12, v6, s[32:35], s41 offen sc1")
        lab("L_cnl")
        a("s_sub_u32 s46, s48, s50"); a("s_sub_u32 s47, s57, s56"); a("s_cmp_eq_u32 s41, 0"); a("s_cselect_b32 s46, s46, s47")
        a("v_cvt_f32_i32 v14, s46"); a("v_rcp_f32 v14, v14")
        a("s_mov_b32 s56, s57")
        if GB:
            a(f"s_mov_b32 s58, {f2u(-G / 100.0)}"); a(f"s_mov_b32 s59, {f2u(-G2 / 100.0)}")
            a(f"s_cmp_gt_u32 s44, {TH2 * 8}"); a(f"s_cselect_b32 s58, {f2u(-GB / 100.0)}, s58"); a(f"s_cselect_b32 s59, {f2u(-GB2 / 100.0)}, s59")
            a("v_mul_f32 v11, s58, v11"); a("v_mul_f32 v13, s59, v13"); a("v_add_f32 v11, v11, v13")
        else:
            a(f"v_mul_f32 v11, {f2u(-G / 100.0)}, v11"); a(f"v_mul_f32 v13, {f2u(-G2 / 100.0)}, v13"); a("v_add_f32 v11, v11, v13")
        if LT: a(f"v_mul_f32 v15, {f2u(32.0 * CKI * LT * 16.0)}, v14")
        else: a(f"v_mov_b32 v15, {f2u(float(D16 or D * 16))}")
        a("v_mul_f32 v11, v11, v14")
        if AS != 100:
            a(f"v_mul_f32 v13, {f2u(AS / 100.0)}, v11"); a("v_max_f32 v11, v11, v13" if AS > 100 else "v_min_f32 v11, v11, v13")
        if KI:
            a(f"v_mul_f32 v13, {f2u(KI / 100.0)}, v11"); a("v_add_f32 v20, v20, v13")
            a("v_add_f32 v11, v11, v20")
        a("v_fma_f32 v15, v15, v11, v15")
        a(f"v_max_f32 v15, {f2u(DMIN * 16.0)}, v15"); a(f"v_min_f32 v15, {f2u(DMAX * 16.0)}, v15")
        a("v_cvt_u32_f32 v15, v15")
        a("ds_write_b32 v38, v15 offset:12")
        lab("L_cnext")
        a("s_mov_b32 s50, s48")
        if TH2:
            a(f"s_cmp_ge_u32 s44, {TH2 * 8}"); a(f"s_cselect_b32 s46, {CK2 * 8}, {CKI * 8}"); a("s_add_u32 s44, s44, s46")
        else:
            a(f"s_add_u32 s44, s44, {CKI * 8}")
        a("s_add_u32 s40, s40, 128")
        a(f"s_cmp_le_u32 s44, {LAST * 8}")
        a("s_cbranch_scc1 L_cl")
        a("s_endpgm")
    L.append(".p2align 10")
    lab("L_end")
    L.append('.section .rodata,"a"'); L.append(".p2align 6"); L.append(f".amdhsa_kernel {KN}")
    a(".amdhsa_next_free_vgpr 168"); a(".amdhsa_next_free_sgpr 96"); a(".amdhsa_accum_offset 168")
    a(".amdhsa_group_segment_fixed_size 0"); a(".amdhsa_kernarg_size 96"); a(".amdhsa_user_sgpr_count 2")
    a(".amdhsa_user_sgpr_kernarg_segment_ptr 1"); a(".amdhsa_system_sgpr_workgroup_id_x 1")
    a(".amdhsa_float_denorm_mode_32 3")
    L.append(".end_amdhsa_kernel")
    return "\n".join(L) + "\n"

if __name__ == "__main__":
    for spec in sys.argv[1:]:
        out, _, kvs = spec.partition(":")
        kw = {}
        if kvs:
            for kv in kvs.split(","):
                k, v = kv.split("=")
                kw[k] = int(v) if v.lstrip("-").isdigit() else v.replace("+", " ")
        open(out, "w").write(gen(**kw))
```

```python
import sys, struct
KN = "recurrent_scan__mha_block_cached__geglu_ffn__decode_kernel"
HEADER = open("recurrent_scan__mha_block_cached__geglu_ffn__decode.s.ref").read().split("; Override launch")[0]

XN, QP, SP, ML, CT, OB, HB, SC = 0, 1024, 1024, 3072, 3136, 3328, 4352, 4608
MISC = 4608 + 8192
YOFF = 0x80000
TOFF = 0x100000
STOFF = 0x30000000
LOG2E = 0x3fb8aa3b
SCALE = 0x3db504f3
f2u = lambda x: hex(struct.unpack("<I", struct.pack("<f", x))[0])

DOC = '''; ---------------------------------------------------------------------------------------------------------
; ---------------------------------------------------------------------------------------------------------'''

def gen(D=20, D1=0, FW=3, WOS=90, WO0=80, WQWIN=6, WOWIN=2, wpol="", diag=0, kvpol="nt", noffn=0, nowo=0, noq=0,
        MID=440, YP=506, prog=0, NSLOT=18, xpol="", gpol="sc1", spol="sc1", snpol="sc1", pfpol="", SNAP=0,
        ctl=1, DMIN=13, DMAX=28, CKI=4, LT=0, G=50, G2=50, pf=1, lprio=3, gsl=0, vpol=None, hitx=0, wide=0, mpf=1, PF0=0, PFW=4, FF0=70, pp=0, YG=0, csl=1, sno=0, KI=0, DE=28, NE=1, nosnap=0, fast=1, csl1=1, bc=1, ft=1, cont=0, own=2, nolds=0, opol='', D16=316, TH2=48, CK2=2, LAST=62, DS=3, msk=1, DI=0, N1=0, wqhit=0, wqbg=0, miss=0, GB=0, GB2=0, cab=0, rl=1, tprio=0, dr=1, SE=1, YW=0, st0=0, cb=0, lb=-1, WQ0=12, noy=0, AS=65, probe=0, NB=0, DB=28, TB_=0, srdy=0, pk=-1, px0=0, vt=0, tpol=''):
    L = []
    RING = NSLOT * 8192
    LDS_BYTES = RING + MISC
    assert LDS_BYTES <= 163840
    def a(s): L.append("  " + s)
    def lab(s): L.append(s + ":")
    def nop(n): a(f"s_nop {n-1}")
    def stamp(i):
        if diag: a(f"s_memrealtime s[{60+2*i}:{61+2*i}]")
    def put_stamp(i, off, vt):
        a("s_waitcnt lgkmcnt(0)")
        a("s_lshl_b32 s45, s2, 6"); a(f"s_add_u32 s45, s45, {STOFF}"); a(f"v_mov_b32 v{vt+2}, s45")
        a(f"v_mov_b32 v{vt}, s{60+2*i}"); a(f"v_mov_b32 v{vt+1}, s{61+2*i}")
        a("s_mov_b64 exec, 1")
        a(f"global_store_dwordx2 v{vt+2}, v[{vt}:{vt+1}], s[26:27] offset:{off}")
        a("s_mov_b64 exec, -1")
        nop(2)
    L.append(HEADER.rstrip("\n"))
    L.append(f"; @launch grid=(256,1,1) block=({704 if ctl else 640},1,1) lds={LDS_BYTES}")
    L.append(DOC)
    L.append('.amdgcn_target "amdgcn-amd-amdhsa--gfx950"')
    L.append(".text"); L.append(f".globl {KN}"); L.append(".p2align 8"); L.append(f".type {KN},@function"); lab(KN)
    a("s_cmp_ge_u32 s2, 256")
    a("s_cbranch_scc1 L_done")
    a("s_load_dwordx8 s[4:11], s[0:1], 0")
    stamp(0)
    if probe or pk >= 0: a("s_memrealtime s[60:61]")
    a("v_lshrrev_b32 v1, 6, v0")
    a("v_and_b32 v2, 63, v0")
    a("v_readfirstlane_b32 s3, v1")
    a("v_lshlrev_b32 v1, 4, v2")
    a("s_and_b32 s36, s2, 7")
    a("s_lshl_b32 s36, s36, 2")
    a("s_bfe_u32 s37, s2, 0x20003")
    a("s_add_u32 s36, s36, s37")
    a("s_lshr_b32 s37, s2, 5")
    a("s_cmp_lg_u32 s3, 0")
    a("s_cbranch_scc1 L_notloader")

    L.append("; ======== loader")
    if lprio: a(f"s_setprio {lprio}")
    a("s_lshl_b32 s38, s37, 5"); a("s_add_u32 s38, s38, s36"); a("s_lshl_b32 s38, s38, 20")
    a("s_mov_b32 s30, 0x100000"); a("s_mov_b32 s31, 0x20000")
    a("s_mov_b32 s40, 0"); a("s_mov_b32 s41, 0")
    def lds_init():
        a(f"v_mov_b32 v3, {RING+CT}")
        a("v_lshl_add_u32 v4, v2, 2, v3"); a("v_mov_b32 v5, 0")
        a("s_mov_b64 exec, 0xff")
        a("ds_write_b32 v4, v5")
        a("s_mov_b64 exec, -1")
        a(f"v_mov_b32 v8, {D16 or D * 16}"); a("ds_write_b32 v3, v8 offset:12")
    if not fast: lds_init()
    a("s_mov_b32 m0, 0")
    a("s_waitcnt lgkmcnt(0)")
    if st0: a("s_memrealtime s[66:67]")
    a("s_add_u32 s28, s6, s38"); a("s_addc_u32 s29, s7, 0"); a("s_add_u32 s32, s8, s38"); a("s_addc_u32 s33, s9, 0")
    def publish(k):
        a(f"v_add_u32 v5, {k}, v7"); a("ds_write_b32 v3, v5")
    def ld_step(m, Dw, first=False, kvpol=kvpol):
        j = m & 7
        if j == 0 and not (first and m == 0): a("s_mov_b32 m0, s41")
        if j == 4: a("s_add_u32 m0, s41, 4096")
        waited = not (first and m < Dw)
        if waited: a(f"s_waitcnt vmcnt({Dw-1})")
        elif j in (0, 4) and m: nop(1)
        a(f"buffer_load_dwordx4 v1, s[28:31], s40 offen offset:{(j&3)*1024} {kvpol} lds")
        if waited and (m - Dw + 1) % 4 == 0: publish((m - Dw + 1) // 4)
        if j == 3: a("s_add_u32 s40, s40, 4096")
        if j == 7:
            a("s_add_u32 s40, s40, 4096"); a("s_add_u32 s41, s41, 8192")
            a(f"s_cmp_eq_u32 s41, {RING}"); a("s_cselect_b32 s41, 0, s41")
    Dfirst = D1 if D1 else D
    a("v_mov_b32 v7, 0")
    if prog: a("v_mov_b32 v10, 0"); a("v_mov_b32 v11, 0")
    for m in range(32):
        ld_step(m, Dfirst, first=True)
        if st0 and m == Dfirst - 1: a("s_memrealtime s[68:69]")
        if st0 and m == Dfirst: a("s_memrealtime s[70:71]")
        if m == (lb if lb >= 0 else Dfirst - 1 if fast else 7):
            if fast:
                lds_init(); a("s_waitcnt lgkmcnt(0)")
            a("s_barrier")
    def fw(w): return (w - NSLOT) % 4
    def fo(w): return (w - NSLOT) // 4 + 1
    a("s_mov_b32 s44, 0")
    a(f"s_mov_b32 s47, {8 * DS}")
    a(f"ds_read_b32 v6, v3 offset:{16 + 4 * fw(0)}")
    a("ds_read_b32 v8, v3 offset:12")
    Ds = list(range(DMIN, DMAX + 1, DS)) if ctl else [D]
    DMAX = max(Ds)
    def slow(lbl, w, back):
        lab(lbl)
        a("s_sleep 1")
        a(f"ds_read_b32 v6, v3 offset:{16 + 4 * fw(w)}")
        a("s_waitcnt lgkmcnt(0)")
        a("v_readfirstlane_b32 s45, v6")
        a(f"s_sub_i32 s45, s45, {fo(w)}")
        a("s_cmp_ge_i32 s45, s44")
        a(f"s_cbranch_scc0 {lbl}")
        a(f"s_branch {back}")
    lab("L_disp")
    a("v_add_u32 v7, 8, v7")
    a("s_add_u32 s44, s44, 1")
    a("s_cmp_eq_u32 s44, 64")
    a("s_cbranch_scc1 L_drain")
    a("s_cmp_eq_u32 s44, 32")
    a("s_cselect_b32 s28, s32, s28"); a("s_cselect_b32 s29, s33, s29"); a("s_cselect_b32 s40, 0, s40")
    if prog: a("s_memrealtime s[76:77]")
    a("s_waitcnt lgkmcnt(0)")
    a("v_readfirstlane_b32 s45, v6")
    a("v_readfirstlane_b32 s46, v8")
    if prog:
        a("s_mov_b32 m0, s44"); nop(4); a("v_writelane_b32 v10, s76, m0"); a("v_writelane_b32 v11, s46, m0")
    a(f"s_sub_i32 s45, s45, {fo(0)}")
    a("s_cmp_ge_i32 s45, s44")
    a("s_cbranch_scc0 L_lslow_0")
    lab("L_lfree_0")
    if ctl:
        if N1:
            a(f"s_cmp_lt_u32 s44, {N1}"); a(f"s_cselect_b32 s46, {DI * 16}, s46")
        a("s_add_i32 s47, s47, s46")
        def casc(lst):
            if len(lst) == 1:
                a(f"s_branch L_c{lst[0]}"); return
            mid = len(lst) // 2
            a(f"s_cmp_ge_i32 s47, {lst[mid] * 16}")
            if len(lst) - mid == 1:
                a(f"s_cbranch_scc1 L_c{lst[mid]}")
                casc(lst[:mid])
            else:
                l2 = f"L_k{lst[mid]}_{len(lst)}"
                a(f"s_cbranch_scc1 {l2}")
                casc(lst[:mid]); lab(l2); casc(lst[mid:])
        if vpol is not None:
            a("s_cmp_ge_u32 s44, 32"); a("s_cbranch_scc1 L_vc")
        if NB:
            a(f"s_cmp_lt_u32 s44, {64 - NB}"); a("s_cbranch_scc1 L_nb")
            a(f"s_cmp_ge_u32 s46, {D16 + TB_}"); a(f"s_cbranch_scc1 L_c{DB}")
            lab("L_nb")
        if DE:
            a(f"s_cmp_ge_u32 s44, {64 - NE}"); a(f"s_cbranch_scc1 L_c{DE}")
        casc(Ds)
        if DE and DE not in Ds: Ds = Ds + [DE]
        if NB and DB not in Ds: Ds = Ds + [DB]
    if vpol is not None:
        lab("L_vc")
        for w in range(4):
            if w:
                a("s_waitcnt lgkmcnt(0)")
                a("v_readfirstlane_b32 s45, v6")
                a(f"s_sub_i32 s45, s45, {fo(w)}")
                a("s_cmp_ge_i32 s45, s44")
                a(f"s_cbranch_scc0 L_vslow_{w}")
                lab(f"L_vfree_{w}")
            for j in range(8):
                ld_step(8 * w + j, D, kvpol=vpol)
                if j == 4:
                    a(f"ds_read_b32 v6, v3 offset:{16 + 4 * fw((w + 1) & 3)}")
                    if w == 3: a("ds_read_b32 v8, v3 offset:12")
        a("s_branch L_disp")
        for w in range(1, 4): slow(f"L_vslow_{w}", w, f"L_vfree_{w}")
    for Dw in Ds:
        npub = sum(1 for j in range(5, 8) if (j - Dw + 1) % 4 == 0)
        lab(f"L_c{Dw}")
        if ctl: a(f"s_sub_i32 s47, s47, {Dw * 16}")
        for w in range(4):
            if w:
                a(f"s_waitcnt lgkmcnt({npub})")
                a("v_readfirstlane_b32 s45, v6")
                a(f"s_sub_i32 s45, s45, {fo(w)}")
                a("s_cmp_ge_i32 s45, s44")
                a(f"s_cbranch_scc0 L_lslow{Dw}_{w}")
                lab(f"L_lfree{Dw}_{w}")
            for j in range(8):
                ld_step(8 * w + j, Dw)
                if j == 4:
                    a(f"ds_read_b32 v6, v3 offset:{16 + 4 * fw((w + 1) & 3)}")
                    if w == 3: a("ds_read_b32 v8, v3 offset:12")
        a("s_branch L_disp")
    slow("L_lslow_0", 0, "L_lfree_0")
    for Dw in Ds:
        for w in range(1, 4): slow(f"L_lslow{Dw}_{w}", w, f"L_lfree{Dw}_{w}")
    lab("L_drain")
    for r in range((max(Ds) - 1) // 4 * 4, -1, -4):
        if dr:
            a(f"v_add_u32 v5, {-(r // 4)}, v7"); a(f"s_waitcnt vmcnt({r})"); a("ds_write_b32 v3, v5")
        else:
            a(f"s_waitcnt vmcnt({r})"); publish(-(r // 4))
    if diag:
        stamp(2)
        a("s_load_dwordx2 s[26:27], s[0:1], 88")
        if prog:
            a("s_waitcnt lgkmcnt(0)")
            a("v_writelane_b32 v10, s64, 0")
            a("s_lshl_b32 s45, s2, 8"); a(f"s_add_u32 s45, s45, {STOFF + 0x4000}"); a("v_lshrrev_b32 v9, 2, v1"); a("v_add_u32 v9, s45, v9")
            a("global_store_dword v9, v10, s[26:27]")
            a("v_add_u32 v9, 0x10000, v9")
            a("global_store_dword v9, v11, s[26:27]")
        put_stamp(0, 0, 12); put_stamp(2, 24, 12)
        if st0:
            put_stamp(3, 16, 12); put_stamp(4, 32, 12); put_stamp(5, 40, 12)
    a("s_endpgm")

    def wave_allsum(r, t):
        for ro in (8, 4, 2, 1):
            nop(2)
            a(f"v_add_f32_dpp v{r}, v{r}, v{r} row_ror:{ro} row_mask:0xf bank_mask:0xf")
        a(f"v_mov_b32 v{t}, v{r}"); nop(2)
        a(f"v_permlane16_swap_b32 v{r}, v{t}"); a(f"v_add_f32 v{r}, v{r}, v{t}"); a(f"v_mov_b32 v{t}, v{r}"); nop(2)
        a(f"v_permlane32_swap_b32 v{r}, v{t}"); a(f"v_add_f32 v{r}, v{r}, v{t}")
    def layernorm(hook):
        for k in range(4):
            a(f"v_lshlrev_b32 v{12+2*k}, 16, v{8+k}"); a(f"v_and_b32 v{13+2*k}, s43, v{8+k}")
        a("v_add_f32 v20, v12, v13"); a("v_add_f32 v21, v14, v15"); a("v_add_f32 v22, v16, v17"); a("v_add_f32 v23, v18, v19")
        a("v_add_f32 v20, v20, v21"); a("v_add_f32 v22, v22, v23"); a("v_add_f32 v20, v20, v22")
        wave_allsum(20, 21); hook()
        a("v_mul_f32 v20, 0x3b000000, v20")
        a("v_mov_b32 v22, 0")
        for k in range(8):
            a(f"v_sub_f32 v21, v{12+k}, v20"); a("v_fmac_f32 v22, v21, v21")
        hook(); wave_allsum(22, 21); hook()
        a("v_mul_f32 v22, 0x3b000000, v22")
        a("v_cvt_pk_bf16_f32 v20, v20, v22")
        a("v_and_b32 v22, s43, v20"); a("v_lshlrev_b32 v20, 16, v20")
        a("v_add_f32 v22, 0x3727c5ac, v22")
        a("v_cvt_pk_bf16_f32 v22, v22, v22"); a("v_and_b32 v22, s43, v22")
        a("v_sqrt_f32 v22, v22"); nop(1)
        a("v_cvt_pk_bf16_f32 v22, v22, v22"); a("v_and_b32 v22, s43, v22")
        a("v_rcp_f32 v22, v22"); hook()
        for k in range(8): a(f"v_sub_f32 v{12+k}, v{12+k}, v20")
        for k in range(4): a(f"v_cvt_pk_bf16_f32 v{8+k}, v{12+2*k}, v{13+2*k}")
        for k in range(4):
            a(f"v_lshlrev_b32 v{12+2*k}, 16, v{8+k}"); a(f"v_and_b32 v{13+2*k}, s43, v{8+k}")
        for k in range(8): a(f"v_mul_f32 v{12+k}, v22, v{12+k}")
        for k in range(4): a(f"v_cvt_pk_bf16_f32 v{8+k}, v{12+2*k}, v{13+2*k}")
    def forms(pair, odd, lo, hi):
        if not odd:
            a(f"v_and_b32 v{lo}, 0xffff, v{pair}"); a(f"v_lshlrev_b32 v{hi}, 16, v{pair}")
        else:
            a(f"v_lshrrev_b32 v{lo}, 16, v{pair}"); a(f"v_and_b32 v{hi}, s43, v{pair}")
    def mac8(acc, w, lo, hi):
        for d in range(4):
            a(f"v_dot2c_f32_bf16 v{acc+2*d}, v{w+d}, v{lo}")
            a(f"v_dot2c_f32_bf16 v{acc+2*d+1}, v{w+d}, v{hi}")
    def lds_poll(lbl, addr, off, tgt, vt, sleep):
        lab(lbl)
        a(f"ds_read_b32 v{vt}, v{addr} offset:{off}")
        a("s_waitcnt lgkmcnt(0)")
        a(f"v_readfirstlane_b32 s45, v{vt}")
        a(f"s_cmp_ge_u32 s45, {tgt}")
        a(f"s_cbranch_scc1 {lbl}_ok")
        if sleep: a(f"s_sleep {sleep}")
        a(f"s_branch {lbl}")
        lab(lbl + "_ok")
    def packbits(dst, src, n, t):
        a(f"v_and_b32 v{dst}, 1, v{src}")
        for k in range(1, n):
            a(f"v_and_b32 v{t}, 1, v{src+k}"); a(f"v_lshl_or_b32 v{dst}, v{t}, {k}, v{dst}")
    WREG = 40

    lab("L_notloader")
    a("v_lshrrev_b32 v3, 4, v2")
    a("v_and_b32 v4, 15, v2")
    a("s_mov_b32 s43, 0xffff0000")
    a("s_mov_b32 s42, " + hex(LOG2E))
    a("s_lshl_b32 s39, s37, 10")
    a("s_mov_b32 s30, 1024"); a("s_mov_b32 s31, 0x20000"); a("s_mov_b32 s35, 0x20000")
    a("s_cmp_ge_u32 s3, 5")
    a("s_cbranch_scc1 L_helper")

    a("s_sub_u32 s3, s3, 1")
    a("s_lshl_b32 s38, s3, 20"); a("s_lshl_b32 s46, s36, 8"); a("s_add_u32 s38, s38, s46")
    a("v_lshlrev_b32 v5, 18, v3"); a("v_lshl_add_u32 v5, v4, 4, v5"); a("v_add_u32 v5, s38, v5")
    a("s_mov_b32 s34, 0x400000")
    a("s_lshl_b32 s40, s37, 15")
    a("s_waitcnt lgkmcnt(0)")
    a("s_add_u32 s28, s4, s39"); a("s_addc_u32 s29, s5, 0")
    a("s_mov_b32 s32, s10"); a("s_mov_b32 s33, s11")
    a(f"buffer_load_dwordx4 v[8:11], v1, s[28:31], 0 offen {xpol}")
    wq = {"issued": 0}
    def issue_wq(window=True):
        i = wq["issued"]
        if i >= 32 or noq: return
        if window: a(f"s_waitcnt vmcnt({WQWIN-1})")
        r = WREG + i * 4
        a(f"buffer_load_dwordx4 v[{r}:{r+3}], v5, s[32:35], s40 offen {wpol}")
        a(f"s_add_u32 s40, s40, {0 if wqhit == 1 else 0x2000}")
        if i % 4 == 3: a(f"s_and_b32 s40, s40, {0x3ffff if wqhit != 2 else 0}")
        wq["issued"] += 1
    if cb: a("s_barrier")
    for i in range(WQ0 or WQWIN): issue_wq(False)
    if not cb: a("s_barrier")
    a(f"s_waitcnt vmcnt({(WQ0 or WQWIN) if not noq else 0})")
    layernorm(issue_wq)
    a(f"s_mov_b32 s45, {RING+XN}")
    a("v_add_u32 v6, s45, v1")
    a("ds_write_b128 v6, v[8:11]")
    issue_wq()
    a("s_lshl_b32 s46, s3, 8"); a("s_add_u32 s46, s46, s45")
    a("v_lshlrev_b32 v7, 6, v3"); a("v_add_u32 v7, s46, v7")
    a("s_waitcnt lgkmcnt(0)")
    for k in range(8):
        a(f"s_add_u32 s46, s37, {k}"); a("s_and_b32 s46, s46, 7"); a("s_lshl_b32 s46, s46, 3")
        a("v_add_u32 v12, s46, v7")
        a(f"ds_read_b64 v[{16+2*k}:{17+2*k}], v12")
    for k in range(8): a(f"v_mov_b32 v{32+k}, 0")
    a("s_waitcnt lgkmcnt(0)")
    for i in range(32 if not noq else 0):
        forms(16 + i // 2, i & 1, 12, 13)
        if wq["issued"] < 32: issue_wq()
        else: a(f"s_waitcnt vmcnt({31 - i})")
        mac8(32, WREG + i * 4, 12, 13)
    a("v_lshlrev_b32 v7, 5, v4")
    a(f"v_add_u32 v7, {RING}, v7")
    a("v_lshl_add_u32 v6, v3, 2, v7")
    a("s_lshl_b32 s46, s3, 9"); a("v_add_u32 v6, s46, v6")
    for k in range(4): a(f"v_permlane16_swap_b32 v{32+2*k}, v{33+2*k}")
    for k in range(4): a(f"v_add_f32 v{32+2*k}, v{32+2*k}, v{33+2*k}")
    a("v_mov_b32 v39, 1")
    a("v_permlane32_swap_b32 v32, v34"); a("v_permlane32_swap_b32 v36, v38")
    a("v_add_f32 v32, v32, v34"); a("v_add_f32 v36, v36, v38")
    a(f"ds_write_b32 v6, v32 offset:{QP}"); a(f"ds_write_b32 v6, v36 offset:{QP+16}")
    a(f"v_mov_b32 v38, {RING+CT}")
    a("s_waitcnt lgkmcnt(0)")
    a("s_mov_b64 exec, 1")
    a("ds_add_u32 v38, v39 offset:4")
    a("s_mov_b64 exec, -1")
    lds_poll("L_qw", 38, 4, 4, 39, 1)
    for w in range(4):
        a(f"ds_read_b128 v[{40+w*8}:{43+w*8}], v7 offset:{QP+w*512}")
        a(f"ds_read_b128 v[{44+w*8}:{47+w*8}], v7 offset:{QP+w*512+16}")
    a("s_mov_b32 s41, " + hex(SCALE))
    a("v_mov_b32 v16, 0xff800000")
    a("s_lshl_b32 s44, s3, 13"); a("v_add_u32 v36, s44, v1")
    a("s_lshl_b32 s46, s3, 2"); a("v_add_u32 v37, s46, v38")
    a("s_lshl_b32 s47, s3, 1"); a("s_add_u32 s47, s47, 1")
    a("v_mov_b32 v27, 0")
    a("s_lshl_b32 s40, s3, 11"); a(f"s_add_u32 s40, s40, {RING+SC}")
    a("v_lshlrev_b32 v17, 4, v3"); a("v_add_u32 v17, s40, v17")
    a("v_and_b32 v5, 14, v4"); a("v_add_u32 v5, v5, v17")
    a("v_and_b32 v26, 2, v2"); a("v_cmp_ne_u32 vcc, 0, v26")
    a("s_waitcnt lgkmcnt(4)")
    for k in range(8): a(f"v_add_f32 v{40+k}, v{40+k}, v{48+k}")
    a("s_waitcnt lgkmcnt(0)")
    for k in range(8): a(f"v_add_f32 v{56+k}, v{56+k}, v{64+k}")
    for k in range(8): a(f"v_add_f32 v{40+k}, v{40+k}, v{56+k}")
    for k in range(4): a(f"v_cvt_pk_bf16_f32 v{72+k}, v{40+2*k}, v{41+2*k}")
    stamp(1)
    Q = 72; DR = 40
    S = list(range(18, 26))
    def half2(lbl):
        a("s_cmp_gt_u32 s45, s47")
        a(f"s_cbranch_scc1 {lbl}_ok")
        a("s_add_u32 s46, s47, 1")
        lds_poll(lbl, 38, 0, "s46", 39, csl)
        for j in range(4, 8 if not nolds else 4): a(f"ds_read_b128 v[{DR+4*j}:{DR+4*j+3}], v36 offset:{j*1024}")
        a("v_add_u32 v27, 1, v27")
        a("s_add_u32 s44, s44, 0x8000"); a(f"s_sub_u32 s46, s44, {RING}"); a("s_cselect_b32 s44, s44, s46")
        a("v_add_u32 v36, s44, v1")
        a("s_add_u32 s47, s47, 8")
    lab("L_kloop")
    lds_poll("L_pk", 38, 0, "s47", 39, csl1)
    for j in range(4 if not nolds else 0): a(f"ds_read_b128 v[{DR+4*j}:{DR+4*j+3}], v36 offset:{j*1024}")
    for j in range(8): a(f"v_mov_b32 v{S[j]}, 0")
    for j in range(4):
        a(f"s_waitcnt lgkmcnt({3-j})")
        for d in range(4): a(f"v_dot2c_f32_bf16 v{S[j]}, v{DR+4*j+d}, v{Q+d}")
    half2("L_pk2")
    for j in range(4, 8):
        a(f"s_waitcnt lgkmcnt({7-j})")
        if j == 7: a("ds_write_b32 v37, v27 offset:16")
        for d in range(4): a(f"v_dot2c_f32_bf16 v{S[j]}, v{DR+4*j+d}, v{Q+d}")
    for j in range(4): a(f"v_add_f32_dpp v{S[j]}, v{S[j]}, v{S[j]} row_ror:8 row_mask:0xf bank_mask:0x3")
    for j in range(4): a(f"v_add_f32_dpp v{S[j]}, v{S[j+4]}, v{S[j+4]} row_ror:8 row_mask:0xf bank_mask:0xc")
    for j in range(2): a(f"v_add_f32_dpp v{S[j]}, v{S[j]}, v{S[j]} row_ror:12 row_mask:0xf bank_mask:0x5")
    nop(1)
    for j in range(2): a(f"v_add_f32_dpp v{S[j]}, v{S[j+2]}, v{S[j+2]} row_ror:4 row_mask:0xf bank_mask:0xa")
    nop(1)
    for j in range(2): a(f"v_add_f32_dpp v{S[j]}, v{S[j]}, v{S[j]} quad_perm:[2,3,0,1] row_mask:0xf bank_mask:0xf")
    a(f"v_cndmask_b32 v{S[2]}, v{S[0]}, v{S[1]}, vcc")
    nop(2)
    a(f"v_add_f32_dpp v{S[2]}, v{S[2]}, v{S[2]} quad_perm:[1,0,3,2] row_mask:0xf bank_mask:0xf")
    a(f"v_cvt_pk_bf16_f32 v{S[2]}, 0, v{S[2]}")
    a(f"v_mul_f32 v{S[2]}, s41, v{S[2]}")
    a(f"v_cvt_pk_bf16_f32 v{S[2]}, v{S[2]}, v{S[2]}")
    a(f"ds_write_b16 v5, v{S[2]}")
    a(f"v_and_b32 v{S[3]}, s43, v{S[2]}")
    a(f"v_max_f32 v16, v16, v{S[3]}")
    a("v_add_u32 v5, 64, v5")
    a("s_cmp_lt_u32 s47, 256")
    a("s_cbranch_scc1 L_kloop")
    a("v_lshlrev_b32 v5, 1, v1"); a("v_add_u32 v5, s40, v5")
    a("s_waitcnt lgkmcnt(0)")
    a("ds_read_b128 v[40:43], v5"); a("ds_read_b128 v[44:47], v5 offset:16")
    for ro in (8, 4, 2, 1):
        a(f"v_max_f32_dpp v16, v16, v16 row_ror:{ro} row_mask:0xf bank_mask:0xf"); nop(2)
    a("v_mov_b32 v18, v16"); nop(2)
    a("v_permlane16_swap_b32 v16, v18"); a("v_max_f32 v16, v16, v18"); a("v_mov_b32 v18, v16"); nop(2)
    a("v_permlane32_swap_b32 v16, v18"); a("v_max_f32 v16, v16, v18")
    a("v_mul_f32 v18, s42, v16")
    a("s_waitcnt lgkmcnt(0)")
    for k in range(8):
        a(f"v_lshlrev_b32 v{48+2*k}, 16, v{40+k}"); a(f"v_and_b32 v{49+2*k}, s43, v{40+k}")
    for k in range(16): a(f"v_fma_f32 v{48+k}, v{48+k}, s42, -v18")
    for k in range(16): a(f"v_exp_f32 v{48+k}, v{48+k}")
    a("v_add_f32 v19, v48, v49"); a("v_add_f32 v20, v50, v51")
    for k in range(4, 16, 2):
        a(f"v_add_f32 v19, v19, v{48+k}"); a(f"v_add_f32 v20, v20, v{49+k}")
    a("v_add_f32 v19, v19, v20")
    wave_allsum(19, 20)
    a(f"v_subrev_u32 v21, {CT-ML}, v37")
    a("ds_write_b32 v21, v16"); a("ds_write_b32 v21, v19 offset:16")
    a("v_mov_b32 v39, 1")
    a("s_waitcnt lgkmcnt(0)")
    a("s_mov_b64 exec, 1")
    a("ds_add_u32 v38, v39 offset:8")
    a("s_mov_b64 exec, -1")
    lds_poll("L_mw", 38, 8, 4, 39, 1)
    a(f"v_subrev_u32 v21, {CT-ML}, v38")
    a("ds_read_b128 v[8:11], v21"); a("ds_read_b128 v[12:15], v21 offset:16")
    a("s_waitcnt lgkmcnt(1)")
    a("v_max3_f32 v20, v8, v9, v10"); a("v_max_f32 v20, v20, v11")
    for w in range(4): a(f"v_sub_f32 v{8+w}, v{8+w}, v20")
    a("v_sub_f32 v16, v16, v20")
    for w in range(4): a(f"v_mul_f32 v{8+w}, s42, v{8+w}")
    a("v_mul_f32 v16, s42, v16")
    for w in range(4): a(f"v_exp_f32 v{8+w}, v{8+w}")
    a("v_exp_f32 v16, v16")
    a("s_waitcnt lgkmcnt(0)")
    a("v_mul_f32 v20, v8, v12"); a("v_fmac_f32 v20, v9, v13"); a("v_fmac_f32 v20, v10, v14"); a("v_fmac_f32 v20, v11, v15")
    a("v_rcp_f32 v20, v20"); nop(1)
    a("v_mul_f32 v16, v16, v20")
    for k in range(16): a(f"v_mul_f32 v{48+k}, v16, v{48+k}")
    for k in range(8): a(f"v_cvt_pk_bf16_f32 v{40+k}, v{48+2*k}, v{49+2*k}")
    a("ds_write_b128 v5, v[40:43]"); a("ds_write_b128 v5, v[44:47] offset:16")
    for k in range(8): a(f"v_mov_b32 v{8+k}, 0")
    a("s_waitcnt lgkmcnt(0)")
    if tprio: a(f"s_setprio {tprio}")
    L.append("; ======== V phase")
    lab("L_vloop")
    a("ds_read_b128 v[28:31], v17")
    a("v_add_u32 v17, 64, v17")
    lds_poll("L_pv", 38, 0, "s47", 39, csl1)
    for j in range(4 if not nolds else 0): a(f"ds_read_b128 v[{DR+4*j}:{DR+4*j+3}], v36 offset:{j*1024}")
    for j in range(8): forms(28 + j // 2, j & 1, 76 + 2 * j, 77 + 2 * j)
    for j in range(4):
        a(f"s_waitcnt lgkmcnt({3-j})")
        mac8(8, DR + 4 * j, 76 + 2 * j, 77 + 2 * j)
    half2("L_pv2")
    for j in range(4, 8):
        a(f"s_waitcnt lgkmcnt({7-j})")
        if j == 7: a("ds_write_b32 v37, v27 offset:16")
        mac8(8, DR + 4 * j, 76 + 2 * j, 77 + 2 * j)
    a("s_cmp_lt_u32 s47, 512")
    a("s_cbranch_scc1 L_vloop")
    nop(2)
    for k in range(4): a(f"v_permlane16_swap_b32 v{8+2*k}, v{9+2*k}")
    for k in range(4): a(f"v_add_f32 v{8+2*k}, v{8+2*k}, v{9+2*k}")
    nop(1)
    a("v_permlane32_swap_b32 v8, v10"); a("v_permlane32_swap_b32 v12, v14")
    a("v_add_f32 v8, v8, v10"); a("v_add_f32 v12, v12, v14")
    a(f"ds_write_b32 v6, v8 offset:{SP}"); a(f"ds_write_b32 v6, v12 offset:{SP+16}")
    a("s_waitcnt lgkmcnt(0)")
    a("s_barrier")
    if diag:
        a("s_cmp_lg_u32 s3, 0"); a("s_cbranch_scc1 L_done")
        a("s_load_dwordx2 s[26:27], s[0:1], 88")
        if not st0: put_stamp(1, 16, 8)
    a("s_endpgm")

    L.append("; ======== helpers")
    lab("L_helper")
    a("s_sub_u32 s3, s3, 5")
    if pf:
        a("s_cmp_lg_u32 s3, 2"); a("s_cbranch_scc1 L_nopf")
        a("s_getpc_b64 s[46:47]")
        lab("L_pc")
        a(f"s_sub_u32 s46, s46, L_pc-{KN}"); a("s_subb_u32 s47, s47, 0")
        a("s_lshr_b32 s45, s2, 3"); a("s_min_u32 s45, s45, (L_end-" + KN + ")/1024-1"); a("s_lshl_b32 s45, s45, 10")
        a("v_add_u32 v6, s45, v1")
        a(f"global_load_dwordx4 v[8:11], v6, s[46:47] {pfpol}")
        lab("L_nopf")
    a("s_load_dwordx2 s[12:13], s[0:1], 32")
    a("s_load_dwordx8 s[16:23], s[0:1], 48")
    a("s_load_dwordx4 s[24:27], s[0:1], 80")
    a(f"v_mov_b32 v38, {RING+CT}")
    a("s_barrier")
    a("s_waitcnt lgkmcnt(0)")
    a("s_lshl_b32 s38, s37, 16")
    a("s_add_u32 s48, s26, s38"); a("s_addc_u32 s49, s27, 0"); a("s_mov_b32 s50, 0x10000"); a("s_mov_b32 s51, 0x20000")
    a("s_cmp_ge_u32 s3, 4"); a("s_cbranch_scc1 L_notwo")

    a("v_lshlrev_b32 v34, 5, v4"); a("v_lshrrev_b32 v7, 1, v3"); a("v_lshl_add_u32 v34, v7, 4, v34")
    if cont: a("v_lshlrev_b32 v34, 4, v4"); a("v_lshl_add_u32 v34, v7, 8, v34")
    a("s_lshl_b32 s14, s3, 9"); a("s_lshl_b32 s46, s36, 11"); a("s_add_u32 s14, s14, s46")
    a("s_mov_b32 s32, s12"); a("s_mov_b32 s33, s13"); a("s_mov_b32 s34, 0x400000")
    a("s_lshl_b32 s46, s36, 17"); a("s_lshl_b32 s47, s3, 8"); a("s_add_u32 s46, s46, s47")
    a("v_lshlrev_b32 v5, 15, v3"); a("v_lshl_add_u32 v5, v4, 4, v5"); a("v_add_u32 v5, s46, v5")
    a("s_mov_b32 s40, 0"); a("s_mov_b32 s46, 0x05040100"); a("s_mov_b32 s47, 0x07060302")
    if mpf:
        a("s_cmp_eq_u32 s3, 1"); a("s_cselect_b32 s28, s18, s16"); a("s_cselect_b32 s29, s19, s17")
        a("s_cmp_eq_u32 s3, 2"); a("s_cselect_b32 s28, s20, s28"); a("s_cselect_b32 s29, s21, s29")
        a("s_cmp_eq_u32 s3, 3"); a("s_cselect_b32 s30, 0, 0x1c0000")
        if own < 2: a("s_mul_i32 s41, s2, 7168")
        else: a("s_mov_b32 s41, 0")
        a("s_lshl_b32 s45, s3, 12")
        if not own: a("s_lshl_b32 s44, s2, 14"); a("s_add_u32 s15, s44, s45")
        if own:
            a("s_lshl_b32 s44, s36, 17"); a("s_lshl_b32 s15, s37, 14"); a("s_add_u32 s15, s15, s44"); a("s_add_u32 s15, s15, s45")
            a("s_lshl_b32 s44, s36, 16"); a("s_lshl_b32 s45, s37, 13"); a("s_add_u32 s44, s44, s45")
            a("s_cmp_eq_u32 s3, 2"); a("s_cselect_b32 s41, s44, s41")
        if PF0: lds_poll("L_pf0", 38, 0, PF0, 39, 8)
        if own == 3:
            a("v_lshrrev_b32 v6, 2, v2"); a("v_mul_u32_u24 v6, 3584, v6"); a("v_and_b32 v7, 3, v2"); a("v_lshl_add_u32 v6, v7, 7, v6")
            a("v_lshlrev_b32 v7, 7, v2")
            a("s_and_b32 s44, s2, 7"); a("s_lshr_b32 s45, s2, 3"); a("s_mul_i32 s45, s45, 57344"); a("s_lshl_b32 s13, s44, 9"); a("s_add_u32 s45, s45, s13")
            a("s_cmp_eq_u32 s44, 7"); a("s_cselect_b32 s44, 0, s30")
            a("s_cmp_lt_u32 s3, 2"); a("s_cselect_b32 s30, s44, s30"); a("s_cselect_b32 s41, s45, s41")
            a("s_cselect_b64 vcc, -1, 0")
            a("s_mov_b32 exec_hi, 0")
            a(f"buffer_load_dword v41, v7, s[32:35], s15 offen {tpol}")
            a("s_mov_b64 exec, -1")
            a("v_cndmask_b32 v6, v7, v6, vcc")
            a(f"buffer_load_dword v40, v6, s[28:31], s41 offen {tpol}")
        elif own == 2:
            a("v_lshrrev_b32 v6, 5, v2"); a("v_mul_u32_u24 v6, 3584, v6"); a("v_and_b32 v7, 0x1f0, v1"); a("v_add_u32 v6, v6, v7")
            a("s_and_b32 s44, s2, 7"); a("s_lshr_b32 s45, s2, 3"); a("s_mul_i32 s45, s45, 57344"); a("s_lshl_b32 s13, s44, 9"); a("s_add_u32 s45, s45, s13")
            a("s_cmp_eq_u32 s44, 7"); a("s_cselect_b32 s44, 0, s30")
            a("s_cmp_lt_u32 s3, 2"); a("s_cselect_b32 s30, s44, s30"); a("s_cselect_b32 s41, s45, s41")
            a("s_cselect_b64 vcc, -1, 0"); a("s_mov_b32 s13, 1024"); a("s_cselect_b32 s13, 7168, s13")
            a("v_cndmask_b32 v6, v1, v6, vcc")
            for i in range(12):
                if i >= PFW: a(f"s_waitcnt vmcnt({PFW - 1})")
                r = WREG + 4 * i
                if i < 8:
                    a(f"buffer_load_dwordx4 v[{r}:{r+3}], v6, s[28:31], s41 offen"); a("s_add_u32 s41, s41, s13")
                else:
                    a(f"buffer_load_dwordx4 v[{r}:{r+3}], v1, s[32:35], s15 offen offset:{(i - 8) * 1024}")
        else:
            if own:
                a("s_mov_b32 s45, 0x200000"); a("s_cmp_eq_u32 s3, 2"); a("s_cselect_b32 s45, 7168, s45"); a("s_add_u32 s45, s45, s41")
                a(f"buffer_load_dwordx4 v[{WREG+44}:{WREG+47}], v1, s[28:31], s45 offen")
            for i in range(11):
                if i >= PFW: a(f"s_waitcnt vmcnt({PFW - 1})")
                r = WREG + 4 * i
                if i < 7:
                    a(f"buffer_load_dwordx4 v[{r}:{r+3}], v1, s[28:31], s41 offen offset:{(i % 4) * 1024}")
                    if i == 3: a("s_add_u32 s41, s41, 4096")
                else:
                    a(f"buffer_load_dwordx4 v[{r}:{r+3}], v1, s[32:35], s15 offen offset:{(i - 7) * 1024}")
    if wqbg:
        a("s_mov_b32 s28, s10"); a("s_mov_b32 s29, s11"); a("s_mov_b32 s30, 0x400000")
        a("s_lshl_b32 s44, s3, 20"); a("s_lshl_b32 s45, s36, 8"); a("s_add_u32 s44, s44, s45")
        a("v_lshlrev_b32 v6, 18, v3"); a("v_lshl_add_u32 v6, v4, 4, v6"); a("v_add_u32 v6, s44, v6")
        a("s_lshl_b32 s41, s37, 15")
        for i in range(32):
            a(f"s_waitcnt vmcnt({wqbg - 1})")
            a(f"buffer_load_dwordx4 v[{WREG+4*i}:{WREG+4*i+3}], v6, s[28:31], s41 offen")
            a("s_add_u32 s41, s41, 0x2000"); a("s_and_b32 s41, s41, 0x3ffff")
    a(f"s_mul_i32 s44, s3, {WOS}"); a(f"s_add_u32 s44, s44, {WO0}")
    lds_poll("L_wos", 38, 0, "s44", 39, 32)
    a(f"buffer_load_dwordx4 v[8:11], v34, s[48:51], s14 offen {snpol}")
    a("s_waitcnt vmcnt(0)")
    packbits(35, 8, 4, 20)
    a("v_xor_b32 v35, 15, v35")
    def issue_o(i):
        r = WREG + i * 4
        a(f"buffer_load_dwordx4 v[{r}:{r+3}], v5, s[32:35], s40 offen offset:{(i%4)*1024} {wpol}")
        if i % 4 == 3: a(f"s_add_u32 s40, s40, {0 if hitx else 4096}")
    for i in range(WOWIN if not nowo else 0): issue_o(i)
    for i in range(32 if not nowo else 0):
        a(f"s_waitcnt vmcnt({min(WOWIN - 1, 31 - i)})")
        if i + WOWIN < 32: issue_o(i + WOWIN)
        if i & 1:
            A = WREG + 8 * (i // 2); B = A + 4
            for d in range(4):
                a(f"v_perm_b32 v12, v{B+d}, v{A+d}, s46")
                a(f"v_perm_b32 v{B+d}, v{B+d}, v{A+d}, s47")
                a(f"v_mov_b32 v{A+d}, v12")
    a("v_lshrrev_b32 v7, 1, v1"); a(f"v_add_u32 v7, {RING}, v7")
    a("s_lshl_b32 s45, s3, 8"); a(f"s_add_u32 s45, s45, {RING+OB}")
    a("v_lshrrev_b32 v4, 2, v1"); a("v_add_u32 v4, s45, v4")
    a("v_lshlrev_b32 v3, 6, v3"); a("v_add_u32 v3, s45, v3")
    for k in range(4): a(f"v_bfe_u32 v{k if k < 3 else 5}, v35, {k}, 1".replace("v0,", "v0,"))
    TB = [0, 1, 2, 5]
    for k in range(8): a(f"v_mov_b32 v{8+k}, 0")
    stamp(5)
    if tprio: a(f"s_setprio {tprio}")
    a("s_barrier")
    for w in range(4): a(f"ds_read_b64 v[{16+2*w}:{17+2*w}], v7 offset:{SP+w*512}")
    a("s_waitcnt lgkmcnt(2)")
    a("v_add_f32 v16, v16, v18"); a("v_add_f32 v17, v17, v19")
    a("s_waitcnt lgkmcnt(0)")
    a("v_add_f32 v20, v20, v22"); a("v_add_f32 v21, v21, v23")
    a("v_add_f32 v16, v16, v20"); a("v_add_f32 v17, v17, v21")
    a("v_cvt_pk_bf16_f32 v25, v16, v17")
    if bc:
        nop(2)
        for k in range(16):
            A = WREG + 8 * k; B = A + 4
            for d in range(4):
                a(f"v_dot2c_f32_bf16_dpp v{8+2*d}, v25, v{A+d} row_newbcast:{k} row_mask:0xf bank_mask:0xf")
                a(f"v_dot2c_f32_bf16_dpp v{9+2*d}, v25, v{B+d} row_newbcast:{k} row_mask:0xf bank_mask:0xf")
    else:
        a("ds_write_b32 v4, v25")
        a("s_waitcnt lgkmcnt(0)")
        for k in range(4): a(f"ds_read_b128 v[{16+4*k}:{19+4*k}], v3 offset:{16*k}")
        for k in range(16):
            if k % 4 == 0: a(f"s_waitcnt lgkmcnt({3-k//4})")
            A = WREG + 8 * k; B = A + 4
            for d in range(4):
                a(f"v_dot2c_f32_bf16 v{8+2*d}, v{A+d}, v{16+k}")
                a(f"v_dot2c_f32_bf16 v{9+2*d}, v{B+d}, v{16+k}")
    nop(3)
    for k in range(4): a(f"v_permlane32_swap_b32 v{8+k}, v{12+k}")
    for k in range(4): a(f"v_add_f32 v{8+k}, v{8+k}, v{12+k}")
    for k in range(4): a(f"v_mov_b32 v{12+k}, v{8+k}")
    for k in range(4): a(f"v_permlane16_swap_b32 v{8+k}, v{12+k}")
    for k in range(4): a(f"v_add_f32 v{8+k}, v{8+k}, v{12+k}")
    for k in range(4): a(f"v_and_or_b32 v{20+k}, v{8+k}, -2, v{TB[k]}")
    a("s_mov_b32 exec_lo, 0xffff"); a("s_mov_b32 exec_hi, 0xffff")
    a(f"buffer_store_dwordx4 v[20:23], v34, s[48:51], s14 offen {spol}")
    if diag:
        a("s_mov_b64 exec, -1")
        a("s_cmp_lg_u32 s3, 3"); a("s_cbranch_scc1 L_done")
        stamp(6); put_stamp(6, 48, 24)
        if not st0: put_stamp(5, 40, 24)
    a("s_endpgm")

    lab("L_notwo")
    if ctl:
        a("s_cmp_eq_u32 s3, 5"); a("s_cbranch_scc1 L_ctl")
    a(f"s_add_u32 s52, s48, {YOFF}"); a("s_addc_u32 s53, s49, 0"); a(f"s_mov_b32 s54, {28*2048}"); a("s_mov_b32 s55, 0x20000")
    a("s_add_u32 s28, s4, s39"); a("s_addc_u32 s29, s5, 0")
    a("s_add_u32 s56, s22, s39"); a("s_addc_u32 s57, s23, 0"); a("s_mov_b32 s58, 1024"); a("s_mov_b32 s59, 0x20000")
    a("v_lshrrev_b32 v32, 2, v2"); a("v_lshlrev_b32 v32, 11, v32"); a("v_and_b32 v33, 48, v1"); a("v_add_u32 v32, v32, v33")
    a("v_add_u32 v33, 0x8000, v32")
    a("v_lshlrev_b32 v34, 1, v1")
    a("s_lshl_b32 s14, s36, 11"); a("s_lshl_b32 s15, s36, 6")
    a("v_lshrrev_b32 v31, 1, v1"); a("v_and_b32 v31, 24, v31"); a("s_lshl_b32 s46, s36, 5"); a("v_add_u32 v31, s46, v31")
    def snap_gather():
        if nosnap:
            a("s_lshl_b32 s46, s37, 5"); a("v_mov_b32 v30, s46"); a("v_mov_b32 v29, 1")
            a("s_mov_b64 exec, 1"); a("global_atomic_add v30, v29, s[24:25] sc1"); a("s_mov_b64 exec, -1")
            return
        a(f"buffer_load_dwordx4 v[8:11], v32, s[48:51], s15 offen {snpol}")
        a(f"buffer_load_dwordx4 v[12:15], v33, s[48:51], s15 offen {snpol}")
        a(f"buffer_load_dwordx4 v[16:19], v32, s[52:55], s15 offen {snpol}")
        a(f"buffer_load_dwordx4 v[20:23], v33, s[52:55], s15 offen {snpol}")
        a("s_lshl_b32 s46, s37, 5"); a("v_mov_b32 v30, s46"); a("v_mov_b32 v29, 1")
        a("v_cmp_le_u32 vcc, 48, v2")
        a("s_waitcnt vmcnt(0)")
        a("s_mov_b64 exec, 1")
        a("global_atomic_add v30, v29, s[24:25] sc1")
        a("s_mov_b64 exec, -1")
        packbits(36, 8, 8, 24)
        packbits(37, 16, 8, 24)
        a("v_mov_b32 v24, 0xf0"); a("v_cndmask_b32 v24, 0, v24, vcc"); a("v_or_b32 v37, v37, v24")
    def snap_own():
        a(f"buffer_load_dwordx4 v[8:11], v34, s[52:55], s14 offen {snpol}")
        a(f"buffer_load_dwordx4 v[12:15], v34, s[52:55], s14 offen offset:16 {snpol}")
        a(f"buffer_load_dwordx2 v[26:27], v31, s[28:31], 0 offen {xpol}")
        if sno:
            a(f"buffer_load_dwordx4 v[16:19], v1, s[48:51], s14 offen {snpol}")
            a(f"buffer_load_dwordx4 v[20:23], v1, s[48:51], s14 offen offset:1024 {snpol}")
        a("s_waitcnt vmcnt(0)")
        packbits(35, 8, 8, 24)
        a("v_xor_b32 v35, 0xff, v35")
    if sno:
        snap_own()
        lds_poll("L_hq", 38, 4, 4, 39, 8)
        if SNAP: lds_poll("L_sw", 38, 0, SNAP, 39, 8)
        snap_gather()
    else:
        if SNAP: lds_poll("L_sw", 38, 0, SNAP, 39, 8)
        snap_gather()
        lds_poll("L_hq", 38, 4, 4, 39, 8)
        snap_own()
    a("s_cmp_ge_u32 s36, 28"); a("s_cbranch_scc1 L_noffn")
    if FF0: lds_poll("L_ff0", 38, 0, FF0, 39, 16)
    FA = 40; FREG = 56
    if not noffn:
        a("s_mov_b32 s28, s16"); a("s_mov_b32 s29, s17"); a("s_mov_b32 s30, 0x1c0000")
        a("s_mov_b32 s32, s18"); a("s_mov_b32 s33, s19"); a("s_mov_b32 s34, 0x1c0000")
        a("v_lshrrev_b32 v6, 3, v2"); a("v_and_b32 v7, 7, v2")
        a("s_mov_b32 s46, 229376"); a("v_mul_lo_u32 v8, v6, s46")
        a("v_lshl_add_u32 v8, v7, 4, v8"); a("s_lshl_b32 s46, s36, 7"); a("v_add_u32 v8, s46, v8")
        if wide:
            a("s_mov_b32 s46, 229376"); a("v_mul_lo_u32 v8, v3, s46"); a("v_lshl_add_u32 v8, v4, 4, v8")
            a("s_lshr_b32 s46, s36, 1"); a("s_lshl_b32 s46, s46, 8"); a("v_add_u32 v8, s46, v8")
            a("s_and_b32 s46, s36, 1"); a("s_mul_i32 s46, s46, 917504"); a("v_add_u32 v8, s46, v8")
        a("v_lshlrev_b32 v9, 7, v6"); a(f"v_add_u32 v9, {RING+XN}, v9")
        a("s_mov_b32 s40, 0")
        def issue_f(n):
            r = FREG + (n % 4) * 4; srd = 28 if n % 2 == 0 else 32
            so = "s40" if n < 4 else "s41"
            a(f"buffer_load_dwordx4 v[{r}:{r+3}], v8, s[{srd}:{srd+3}], {so} offen offset:{3584*((n%4)//2)} {wpol}")
        for n in range(FW): issue_f(n)
        a(f"s_mov_b32 s41, {0 if hitx else 7168}")
        a("ds_read_b32 v10, v9")
        for k in range(16): a(f"v_mov_b32 v{FA+k}, 0")
        a("s_mov_b32 s44, 31")
        def fbody(last):
            a("s_waitcnt lgkmcnt(0)")
            forms(10, 0, 12, 13); forms(10, 1, 14, 15)
            if not last:
                a("v_add_u32 v9, 4, v9"); a("ds_read_b32 v10, v9")
            for n in range(4):
                a(f"s_waitcnt vmcnt({FW-1 if not last else min(FW-1, 3-n)})")
                mac8(FA + 8 * (n % 2), FREG + n * 4, 12 + 2 * (n // 2), 13 + 2 * (n // 2))
                if not last or n + FW < 4: issue_f(n + FW)
            if not last:
                a("s_mov_b32 s40, s41"); a(f"s_add_u32 s41, s41, {0 if hitx else 7168}")
        lab("L_floop")
        fbody(False)
        a("s_sub_u32 s44, s44, 1"); a("s_cmp_lg_u32 s44, 0"); a("s_cbranch_scc1 L_floop")
        fbody(True)
        a("s_mov_b32 s28, s20"); a("s_mov_b32 s29, s21")
        a("s_lshl_b32 s40, s36, 16")
        a(f"s_add_u32 s41, s40, {0 if hitx else 4096}")
        def issue_d(n):
            r = FREG + (n % 4) * 4
            so = "s40" if n < 4 else "s41"
            a(f"buffer_load_dwordx4 v[{r}:{r+3}], v1, s[28:31], {so} offen offset:{(n%4)*1024} {wpol}")
        for n in range(FW): issue_d(n)
        a("v_and_b32 v14, 8, v2"); a("v_cmp_ne_u32 vcc, 0, v14")
        for acc in (FA, FA + 8):
            for k in range(4): a(f"v_permlane32_swap_b32 v{acc+k}, v{acc+4+k}")
            for k in range(4): a(f"v_add_f32 v{acc+k}, v{acc+k}, v{acc+4+k}")
            nop(1)
            a(f"v_permlane16_swap_b32 v{acc}, v{acc+2}"); a(f"v_permlane16_swap_b32 v{acc+1}, v{acc+3}")
            a(f"v_add_f32 v{acc}, v{acc}, v{acc+2}"); a(f"v_add_f32 v{acc+1}, v{acc+1}, v{acc+3}")
            nop(2)
            a(f"v_add_f32_dpp v{acc}, v{acc}, v{acc} row_ror:8 row_mask:0xf bank_mask:0xf")
            a(f"v_add_f32_dpp v{acc+1}, v{acc+1}, v{acc+1} row_ror:8 row_mask:0xf bank_mask:0xf")
            a(f"v_cndmask_b32 v{acc}, v{acc}, v{acc+1}, vcc")
        a(f"v_cvt_pk_bf16_f32 v14, v{FA}, v{FA+8}")
        a("v_lshlrev_b32 v15, 16, v14"); a("v_and_b32 v16, s43, v14")
        a("v_mul_f32 v17, v15, v15"); a("v_mul_f32 v17, v17, v15")
        a("v_mov_b32 v18, 0x3d372713"); a("v_fma_f32 v17, v17, v18, v15")
        a("v_mul_f32 v17, 0xc0135761, v17")
        a("v_exp_f32 v17, v17"); nop(1)
        a("v_add_f32 v17, 1.0, v17"); a("v_rcp_f32 v17, v17"); nop(1)
        a("v_mul_f32 v17, v15, v17")
        a("v_cvt_pk_bf16_f32 v17, v17, v17"); a("v_and_b32 v17, s43, v17")
        a("v_mul_f32 v17, v17, v16")
        a("v_cvt_pk_bf16_f32 v17, v17, v17")
        a("v_lshlrev_b32 v14, 4, v7")
        a("v_lshrrev_b32 v15, 5, v2"); a("v_lshl_add_u32 v14, v15, 3, v14")
        a("v_bfe_u32 v15, v2, 4, 1"); a("v_lshl_add_u32 v14, v15, 2, v14")
        a("v_bfe_u32 v15, v2, 3, 1"); a("v_lshl_add_u32 v14, v15, 1, v14")
        a(f"v_mov_b32 v9, {RING+HB}"); a("v_add_u32 v14, v9, v14")
        a("ds_write_b16 v14, v17")
        a("s_waitcnt lgkmcnt(0)")
        a("ds_read_b64 v[10:11], v9")
        for k in range(8): a(f"v_mov_b32 v{FA+k}, 0")
        a("s_mov_b32 s44, 15")
        def dbody(last):
            a("s_waitcnt lgkmcnt(0)")
            forms(10, 0, 12, 13); forms(10, 1, 14, 15); forms(11, 0, 16, 17); forms(11, 1, 18, 19)
            if not last:
                a("v_add_u32 v9, 8, v9"); a("ds_read_b64 v[10:11], v9")
            for n in range(4):
                a(f"s_waitcnt vmcnt({FW-1 if not last else min(FW-1, 3-n)})")
                mac8(FA, FREG + n * 4, 12 + 2 * n, 13 + 2 * n)
                if not last or n + FW < 4: issue_d(n + FW)
            if not last:
                a("s_mov_b32 s40, s41"); a(f"s_add_u32 s41, s41, {0 if hitx else 4096}")
        lab("L_dloop")
        dbody(False)
        a("s_sub_u32 s44, s44, 1"); a("s_cmp_lg_u32 s44, 0"); a("s_cbranch_scc1 L_dloop")
        dbody(True)
    for k in range(8): a(f"v_bfe_u32 v{8+k}, v35, {k}, 1")
    for k in range(8): a(f"v_and_or_b32 v{FA+k}, v{FA+k}, -2, v{8+k}")
    lab("L_noffn")
    if diag:
        stamp(4); put_stamp(4, 56, 12)
    lds_poll("L_mid", 38, 0, MID, 39, 32)
    if srdy:
        a("s_lshl_b32 s46, s37, 5"); a("s_load_dword s46, s[24:25], s46 glc"); a("s_waitcnt lgkmcnt(0)")
        a("s_cmp_ge_u32 s46, 32"); a("s_cbranch_scc1 L_rdy_ok")
    a("s_mov_b32 s47, 0x20000")
    a("s_mov_b64 exec, 1")
    lab("L_rdy")
    a(f"global_load_dword v13, v30, s[24:25] sc1")
    a("s_waitcnt vmcnt(0)")
    a("v_readfirstlane_b32 s46, v13")
    a("s_sub_u32 s47, s47, 1"); a("s_cmp_eq_u32 s47, 0"); a("s_cbranch_scc1 L_rdy_ok")
    a("s_cmp_ge_u32 s46, 32"); a("s_cbranch_scc1 L_rdy_ok")
    a("s_sleep 16"); a("s_branch L_rdy")
    lab("L_rdy_ok")
    a("s_mov_b64 exec, -1")
    a("v_lshlrev_b32 v24, 16, v26"); a("v_and_b32 v25, s43, v26"); a("v_lshlrev_b32 v26, 16, v27"); a("v_and_b32 v27, s43, v27")
    a("v_cmp_gt_u32 vcc, 32, v2"); a("v_and_b32 v12, 16, v2"); a("v_cmp_eq_u32 s[12:13], 0, v12")
    nop(1)
    a("v_cndmask_b32 v24, v26, v24, vcc"); a("v_cndmask_b32 v25, v27, v25, vcc")
    a("v_cndmask_b32 v24, v25, v24, s[12:13]")
    a("v_lshrrev_b32 v12, 5, v2"); a("v_lshl_add_u32 v31, v12, 2, v31"); a("v_bfe_u32 v12, v2, 4, 1"); a("v_lshl_add_u32 v31, v12, 1, v31")
    for k in range(8): a(f"v_bfe_u32 v{48+k}, v36, {k}, 1")
    for k in range(8): a(f"v_bfe_u32 v{56+k}, v37, {k}, 1")
    a("s_mov_b32 s47, 0x40000")
    lds_poll("L_yp", 38, 0, YP, 39, 2)
    if not noy & 1:
        a(f"buffer_store_dwordx4 v[{FA}:{FA+3}], v34, s[52:55], s14 offen {spol}")
        a(f"buffer_store_dwordx4 v[{FA+4}:{FA+7}], v34, s[52:55], s14 offen offset:16 {spol}")
    if YW: lds_poll("L_yw", 38, 0, 512, 39, 1)
    else: a("s_barrier")
    def pissue(b, srd):
        a(f"buffer_load_dwordx4 v[{b}:{b+3}], v32, s[{srd}:{srd+3}], s15 offen {gpol}")
        a(f"buffer_load_dwordx4 v[{b+4}:{b+7}], v33, s[{srd}:{srd+3}], s15 offen {gpol}")
    def pcheck(b, sn):
        a(f"v_xor_b32 v16, v{b}, v{sn}")
        for k in range(1, 8): a(f"v_bitop3_b32 v16, v16, v{b+k}, v{sn+k} bitop3:0x60")
        a("v_and_b32 v16, 1, v16")
        a("v_cmp_eq_u32 vcc, 0, v16")
    def reduce16(b):
        for k in range(8): a(f"v_and_b32 v{8+k}, -2, v{b+k}")
        for k in range(4): a(f"v_add_f32 v{8+k}, v{8+k}, v{12+k}")
        nop(1)
        a("v_permlane32_swap_b32 v8, v10"); a("v_permlane32_swap_b32 v9, v11")
        a("v_add_f32 v8, v8, v10"); a("v_add_f32 v9, v9, v11")
        nop(2)
        a("v_permlane16_swap_b32 v8, v9")
        a("v_add_f32 v8, v8, v9")
        nop(2)
        a("v_add_f32_dpp v8, v8, v8 row_ror:4 row_mask:0xf bank_mask:0xf")
        nop(2)
        a("v_add_f32_dpp v8, v8, v8 row_ror:8 row_mask:0xf bank_mask:0xf")
        a("v_cvt_pk_bf16_f32 v8, 0, v8")
    if YW:
        pissue(64, 52)
        a("s_barrier")
        a("s_branch L_gy1")
    if noy: a("s_branch L_gy_ok")
    lab("L_gy")
    pissue(64, 52)
    lab("L_gy1")
    a("s_waitcnt vmcnt(0)")
    pcheck(64, 56)
    a("s_sub_u32 s47, s47, 1"); a("s_cmp_eq_u32 s47, 0"); a("s_cbranch_scc1 L_gy_ok")
    a("s_and_b64 exec, exec, vcc")
    a("s_cbranch_scc1 L_gy")
    lab("L_gy_ok")
    a("s_mov_b64 exec, -1")
    if SE: pissue(72, 48)
    reduce16(64)
    a("v_mul_f32 v9, 0xbfb8aa3b, v8"); a("v_exp_f32 v9, v9"); nop(1)
    a("v_add_f32 v9, 1.0, v9"); a("v_rcp_f32 v9, v9"); nop(1)
    a("v_mul_f32 v8, v8, v9")
    a("v_cvt_pk_bf16_f32 v20, 0, v8")
    stamp(3)
    a("s_mov_b32 s47, 0x40000")
    if SE: a("s_branch L_gs1")
    lab("L_gs")
    pissue(72, 48)
    lab("L_gs1")
    a("s_waitcnt vmcnt(0)")
    pcheck(72, 48)
    a("s_sub_u32 s47, s47, 1"); a("s_cmp_eq_u32 s47, 0"); a("s_cbranch_scc1 L_gs_ok")
    a("s_and_b64 exec, exec, vcc")
    a("s_cbranch_scc1 L_gs")
    lab("L_gs_ok")
    a("s_mov_b64 exec, -1")
    reduce16(72)
    a("v_mul_f32 v8, v8, v20")
    a("v_cvt_pk_bf16_f32 v8, 0, v8")
    a("v_add_f32 v8, v8, v24")
    a("v_cvt_pk_bf16_f32 v8, v8, v8")
    a("s_mov_b32 exec_lo, 0x000f000f"); a("s_mov_b32 exec_hi, 0x000f000f")
    a("buffer_store_short v8, v31, s[56:59], 0 offen")
    if probe:
        a("s_waitcnt lgkmcnt(0)")
        a(f"s_add_u32 s60, s60, {probe * 100}")
        lab("L_probe"); a("s_memrealtime s[62:63]"); a("s_waitcnt lgkmcnt(0)"); a("s_sub_u32 s46, s62, s60"); a("s_cmp_lt_i32 s46, 0"); a("s_cbranch_scc1 L_probe")
    if diag:
        stamp(7)
        a("s_mov_b64 exec, -1")
        put_stamp(7, 8, 20)
        if not st0: put_stamp(3, 32, 20)
    lab("L_done")
    a("s_endpgm")
    if ctl:
        NCK = 62 // CKI
        lab("L_ctl")
        if vt:
            a("s_lshl_b32 s46, s37, 5"); a("s_add_u32 s46, s46, s36"); a("s_lshl_b32 s46, s46, 20")
            a("s_add_u32 s28, s8, s46"); a("s_addc_u32 s29, s9, 0"); a("s_mov_b32 s30, 0x100000")
            a("v_lshlrev_b32 v6, 16, v2")
            lds_poll("L_vt", 38, 0, vt, 39, 16)
            a("buffer_load_dword v9, v6, s[28:31], 0 offen nt")
        a("s_and_b32 s12, s2, 7"); a("s_lshr_b32 s13, s2, 3")
        a("s_lshl_b32 s46, s12, 12"); a(f"s_add_u32 s46, s46, {TOFF}")
        a("s_add_u32 s28, s26, s46"); a("s_addc_u32 s29, s27, 0"); a("s_mov_b32 s30, 4096")
        a(f"s_add_u32 s32, s26, {TOFF + 0x8000}"); a("s_addc_u32 s33, s27, 0"); a("s_mov_b32 s34, 4096")
        a("s_lshl_b32 s46, s13, 2"); a("v_mov_b32 v7, s46")
        a("s_lshl_b32 s46, s12, 2"); a("v_mov_b32 v6, s46")
        a(f"s_mov_b32 s44, {CKI * 8}")
        a("s_mov_b32 s40, 0")
        a("s_mov_b32 s50, 0"); a("s_mov_b32 s51, 0"); a("s_mov_b32 s56, 0"); a("v_mov_b32 v20, 0")
        if pk >= 0: a("s_mov_b32 s62, 0")
        a("s_mov_b64 exec, 1")
        lab("L_cl")
        lds_poll("L_cp", 38, 0, "s44", 39, 2)
        a("s_memrealtime s[48:49]")
        a("s_waitcnt lgkmcnt(0)")
        a("v_mov_b32 v8, s48")
        if not cab & 1: a("buffer_store_dword v8, v7, s[28:31], s40 offen")
        a("s_cmp_eq_u32 s40, 0"); a("s_cbranch_scc1 L_cnext")
        a("s_sub_u32 s41, s40, 128")
        if not cab & 2:
            a("s_load_dwordx16 s[64:79], s[28:29], s41")
            a("s_add_u32 s46, s41, 64")
            a("s_load_dwordx16 s[80:95], s[28:29], s46")
        a("s_cmp_eq_u32 s41, 0"); a("s_cbranch_scc1 L_cn2")
        a("s_sub_u32 s46, s41, 128")
        if not cab & 4: a("s_load_dwordx8 s[4:11], s[32:33], s46")
        lab("L_cn2")
        a("s_mov_b32 s52, 0"); a("s_mov_b32 s53, 0"); a("s_sub_u32 s54, s50, 2000")
        a("s_waitcnt lgkmcnt(0)")
        for t in range(32):
            a(f"s_sub_u32 s55, s{64+t}, s54"); a("s_cmp_lt_u32 s55, 4000")
            a("s_cselect_b32 s55, s55, 2000"); a("s_addc_u32 s53, s53, 0"); a("s_add_u32 s52, s52, s55")
        a("s_sub_u32 s52, s52, 64000")
        if miss:
            a("s_sub_u32 s55, s48, s50"); a("s_sub_u32 s58, 32, s53"); a("s_mul_i32 s55, s55, s58")
            a("s_cmp_ge_u32 s53, 12"); a("s_cselect_b32 s55, s55, 0"); a("s_cselect_b32 s53, 32, s53"); a("s_add_u32 s52, s52, s55")
        a("s_max_u32 s53, s53, 1")
        a("v_cvt_f32_i32 v11, s52"); a("v_cvt_f32_u32 v12, s53")
        a("v_rcp_f32 v12, v12")
        a("s_mov_b32 s52, 0"); a("s_mov_b32 s53, 0"); a("s_sub_u32 s54, s56, 2000")
        for t in range(8):
            a(f"s_sub_u32 s55, s{4+t}, s54"); a("s_cmp_lt_u32 s55, 4000")
            a("s_cselect_b32 s55, s55, 2000"); a("s_addc_u32 s53, s53, 0"); a("s_add_u32 s52, s52, s55")
        a("s_sub_u32 s52, s52, 16000"); a("s_max_u32 s53, s53, 1")
        a("v_mul_f32 v11, v11, v12")
        a("v_cvt_f32_i32 v13, s52"); a("v_cvt_f32_u32 v14, s53"); a("v_rcp_f32 v14, v14")
        a("v_cvt_i32_f32 v12, v11"); a("v_add_u32 v12, s50, v12")
        a("v_mul_f32 v13, v13, v14")
        a("v_readfirstlane_b32 s57, v12")
        if rl:
            a("s_lshr_b32 s46, s40, 7"); a("s_cmp_lg_u32 s13, s46")
        else:
            a("s_cmp_lg_u32 s13, 0")
        a("s_cbranch_scc1 L_cnl")
        if not cab & 8: a("buffer_store_dword v12, v6, s[32:35], s41 offen sc1")
        lab("L_cnl")
        a("s_sub_u32 s46, s48, s50"); a("s_sub_u32 s47, s57, s56"); a("s_cmp_eq_u32 s41, 0"); a("s_cselect_b32 s46, s46, s47")
        a("v_cvt_f32_i32 v14, s46"); a("v_rcp_f32 v14, v14")
        a("s_mov_b32 s56, s57")
        if GB:
            a(f"s_mov_b32 s58, {f2u(-G / 100.0)}"); a(f"s_mov_b32 s59, {f2u(-G2 / 100.0)}")
            a(f"s_cmp_gt_u32 s44, {TH2 * 8}"); a(f"s_cselect_b32 s58, {f2u(-GB / 100.0)}, s58"); a(f"s_cselect_b32 s59, {f2u(-GB2 / 100.0)}, s59")
            a("v_mul_f32 v11, s58, v11"); a("v_mul_f32 v13, s59, v13"); a("v_add_f32 v11, v11, v13")
        else:
            a(f"v_mul_f32 v11, {f2u(-G / 100.0)}, v11"); a(f"v_mul_f32 v13, {f2u(-G2 / 100.0)}, v13"); a("v_add_f32 v11, v11, v13")
        if LT: a(f"v_mul_f32 v15, {f2u(32.0 * CKI * LT * 16.0)}, v14")
        else: a(f"v_mov_b32 v15, {f2u(float(D16 or D * 16))}")
        a("v_mul_f32 v11, v11, v14")
        if AS != 100:
            a(f"v_mul_f32 v13, {f2u(AS / 100.0)}, v11"); a("v_max_f32 v11, v11, v13" if AS > 100 else "v_min_f32 v11, v11, v13")
        if KI:
            a(f"v_mul_f32 v13, {f2u(KI / 100.0)}, v11"); a("v_add_f32 v20, v20, v13")
            a("v_add_f32 v11, v11, v20")
        a("v_fma_f32 v15, v15, v11, v15")
        a(f"v_max_f32 v15, {f2u(DMIN * 16.0)}, v15"); a(f"v_min_f32 v15, {f2u(DMAX * 16.0)}, v15")
        a("v_cvt_u32_f32 v15, v15")
        a("ds_write_b32 v38, v15 offset:12")
        lab("L_cnext")
        if pk >= 0:
            a(f"s_cmp_eq_u32 s40, {pk * 128}"); a("s_cselect_b32 s62, s48, s62")
        a("s_mov_b32 s50, s48")
        if TH2:
            a(f"s_cmp_ge_u32 s44, {TH2 * 8}"); a(f"s_cselect_b32 s46, {CK2 * 8}, {CKI * 8}"); a("s_add_u32 s44, s44, s46")
        else:
            a(f"s_add_u32 s44, s44, {CKI * 8}")
        a("s_add_u32 s40, s40, 128")
        a(f"s_cmp_le_u32 s44, {LAST * 8}")
        a("s_cbranch_scc1 L_cl")
        if pk >= 0:
            a("s_cmp_lg_u32 s2, 77"); a("s_cbranch_scc1 L_done")
            a("s_sub_u32 s62, s62, s60"); a(f"s_sub_u32 s62, s62, {px0 * 100}"); a("s_mul_i32 s62, s62, 10")
            a("s_add_u32 s62, s62, s60"); a("s_add_u32 s62, s62, 10000")
            lab("L_pk_"); a("s_memrealtime s[48:49]"); a("s_waitcnt lgkmcnt(0)"); a("s_sub_u32 s46, s48, s62"); a("s_cmp_lt_i32 s46, 0"); a("s_cbranch_scc1 L_pk_")
        a("s_endpgm")
    L.append(".p2align 10")
    lab("L_end")
    L.append('.section .rodata,"a"'); L.append(".p2align 6"); L.append(f".amdhsa_kernel {KN}")
    a(".amdhsa_next_free_vgpr 168"); a(".amdhsa_next_free_sgpr 96"); a(".amdhsa_accum_offset 168")
    a(".amdhsa_group_segment_fixed_size 0"); a(".amdhsa_kernarg_size 96"); a(".amdhsa_user_sgpr_count 2")
    a(".amdhsa_user_sgpr_kernarg_segment_ptr 1"); a(".amdhsa_system_sgpr_workgroup_id_x 1")
    a(".amdhsa_float_denorm_mode_32 3")
    L.append(".end_amdhsa_kernel")
    return "\n".join(L) + "\n"

if __name__ == "__main__":
    for spec in sys.argv[1:]:
        out, _, kvs = spec.partition(":")
        kw = {}
        if kvs:
            for kv in kvs.split(","):
                k, v = kv.split("=")
                kw[k] = int(v) if v.lstrip("-").isdigit() else v.replace("+", " ")
        open(out, "w").write(gen(**kw))
```

```python
import sys, struct
KN = "recurrent_scan__mha_block_cached__geglu_ffn__decode_kernel"
HEADER = open("recurrent_scan__mha_block_cached__geglu_ffn__decode.s.ref").read().split("; Override launch")[0]

XN, QP, SP, ML, CT, OB, HB, SC = 0, 1024, 1024, 3072, 3136, 3328, 4352, 4608
MISC = 4608 + 8192
YOFF = 0x80000
TOFF = 0x100000
STOFF = 0x30000000
LOG2E = 0x3fb8aa3b
SCALE = 0x3db504f3
f2u = lambda x: hex(struct.unpack("<I", struct.pack("<f", x))[0])

DOC = '''; ---------------------------------------------------------------------------------------------------------
; ---------------------------------------------------------------------------------------------------------'''

def gen(D=20, D1=0, FW=3, WOS=90, WO0=80, WQWIN=6, WOWIN=2, wpol="", diag=0, kvpol="nt", noffn=0, nowo=0, noq=0,
        MID=440, YP=506, prog=0, NSLOT=18, xpol="", gpol="sc1", spol="sc1", snpol="sc1", pfpol="", SNAP=0,
        ctl=1, DMIN=13, DMAX=28, CKI=4, LT=0, G=50, G2=50, pf=1, lprio=3, gsl=0, vpol=None, hitx=0, wide=0, mpf=1, PF0=0, PFW=4, FF0=70, pp=0, YG=0, csl=1, sno=0, KI=0, DE=28, NE=1, nosnap=0, fast=1, csl1=1, bc=1, ft=1, cont=0, own=2, nolds=0, opol='', D16=316, TH2=48, CK2=2, LAST=62, DS=3, msk=1, DI=0, N1=0, wqhit=0, wqbg=0, miss=0, GB=0, GB2=0, cab=0, rl=1, tprio=0, dr=1, SE=1, YW=0, st0=0, cb=0, lb=-1, WQ0=12, noy=0, AS=65, probe=0, NB=0, DB=28, TB_=0, srdy=0, pk=-1, px0=0, vt=0, tpol='', pad=0, qpol=None, mpol='', rot=1):
    L = []
    RING = NSLOT * 8192
    LDS_BYTES = RING + MISC
    assert LDS_BYTES <= 163840
    def a(s): L.append(("  " + s).rstrip())
    def lab(s): L.append(s + ":")
    def nop(n): a(f"s_nop {n-1}")
    def stamp(i):
        if diag: a(f"s_memrealtime s[{60+2*i}:{61+2*i}]")
    def put_stamp(i, off, vt):
        a("s_waitcnt lgkmcnt(0)")
        a("s_lshl_b32 s45, s2, 6"); a(f"s_add_u32 s45, s45, {STOFF}"); a(f"v_mov_b32 v{vt+2}, s45")
        a(f"v_mov_b32 v{vt}, s{60+2*i}"); a(f"v_mov_b32 v{vt+1}, s{61+2*i}")
        a("s_mov_b64 exec, 1")
        a(f"global_store_dwordx2 v{vt+2}, v[{vt}:{vt+1}], s[26:27] offset:{off}")
        a("s_mov_b64 exec, -1")
        nop(2)
    L.append(HEADER.rstrip("\n"))
    L.append(f"; @launch grid=(256,1,1) block=({704 if ctl else 640},1,1) lds={LDS_BYTES}")
    L.append(DOC)
    L.append('.amdgcn_target "amdgcn-amd-amdhsa--gfx950"')
    L.append(".text"); L.append(f".globl {KN}"); L.append(".p2align 8"); L.append(f".type {KN},@function"); lab(KN)
    a("s_cmp_ge_u32 s2, 256")
    a("s_cbranch_scc1 L_done")
    a("s_load_dwordx8 s[4:11], s[0:1], 0")
    stamp(0)
    if probe or pk >= 0: a("s_memrealtime s[60:61]")
    a("v_lshrrev_b32 v1, 6, v0")
    a("v_and_b32 v2, 63, v0")
    a("v_readfirstlane_b32 s3, v1")
    a("v_lshlrev_b32 v1, 4, v2")
    a("s_and_b32 s36, s2, 7")
    a("s_lshl_b32 s36, s36, 2")
    a("s_bfe_u32 s37, s2, 0x20003")
    a("s_add_u32 s36, s36, s37")
    a("s_lshr_b32 s37, s2, 5")
    a("s_cmp_lg_u32 s3, 0")
    a("s_cbranch_scc1 L_notloader")

    L.append("; ======== loader")
    if lprio: a(f"s_setprio {lprio}")
    a("s_lshl_b32 s38, s37, 5"); a("s_add_u32 s38, s38, s36"); a("s_lshl_b32 s38, s38, 20")
    a("s_mov_b32 s30, 0x100000"); a("s_mov_b32 s31, 0x20000")
    a("s_mov_b32 s40, 0"); a("s_mov_b32 s41, 0")
    def lds_init():
        a(f"v_mov_b32 v3, {RING+CT}")
        a("v_lshl_add_u32 v4, v2, 2, v3"); a("v_mov_b32 v5, 0")
        a("s_mov_b64 exec, 0xff")
        a("ds_write_b32 v4, v5")
        a("s_mov_b64 exec, -1")
        a(f"v_mov_b32 v8, {D16 or D * 16}"); a("ds_write_b32 v3, v8 offset:12")
    if not fast: lds_init()
    a("s_mov_b32 m0, 0")
    a("s_waitcnt lgkmcnt(0)")
    if st0: a("s_memrealtime s[66:67]")
    a("s_add_u32 s28, s6, s38"); a("s_addc_u32 s29, s7, 0"); a("s_add_u32 s32, s8, s38"); a("s_addc_u32 s33, s9, 0")
    def publish(k):
        a(f"v_add_u32 v5, {k}, v7"); a("ds_write_b32 v3, v5")
    def ld_step(m, Dw, first=False, kvpol=kvpol):
        j = m & 7
        if j == 0 and not (first and m == 0): a("s_mov_b32 m0, s41")
        if j == 4: a("s_add_u32 m0, s41, 4096")
        waited = not (first and m < Dw)
        if waited: a(f"s_waitcnt vmcnt({Dw-1})")
        elif j in (0, 4) and m: nop(1)
        a(f"buffer_load_dwordx4 v1, s[28:31], s40 offen offset:{(j&3)*1024} {kvpol} lds")
        if waited and (m - Dw + 1) % 4 == 0: publish((m - Dw + 1) // 4)
        if j == 3: a("s_add_u32 s40, s40, 4096")
        if j == 7:
            a("s_add_u32 s40, s40, 4096"); a("s_add_u32 s41, s41, 8192")
            a(f"s_cmp_eq_u32 s41, {RING}"); a("s_cselect_b32 s41, 0, s41")
    Dfirst = D1 if D1 else D
    a("v_mov_b32 v7, 0")
    if prog: a("v_mov_b32 v10, 0"); a("v_mov_b32 v11, 0")
    for m in range(32):
        ld_step(m, Dfirst, first=True)
        if st0 and m == Dfirst - 1: a("s_memrealtime s[68:69]")
        if st0 and m == Dfirst: a("s_memrealtime s[70:71]")
        if m == (lb if lb >= 0 else Dfirst - 1 if fast else 7):
            if fast:
                lds_init(); a("s_waitcnt lgkmcnt(0)")
            a("s_barrier")
    def fw(w): return (w - NSLOT) % 4
    def fo(w): return (w - NSLOT) // 4 + 1
    a("s_mov_b32 s44, 0")
    a(f"s_mov_b32 s47, {8 * DS}")
    a(f"ds_read_b32 v6, v3 offset:{16 + 4 * fw(0)}")
    a("ds_read_b32 v8, v3 offset:12")
    Ds = list(range(DMIN, DMAX + 1, DS)) if ctl else [D]
    DMAX = max(Ds)
    def slow(lbl, w, back):
        lab(lbl)
        a("s_sleep 1")
        a(f"ds_read_b32 v6, v3 offset:{16 + 4 * fw(w)}")
        a("s_waitcnt lgkmcnt(0)")
        a("v_readfirstlane_b32 s45, v6")
        a(f"s_sub_i32 s45, s45, {fo(w)}")
        a("s_cmp_ge_i32 s45, s44")
        a(f"s_cbranch_scc0 {lbl}")
        a(f"s_branch {back}")
    lab("L_disp")
    a("v_add_u32 v7, 8, v7")
    a("s_add_u32 s44, s44, 1")
    a("s_cmp_eq_u32 s44, 64")
    a("s_cbranch_scc1 L_drain")
    a("s_cmp_eq_u32 s44, 32")
    a("s_cselect_b32 s28, s32, s28"); a("s_cselect_b32 s29, s33, s29"); a("s_cselect_b32 s40, 0, s40")
    if prog: a("s_memrealtime s[76:77]")
    a("s_waitcnt lgkmcnt(0)")
    a("v_readfirstlane_b32 s45, v6")
    a("v_readfirstlane_b32 s46, v8")
    if prog:
        a("s_mov_b32 m0, s44"); nop(4); a("v_writelane_b32 v10, s76, m0"); a("v_writelane_b32 v11, s46, m0")
    a(f"s_sub_i32 s45, s45, {fo(0)}")
    a("s_cmp_ge_i32 s45, s44")
    a("s_cbranch_scc0 L_lslow_0")
    lab("L_lfree_0")
    if ctl:
        if N1:
            a(f"s_cmp_lt_u32 s44, {N1}"); a(f"s_cselect_b32 s46, {DI * 16}, s46")
        a("s_add_i32 s47, s47, s46")
        def casc(lst):
            if len(lst) == 1:
                a(f"s_branch L_c{lst[0]}"); return
            mid = len(lst) // 2
            a(f"s_cmp_ge_i32 s47, {lst[mid] * 16}")
            if len(lst) - mid == 1:
                a(f"s_cbranch_scc1 L_c{lst[mid]}")
                casc(lst[:mid])
            else:
                l2 = f"L_k{lst[mid]}_{len(lst)}"
                a(f"s_cbranch_scc1 {l2}")
                casc(lst[:mid]); lab(l2); casc(lst[mid:])
        if vpol is not None:
            a("s_cmp_ge_u32 s44, 32"); a("s_cbranch_scc1 L_vc")
        if NB:
            a(f"s_cmp_lt_u32 s44, {64 - NB}"); a("s_cbranch_scc1 L_nb")
            a(f"s_cmp_ge_u32 s46, {D16 + TB_}"); a(f"s_cbranch_scc1 L_c{DB}")
            lab("L_nb")
        if DE:
            a(f"s_cmp_ge_u32 s44, {64 - NE}"); a(f"s_cbranch_scc1 L_c{DE}")
        casc(Ds)
        if DE and DE not in Ds: Ds = Ds + [DE]
        if NB and DB not in Ds: Ds = Ds + [DB]
    if vpol is not None:
        lab("L_vc")
        for w in range(4):
            if w:
                a("s_waitcnt lgkmcnt(0)")
                a("v_readfirstlane_b32 s45, v6")
                a(f"s_sub_i32 s45, s45, {fo(w)}")
                a("s_cmp_ge_i32 s45, s44")
                a(f"s_cbranch_scc0 L_vslow_{w}")
                lab(f"L_vfree_{w}")
            for j in range(8):
                ld_step(8 * w + j, D, kvpol=vpol)
                if j == 4:
                    a(f"ds_read_b32 v6, v3 offset:{16 + 4 * fw((w + 1) & 3)}")
                    if w == 3: a("ds_read_b32 v8, v3 offset:12")
        a("s_branch L_disp")
        for w in range(1, 4): slow(f"L_vslow_{w}", w, f"L_vfree_{w}")
    for Dw in Ds:
        npub = sum(1 for j in range(5, 8) if (j - Dw + 1) % 4 == 0)
        lab(f"L_c{Dw}")
        if ctl: a(f"s_sub_i32 s47, s47, {Dw * 16}")
        for w in range(4):
            if w:
                a(f"s_waitcnt lgkmcnt({npub})")
                a("v_readfirstlane_b32 s45, v6")
                a(f"s_sub_i32 s45, s45, {fo(w)}")
                a("s_cmp_ge_i32 s45, s44")
                a(f"s_cbranch_scc0 L_lslow{Dw}_{w}")
                lab(f"L_lfree{Dw}_{w}")
            for j in range(8):
                ld_step(8 * w + j, Dw)
                if j == 4:
                    a(f"ds_read_b32 v6, v3 offset:{16 + 4 * fw((w + 1) & 3)}")
                    if w == 3: a("ds_read_b32 v8, v3 offset:12")
        a("s_branch L_disp")
    slow("L_lslow_0", 0, "L_lfree_0")
    for Dw in Ds:
        for w in range(1, 4): slow(f"L_lslow{Dw}_{w}", w, f"L_lfree{Dw}_{w}")
    lab("L_drain")
    for r in range((max(Ds) - 1) // 4 * 4, -1, -4):
        if dr:
            a(f"v_add_u32 v5, {-(r // 4)}, v7"); a(f"s_waitcnt vmcnt({r})"); a("ds_write_b32 v3, v5")
        else:
            a(f"s_waitcnt vmcnt({r})"); publish(-(r // 4))
    if diag:
        stamp(2)
        a("s_load_dwordx2 s[26:27], s[0:1], 88")
        if prog:
            a("s_waitcnt lgkmcnt(0)")
            a("v_writelane_b32 v10, s64, 0")
            a("s_lshl_b32 s45, s2, 8"); a(f"s_add_u32 s45, s45, {STOFF + 0x4000}"); a("v_lshrrev_b32 v9, 2, v1"); a("v_add_u32 v9, s45, v9")
            a("global_store_dword v9, v10, s[26:27]")
            a("v_add_u32 v9, 0x10000, v9")
            a("global_store_dword v9, v11, s[26:27]")
        put_stamp(0, 0, 12); put_stamp(2, 24, 12)
        if st0:
            put_stamp(3, 16, 12); put_stamp(4, 32, 12); put_stamp(5, 40, 12)
    a("s_endpgm")

    def wave_allsum(r, t):
        for ro in (8, 4, 2, 1):
            nop(2)
            a(f"v_add_f32_dpp v{r}, v{r}, v{r} row_ror:{ro} row_mask:0xf bank_mask:0xf")
        a(f"v_mov_b32 v{t}, v{r}"); nop(2)
        a(f"v_permlane16_swap_b32 v{r}, v{t}"); a(f"v_add_f32 v{r}, v{r}, v{t}"); a(f"v_mov_b32 v{t}, v{r}"); nop(2)
        a(f"v_permlane32_swap_b32 v{r}, v{t}"); a(f"v_add_f32 v{r}, v{r}, v{t}")
    def layernorm(hook):
        for k in range(4):
            a(f"v_lshlrev_b32 v{12+2*k}, 16, v{8+k}"); a(f"v_and_b32 v{13+2*k}, s43, v{8+k}")
        a("v_add_f32 v20, v12, v13"); a("v_add_f32 v21, v14, v15"); a("v_add_f32 v22, v16, v17"); a("v_add_f32 v23, v18, v19")
        a("v_add_f32 v20, v20, v21"); a("v_add_f32 v22, v22, v23"); a("v_add_f32 v20, v20, v22")
        wave_allsum(20, 21); hook()
        a("v_mul_f32 v20, 0x3b000000, v20")
        a("v_mov_b32 v22, 0")
        for k in range(8):
            a(f"v_sub_f32 v21, v{12+k}, v20"); a("v_fmac_f32 v22, v21, v21")
        hook(); wave_allsum(22, 21); hook()
        a("v_mul_f32 v22, 0x3b000000, v22")
        a("v_cvt_pk_bf16_f32 v20, v20, v22")
        a("v_and_b32 v22, s43, v20"); a("v_lshlrev_b32 v20, 16, v20")
        a("v_add_f32 v22, 0x3727c5ac, v22")
        a("v_cvt_pk_bf16_f32 v22, v22, v22"); a("v_and_b32 v22, s43, v22")
        a("v_sqrt_f32 v22, v22"); nop(1)
        a("v_cvt_pk_bf16_f32 v22, v22, v22"); a("v_and_b32 v22, s43, v22")
        a("v_rcp_f32 v22, v22"); hook()
        for k in range(8): a(f"v_sub_f32 v{12+k}, v{12+k}, v20")
        for k in range(4): a(f"v_cvt_pk_bf16_f32 v{8+k}, v{12+2*k}, v{13+2*k}")
        for k in range(4):
            a(f"v_lshlrev_b32 v{12+2*k}, 16, v{8+k}"); a(f"v_and_b32 v{13+2*k}, s43, v{8+k}")
        for k in range(8): a(f"v_mul_f32 v{12+k}, v22, v{12+k}")
        for k in range(4): a(f"v_cvt_pk_bf16_f32 v{8+k}, v{12+2*k}, v{13+2*k}")
    def forms(pair, odd, lo, hi):
        if not odd:
            a(f"v_and_b32 v{lo}, 0xffff, v{pair}"); a(f"v_lshlrev_b32 v{hi}, 16, v{pair}")
        else:
            a(f"v_lshrrev_b32 v{lo}, 16, v{pair}"); a(f"v_and_b32 v{hi}, s43, v{pair}")
    def mac8(acc, w, lo, hi):
        for d in range(4):
            a(f"v_dot2c_f32_bf16 v{acc+2*d}, v{w+d}, v{lo}")
            a(f"v_dot2c_f32_bf16 v{acc+2*d+1}, v{w+d}, v{hi}")
    def lds_poll(lbl, addr, off, tgt, vt, sleep):
        lab(lbl)
        a(f"ds_read_b32 v{vt}, v{addr} offset:{off}")
        a("s_waitcnt lgkmcnt(0)")
        a(f"v_readfirstlane_b32 s45, v{vt}")
        a(f"s_cmp_ge_u32 s45, {tgt}")
        a(f"s_cbranch_scc1 {lbl}_ok")
        if sleep: a(f"s_sleep {sleep}")
        a(f"s_branch {lbl}")
        lab(lbl + "_ok")
    def packbits(dst, src, n, t):
        a(f"v_and_b32 v{dst}, 1, v{src}")
        for k in range(1, n):
            a(f"v_and_b32 v{t}, 1, v{src+k}"); a(f"v_lshl_or_b32 v{dst}, v{t}, {k}, v{dst}")
    WREG = 40

    lab("L_notloader")
    a("v_lshrrev_b32 v3, 4, v2")
    a("v_and_b32 v4, 15, v2")
    a("s_mov_b32 s43, 0xffff0000")
    a("s_mov_b32 s42, " + hex(LOG2E))
    a("s_lshl_b32 s39, s37, 10")
    a("s_mov_b32 s30, 1024"); a("s_mov_b32 s31, 0x20000"); a("s_mov_b32 s35, 0x20000")
    a("s_cmp_ge_u32 s3, 5")
    a("s_cbranch_scc1 L_helper")

    a("s_sub_u32 s3, s3, 1")
    a("s_lshl_b32 s38, s3, 20"); a("s_lshl_b32 s46, s36, 8"); a("s_add_u32 s38, s38, s46")
    a("v_lshlrev_b32 v5, 18, v3"); a("v_lshl_add_u32 v5, v4, 4, v5"); a("v_add_u32 v5, s38, v5")
    a("s_mov_b32 s34, 0x400000")
    a("s_lshl_b32 s40, s37, 15")
    a("s_waitcnt lgkmcnt(0)")
    a("s_add_u32 s28, s4, s39"); a("s_addc_u32 s29, s5, 0")
    a("s_mov_b32 s32, s10"); a("s_mov_b32 s33, s11")
    a(f"buffer_load_dwordx4 v[8:11], v1, s[28:31], 0 offen {xpol}")
    wq = {"issued": 0}
    def issue_wq(window=True):
        i = wq["issued"]
        if i >= 32 or noq: return
        if window: a(f"s_waitcnt vmcnt({WQWIN-1})")
        r = WREG + i * 4
        a(f"buffer_load_dwordx4 v[{r}:{r+3}], v5, s[32:35], s40 offen {wpol if qpol is None else qpol}")
        a(f"s_add_u32 s40, s40, {0 if wqhit == 1 else 0x2000}")
        if i % 4 == 3: a(f"s_and_b32 s40, s40, {0x3ffff if wqhit != 2 else 0}")
        wq["issued"] += 1
    if cb: a("s_barrier")
    for i in range(WQ0 or WQWIN): issue_wq(False)
    if not cb: a("s_barrier")
    a(f"s_waitcnt vmcnt({(WQ0 or WQWIN) if not noq else 0})")
    layernorm(issue_wq)
    a(f"s_mov_b32 s45, {RING+XN}")
    a("v_add_u32 v6, s45, v1")
    a("ds_write_b128 v6, v[8:11]")
    issue_wq()
    a("s_lshl_b32 s46, s3, 8"); a("s_add_u32 s46, s46, s45")
    a("v_lshlrev_b32 v7, 6, v3"); a("v_add_u32 v7, s46, v7")
    a("s_waitcnt lgkmcnt(0)")
    for k in range(8):
        a(f"s_add_u32 s46, s37, {k}"); a("s_and_b32 s46, s46, 7"); a("s_lshl_b32 s46, s46, 3")
        a("v_add_u32 v12, s46, v7")
        a(f"ds_read_b64 v[{16+2*k}:{17+2*k}], v12")
    for k in range(8): a(f"v_mov_b32 v{32+k}, 0")
    a("s_waitcnt lgkmcnt(0)")
    for i in range(32 if not noq else 0):
        forms(16 + i // 2, i & 1, 12, 13)
        if wq["issued"] < 32: issue_wq()
        else: a(f"s_waitcnt vmcnt({31 - i})")
        mac8(32, WREG + i * 4, 12, 13)
    a("v_lshlrev_b32 v7, 5, v4")
    a(f"v_add_u32 v7, {RING}, v7")
    a("v_lshl_add_u32 v6, v3, 2, v7")
    a("s_lshl_b32 s46, s3, 9"); a("v_add_u32 v6, s46, v6")
    for k in range(4): a(f"v_permlane16_swap_b32 v{32+2*k}, v{33+2*k}")
    for k in range(4): a(f"v_add_f32 v{32+2*k}, v{32+2*k}, v{33+2*k}")
    a("v_mov_b32 v39, 1")
    a("v_permlane32_swap_b32 v32, v34"); a("v_permlane32_swap_b32 v36, v38")
    a("v_add_f32 v32, v32, v34"); a("v_add_f32 v36, v36, v38")
    a(f"ds_write_b32 v6, v32 offset:{QP}"); a(f"ds_write_b32 v6, v36 offset:{QP+16}")
    a(f"v_mov_b32 v38, {RING+CT}")
    a("s_waitcnt lgkmcnt(0)")
    a("s_mov_b64 exec, 1")
    a("ds_add_u32 v38, v39 offset:4")
    a("s_mov_b64 exec, -1")
    lds_poll("L_qw", 38, 4, 4, 39, 1)
    for w in range(4):
        a(f"ds_read_b128 v[{40+w*8}:{43+w*8}], v7 offset:{QP+w*512}")
        a(f"ds_read_b128 v[{44+w*8}:{47+w*8}], v7 offset:{QP+w*512+16}")
    a("s_mov_b32 s41, " + hex(SCALE))
    a("v_mov_b32 v16, 0xff800000")
    a("s_lshl_b32 s44, s3, 13"); a("v_add_u32 v36, s44, v1")
    a("s_lshl_b32 s46, s3, 2"); a("v_add_u32 v37, s46, v38")
    a("s_lshl_b32 s47, s3, 1"); a("s_add_u32 s47, s47, 1")
    a("v_mov_b32 v27, 0")
    a("s_lshl_b32 s40, s3, 11"); a(f"s_add_u32 s40, s40, {RING+SC}")
    a("v_lshlrev_b32 v17, 4, v3"); a("v_add_u32 v17, s40, v17")
    a("v_and_b32 v5, 14, v4"); a("v_add_u32 v5, v5, v17")
    a("v_and_b32 v26, 2, v2"); a("v_cmp_ne_u32 vcc, 0, v26")
    a("s_waitcnt lgkmcnt(4)")
    for k in range(8): a(f"v_add_f32 v{40+k}, v{40+k}, v{48+k}")
    a("s_waitcnt lgkmcnt(0)")
    for k in range(8): a(f"v_add_f32 v{56+k}, v{56+k}, v{64+k}")
    for k in range(8): a(f"v_add_f32 v{40+k}, v{40+k}, v{56+k}")
    for k in range(4): a(f"v_cvt_pk_bf16_f32 v{72+k}, v{40+2*k}, v{41+2*k}")
    stamp(1)
    Q = 72; DR = 40
    S = list(range(18, 26))
    def half2(lbl):
        a("s_cmp_gt_u32 s45, s47")
        a(f"s_cbranch_scc1 {lbl}_ok")
        a("s_add_u32 s46, s47, 1")
        lds_poll(lbl, 38, 0, "s46", 39, csl)
        for j in range(4, 8 if not nolds else 4): a(f"ds_read_b128 v[{DR+4*j}:{DR+4*j+3}], v36 offset:{j*1024}")
        a("v_add_u32 v27, 1, v27")
        a("s_add_u32 s44, s44, 0x8000"); a(f"s_sub_u32 s46, s44, {RING}"); a("s_cselect_b32 s44, s44, s46")
        a("v_add_u32 v36, s44, v1")
        a("s_add_u32 s47, s47, 8")
    lab("L_kloop")
    lds_poll("L_pk", 38, 0, "s47", 39, csl1)
    for j in range(4 if not nolds else 0): a(f"ds_read_b128 v[{DR+4*j}:{DR+4*j+3}], v36 offset:{j*1024}")
    for j in range(8): a(f"v_mov_b32 v{S[j]}, 0")
    for j in range(4):
        a(f"s_waitcnt lgkmcnt({3-j})")
        for d in range(4): a(f"v_dot2c_f32_bf16 v{S[j]}, v{DR+4*j+d}, v{Q+d}")
    half2("L_pk2")
    for j in range(4, 8):
        a(f"s_waitcnt lgkmcnt({7-j})")
        if j == 7: a("ds_write_b32 v37, v27 offset:16")
        for d in range(4): a(f"v_dot2c_f32_bf16 v{S[j]}, v{DR+4*j+d}, v{Q+d}")
    for j in range(4): a(f"v_add_f32_dpp v{S[j]}, v{S[j]}, v{S[j]} row_ror:8 row_mask:0xf bank_mask:0x3")
    for j in range(4): a(f"v_add_f32_dpp v{S[j]}, v{S[j+4]}, v{S[j+4]} row_ror:8 row_mask:0xf bank_mask:0xc")
    for j in range(2): a(f"v_add_f32_dpp v{S[j]}, v{S[j]}, v{S[j]} row_ror:12 row_mask:0xf bank_mask:0x5")
    nop(1)
    for j in range(2): a(f"v_add_f32_dpp v{S[j]}, v{S[j+2]}, v{S[j+2]} row_ror:4 row_mask:0xf bank_mask:0xa")
    nop(1)
    for j in range(2): a(f"v_add_f32_dpp v{S[j]}, v{S[j]}, v{S[j]} quad_perm:[2,3,0,1] row_mask:0xf bank_mask:0xf")
    a(f"v_cndmask_b32 v{S[2]}, v{S[0]}, v{S[1]}, vcc")
    nop(2)
    a(f"v_add_f32_dpp v{S[2]}, v{S[2]}, v{S[2]} quad_perm:[1,0,3,2] row_mask:0xf bank_mask:0xf")
    a(f"v_cvt_pk_bf16_f32 v{S[2]}, 0, v{S[2]}")
    a(f"v_mul_f32 v{S[2]}, s41, v{S[2]}")
    a(f"v_cvt_pk_bf16_f32 v{S[2]}, v{S[2]}, v{S[2]}")
    a(f"ds_write_b16 v5, v{S[2]}")
    a(f"v_and_b32 v{S[3]}, s43, v{S[2]}")
    a(f"v_max_f32 v16, v16, v{S[3]}")
    a("v_add_u32 v5, 64, v5")
    a("s_cmp_lt_u32 s47, 256")
    a("s_cbranch_scc1 L_kloop")
    a("v_lshlrev_b32 v5, 1, v1"); a("v_add_u32 v5, s40, v5")
    a("s_waitcnt lgkmcnt(0)")
    a("ds_read_b128 v[40:43], v5"); a("ds_read_b128 v[44:47], v5 offset:16")
    for ro in (8, 4, 2, 1):
        a(f"v_max_f32_dpp v16, v16, v16 row_ror:{ro} row_mask:0xf bank_mask:0xf"); nop(2)
    a("v_mov_b32 v18, v16"); nop(2)
    a("v_permlane16_swap_b32 v16, v18"); a("v_max_f32 v16, v16, v18"); a("v_mov_b32 v18, v16"); nop(2)
    a("v_permlane32_swap_b32 v16, v18"); a("v_max_f32 v16, v16, v18")
    a("v_mul_f32 v18, s42, v16")
    a("s_waitcnt lgkmcnt(0)")
    for k in range(8):
        a(f"v_lshlrev_b32 v{48+2*k}, 16, v{40+k}"); a(f"v_and_b32 v{49+2*k}, s43, v{40+k}")
    for k in range(16): a(f"v_fma_f32 v{48+k}, v{48+k}, s42, -v18")
    for k in range(16): a(f"v_exp_f32 v{48+k}, v{48+k}")
    a("v_add_f32 v19, v48, v49"); a("v_add_f32 v20, v50, v51")
    for k in range(4, 16, 2):
        a(f"v_add_f32 v19, v19, v{48+k}"); a(f"v_add_f32 v20, v20, v{49+k}")
    a("v_add_f32 v19, v19, v20")
    wave_allsum(19, 20)
    a(f"v_subrev_u32 v21, {CT-ML}, v37")
    a("ds_write_b32 v21, v16"); a("ds_write_b32 v21, v19 offset:16")
    a("v_mov_b32 v39, 1")
    a("s_waitcnt lgkmcnt(0)")
    a("s_mov_b64 exec, 1")
    a("ds_add_u32 v38, v39 offset:8")
    a("s_mov_b64 exec, -1")
    lds_poll("L_mw", 38, 8, 4, 39, 1)
    a(f"v_subrev_u32 v21, {CT-ML}, v38")
    a("ds_read_b128 v[8:11], v21"); a("ds_read_b128 v[12:15], v21 offset:16")
    a("s_waitcnt lgkmcnt(1)")
    a("v_max3_f32 v20, v8, v9, v10"); a("v_max_f32 v20, v20, v11")
    for w in range(4): a(f"v_sub_f32 v{8+w}, v{8+w}, v20")
    a("v_sub_f32 v16, v16, v20")
    for w in range(4): a(f"v_mul_f32 v{8+w}, s42, v{8+w}")
    a("v_mul_f32 v16, s42, v16")
    for w in range(4): a(f"v_exp_f32 v{8+w}, v{8+w}")
    a("v_exp_f32 v16, v16")
    a("s_waitcnt lgkmcnt(0)")
    a("v_mul_f32 v20, v8, v12"); a("v_fmac_f32 v20, v9, v13"); a("v_fmac_f32 v20, v10, v14"); a("v_fmac_f32 v20, v11, v15")
    a("v_rcp_f32 v20, v20"); nop(1)
    a("v_mul_f32 v16, v16, v20")
    for k in range(16): a(f"v_mul_f32 v{48+k}, v16, v{48+k}")
    for k in range(8): a(f"v_cvt_pk_bf16_f32 v{40+k}, v{48+2*k}, v{49+2*k}")
    a("ds_write_b128 v5, v[40:43]"); a("ds_write_b128 v5, v[44:47] offset:16")
    for k in range(8): a(f"v_mov_b32 v{8+k}, 0")
    a("s_waitcnt lgkmcnt(0)")
    if tprio: a(f"s_setprio {tprio}")
    L.append("; ======== V phase")
    lab("L_vloop")
    a("ds_read_b128 v[28:31], v17")
    a("v_add_u32 v17, 64, v17")
    lds_poll("L_pv", 38, 0, "s47", 39, csl1)
    for j in range(4 if not nolds else 0): a(f"ds_read_b128 v[{DR+4*j}:{DR+4*j+3}], v36 offset:{j*1024}")
    for j in range(8): forms(28 + j // 2, j & 1, 76 + 2 * j, 77 + 2 * j)
    for j in range(4):
        a(f"s_waitcnt lgkmcnt({3-j})")
        mac8(8, DR + 4 * j, 76 + 2 * j, 77 + 2 * j)
    half2("L_pv2")
    for j in range(4, 8):
        a(f"s_waitcnt lgkmcnt({7-j})")
        if j == 7: a("ds_write_b32 v37, v27 offset:16")
        mac8(8, DR + 4 * j, 76 + 2 * j, 77 + 2 * j)
    a("s_cmp_lt_u32 s47, 512")
    a("s_cbranch_scc1 L_vloop")
    nop(2)
    for k in range(4): a(f"v_permlane16_swap_b32 v{8+2*k}, v{9+2*k}")
    for k in range(4): a(f"v_add_f32 v{8+2*k}, v{8+2*k}, v{9+2*k}")
    nop(1)
    a("v_permlane32_swap_b32 v8, v10"); a("v_permlane32_swap_b32 v12, v14")
    a("v_add_f32 v8, v8, v10"); a("v_add_f32 v12, v12, v14")
    a(f"ds_write_b32 v6, v8 offset:{SP}"); a(f"ds_write_b32 v6, v12 offset:{SP+16}")
    a("s_waitcnt lgkmcnt(0)")
    a("s_barrier")
    if diag:
        a("s_cmp_lg_u32 s3, 0"); a("s_cbranch_scc1 L_done")
        a("s_load_dwordx2 s[26:27], s[0:1], 88")
        if not st0: put_stamp(1, 16, 8)
    a("s_endpgm")

    L.append("; ======== helpers")
    lab("L_helper")
    a("s_sub_u32 s3, s3, 5")
    if pf:
        a("s_cmp_lg_u32 s3, 2"); a("s_cbranch_scc1 L_nopf")
        a("s_getpc_b64 s[46:47]")
        lab("L_pc")
        a(f"s_sub_u32 s46, s46, L_pc-{KN}"); a("s_subb_u32 s47, s47, 0")
        a("s_lshr_b32 s45, s2, 3"); a("s_min_u32 s45, s45, (L_end-" + KN + ")/1024-1"); a("s_lshl_b32 s45, s45, 10")
        a("v_add_u32 v6, s45, v1")
        a(f"global_load_dwordx4 v[8:11], v6, s[46:47] {pfpol}")
        lab("L_nopf")
    a("s_load_dwordx2 s[12:13], s[0:1], 32")
    a("s_load_dwordx8 s[16:23], s[0:1], 48")
    a("s_load_dwordx4 s[24:27], s[0:1], 80")
    a(f"v_mov_b32 v38, {RING+CT}")
    a("s_barrier")
    a("s_waitcnt lgkmcnt(0)")
    a("s_lshl_b32 s38, s37, 16")
    a("s_add_u32 s48, s26, s38"); a("s_addc_u32 s49, s27, 0"); a("s_mov_b32 s50, 0x10000"); a("s_mov_b32 s51, 0x20000")
    a("s_cmp_ge_u32 s3, 4"); a("s_cbranch_scc1 L_notwo")

    a("v_lshlrev_b32 v34, 5, v4"); a("v_lshrrev_b32 v7, 1, v3"); a("v_lshl_add_u32 v34, v7, 4, v34")
    if cont: a("v_lshlrev_b32 v34, 4, v4"); a("v_lshl_add_u32 v34, v7, 8, v34")
    a("s_lshl_b32 s14, s3, 9"); a("s_lshl_b32 s46, s36, 11"); a("s_add_u32 s14, s14, s46")
    a("s_mov_b32 s32, s12"); a("s_mov_b32 s33, s13"); a("s_mov_b32 s34, 0x400000")
    a("s_lshl_b32 s46, s36, 17"); a("s_lshl_b32 s47, s3, 8"); a("s_add_u32 s46, s46, s47")
    a("v_lshlrev_b32 v5, 15, v3"); a("v_lshl_add_u32 v5, v4, 4, v5"); a("v_add_u32 v5, s46, v5")
    a("s_mov_b32 s40, 0"); a("s_mov_b32 s46, 0x05040100"); a("s_mov_b32 s47, 0x07060302")
    if mpf:
        a("s_cmp_eq_u32 s3, 1"); a("s_cselect_b32 s28, s18, s16"); a("s_cselect_b32 s29, s19, s17")
        a("s_cmp_eq_u32 s3, 2"); a("s_cselect_b32 s28, s20, s28"); a("s_cselect_b32 s29, s21, s29")
        a("s_cmp_eq_u32 s3, 3"); a("s_cselect_b32 s30, 0, 0x1c0000")
        if own < 2: a("s_mul_i32 s41, s2, 7168")
        else: a("s_mov_b32 s41, 0")
        a("s_lshl_b32 s45, s3, 12")
        if not own: a("s_lshl_b32 s44, s2, 14"); a("s_add_u32 s15, s44, s45")
        if own:
            a("s_lshl_b32 s44, s36, 17"); a("s_lshl_b32 s15, s37, 14"); a("s_add_u32 s15, s15, s44"); a("s_add_u32 s15, s15, s45")
            a("s_lshl_b32 s44, s36, 16"); a("s_lshl_b32 s45, s37, 13"); a("s_add_u32 s44, s44, s45")
            a("s_cmp_eq_u32 s3, 2"); a("s_cselect_b32 s41, s44, s41")
        if PF0: lds_poll("L_pf0", 38, 0, PF0, 39, 8)
        if own == 3:
            a("v_lshrrev_b32 v6, 2, v2"); a("v_mul_u32_u24 v6, 3584, v6"); a("v_and_b32 v7, 3, v2"); a("v_lshl_add_u32 v6, v7, 7, v6")
            a("v_lshlrev_b32 v7, 7, v2")
            a("s_and_b32 s44, s2, 7"); a("s_lshr_b32 s45, s2, 3"); a("s_mul_i32 s45, s45, 57344"); a("s_lshl_b32 s13, s44, 9"); a("s_add_u32 s45, s45, s13")
            a("s_cmp_eq_u32 s44, 7"); a("s_cselect_b32 s44, 0, s30")
            a("s_cmp_lt_u32 s3, 2"); a("s_cselect_b32 s30, s44, s30"); a("s_cselect_b32 s41, s45, s41")
            a("s_cselect_b64 vcc, -1, 0")
            a("s_mov_b32 exec_hi, 0")
            a(f"buffer_load_dword v41, v7, s[32:35], s15 offen {tpol}")
            a("s_mov_b64 exec, -1")
            a("v_cndmask_b32 v6, v7, v6, vcc")
            a(f"buffer_load_dword v40, v6, s[28:31], s41 offen {tpol}")
        elif own == 2:
            a("v_lshrrev_b32 v6, 5, v2"); a("v_mul_u32_u24 v6, 3584, v6"); a("v_and_b32 v7, 0x1f0, v1"); a("v_add_u32 v6, v6, v7")
            a("s_and_b32 s44, s2, 7"); a("s_lshr_b32 s45, s2, 3"); a("s_mul_i32 s45, s45, 57344"); a("s_lshl_b32 s13, s44, 9"); a("s_add_u32 s45, s45, s13")
            a("s_cmp_eq_u32 s44, 7"); a("s_cselect_b32 s44, 0, s30")
            a("s_cmp_lt_u32 s3, 2"); a("s_cselect_b32 s30, s44, s30"); a("s_cselect_b32 s41, s45, s41")
            a("s_cselect_b64 vcc, -1, 0"); a("s_mov_b32 s13, 1024"); a("s_cselect_b32 s13, 7168, s13")
            a("v_cndmask_b32 v6, v1, v6, vcc")
            for i in range(12):
                if i >= PFW: a(f"s_waitcnt vmcnt({PFW - 1})")
                r = WREG + 4 * i
                if i < 8:
                    a(f"buffer_load_dwordx4 v[{r}:{r+3}], v6, s[28:31], s41 offen {mpol}"); a("s_add_u32 s41, s41, s13")
                else:
                    a(f"buffer_load_dwordx4 v[{r}:{r+3}], v1, s[32:35], s15 offen offset:{(i - 8) * 1024} {mpol}")
        else:
            if own:
                a("s_mov_b32 s45, 0x200000"); a("s_cmp_eq_u32 s3, 2"); a("s_cselect_b32 s45, 7168, s45"); a("s_add_u32 s45, s45, s41")
                a(f"buffer_load_dwordx4 v[{WREG+44}:{WREG+47}], v1, s[28:31], s45 offen")
            for i in range(11):
                if i >= PFW: a(f"s_waitcnt vmcnt({PFW - 1})")
                r = WREG + 4 * i
                if i < 7:
                    a(f"buffer_load_dwordx4 v[{r}:{r+3}], v1, s[28:31], s41 offen offset:{(i % 4) * 1024}")
                    if i == 3: a("s_add_u32 s41, s41, 4096")
                else:
                    a(f"buffer_load_dwordx4 v[{r}:{r+3}], v1, s[32:35], s15 offen offset:{(i - 7) * 1024}")
    if wqbg:
        a("s_mov_b32 s28, s10"); a("s_mov_b32 s29, s11"); a("s_mov_b32 s30, 0x400000")
        a("s_lshl_b32 s44, s3, 20"); a("s_lshl_b32 s45, s36, 8"); a("s_add_u32 s44, s44, s45")
        a("v_lshlrev_b32 v6, 18, v3"); a("v_lshl_add_u32 v6, v4, 4, v6"); a("v_add_u32 v6, s44, v6")
        a("s_lshl_b32 s41, s37, 15")
        for i in range(32):
            a(f"s_waitcnt vmcnt({wqbg - 1})")
            a(f"buffer_load_dwordx4 v[{WREG+4*i}:{WREG+4*i+3}], v6, s[28:31], s41 offen")
            a("s_add_u32 s41, s41, 0x2000"); a("s_and_b32 s41, s41, 0x3ffff")
    a(f"s_mul_i32 s44, s3, {WOS}"); a(f"s_add_u32 s44, s44, {WO0}")
    lds_poll("L_wos", 38, 0, "s44", 39, 32)
    a(f"buffer_load_dwordx4 v[8:11], v34, s[48:51], s14 offen {snpol}")
    a("s_waitcnt vmcnt(0)")
    packbits(35, 8, 4, 20)
    a("v_xor_b32 v35, 15, v35")
    def issue_o(i):
        r = WREG + i * 4
        a(f"buffer_load_dwordx4 v[{r}:{r+3}], v5, s[32:35], s40 offen offset:{(i%4)*1024} {wpol}")
        if i % 4 == 3: a(f"s_add_u32 s40, s40, {0 if hitx else 4096}")
    for i in range(WOWIN if not nowo else 0): issue_o(i)
    for i in range(32 if not nowo else 0):
        a(f"s_waitcnt vmcnt({min(WOWIN - 1, 31 - i)})")
        if i + WOWIN < 32: issue_o(i + WOWIN)
        if i & 1:
            A = WREG + 8 * (i // 2); B = A + 4
            for d in range(4):
                a(f"v_perm_b32 v12, v{B+d}, v{A+d}, s46")
                a(f"v_perm_b32 v{B+d}, v{B+d}, v{A+d}, s47")
                a(f"v_mov_b32 v{A+d}, v12")
    a("v_lshrrev_b32 v7, 1, v1"); a(f"v_add_u32 v7, {RING}, v7")
    a("s_lshl_b32 s45, s3, 8"); a(f"s_add_u32 s45, s45, {RING+OB}")
    a("v_lshrrev_b32 v4, 2, v1"); a("v_add_u32 v4, s45, v4")
    a("v_lshlrev_b32 v3, 6, v3"); a("v_add_u32 v3, s45, v3")
    for k in range(4): a(f"v_bfe_u32 v{k if k < 3 else 5}, v35, {k}, 1".replace("v0,", "v0,"))
    TB = [0, 1, 2, 5]
    for k in range(8): a(f"v_mov_b32 v{8+k}, 0")
    stamp(5)
    if tprio: a(f"s_setprio {tprio}")
    a("s_barrier")
    for w in range(4): a(f"ds_read_b64 v[{16+2*w}:{17+2*w}], v7 offset:{SP+w*512}")
    a("s_waitcnt lgkmcnt(2)")
    a("v_add_f32 v16, v16, v18"); a("v_add_f32 v17, v17, v19")
    a("s_waitcnt lgkmcnt(0)")
    a("v_add_f32 v20, v20, v22"); a("v_add_f32 v21, v21, v23")
    a("v_add_f32 v16, v16, v20"); a("v_add_f32 v17, v17, v21")
    a("v_cvt_pk_bf16_f32 v25, v16, v17")
    if bc:
        nop(2)
        for k in range(16):
            A = WREG + 8 * k; B = A + 4
            for d in range(4):
                a(f"v_dot2c_f32_bf16_dpp v{8+2*d}, v25, v{A+d} row_newbcast:{k} row_mask:0xf bank_mask:0xf")
                a(f"v_dot2c_f32_bf16_dpp v{9+2*d}, v25, v{B+d} row_newbcast:{k} row_mask:0xf bank_mask:0xf")
    else:
        a("ds_write_b32 v4, v25")
        a("s_waitcnt lgkmcnt(0)")
        for k in range(4): a(f"ds_read_b128 v[{16+4*k}:{19+4*k}], v3 offset:{16*k}")
        for k in range(16):
            if k % 4 == 0: a(f"s_waitcnt lgkmcnt({3-k//4})")
            A = WREG + 8 * k; B = A + 4
            for d in range(4):
                a(f"v_dot2c_f32_bf16 v{8+2*d}, v{A+d}, v{16+k}")
                a(f"v_dot2c_f32_bf16 v{9+2*d}, v{B+d}, v{16+k}")
    nop(3)
    for k in range(4): a(f"v_permlane32_swap_b32 v{8+k}, v{12+k}")
    for k in range(4): a(f"v_add_f32 v{8+k}, v{8+k}, v{12+k}")
    for k in range(4): a(f"v_mov_b32 v{12+k}, v{8+k}")
    for k in range(4): a(f"v_permlane16_swap_b32 v{8+k}, v{12+k}")
    for k in range(4): a(f"v_add_f32 v{8+k}, v{8+k}, v{12+k}")
    for k in range(4): a(f"v_and_or_b32 v{20+k}, v{8+k}, -2, v{TB[k]}")
    a("s_mov_b32 exec_lo, 0xffff"); a("s_mov_b32 exec_hi, 0xffff")
    a(f"buffer_store_dwordx4 v[20:23], v34, s[48:51], s14 offen {spol}")
    if diag:
        a("s_mov_b64 exec, -1")
        a("s_cmp_lg_u32 s3, 3"); a("s_cbranch_scc1 L_done")
        stamp(6); put_stamp(6, 48, 24)
        if not st0: put_stamp(5, 40, 24)
    a("s_endpgm")

    lab("L_notwo")
    if ctl:
        a("s_cmp_eq_u32 s3, 5"); a("s_cbranch_scc1 L_ctl")
    a(f"s_add_u32 s52, s48, {YOFF}"); a("s_addc_u32 s53, s49, 0"); a(f"s_mov_b32 s54, {28*2048}"); a("s_mov_b32 s55, 0x20000")
    a("s_add_u32 s28, s4, s39"); a("s_addc_u32 s29, s5, 0")
    a("s_add_u32 s56, s22, s39"); a("s_addc_u32 s57, s23, 0"); a("s_mov_b32 s58, 1024"); a("s_mov_b32 s59, 0x20000")
    a("v_lshrrev_b32 v32, 2, v2"); a("v_lshlrev_b32 v32, 11, v32"); a("v_and_b32 v33, 48, v1"); a("v_add_u32 v32, v32, v33")
    a("v_add_u32 v33, 0x8000, v32")
    a("v_lshlrev_b32 v34, 1, v1")
    a("s_lshl_b32 s14, s36, 11"); a("s_lshl_b32 s15, s36, 6")
    a("v_lshrrev_b32 v31, 1, v1"); a("v_and_b32 v31, 24, v31"); a("s_lshl_b32 s46, s36, 5"); a("v_add_u32 v31, s46, v31")
    def snap_gather():
        if nosnap:
            a("s_lshl_b32 s46, s37, 5"); a("v_mov_b32 v30, s46"); a("v_mov_b32 v29, 1")
            a("s_mov_b64 exec, 1"); a("global_atomic_add v30, v29, s[24:25] sc1"); a("s_mov_b64 exec, -1")
            return
        a(f"buffer_load_dwordx4 v[8:11], v32, s[48:51], s15 offen {snpol}")
        a(f"buffer_load_dwordx4 v[12:15], v33, s[48:51], s15 offen {snpol}")
        a(f"buffer_load_dwordx4 v[16:19], v32, s[52:55], s15 offen {snpol}")
        a(f"buffer_load_dwordx4 v[20:23], v33, s[52:55], s15 offen {snpol}")
        a("s_lshl_b32 s46, s37, 5"); a("v_mov_b32 v30, s46"); a("v_mov_b32 v29, 1")
        a("v_cmp_le_u32 vcc, 48, v2")
        a("s_waitcnt vmcnt(0)")
        a("s_mov_b64 exec, 1")
        a("global_atomic_add v30, v29, s[24:25] sc1")
        a("s_mov_b64 exec, -1")
        packbits(36, 8, 8, 24)
        packbits(37, 16, 8, 24)
        a("v_mov_b32 v24, 0xf0"); a("v_cndmask_b32 v24, 0, v24, vcc"); a("v_or_b32 v37, v37, v24")
    def snap_own():
        a(f"buffer_load_dwordx4 v[8:11], v34, s[52:55], s14 offen {snpol}")
        a(f"buffer_load_dwordx4 v[12:15], v34, s[52:55], s14 offen offset:16 {snpol}")
        a(f"buffer_load_dwordx2 v[26:27], v31, s[28:31], 0 offen {xpol}")
        if sno:
            a(f"buffer_load_dwordx4 v[16:19], v1, s[48:51], s14 offen {snpol}")
            a(f"buffer_load_dwordx4 v[20:23], v1, s[48:51], s14 offen offset:1024 {snpol}")
        a("s_waitcnt vmcnt(0)")
        packbits(35, 8, 8, 24)
        a("v_xor_b32 v35, 0xff, v35")
    if sno:
        snap_own()
        lds_poll("L_hq", 38, 4, 4, 39, 8)
        if SNAP: lds_poll("L_sw", 38, 0, SNAP, 39, 8)
        snap_gather()
    else:
        if SNAP: lds_poll("L_sw", 38, 0, SNAP, 39, 8)
        snap_gather()
        lds_poll("L_hq", 38, 4, 4, 39, 8)
        snap_own()
    a("s_cmp_ge_u32 s36, 28"); a("s_cbranch_scc1 L_noffn")
    if FF0: lds_poll("L_ff0", 38, 0, FF0, 39, 16)
    FA = 40; FREG = 56
    if not noffn:
        a("s_mov_b32 s28, s16"); a("s_mov_b32 s29, s17"); a("s_mov_b32 s30, 0x1c0000")
        a("s_mov_b32 s32, s18"); a("s_mov_b32 s33, s19"); a("s_mov_b32 s34, 0x1c0000")
        a("v_lshrrev_b32 v6, 3, v2"); a("v_and_b32 v7, 7, v2")
        a("s_mov_b32 s46, 229376"); a("v_mul_lo_u32 v8, v6, s46")
        a("v_lshl_add_u32 v8, v7, 4, v8"); a("s_lshl_b32 s46, s36, 7"); a("v_add_u32 v8, s46, v8")
        if wide:
            a("s_mov_b32 s46, 229376"); a("v_mul_lo_u32 v8, v3, s46"); a("v_lshl_add_u32 v8, v4, 4, v8")
            a("s_lshr_b32 s46, s36, 1"); a("s_lshl_b32 s46, s46, 8"); a("v_add_u32 v8, s46, v8")
            a("s_and_b32 s46, s36, 1"); a("s_mul_i32 s46, s46, 917504"); a("v_add_u32 v8, s46, v8")
        a("v_lshlrev_b32 v9, 7, v6"); a(f"v_add_u32 v9, {RING+XN}, v9")
        a("s_mov_b32 s40, 0")
        def issue_f(n):
            r = FREG + (n % 4) * 4; srd = 28 if n % 2 == 0 else 32
            so = "s40" if n < 4 else "s41"
            a(f"buffer_load_dwordx4 v[{r}:{r+3}], v8, s[{srd}:{srd+3}], {so} offen offset:{3584*((n%4)//2)} {wpol}")
        for n in range(FW): issue_f(n)
        a(f"s_mov_b32 s41, {0 if hitx else 7168}")
        a("ds_read_b32 v10, v9")
        for k in range(16): a(f"v_mov_b32 v{FA+k}, 0")
        a("s_mov_b32 s44, 31")
        def fbody(last):
            a("s_waitcnt lgkmcnt(0)")
            forms(10, 0, 12, 13); forms(10, 1, 14, 15)
            if not last:
                a("v_add_u32 v9, 4, v9"); a("ds_read_b32 v10, v9")
            for n in range(4):
                a(f"s_waitcnt vmcnt({FW-1 if not last else min(FW-1, 3-n)})")
                mac8(FA + 8 * (n % 2), FREG + n * 4, 12 + 2 * (n // 2), 13 + 2 * (n // 2))
                if not last or n + FW < 4: issue_f(n + FW)
            if not last:
                a("s_mov_b32 s40, s41"); a(f"s_add_u32 s41, s41, {0 if hitx else 7168}")
        lab("L_floop")
        fbody(False)
        a("s_sub_u32 s44, s44, 1"); a("s_cmp_lg_u32 s44, 0"); a("s_cbranch_scc1 L_floop")
        fbody(True)
        a("s_mov_b32 s28, s20"); a("s_mov_b32 s29, s21")
        a("s_lshl_b32 s40, s36, 16")
        a(f"s_add_u32 s41, s40, {0 if hitx else 4096}")
        def issue_d(n):
            r = FREG + (n % 4) * 4
            so = "s40" if n < 4 else "s41"
            a(f"buffer_load_dwordx4 v[{r}:{r+3}], v1, s[28:31], {so} offen offset:{(n%4)*1024} {wpol}")
        for n in range(FW): issue_d(n)
        a("v_and_b32 v14, 8, v2"); a("v_cmp_ne_u32 vcc, 0, v14")
        for acc in (FA, FA + 8):
            for k in range(4): a(f"v_permlane32_swap_b32 v{acc+k}, v{acc+4+k}")
            for k in range(4): a(f"v_add_f32 v{acc+k}, v{acc+k}, v{acc+4+k}")
            nop(1)
            a(f"v_permlane16_swap_b32 v{acc}, v{acc+2}"); a(f"v_permlane16_swap_b32 v{acc+1}, v{acc+3}")
            a(f"v_add_f32 v{acc}, v{acc}, v{acc+2}"); a(f"v_add_f32 v{acc+1}, v{acc+1}, v{acc+3}")
            nop(2)
            a(f"v_add_f32_dpp v{acc}, v{acc}, v{acc} row_ror:8 row_mask:0xf bank_mask:0xf")
            a(f"v_add_f32_dpp v{acc+1}, v{acc+1}, v{acc+1} row_ror:8 row_mask:0xf bank_mask:0xf")
            a(f"v_cndmask_b32 v{acc}, v{acc}, v{acc+1}, vcc")
        a(f"v_cvt_pk_bf16_f32 v14, v{FA}, v{FA+8}")
        a("v_lshlrev_b32 v15, 16, v14"); a("v_and_b32 v16, s43, v14")
        a("v_mul_f32 v17, v15, v15"); a("v_mul_f32 v17, v17, v15")
        a("v_mov_b32 v18, 0x3d372713"); a("v_fma_f32 v17, v17, v18, v15")
        a("v_mul_f32 v17, 0xc0135761, v17")
        a("v_exp_f32 v17, v17"); nop(1)
        a("v_add_f32 v17, 1.0, v17"); a("v_rcp_f32 v17, v17"); nop(1)
        a("v_mul_f32 v17, v15, v17")
        a("v_cvt_pk_bf16_f32 v17, v17, v17"); a("v_and_b32 v17, s43, v17")
        a("v_mul_f32 v17, v17, v16")
        a("v_cvt_pk_bf16_f32 v17, v17, v17")
        a("v_lshlrev_b32 v14, 4, v7")
        a("v_lshrrev_b32 v15, 5, v2"); a("v_lshl_add_u32 v14, v15, 3, v14")
        a("v_bfe_u32 v15, v2, 4, 1"); a("v_lshl_add_u32 v14, v15, 2, v14")
        a("v_bfe_u32 v15, v2, 3, 1"); a("v_lshl_add_u32 v14, v15, 1, v14")
        a(f"v_mov_b32 v9, {RING+HB}"); a("v_add_u32 v14, v9, v14")
        a("ds_write_b16 v14, v17")
        a("s_waitcnt lgkmcnt(0)")
        a("ds_read_b64 v[10:11], v9")
        for k in range(8): a(f"v_mov_b32 v{FA+k}, 0")
        a("s_mov_b32 s44, 15")
        def dbody(last):
            a("s_waitcnt lgkmcnt(0)")
            forms(10, 0, 12, 13); forms(10, 1, 14, 15); forms(11, 0, 16, 17); forms(11, 1, 18, 19)
            if not last:
                a("v_add_u32 v9, 8, v9"); a("ds_read_b64 v[10:11], v9")
            for n in range(4):
                a(f"s_waitcnt vmcnt({FW-1 if not last else min(FW-1, 3-n)})")
                mac8(FA, FREG + n * 4, 12 + 2 * n, 13 + 2 * n)
                if not last or n + FW < 4: issue_d(n + FW)
            if not last:
                a("s_mov_b32 s40, s41"); a(f"s_add_u32 s41, s41, {0 if hitx else 4096}")
        lab("L_dloop")
        dbody(False)
        a("s_sub_u32 s44, s44, 1"); a("s_cmp_lg_u32 s44, 0"); a("s_cbranch_scc1 L_dloop")
        dbody(True)
    for k in range(8): a(f"v_bfe_u32 v{8+k}, v35, {k}, 1")
    for k in range(8): a(f"v_and_or_b32 v{FA+k}, v{FA+k}, -2, v{8+k}")
    lab("L_noffn")
    if diag:
        stamp(4); put_stamp(4, 56, 12)
    lds_poll("L_mid", 38, 0, MID, 39, 32)
    if srdy:
        a("s_lshl_b32 s46, s37, 5"); a("s_load_dword s46, s[24:25], s46 glc"); a("s_waitcnt lgkmcnt(0)")
        a("s_cmp_ge_u32 s46, 32"); a("s_cbranch_scc1 L_rdy_ok")
    a("s_mov_b32 s47, 0x20000")
    a("s_mov_b64 exec, 1")
    lab("L_rdy")
    a(f"global_load_dword v13, v30, s[24:25] sc1")
    a("s_waitcnt vmcnt(0)")
    a("v_readfirstlane_b32 s46, v13")
    a("s_sub_u32 s47, s47, 1"); a("s_cmp_eq_u32 s47, 0"); a("s_cbranch_scc1 L_rdy_ok")
    a("s_cmp_ge_u32 s46, 32"); a("s_cbranch_scc1 L_rdy_ok")
    a("s_sleep 16"); a("s_branch L_rdy")
    lab("L_rdy_ok")
    a("s_mov_b64 exec, -1")
    a("v_lshlrev_b32 v24, 16, v26"); a("v_and_b32 v25, s43, v26"); a("v_lshlrev_b32 v26, 16, v27"); a("v_and_b32 v27, s43, v27")
    a("v_cmp_gt_u32 vcc, 32, v2"); a("v_and_b32 v12, 16, v2"); a("v_cmp_eq_u32 s[12:13], 0, v12")
    nop(1)
    a("v_cndmask_b32 v24, v26, v24, vcc"); a("v_cndmask_b32 v25, v27, v25, vcc")
    a("v_cndmask_b32 v24, v25, v24, s[12:13]")
    a("v_lshrrev_b32 v12, 5, v2"); a("v_lshl_add_u32 v31, v12, 2, v31"); a("v_bfe_u32 v12, v2, 4, 1"); a("v_lshl_add_u32 v31, v12, 1, v31")
    for k in range(8): a(f"v_bfe_u32 v{48+k}, v36, {k}, 1")
    for k in range(8): a(f"v_bfe_u32 v{56+k}, v37, {k}, 1")
    a("s_mov_b32 s47, 0x40000")
    lds_poll("L_yp", 38, 0, YP, 39, 2)
    if not noy & 1:
        a(f"buffer_store_dwordx4 v[{FA}:{FA+3}], v34, s[52:55], s14 offen {spol}")
        a(f"buffer_store_dwordx4 v[{FA+4}:{FA+7}], v34, s[52:55], s14 offen offset:16 {spol}")
    if YW: lds_poll("L_yw", 38, 0, 512, 39, 1)
    else: a("s_barrier")
    def pissue(b, srd):
        a(f"buffer_load_dwordx4 v[{b}:{b+3}], v32, s[{srd}:{srd+3}], s15 offen {gpol}")
        a(f"buffer_load_dwordx4 v[{b+4}:{b+7}], v33, s[{srd}:{srd+3}], s15 offen {gpol}")
    def pcheck(b, sn):
        a(f"v_xor_b32 v16, v{b}, v{sn}")
        for k in range(1, 8): a(f"v_bitop3_b32 v16, v16, v{b+k}, v{sn+k} bitop3:0x60")
        a("v_and_b32 v16, 1, v16")
        a("v_cmp_eq_u32 vcc, 0, v16")
    def reduce16(b):
        for k in range(8): a(f"v_and_b32 v{8+k}, -2, v{b+k}")
        for k in range(4): a(f"v_add_f32 v{8+k}, v{8+k}, v{12+k}")
        nop(1)
        a("v_permlane32_swap_b32 v8, v10"); a("v_permlane32_swap_b32 v9, v11")
        a("v_add_f32 v8, v8, v10"); a("v_add_f32 v9, v9, v11")
        nop(2)
        a("v_permlane16_swap_b32 v8, v9")
        a("v_add_f32 v8, v8, v9")
        nop(2)
        a("v_add_f32_dpp v8, v8, v8 row_ror:4 row_mask:0xf bank_mask:0xf")
        nop(2)
        a("v_add_f32_dpp v8, v8, v8 row_ror:8 row_mask:0xf bank_mask:0xf")
        a("v_cvt_pk_bf16_f32 v8, 0, v8")
    if YW:
        pissue(64, 52)
        a("s_barrier")
        a("s_branch L_gy1")
    if noy: a("s_branch L_gy_ok")
    lab("L_gy")
    pissue(64, 52)
    lab("L_gy1")
    a("s_waitcnt vmcnt(0)")
    pcheck(64, 56)
    a("s_sub_u32 s47, s47, 1"); a("s_cmp_eq_u32 s47, 0"); a("s_cbranch_scc1 L_gy_ok")
    a("s_and_b64 exec, exec, vcc")
    a("s_cbranch_scc1 L_gy")
    lab("L_gy_ok")
    a("s_mov_b64 exec, -1")
    if SE: pissue(72, 48)
    reduce16(64)
    a("v_mul_f32 v9, 0xbfb8aa3b, v8"); a("v_exp_f32 v9, v9"); nop(1)
    a("v_add_f32 v9, 1.0, v9"); a("v_rcp_f32 v9, v9"); nop(1)
    a("v_mul_f32 v8, v8, v9")
    a("v_cvt_pk_bf16_f32 v20, 0, v8")
    stamp(3)
    a("s_mov_b32 s47, 0x40000")
    if SE: a("s_branch L_gs1")
    lab("L_gs")
    pissue(72, 48)
    lab("L_gs1")
    a("s_waitcnt vmcnt(0)")
    pcheck(72, 48)
    a("s_sub_u32 s47, s47, 1"); a("s_cmp_eq_u32 s47, 0"); a("s_cbranch_scc1 L_gs_ok")
    a("s_and_b64 exec, exec, vcc")
    a("s_cbranch_scc1 L_gs")
    lab("L_gs_ok")
    a("s_mov_b64 exec, -1")
    reduce16(72)
    a("v_mul_f32 v8, v8, v20")
    a("v_cvt_pk_bf16_f32 v8, 0, v8")
    a("v_add_f32 v8, v8, v24")
    a("v_cvt_pk_bf16_f32 v8, v8, v8")
    a("s_mov_b32 exec_lo, 0x000f000f"); a("s_mov_b32 exec_hi, 0x000f000f")
    a("buffer_store_short v8, v31, s[56:59], 0 offen")
    if probe:
        a("s_waitcnt lgkmcnt(0)")
        a(f"s_add_u32 s60, s60, {probe * 100}")
        lab("L_probe"); a("s_memrealtime s[62:63]"); a("s_waitcnt lgkmcnt(0)"); a("s_sub_u32 s46, s62, s60"); a("s_cmp_lt_i32 s46, 0"); a("s_cbranch_scc1 L_probe")
    if diag:
        stamp(7)
        a("s_mov_b64 exec, -1")
        put_stamp(7, 8, 20)
        if not st0: put_stamp(3, 32, 20)
    lab("L_done")
    a("s_endpgm")
    if ctl:
        NCK = 62 // CKI
        lab("L_ctl")
        if vt:
            a("s_lshl_b32 s46, s37, 5"); a("s_add_u32 s46, s46, s36"); a("s_lshl_b32 s46, s46, 20")
            a("s_add_u32 s28, s8, s46"); a("s_addc_u32 s29, s9, 0"); a("s_mov_b32 s30, 0x100000")
            a("v_lshlrev_b32 v6, 16, v2")
            lds_poll("L_vt", 38, 0, vt, 39, 16)
            a("buffer_load_dword v9, v6, s[28:31], 0 offen nt")
        a("s_and_b32 s12, s2, 7"); a("s_lshr_b32 s13, s2, 3")
        a("s_lshl_b32 s46, s12, 12"); a(f"s_add_u32 s46, s46, {TOFF}")
        a("s_add_u32 s28, s26, s46"); a("s_addc_u32 s29, s27, 0"); a("s_mov_b32 s30, 4096")
        a(f"s_add_u32 s32, s26, {TOFF + 0x8000}"); a("s_addc_u32 s33, s27, 0"); a("s_mov_b32 s34, 4096")
        a("s_lshl_b32 s46, s13, 2"); a("v_mov_b32 v7, s46")
        a("s_lshl_b32 s46, s12, 2"); a("v_mov_b32 v6, s46")
        a(f"s_mov_b32 s44, {CKI * 8}")
        a("s_mov_b32 s40, 0")
        a("s_mov_b32 s50, 0"); a("s_mov_b32 s51, 0"); a("s_mov_b32 s56, 0"); a("v_mov_b32 v20, 0")
        if pk >= 0: a("s_mov_b32 s62, 0")
        a("s_mov_b64 exec, 1")
        lab("L_cl")
        lds_poll("L_cp", 38, 0, "s44", 39, 2)
        a("s_memrealtime s[48:49]")
        a("s_waitcnt lgkmcnt(0)")
        a("v_mov_b32 v8, s48")
        if not cab & 1: a("buffer_store_dword v8, v7, s[28:31], s40 offen")
        a("s_cmp_eq_u32 s40, 0"); a("s_cbranch_scc1 L_cnext")
        a("s_sub_u32 s41, s40, 128")
        if not cab & 2:
            a("s_load_dwordx16 s[64:79], s[28:29], s41")
            a("s_add_u32 s46, s41, 64")
            a("s_load_dwordx16 s[80:95], s[28:29], s46")
        a("s_cmp_eq_u32 s41, 0"); a("s_cbranch_scc1 L_cn2")
        a("s_sub_u32 s46, s41, 128")
        if not cab & 4: a("s_load_dwordx8 s[4:11], s[32:33], s46")
        lab("L_cn2")
        a("s_mov_b32 s52, 0"); a("s_mov_b32 s53, 0"); a("s_sub_u32 s54, s50, 2000")
        a("s_waitcnt lgkmcnt(0)")
        for t in range(32):
            a(f"s_sub_u32 s55, s{64+t}, s54"); a("s_cmp_lt_u32 s55, 4000")
            a("s_cselect_b32 s55, s55, 2000"); a("s_addc_u32 s53, s53, 0"); a("s_add_u32 s52, s52, s55")
        a("s_sub_u32 s52, s52, 64000")
        if miss:
            a("s_sub_u32 s55, s48, s50"); a("s_sub_u32 s58, 32, s53"); a("s_mul_i32 s55, s55, s58")
            a("s_cmp_ge_u32 s53, 12"); a("s_cselect_b32 s55, s55, 0"); a("s_cselect_b32 s53, 32, s53"); a("s_add_u32 s52, s52, s55")
        a("s_max_u32 s53, s53, 1")
        a("v_cvt_f32_i32 v11, s52"); a("v_cvt_f32_u32 v12, s53")
        a("v_rcp_f32 v12, v12")
        a("s_mov_b32 s52, 0"); a("s_mov_b32 s53, 0"); a("s_sub_u32 s54, s56, 2000")
        for t in range(8):
            a(f"s_sub_u32 s55, s{4+t}, s54"); a("s_cmp_lt_u32 s55, 4000")
            a("s_cselect_b32 s55, s55, 2000"); a("s_addc_u32 s53, s53, 0"); a("s_add_u32 s52, s52, s55")
        a("s_sub_u32 s52, s52, 16000"); a("s_max_u32 s53, s53, 1")
        a("v_mul_f32 v11, v11, v12")
        a("v_cvt_f32_i32 v13, s52"); a("v_cvt_f32_u32 v14, s53"); a("v_rcp_f32 v14, v14")
        a("v_cvt_i32_f32 v12, v11"); a("v_add_u32 v12, s50, v12")
        a("v_mul_f32 v13, v13, v14")
        a("v_readfirstlane_b32 s57, v12")
        if rl:
            a("s_lshr_b32 s46, s40, 7"); a("s_cmp_lg_u32 s13, s46")
        else:
            a("s_cmp_lg_u32 s13, 0")
        a("s_cbranch_scc1 L_cnl")
        if not cab & 8: a("buffer_store_dword v12, v6, s[32:35], s41 offen sc1")
        lab("L_cnl")
        a("s_sub_u32 s46, s48, s50"); a("s_sub_u32 s47, s57, s56"); a("s_cmp_eq_u32 s41, 0"); a("s_cselect_b32 s46, s46, s47")
        a("v_cvt_f32_i32 v14, s46"); a("v_rcp_f32 v14, v14")
        a("s_mov_b32 s56, s57")
        if GB:
            a(f"s_mov_b32 s58, {f2u(-G / 100.0)}"); a(f"s_mov_b32 s59, {f2u(-G2 / 100.0)}")
            a(f"s_cmp_gt_u32 s44, {TH2 * 8}"); a(f"s_cselect_b32 s58, {f2u(-GB / 100.0)}, s58"); a(f"s_cselect_b32 s59, {f2u(-GB2 / 100.0)}, s59")
            a("v_mul_f32 v11, s58, v11"); a("v_mul_f32 v13, s59, v13"); a("v_add_f32 v11, v11, v13")
        else:
            a(f"v_mul_f32 v11, {f2u(-G / 100.0)}, v11"); a(f"v_mul_f32 v13, {f2u(-G2 / 100.0)}, v13"); a("v_add_f32 v11, v11, v13")
        if LT: a(f"v_mul_f32 v15, {f2u(32.0 * CKI * LT * 16.0)}, v14")
        else: a(f"v_mov_b32 v15, {f2u(float(D16 or D * 16))}")
        a("v_mul_f32 v11, v11, v14")
        if AS != 100:
            a(f"v_mul_f32 v13, {f2u(AS / 100.0)}, v11"); a("v_max_f32 v11, v11, v13" if AS > 100 else "v_min_f32 v11, v11, v13")
        if KI:
            a(f"v_mul_f32 v13, {f2u(KI / 100.0)}, v11"); a("v_add_f32 v20, v20, v13")
            a("v_add_f32 v11, v11, v20")
        a("v_fma_f32 v15, v15, v11, v15")
        a(f"v_max_f32 v15, {f2u(DMIN * 16.0)}, v15"); a(f"v_min_f32 v15, {f2u(DMAX * 16.0)}, v15")
        a("v_cvt_u32_f32 v15, v15")
        a("ds_write_b32 v38, v15 offset:12")
        lab("L_cnext")
        if pk >= 0:
            a(f"s_cmp_eq_u32 s40, {pk * 128}"); a("s_cselect_b32 s62, s48, s62")
        a("s_mov_b32 s50, s48")
        if TH2:
            a(f"s_cmp_ge_u32 s44, {TH2 * 8}"); a(f"s_cselect_b32 s46, {CK2 * 8}, {CKI * 8}"); a("s_add_u32 s44, s44, s46")
        else:
            a(f"s_add_u32 s44, s44, {CKI * 8}")
        a("s_add_u32 s40, s40, 128")
        a(f"s_cmp_le_u32 s44, {LAST * 8}")
        a("s_cbranch_scc1 L_cl")
        if pk >= 0:
            a("s_cmp_lg_u32 s2, 77"); a("s_cbranch_scc1 L_done")
            a("s_sub_u32 s62, s62, s60"); a(f"s_sub_u32 s62, s62, {px0 * 100}"); a("s_mul_i32 s62, s62, 10")
            a("s_add_u32 s62, s62, s60"); a("s_add_u32 s62, s62, 10000")
            lab("L_pk_"); a("s_memrealtime s[48:49]"); a("s_waitcnt lgkmcnt(0)"); a("s_sub_u32 s46, s48, s62"); a("s_cmp_lt_i32 s46, 0"); a("s_cbranch_scc1 L_pk_")
        a("s_endpgm")
    for _ in range(pad * 256): a("s_endpgm")
    L.append(".p2align 10")
    lab("L_end")
    L.append('.section .rodata,"a"'); L.append(".p2align 6"); L.append(f".amdhsa_kernel {KN}")
    a(".amdhsa_next_free_vgpr 168"); a(".amdhsa_next_free_sgpr 96"); a(".amdhsa_accum_offset 168")
    a(".amdhsa_group_segment_fixed_size 0"); a(".amdhsa_kernarg_size 96"); a(".amdhsa_user_sgpr_count 2")
    a(".amdhsa_user_sgpr_kernarg_segment_ptr 1"); a(".amdhsa_system_sgpr_workgroup_id_x 1")
    a(".amdhsa_float_denorm_mode_32 3")
    L.append(".end_amdhsa_kernel")
    return "\n".join(L) + "\n"

if __name__ == "__main__":
    for spec in sys.argv[1:]:
        out, _, kvs = spec.partition(":")
        kw = {}
        if kvs:
            for kv in kvs.split(","):
                k, v = kv.split("=")
                kw[k] = int(v) if v.lstrip("-").isdigit() else v.replace("+", " ")
        open(out, "w").write(gen(**kw))
```
